```python
import torch

def _softmax(x, axis=-1):
    return torch.softmax(x, dim=axis)
def _gelu(x):
    return torch.nn.functional.gelu(x, approximate="tanh")
def _silu(x):
    return torch.nn.functional.silu(x)
def _sigmoid(x):
    return torch.sigmoid(x)
def _layernorm(x, axis=-1, eps=1e-5):
    m = x.mean(dim=axis, keepdim=True)
    v = x.var(dim=axis, keepdim=True, unbiased=False)
    return (x - m) / torch.sqrt(v + eps)
def _scatter_add(tgt, idx, src, axis=0):
    return tgt.clone().index_add_(axis, idx, src)
def _segment_sum(src, seg, n):
    out = torch.zeros((n,) + src.shape[1:], dtype=src.dtype)
    return out.index_add_(0, seg, src)
def _pad(x, pw):
    flat = tuple(v for pair in reversed(pw) for v in pair)
    return torch.nn.functional.pad(x, flat)

kernel_name = 'gated_mix__sliding_local_dilated__dense_activation_relu__prompt'

def setup_inputs():

    _w = (lambda a: (lambda t: t.to(torch.bfloat16) if t.is_floating_point() else t)(torch.as_tensor(a)))
    def _A_setup():
        B, S, D = 1, 2048, 640
        return {
            "x": _w((lambda *s: torch.randn(*s, dtype=torch.bfloat16) * 0.05)(B, S, D)),
            "wqkv": _w((lambda *s: torch.randn(*s, dtype=torch.bfloat16) * 0.8)(D, 3 * D)),
            "wo": _w((lambda *s: torch.randn(*s, dtype=torch.bfloat16) * 0.05)(D, D)),
        }
    _A_in = _A_setup()

    def _B_setup():
        B, S, D, Dff = 1, 2048, 640, 1536
        return {
            "x": _w((lambda *s: torch.randn(*s, dtype=torch.bfloat16) * 0.05)(B, S, D)),
            "w1": _w((lambda *s: torch.randn(*s, dtype=torch.bfloat16) * 0.2)(D, Dff)),
            "w2": _w((lambda *s: torch.randn(*s, dtype=torch.bfloat16) * 0.2)(Dff, D)),
        }
    _B_in = _B_setup()

    return {
        "A_x": _A_in["x"],
        "A_wqkv": _A_in["wqkv"],
        "A_wo": _A_in["wo"],
        "B_x": _B_in["x"],
        "B_w1": _B_in["w1"],
        "B_w2": _B_in["w2"],
        "gate_w": _w((lambda *s: torch.randn(*s, dtype=torch.bfloat16) * 0.05)(640) * 16.0),
    }

def reference(A_x, A_wqkv, A_wo, B_x, B_w1, B_w2, gate_w):
    def _A_ref(x, wqkv, wo):
        B, S, D = x.shape
        H = 32; Dh = D // H
        W, dil = 8, 2
        qkv = (lambda x, *d: x.permute(*d))((x @ wqkv).reshape(B, S, 3, H, Dh), 2, 0, 3, 1, 4)
        q, k, v = qkv[0], qkv[1], qkv[2]
        scale = Dh ** -0.5
        pos = torch.arange(S)
        off = torch.arange(W) * dil
        idx = pos[:, None] - off[None, :]
        mask = idx >= 0
        idx_c = torch.where(mask, idx, 0).reshape(-1)
        kg = k[:, :, idx_c, :].reshape(B, H, S, W, Dh)
        vg = v[:, :, idx_c, :].reshape(B, H, S, W, Dh)
        logits = torch.einsum("bhsd,bhswd->bhsw", q, kg) * scale
        logits = torch.where(mask[None, None, :, :], logits, -1e9)
        attn = _softmax(logits, axis=-1)
        o = torch.einsum("bhsw,bhswd->bhsd", attn, vg)
        return (lambda x, *d: x.permute(*d))(o, 0, 2, 1, 3).reshape(B, S, D) @ wo

    def _B_ref(x, w1, w2):
        h = torch.einsum("bsd,df->bsf", x, w1)
        zero = torch.zeros_like(h)
        h = torch.maximum(h, zero)
        return torch.einsum("bsf,fd->bsd", h, w2)

    x = A_x
    g = _sigmoid((x * gate_w).sum(-1, keepdims=True))
    a = _A_ref(x, A_wqkv, A_wo)
    b = _B_ref(x, B_w1, B_w2)
    return g * a + (1 - g) * b
```

```python
import re

def _regs(tok):
    tok = tok.strip()
    tok = tok.lstrip('-')
    if tok.startswith('abs(') or tok.startswith('|'):
        tok = tok.replace('abs(', '').replace(')', '').replace('|', '')
    m = re.fullmatch(r'([vsa])(\d+)', tok)
    if m:
        return [(m.group(1), int(m.group(2)))]
    m = re.fullmatch(r'([vsa])\[(\d+):(\d+)\]', tok)
    if m:
        return [(m.group(1), i) for i in range(int(m.group(2)), int(m.group(3)) + 1)]
    if tok == 'vcc':
        return [('s', 106), ('s', 107)]
    if tok == 'exec':
        return [('s', 126), ('s', 127)]
    if tok == 'm0':
        return [('s', 124)]
    return []

TRANS = ('v_exp_f32', 'v_rcp_f32', 'v_log_f32', 'v_rsq_f32', 'v_sqrt_f32')

class Ins:
    def __init__(self, text):
        self.text = text
        t = text.split(';')[0].strip()
        parts = t.split(None, 1)
        self.op = parts[0]
        rest = parts[1] if len(parts) > 1 else ''
        ops = []
        depth = 0
        cur = ''
        for ch in rest:
            if ch == '[':
                depth += 1
            if ch == ']':
                depth -= 1
            if ch == ',' and depth == 0:
                ops.append(cur.strip()); cur = ''
            else:
                cur += ch
        if cur.strip():
            ops.append(cur.strip())
        self.mods = ''
        if ops:
            sp = ops[-1].split(None, 1)
            ops[-1] = sp[0]
            if len(sp) > 1:
                self.mods = sp[1]
        self.ops = ops
        op = self.op
        self.w = set(); self.r = set()
        self.cls = 'other'
        self.states = 1
        R = [set(_regs(o)) for o in ops]
        if op == 's_nop':
            self.cls = 'nop'; self.states = int(ops[0], 0) + 1
        elif op.startswith('v_mfma'):
            self.cls = 'mfma'
            self.w = R[0]; self.a = R[1]; self.b = R[2]; self.c = R[3]
            self.r = R[1] | R[2] | R[3]
        elif op.startswith('v_'):
            self.cls = 'valu'
            self.w = set(R[0])
            for x in R[1:]:
                self.r |= x
            if op.startswith('v_permlane') and 'swap' in op:
                self.w |= R[1]; self.r |= R[0]
            if op.startswith('v_fmac') or op.startswith('v_dot2c'):
                self.r |= R[0]
            if op.startswith('v_cndmask') and len(ops) == 3:
                self.r |= set(_regs('vcc'))
            if '_dpp' in op:
                self.r |= R[0]
        elif op.startswith('ds_read'):
            self.cls = 'ds'; self.w = R[0]; self.r = R[1]
        elif op.startswith('ds_add_rtn'):
            self.cls = 'ds'; self.w = R[0]; self.r = R[1] | R[2]
        elif op.startswith(('ds_write', 'ds_add')):
            self.cls = 'ds'
            for x in R: self.r |= x
        elif op.startswith('buffer_load'):
            self.cls = 'vmem'
            if ' lds' in (' ' + self.mods):
                self.lds = True
                for x in R: self.r |= x
                self.r |= set(_regs('m0'))
            else:
                self.w = R[0]
                for x in R[1:]: self.r |= x
        elif op.startswith('buffer_store') or op.startswith('buffer_atomic'):
            self.cls = 'vmem'
            for x in R: self.r |= x
            self.data = R[0]
        elif op.startswith('s_'):
            self.cls = 'salu'
            nodst = ('s_cmp', 's_cbranch', 's_branch', 's_barrier', 's_waitcnt', 's_endpgm', 's_setprio', 's_sleep', 's_bitcmp')
            if op.startswith(nodst):
                for x in R: self.r |= x
            else:
                if R: self.w = R[0]
                for x in R[1:]: self.r |= x
        self.trans = op.startswith(TRANS)
        self.dot = op.startswith('v_dot')

def need(p, c):
    n = 0
    pv = {x for x in p.w if x[0] in 'va'}
    ps = {x for x in p.w if x[0] == 's'}
    if p.cls == 'valu':
        if c.cls == 'mfma' and pv & c.r: n = max(n, 2)
        if c.cls == 'valu':
            if (c.op.startswith('v_permlane') or '_dpp' in c.op) and pv & c.r: n = max(n, 2)
            if p.trans and pv & c.r: n = max(n, 1)
            if c.op.startswith(('v_readfirstlane', 'v_readlane')) and pv & c.r: n = max(n, 1)
            if ps & c.r: n = max(n, 2)
        if p.trans and c.cls in ('vmem', 'ds') and pv & c.r: n = max(n, 1)
        if c.cls == 'vmem' and ps & c.r: n = max(n, 5)
        if p.dot and (pv & (c.r | c.w)):
            if not (c.op == p.op and c.ops[-1] == p.ops[0] and not (pv & (set(_regs(c.ops[1])) | set(_regs(c.ops[2]))))):
                n = max(n, 3)
    if p.cls == 'mfma':
        if c.cls == 'mfma':
            if pv & (c.a | c.b): n = max(n, 8)
            if pv & c.c:
                if not (c.c == pv and c.op == p.op): n = max(n, 6)
            elif pv & c.w: n = max(n, 8)
        elif c.cls in ('valu', 'vmem', 'ds'):
            if pv & (c.r | c.w): n = max(n, 8)
        if c.cls == 'valu' and (p.c & c.w): n = max(n, 3)
    if p.cls == 'vmem' and hasattr(p, 'data') and len(p.data) >= 3:
        if p.data & c.w: n = max(n, 2 if c.cls == 'valu' else 1)
    if p.cls == 'salu' and ('s', 124) in p.w and getattr(c, 'lds', False): n = max(n, 1)
    return n

class Asm:
    def __init__(self):
        self.items = []
    def __call__(self, text):
        for line in text.split('\n'):
            line = line.strip()
            if not line: continue
            if line.startswith(';') or line.startswith('.'):
                self.items.append(('t', line))
            elif line.endswith(':'):
                self.items.append(('l', line[:-1]))
            else:
                self.items.append(('i', Ins(line)))
    def raw(self, text):
        self.items.append(('t', text))
    def _req(self, hist, ins):
        dist = 0; worst = 0
        for p in reversed(hist):
            if dist >= 9: break
            k = need(p, ins) - dist
            worst = max(worst, k)
            dist += p.states
        return worst
    def finish(self):
        out = []; hist = []; nn = 0
        for kind, it in self.items:
            if kind == 'i':
                k = self._req(hist, it)
                if k > 0:
                    nop = Ins('s_nop %d' % (k - 1)); out.append(('i', nop)); hist.append(nop); nn += k
                out.append((kind, it)); hist.append(it)
                if it.op in ('s_endpgm', 's_branch'): hist = []
                hist = hist[-12:]
            else:
                out.append((kind, it))
        lab = {it: i for i, (k, it) in enumerate(out) if k == 'l'}
        for i, (k, it) in enumerate(out):
            if k == 'i' and it.op.startswith(('s_cbranch', 's_branch')):
                h = [x for kk, x in out[max(0, i - 14):i + 1] if kk == 'i'][-12:]
                j = lab[it.ops[0]]; cnt = 0
                while j < len(out) and cnt < 10:
                    kk, x = out[j]
                    if kk == 'i':
                        q = self._req(h, x)
                        if q > 0:
                            raise RuntimeError('hazard across branch %s -> %s needs %d' % (it.text, x.text, q))
                        h.append(x); cnt += x.states
                        if x.op in ('s_endpgm', 's_branch'): break
                    j += 1
        self.nops = nn
        lines = []
        for k, it in out:
            if k == 'i': lines.append('    ' + it.text)
            elif k == 'l': lines.append(it + ':')
            else: lines.append(it)
        return '\n'.join(lines) + '\n'

def v(n, c=1):
    return 'v%d' % n if c == 1 else 'v[%d:%d]' % (n, n + c - 1)
def s(n, c=1):
    return 's%d' % n if c == 1 else 's[%d:%d]' % (n, n + c - 1)
```

```python
import sys, math, struct
from asmlib import Asm, v, s

NAME = 'gated_mix__sliding_local_dilated__dense_activation_relu__prompt'
K1 = NAME + '_kernel'
K2 = 'gm_stage2_kernel'

WS_A = 0
WS_B = 0x900000
WS_G = 0xC00000
WS_SIZE = 0xC02000
RSTRIDE = 68 * 4096
NBSTRIDE = 68 * 5120
SLOT = 50176
XOFF = 33792
BAD = 0x40000000

class Cfg:
    rot = 1
    prof = 0
    k2depth = 4
cfg = Cfg()

def f32(x):
    return '0x%08x' % struct.unpack('<I', struct.pack('<f', x))[0]

def srd(a, d, lo, size):
    a('s_mov_b32 %s, %s' % (s(d), s(lo)))
    a('s_mov_b32 %s, %s' % (s(d + 1), s(lo + 1)))
    a('s_mov_b32 %s, %d' % (s(d + 2), size))
    a('s_mov_b32 %s, 0x00020000' % s(d + 3))

def interleave(a, mf, rd, first=1, per=1):
    rd = list(rd)
    for i, m in enumerate(mf):
        a(m)
        for _ in range(per):
            if rd: a(rd.pop(0))
    for x in rd: a(x)

SETS = (16, 64)
ACC = 112
def acc(t, n): return ACC + (t * 8 + n) * 4
VXA0, VXA1, VWM, VWQ, VWV = 4, 5, 6, 7, 8

def k1_reads(att, st, ks):
    base = SETS[st]
    xa = VXA1 if ks else VXA0
    r = []
    xs = ['ds_read_b128 %s, %s offset:%d' % (v(base + 4 * t, 4), v(xa), t * 2048) for t in range(4)]
    ws = []
    for n in range(8):
        if att:
            reg, off = [(VWM, 0), (VWM, 40), (VWM, 160), (VWM, 200), (VWQ, 0), (VWM, 320), (VWM, 360), (VWV, 0)][n]
        else:
            reg, off = VWM, 32 * n
        for h in range(2):
            ws.append('ds_read_b64_tr_b16 %s, %s offset:%d' % (v(base + 16 + 4 * n + 2 * h, 2), v(reg), off + ks * 16896 + h * 512))
    r = ws[:2] + xs + ws[2:]
    return r

def k1_mfmas(att, st):
    base = SETS[st]
    m = []
    for n in range(8):
        for t in range(4):
            W = v(base + 16 + 4 * n, 4); X = v(base + 4 * t, 4); A = v(acc(t, n), 4)
            if att and n >= 5:
                m.append('v_mfma_f32_16x16x32_bf16 %s, %s, %s, %s' % (A, X, W, A))
            else:
                m.append('v_mfma_f32_16x16x32_bf16 %s, %s, %s, %s' % (A, W, X, A))
    return m

def k1_mainloop(a, att, tag):
    a('s_barrier')
    for x in k1_reads(att, 0, 0): a(x)
    a('s_mov_b32 s48, 0')
    a('s_mov_b32 s49, 0')
    a('s_waitcnt lgkmcnt(0)')
    a('L_%s_loop:' % tag)
    pre = ['s_add_u32 s49, s49, 1', 's_cmp_eq_u32 s49, 3', 's_cselect_b32 s50, s51, s52', 's_cselect_b32 s49, 0, s49']
    adv = ['v_add_u32 %s, s50, %s' % (v(r), v(r)) for r in ([VXA0, VXA1, VWM, VWQ, VWV] if att else [VXA0, VXA1, VWM])]
    interleave(a, k1_mfmas(att, 0), k1_reads(att, 1, 1) + pre + adv)
    a('s_waitcnt lgkmcnt(0)')
    a('s_barrier')
    interleave(a, k1_mfmas(att, 1), k1_reads(att, 0, 0) + ['s_add_u32 s48, s48, 1', 's_cmp_lt_u32 s48, 10'])
    a('s_waitcnt lgkmcnt(0)')
    a('s_cbranch_scc1 L_%s_loop' % tag)

def tok_addr(a, dst, vj, tmp, vloc):
    a('v_lshrrev_b32 %s, 5, %s' % (v(tmp), v(vj)))
    a('v_mul_u32_u24 %s, s54, %s' % (v(dst), v(tmp)))
    a('v_and_b32 %s, 16, %s' % (v(tmp), v(vj)))
    a('v_lshl_add_u32 %s, %s, 7, %s' % (v(dst), v(tmp), v(dst)))
    a('v_and_b32 %s, 15, %s' % (v(tmp), v(vj)))
    a('v_lshl_add_u32 %s, %s, 4, %s' % (v(dst), v(tmp), v(dst)))
    a('v_cmp_gt_u32 vcc, 0x400, %s' % v(vj))
    a('v_cmp_le_u32 s[56:57], s53, %s' % v(vloc))
    a('s_and_b64 vcc, vcc, s[56:57]')
    a('v_mov_b32 %s, %s' % (v(tmp), hex(BAD)))
    a('v_cndmask_b32 %s, %s, %s, vcc' % (v(dst), v(tmp), v(dst)))

def gen_k1(a):
    a('.globl %s' % K1); a('.p2align 8'); a('.type %s,@function' % K1)
    a('%s:' % K1)
    a('s_cmp_ge_u32 s2, 256')
    a('s_cbranch_scc1 L1_end')
    a('s_load_dwordx4 s[4:7], s[0:1], 0')
    a('s_load_dwordx2 s[8:9], s[0:1], 16')
    a('s_load_dwordx4 s[12:15], s[0:1], 32')
    a('s_load_dwordx2 s[10:11], s[0:1], 48')
    a('s_load_dwordx2 s[16:17], s[0:1], 72')
    a('v_lshrrev_b32 v1, 6, v0')
    a('v_and_b32 v0, 63, v0')
    a('v_readfirstlane_b32 s3, v1')
    a('s_and_b32 s33, s2, 7')
    a('s_lshr_b32 s34, s2, 3')
    a('s_lshr_b32 s35, s33, 2')
    a('s_and_b32 s36, s33, 3')
    a('s_cmp_ge_u32 s34, 30')
    a('s_cbranch_scc1 L1_prep')
    a('s_cmp_ge_u32 s34, 18')
    a('s_cbranch_scc1 L1_ffn_setup')
    a('s_and_b32 s38, s34, 1')
    a('s_lshl_b32 s46, s36, 1')
    a('s_add_u32 s38, s38, s46')
    a('s_mul_i32 s37, s35, 9')
    a('s_lshr_b32 s46, s34, 1')
    a('s_add_u32 s37, s37, s46')
    a('s_mul_i32 s39, s37, 114')
    a('s_movk_i32 s40, 3840')
    a('s_movk_i32 s41, 29')
    a('s_movk_i32 s42, 1120')
    a('s_mul_i32 s43, s38, 160')
    a('s_mov_b32 s44, 0')
    a('s_waitcnt lgkmcnt(0)')
    srd(a, 24, 6, 640 * 3840)
    a('s_branch L1_common')
    a('L1_ffn_setup:')
    a('s_mul_i32 s46, s36, 12')
    a('s_add_u32 s46, s46, s34')
    a('s_sub_u32 s46, s46, 18')
    a('s_lshr_b32 s38, s46, 3')
    a('s_and_b32 s46, s46, 7')
    a('s_lshl_b32 s37, s35, 3')
    a('s_add_u32 s37, s37, s46')
    a('s_lshl_b32 s39, s37, 7')
    a('s_movk_i32 s40, 3072')
    a('s_movk_i32 s41, 31')
    a('s_mov_b32 s42, 0')
    a('s_lshl_b32 s43, s38, 9')
    a('s_mov_b32 s44, 1')
    a('s_waitcnt lgkmcnt(0)')
    srd(a, 24, 12, 640 * 3072)
    a('L1_common:')
    srd(a, 20, 4, 2048 * 1280)
    a('s_cmp_lt_u32 s3, 4')
    a('s_cbranch_scc1 L1_consumer')
    a('s_setprio 3')
    a('s_sub_u32 s46, s3, 4')
    a('v_lshrrev_b32 v2, 3, v0')
    a('v_lshrrev_b32 v3, 4, v0')
    a('v_and_b32 v4, 7, v0')
    a('s_lshr_b32 s47, s46, 1')
    a('s_add_u32 s47, s47, s39')
    a('s_and_b32 s48, s46, 1')
    a('s_lshl_b32 s48, s48, 6')
    a('s_add_u32 s47, s47, s48')
    a('v_lshl_add_u32 v5, v2, 1, s47')
    a('v_mul_u32_u24 v5, 0x500, v5')
    a('v_xor_b32 v4, v4, v3')
    a('v_lshl_add_u32 v16, v4, 4, v5')
    a('v_xor_b32 v4, 4, v4')
    a('v_lshl_add_u32 v17, v4, 4, v5')
    a('v_add_u32 v17, %d, v17' % (16 * 1280))
    a('v_add_u32 v18, %d, v16' % (32 * 1280))
    a('v_add_u32 v19, %d, v17' % (32 * 1280))
    a('v_and_b32 v1, 31, v0')
    a('v_min_u32 v1, s41, v1')
    a('v_mul_u32_u24 v2, 13, v1')
    a('v_lshrrev_b32 v2, 7, v2')
    a('v_lshlrev_b32 v1, 4, v1')
    a('v_mad_u32_u24 v1, v2, s42, v1')
    a('v_add_u32 v1, s43, v1')
    a('v_lshrrev_b32 v2, 5, v0')
    a('v_lshlrev_b32 v2, 2, v2')
    a('s_lshl_b32 s47, s46, 4')
    a('v_add_u32 v2, s47, v2')
    a('v_mad_u32_u24 v8, v2, s40, v1')
    a('s_lshl_b32 s47, s40, 3')
    a('v_add_u32 v12, s47, v8')
    for e in range(1, 4):
        a('v_add_u32 %s, s40, %s' % (v(8 + e), v(7 + e)))
        a('v_add_u32 %s, s40, %s' % (v(12 + e), v(11 + e)))
    if cfg.rot:
        a('s_cmp_ge_u32 s37, 10')
        a('s_cselect_b32 s47, 10, 0')
        a('s_sub_u32 s45, s37, s47')
    else:
        a('s_mov_b32 s45, 0')
    a('s_mov_b32 s48, 0')
    a('s_mov_b32 s49, 0')
    a('s_mul_i32 s50, s46, %d' % (8 * 1056))
    a('s_lshl_b32 s51, s46, 12')
    a('s_add_u32 s51, s51, %d' % XOFF)
    a('s_lshl_b32 s53, s40, 6')
    a('L1_ld_loop:')
    a('s_cmp_lt_u32 s48, 3')
    a('s_cbranch_scc1 L1_ld_nowait')
    a('s_waitcnt vmcnt(12)')
    a('s_barrier')
    a('L1_ld_nowait:')
    a('s_mul_i32 s52, s45, s53')
    a('s_lshl_b32 s54, s45, 7')
    a('s_add_u32 m0, s49, s51')
    for e in range(4):
        if e: a('s_add_u32 m0, m0, 1024')
        a('buffer_load_dwordx4 %s, s[20:23], s54 offen lds' % v(16 + e))
    a('s_add_u32 m0, s49, s50')
    for e in range(8):
        if e: a('s_add_u32 m0, m0, 1056')
        a('buffer_load_dwordx4 %s, s[24:27], s52 offen lds' % v(8 + e))
    a('s_add_u32 s45, s45, 1')
    a('s_cmp_eq_u32 s45, 10')
    a('s_cselect_b32 s45, 0, s45')
    a('s_add_u32 s49, s49, %d' % SLOT)
    a('s_cmp_eq_u32 s49, %d' % (3 * SLOT))
    a('s_cselect_b32 s49, 0, s49')
    a('s_add_u32 s48, s48, 1')
    a('s_cmp_lg_u32 s48, 3')
    a('s_cbranch_scc1 L1_ld_nofirst')
    a('s_waitcnt vmcnt(24)')
    a('s_barrier')
    a('L1_ld_nofirst:')
    a('s_cmp_lt_u32 s48, 10')
    a('s_cbranch_scc1 L1_ld_loop')
    a('s_waitcnt vmcnt(12)')
    a('s_barrier')
    a('s_waitcnt vmcnt(0)')
    a('s_barrier')
    a('s_endpgm')
    a('L1_consumer:')
    srd(a, 28, 16, WS_SIZE)
    a('s_and_b32 s46, s3, 1')
    a('s_lshr_b32 s47, s3, 1')
    a('v_lshrrev_b32 v1, 4, v0')
    a('v_and_b32 v2, 15, v0')
    a('v_bfe_u32 v3, v2, 1, 3')
    a('v_xor_b32 v3, v3, v1')
    a('v_lshlrev_b32 v3, 4, v3')
    a('v_lshl_add_u32 v3, v2, 7, v3')
    a('s_lshl_b32 s48, s46, 13')
    a('s_add_u32 s48, s48, %d' % XOFF)
    a('v_add_u32 %s, s48, v3' % v(VXA0))
    a('v_xor_b32 %s, 64, %s' % (v(VXA1), v(VXA0)))
    a('v_lshrrev_b32 v3, 2, v0')
    a('v_mul_u32_u24 v3, 0x420, v3')
    a('v_and_b32 v15, 3, v0')
    a('v_lshl_add_u32 %s, v15, 3, v3' % v(VWM))
    a('s_mov_b32 s51, %d' % (-2 * SLOT & 0xffffffff))
    a('s_mov_b32 s52, %d' % SLOT)
    for i in range(128): a('v_mov_b32 %s, 0' % v(ACC + i))
    a('s_cmp_eq_u32 s44, 1')
    a('s_cbranch_scc1 L1_ffn')
    a('s_mul_i32 s48, s47, 80')
    a('v_add_u32 %s, s48, %s' % (v(VWM), v(VWM)))
    a('v_add_u32 v3, s48, v3')
    a('v_and_b32 v16, 1, v15')
    a('v_mad_u32_u24 v3, v16, 40, v3')
    a('v_add_u32 %s, 352, v3' % v(VWV))
    a('v_lshrrev_b32 v16, 1, v15')
    a('v_mul_u32_u24 v16, 160, v16')
    a('v_add3_u32 %s, v3, v16, 32' % v(VWQ))
    a('v_lshlrev_b32 v16, 2, v1')
    a('v_sub_u32 v16, v2, v16')
    a('v_mov_b32 v17, %s' % f32(-1e30))
    for r in range(4):
        a('v_subrev_u32 v18, %d, v16' % r)
        a('v_cmp_gt_u32 vcc, 8, v18')
        a('v_cndmask_b32 %s, v17, 0, vcc' % v(240 + r))
        a('v_cmp_gt_i32 vcc, -8, v18')
        a('v_cndmask_b32 %s, v17, 0, vcc' % v(244 + r))
        a('v_cmp_le_i32 vcc, 0, v18')
        a('v_cndmask_b32 %s, 0, -1, vcc' % v(20 + r))
        a('v_mov_b32 %s, 0x3f803f80' % v(250 + r))
    a('v_mov_b32 v17, 0xffff')
    a('v_bfi_b32 v248, v17, v20, v21')
    a('v_bfi_b32 v249, v17, v22, v23')
    a('s_mul_i32 s55, s37, 57')
    a('s_cmp_eq_u32 s37, 0')
    a('s_cselect_b32 s53, 0, 7')
    a('s_mov_b32 s54, %d' % RSTRIDE)
    a('s_lshl_b32 s58, s38, 1')
    a('s_add_u32 s58, s58, s47')
    a('s_lshl_b32 s58, s58, 12')
    a('s_lshl_b32 s59, s46, 10')
    a('s_add_u32 s58, s58, s59')
    a('v_lshlrev_b32 v19, 8, v1')
    for t in range(4):
        a('v_add_u32 v16, %d, v2' % (16 * t))
        a('v_add_u32 v17, s55, v16')
        tok_addr(a, 9 + t, 17, 18, 16)
        a('v_add_u32 %s, v19, %s' % (v(9 + t), v(9 + t)))
    a('s_lshr_b32 s60, s38, 1')
    a('s_add_u32 s60, s60, 16')
    a('s_lshl_b32 s60, s60, 12')
    a('s_add_u32 s59, s59, s60')
    a('s_and_b32 s60, s38, 1')
    a('s_lshl_b32 s60, s60, 1')
    a('s_add_u32 s60, s60, s47')
    a('s_lshl_b32 s60, s60, 8')
    a('s_add_u32 s59, s59, s60')
    a('v_and_b32 v19, 1, v1')
    a('v_lshlrev_b32 v19, 3, v19')
    a('v_lshrrev_b32 v20, 1, v1')
    a('v_lshl_add_u32 v20, v20, 4, v2')
    for u in range(2):
        a('v_add_u32 v16, %d, v20' % (32 * u))
        a('v_add_u32 v17, s55, v16')
        tok_addr(a, 13 + u, 17, 18, 16)
        a('v_add_u32 %s, v19, %s' % (v(13 + u), v(13 + u)))
    for g in range(4):
        m = 0xffff << (16 * g)
        a('s_mov_b32 %s, 0x%x' % (s(64 + 2 * g), m & 0xffffffff))
        a('s_mov_b32 %s, 0x%x' % (s(65 + 2 * g), m >> 32))
    cs = 20 ** -0.5 * math.log2(math.e)
    a('s_mov_b32 s62, %s' % f32(cs))
    a('s_mov_b32 s63, %s' % f32(-cs))
    k1_mainloop(a, True, 'att')
    gen_attention(a)
    a('s_endpgm')
    a('L1_ffn:')
    a('s_lshl_b32 s48, s47, 8')
    a('v_add_u32 %s, s48, %s' % (v(VWM), v(VWM)))
    a('v_lshlrev_b32 v9, 4, v0')
    a('s_mul_i32 s58, s37, %d' % (2 * RSTRIDE))
    a('s_lshl_b32 s59, s38, 3')
    a('s_lshl_b32 s60, s47, 2')
    a('s_add_u32 s59, s59, s60')
    a('s_add_u32 s59, s59, 20')
    a('s_lshl_b32 s59, s59, 12')
    a('s_add_u32 s58, s58, s59')
    a('s_lshl_b32 s59, s46, 10')
    a('s_add_u32 s58, s58, s59')
    k1_mainloop(a, False, 'ffn')
    k = 0
    for m in range(4):
        for t in range(4):
            d = 16 + 4 * (k % 16); k += 1
            for h in range(2):
                A = acc(t, 2 * m + h)
                a('v_cvt_pk_bf16_f32 %s, %s, %s' % (v(d + 2 * h), v(A), v(A + 1)))
                a('v_cvt_pk_bf16_f32 %s, %s, %s' % (v(d + 2 * h + 1), v(A + 2), v(A + 3)))
            for i in range(4):
                a('v_pk_max_i16 %s, %s, 0' % (v(d + i), v(d + i)))
            a('s_add_u32 s59, s58, %d' % ((t >> 1) * RSTRIDE + m * 4096))
            a('buffer_store_dwordx4 %s, v9, s[28:31], s59 offen offset:%d' % (v(d, 4), (t & 1) * 2048))
    a('s_endpgm')
    gen_prep(a)
    a('L1_end:')
    a('s_endpgm')

def gen_attention(a):
    KK = lambda t: 16 + 6 * t
    Q0 = lambda t: 40 + 8 * t
    Q1 = lambda t: 44 + 8 * t
    VP = lambda h, t: 72 + 8 * h + 2 * t
    M = lambda u: 96 + u
    SC = lambda u: 112 + 8 * u
    SP = lambda u: 116 + 8 * u
    P = lambda u: 176 + 4 * u
    SUM = lambda u: 208 + 4 * u
    def cvt(d, A):
        a('v_cvt_pk_bf16_f32 %s, %s, %s' % (v(d), v(A), v(A + 1)))
        a('v_cvt_pk_bf16_f32 %s, %s, %s' % (v(d + 1), v(A + 2), v(A + 3)))
    def conv_qk(t):
        cvt(Q1(t), acc(t, 4)); cvt(KK(t) + 2, acc(t, 4))
        cvt(Q0(t), acc(t, 0)); cvt(Q1(t) + 2, acc(t, 1))
        a('v_permlane32_swap_b32 %s, %s' % (v(Q1(t)), v(KK(t) + 2)))
        a('v_permlane32_swap_b32 %s, %s' % (v(Q1(t) + 1), v(KK(t) + 3)))
        cvt(KK(t), acc(t, 2)); cvt(KK(t) + 4, acc(t, 3))
        for i in range(2):
            a('v_cndmask_b32 %s, 0, %s, s[64:65]' % (v(Q0(t) + 2 + i), v(Q1(t) + i)))
            a('v_cndmask_b32 %s, 0, %s, s[66:67]' % (v(Q1(t) + i), v(Q1(t) + i)))
    def conv_v(t):
        for h in range(3): cvt(VP(h, t), acc(t, 5 + h))
    for t in range(4): conv_qk(t)
    conv_v(0); conv_v(1)
    Kop = lambda h, t: v(KK(t) + 2 * h, 4)
    Qop = lambda h, t: v(Q0(t) if h == 0 else Q1(t), 4)
    mf = []
    for h in range(2):
        for t in range(4):
            u = 4 * h + t
            mf.append('v_mfma_f32_16x16x32_bf16 %s, %s, %s, v[240:243]' % (v(SC(u), 4), Kop(h, t), Qop(h, t)))
            if t: mf.append('v_mfma_f32_16x16x32_bf16 %s, %s, %s, v[244:247]' % (v(SP(u), 4), Kop(h, t - 1), Qop(h, t)))
    cv = []
    for t in (2, 3):
        for h in range(3):
            A = acc(t, 5 + h); d = VP(h, t)
            cv.append('v_cvt_pk_bf16_f32 %s, %s, %s' % (v(d), v(A), v(A + 1)))
            cv.append('v_cvt_pk_bf16_f32 %s, %s, %s' % (v(d + 1), v(A + 2), v(A + 3)))
    interleave(a, mf, cv)
    for u in range(8):
        if u & 3:
            for r in range(4): a('v_max_f32 %s, %s, %s' % (v(SC(u) + r), v(SC(u) + r), v(SP(u) + r)))
        a('v_max3_f32 %s, %s, %s, %s' % (v(M(u)), v(SC(u)), v(SC(u) + 1), v(SC(u) + 2)))
        a('v_max_f32 %s, %s, %s' % (v(M(u)), v(M(u)), v(SC(u) + 3)))
    G = (0, 4)
    for b in G:
        a('v_permlane32_swap_b32 %s, %s' % (v(M(b)), v(M(b + 1))))
        a('v_permlane32_swap_b32 %s, %s' % (v(M(b + 2)), v(M(b + 3))))
    for b in G:
        a('v_max_f32 %s, %s, %s' % (v(M(b)), v(M(b)), v(M(b + 1))))
        a('v_max_f32 %s, %s, %s' % (v(M(b + 2)), v(M(b + 2)), v(M(b + 3))))
    for b in G: a('v_permlane16_swap_b32 %s, %s' % (v(M(b)), v(M(b + 2))))
    for b in G: a('v_max_f32 %s, %s, %s' % (v(M(b)), v(M(b)), v(M(b + 2))))
    for b in G: a('v_mul_f32 %s, s63, %s' % (v(M(b + 2)), v(M(b))))
    for b in G: a('v_mul_f32 %s, s63, %s' % (v(M(b)), v(M(b))))
    for b in G: a('v_permlane16_swap_b32 %s, %s' % (v(M(b)), v(M(b + 2))))
    for b in G:
        a('v_mov_b32 %s, %s' % (v(M(b + 1)), v(M(b))))
        a('v_mov_b32 %s, %s' % (v(M(b + 3)), v(M(b + 2))))
    for b in G:
        a('v_permlane32_swap_b32 %s, %s' % (v(M(b)), v(M(b + 1))))
        a('v_permlane32_swap_b32 %s, %s' % (v(M(b + 2)), v(M(b + 3))))
    pend = []
    for u in range(8):
        h, t = u >> 2, u & 3
        for r in range(4): a('v_fma_f32 %s, %s, s62, %s' % (v(SC(u) + r), v(SC(u) + r), v(M(u))))
        for r in range(4):
            a('v_exp_f32 %s, %s' % (v(SC(u) + r), v(SC(u) + r)))
            if pend: a(pend.pop(0))
        for x in pend: a(x)
        if t == 0:
            cvt(P(u) + 2, SC(u))
            op = 'v_mfma_f32_16x16x16_bf16'; B = v(P(u) + 2, 2); n = 2; o = 0
        else:
            cvt(P(u), SC(u))
            for i in range(2): a('v_and_b32 %s, %s, %s' % (v(P(u) + 2 + i), v(248 + i), v(P(u) + i)))
            for i in range(2): a('v_bfi_b32 %s, %s, 0, %s' % (v(P(u) + i), v(248 + i), v(P(u) + i)))
            op = 'v_mfma_f32_16x16x32_bf16'; B = v(P(u), 4); n = 4; o = -2
        pend = ['%s %s, %s, %s, 0' % (op, v(SUM(u), 4), v(250, n), B),
                '%s %s, %s, %s, 0' % (op, v(SC(u), 4), v(VP(h, t) + o, n), B),
                '%s %s, %s, %s, 0' % (op, v(SP(u), 4), v(VP(2, t) + o, n), B)]
    for x in pend: a(x)
    for u in range(8): a('v_rcp_f32 %s, %s' % (v(SUM(u)), v(SUM(u))))
    for t in range(4):
        for h in range(2):
            u = 4 * h + t
            for i in range(2):
                a('v_pk_mul_f32 %s, %s, %s op_sel_hi:[1,0]' % (v(SC(u) + 2 * i, 2), v(SC(u) + 2 * i, 2), v(SUM(u), 2)))
        for h in range(2): cvt(16 + 4 * t + 2 * h, SC(4 * h + t))
        a('buffer_store_dwordx4 %s, %s, s[28:31], s58 offen' % (v(16 + 4 * t, 4), v(9 + t)))
    for g in range(4):
        a('s_mov_b64 exec, %s' % s(64 + 2 * g, 2))
        for u2 in range(2):
            u = 4 * (g & 1) + 2 * u2 + (g >> 1)
            for i in range(2):
                a('v_pk_mul_f32 %s, %s, %s op_sel_hi:[1,0]' % (v(40 + 4 * u2 + 2 * i, 2), v(SP(u) + 2 * i, 2), v(SUM(u), 2)))
    a('s_mov_b64 exec, -1')
    for u2 in range(2):
        cvt(48 + 2 * u2, 40 + 4 * u2)
        a('buffer_store_dwordx2 %s, %s, s[28:31], s59 offen' % (v(48 + 2 * u2, 2), v(13 + u2)))

def gen_prep(a):
    PITCH = 176
    LW = 32 * PITCH
    a('L1_prep:')
    a('s_sub_u32 s37, s34, 30')
    a('s_lshl_b32 s37, s37, 3')
    a('s_add_u32 s37, s37, s33')
    a('s_waitcnt lgkmcnt(0)')
    srd(a, 20, 4, 2048 * 1280)
    srd(a, 24, 8, 640 * 1280)
    srd(a, 40, 14, 1536 * 1280)
    srd(a, 44, 10, 1280)
    srd(a, 28, 16, WS_SIZE)
    U = lambda u: 24 + 20 * u
    GW = 124
    GX = 164
    a('s_mul_i32 s48, s3, 160')
    a('s_mul_i32 s49, s3, %d' % LW)
    a('s_movk_i32 s50, 205')
    a('s_movk_i32 s51, 1280')
    a('s_movk_i32 s52, %d' % PITCH)
    for e in range(5):
        a('v_add_u32 v1, %d, v0' % (64 * e))
        a('v_mul_u32_u24 v2, s50, v1')
        a('v_lshrrev_b32 v2, 11, v2')
        a('v_mul_u32_u24 v3, 10, v2')
        a('v_sub_u32 v1, v1, v3')
        a('v_lshlrev_b32 v1, 4, v1')
        a('v_mad_u32_u24 %s, v2, s52, v1' % v(19 + e))
        a('v_add_u32 %s, s49, %s' % (v(19 + e), v(19 + e)))
        a('v_and_b32 v3, 3, v2')
        a('v_mad_u32_u24 v1, v3, s51, v1')
        a('v_add_u32 %s, s48, v1' % v(4 + e))
        a('v_lshrrev_b32 %s, 3, v2' % v(9 + e))
        a('v_bfe_u32 %s, v2, 2, 1' % v(14 + e))
    def addrs(al, be):
        a('s_movk_i32 s53, %d' % (al * 1280) if al * 1280 < 32768 else 's_mov_b32 s53, %d' % (al * 1280))
        a('s_movk_i32 s54, %d' % (be * 1280))
        for e in range(5):
            a('v_mad_u32_u24 %s, %s, s53, %s' % (v(244 + e), v(9 + e), v(4 + e)))
            a('v_mad_u32_u24 %s, %s, s54, %s' % (v(244 + e), v(14 + e), v(244 + e)))
    addrs(4, 16)
    a('s_mul_i32 s55, s37, %d' % (3 * 32 * 1280))
    for u in range(3):
        for e in range(5):
            a('buffer_load_dwordx4 %s, %s, s[40:43], s55 offen' % (v(U(u) + 4 * e, 4), v(244 + e)))
        if u < 2: a('s_add_u32 s55, s55, %d' % (32 * 1280))
    addrs(4, 20)
    a('s_mul_i32 s55, s37, %d' % (40 * 1280))
    for e in range(5):
        a('buffer_load_dwordx4 %s, %s, s[24:27], s55 offen' % (v(U(3) + 4 * e, 4), v(244 + e)))
    addrs(40, 20)
    a('s_and_b32 s56, s37, 3')
    a('s_mul_i32 s55, s56, %d' % (160 * 1280))
    a('s_add_u32 s55, s55, %d' % (16 * 1280))
    for e in range(5):
        a('buffer_load_dwordx4 %s, %s, s[24:27], s55 offen' % (v(U(4) + 4 * e, 4), v(244 + e)))
    a('v_and_b32 v1, 7, v0')
    a('v_lshlrev_b32 v1, 4, v1')
    for i in range(10):
        a('buffer_load_dwordx4 %s, v1, s[44:47], 0 offen offset:%d' % (v(GW + 4 * i, 4), 128 * i))
    a('s_lshl_b32 s57, s37, 7')
    a('s_lshl_b32 s58, s3, 4')
    a('s_add_u32 s57, s57, s58')
    a('v_lshrrev_b32 v2, 3, v0')
    a('v_add_u32 v2, s57, v2')
    a('v_mad_u32_u24 v3, v2, s51, v1')
    a('s_movk_i32 s58, %d' % (8 * 1280))
    for hh in range(2):
        for i in range(10):
            a('buffer_load_dwordx4 %s, v3, s[20:23], %s offen offset:%d' % (v(GX + 40 * hh + 4 * i, 4), 's58' if hh else '0', 128 * i))
    a('v_lshrrev_b32 v4, 4, v0')
    a('v_bfe_u32 v5, v0, 2, 2')
    a('v_lshl_add_u32 v4, v4, 3, v5')
    a('v_mul_u32_u24 v4, s52, v4')
    a('v_add_u32 v4, s49, v4')
    a('v_and_b32 v5, 3, v0')
    a('v_lshl_add_u32 v6, v5, 3, v4')
    a('v_lshl_add_u32 v5, v5, 4, v4')
    a('v_lshlrev_b32 v7, 4, v0')
    a('v_add_u32 v8, 4096, v7')
    a('s_mul_i32 s59, s3, %d' % NBSTRIDE)
    a('s_add_u32 s59, s59, %d' % WS_B)
    for u in range(5):
        a('s_waitcnt vmcnt(50)')
        for e in range(5):
            a('ds_write_b128 %s, %s' % (v(19 + e), v(U(u) + 4 * e, 4)))
        if u < 3:
            a('s_mul_i32 s60, s37, 3'); a('s_add_u32 s60, s60, %d' % (20 + u))
        elif u == 3:
            a('s_mov_b32 s60, s37')
        else:
            a('s_add_u32 s60, s56, 16')
        a('s_mul_i32 s60, s60, 5120')
        a('s_add_u32 s60, s60, s59')
        a('s_waitcnt lgkmcnt(0)')
        for nt in range(5):
            for h in range(2):
                if nt < 4: reg, off = 5, 64 * (nt >> 1) + 8 * (nt & 1)
                else: reg, off = 6, 128
                a('ds_read_b64_tr_b16 %s, %s offset:%d' % (v(U(u) + 4 * nt + 2 * h, 2), v(reg), off + h * 4 * PITCH))
        a('s_waitcnt lgkmcnt(0)')
        for nt in range(5):
            a('buffer_store_dwordx4 %s, %s, s[28:31], s60 offen offset:%d' % (v(U(u) + 4 * nt, 4), v(7 if nt < 4 else 8), (nt & 3) * 1024))
    a('s_waitcnt vmcnt(25)')
    for hh in range(2):
        a('v_mov_b32 %s, 0' % v(9 + hh))
    for i in range(40):
        for hh in range(2):
            a('v_dot2_f32_bf16 %s, %s, %s, %s' % (v(9 + hh), v(GX + 40 * hh + i), v(GW + i), v(9 + hh)))
    for pat in ('quad_perm:[1,0,3,2]', 'quad_perm:[2,3,0,1]', 'row_half_mirror'):
        for hh in range(2):
            a('v_add_f32_dpp %s, %s, %s %s row_mask:0xf bank_mask:0xf' % (v(11 + hh), v(9 + hh), v(9 + hh), pat))
        for hh in range(2):
            a('v_mov_b32 %s, %s' % (v(9 + hh), v(11 + hh)))
    for hh in range(2): a('v_mul_f32 %s, %s, %s' % (v(9 + hh), f32(-math.log2(math.e)), v(9 + hh)))
    for hh in range(2): a('v_exp_f32 %s, %s' % (v(9 + hh), v(9 + hh)))
    for hh in range(2): a('v_add_f32 %s, 1.0, %s' % (v(9 + hh), v(9 + hh)))
    for hh in range(2): a('v_rcp_f32 %s, %s' % (v(9 + hh), v(9 + hh)))
    a('v_lshlrev_b32 v2, 2, v2')
    a('v_mov_b32 v3, %s' % hex(BAD))
    a('v_cmp_eq_u32 vcc, 0, v1')
    a('v_cndmask_b32 v2, v3, v2, vcc')
    a('s_mov_b32 s60, %d' % WS_G)
    for hh in range(2):
        a('buffer_store_dword %s, v2, s[28:31], s60 offen offset:%d' % (v(9 + hh), 32 * hh))
    a('s_endpgm')

def gen_k2(a):
    D = cfg.k2depth
    RING = 16
    AC = RING + 36 * D
    accr = lambda m, nt: AC + (m * 5 + nt) * 4
    Bq = lambda q, nt: RING + 36 * q + 4 * nt
    Aq = lambda q, m: RING + 36 * q + 20 + 4 * m
    a('.globl %s' % K2); a('.p2align 8'); a('.type %s,@function' % K2)
    a('%s:' % K2)
    a('s_cmp_ge_u32 s2, 256')
    a('s_cbranch_scc1 L2_end')
    a('s_load_dwordx2 s[4:5], s[0:1], 72')
    a('s_load_dwordx2 s[6:7], s[0:1], 56')
    a('v_lshrrev_b32 v1, 6, v0')
    a('v_and_b32 v0, 63, v0')
    a('v_readfirstlane_b32 s3, v1')
    a('s_and_b32 s16, s2, 7')
    a('s_lshr_b32 s17, s2, 3')
    a('s_and_b32 s18, s16, 1')
    a('s_lshl_b32 s18, s18, 2')
    a('s_and_b32 s19, s17, 3')
    a('s_add_u32 s18, s18, s19')
    a('s_lshr_b32 s19, s16, 1')
    a('s_lshl_b32 s19, s19, 3')
    a('s_lshr_b32 s20, s17, 2')
    a('s_add_u32 s19, s19, s20')
    a('s_lshl_b32 s20, s3, 4')
    a('s_add_u32 s20, s20, 4')
    a('s_cmp_eq_u32 s3, 0')
    a('s_cselect_b32 s20, 0, s20')
    a('s_cselect_b32 s21, %d, %d' % (20 // D - 1, 16 // D - 1))
    a('s_mul_i32 s22, s19, %d' % RSTRIDE)
    a('s_lshl_b32 s23, s20, 12')
    a('s_add_u32 s22, s22, s23')
    a('s_mul_i32 s23, s18, %d' % NBSTRIDE)
    a('s_mul_i32 s24, s20, 5120')
    a('s_add_u32 s23, s23, s24')
    a('s_add_u32 s23, s23, %d' % WS_B)
    a('v_lshlrev_b32 v2, 4, v0')
    a('v_add_u32 v3, 4096, v2')
    for m in range(4):
        a('s_add_u32 s24, s3, %d' % m)
        a('s_and_b32 s24, s24, 3')
        a('s_lshl_b32 s25, s24, 10')
        a('v_add_u32 %s, s25, v2' % v(4 + m))
        if m:
            a('s_mul_i32 s25, s24, 15360')
            a('s_add_u32 s25, s25, %d' % ((m - 1) * 5120))
            a('v_add_u32 %s, s25, v2' % v(8 + m))
    a('s_lshl_b32 s24, s19, 6')
    a('s_lshr_b32 s25, s3, 1')
    a('s_lshl_b32 s25, s25, 5')
    a('s_add_u32 s24, s24, s25')
    a('s_and_b32 s25, s3, 1')
    a('s_add_u32 s24, s24, s25')
    a('v_and_b32 v12, 15, v0')
    a('v_lshl_add_u32 v12, v12, 1, s24')
    a('v_lshlrev_b32 v13, 2, v12')
    a('s_mov_b32 s26, %d' % WS_G)
    a('s_waitcnt lgkmcnt(0)')
    srd(a, 8, 4, WS_SIZE)
    def ldB(q, nt): return 'buffer_load_dwordx4 %s, %s, s[8:11], s23 offen offset:%d' % (v(Bq(q, nt), 4), v(2 if nt < 4 else 3), (nt & 3) * 1024)
    def ldA(q, m): return 'buffer_load_dwordx4 %s, %s, s[8:11], s22 offen' % (v(Aq(q, m), 4), v(4 + m))
    adv = ['s_add_u32 s22, s22, 4096', 's_add_u32 s23, s23, 5120']
    a('buffer_load_dword v14, v13, s[8:11], s26 offen')
    for q in range(D):
        for nt in range(5): a(ldB(q, nt))
        for m in range(4): a(ldA(q, m))
        for x in adv: a(x)
    srd(a, 12, 6, 2048 * 1280)
    for i in range(80): a('v_mov_b32 %s, 0' % v(AC + i))
    def step(q, load, cnt):
        a('s_waitcnt vmcnt(%d)' % cnt)
        for nt in range(5):
            for m in range(4):
                A = v(accr(m, nt), 4)
                a('v_mfma_f32_16x16x32_bf16 %s, %s, %s, %s' % (A, v(Bq(q, nt), 4), v(Aq(q, m), 4), A))
                if load and nt == 4: a(ldA(q, m)) if False else None
            if load: a(ldB(q, nt))
        if load:
            for m in range(4): a(ldA(q, m))
            for x in adv: a(x)
    a('L2_loop:')
    for q in range(D): step(q, True, 9 * (D - 1))
    a('s_sub_u32 s21, s21, 1')
    a('s_cmp_lg_u32 s21, 0')
    a('s_cbranch_scc1 L2_loop')
    for q in range(D): step(q, False, 9 * (D - 1 - q))
    for m in range(1, 4):
        for nt in range(5):
            a('ds_write_b128 %s, %s offset:%d' % (v(8 + m), v(accr(m, nt), 4), nt * 1024))
    a('v_sub_f32 v15, 1.0, v14')
    for m in range(4):
        a('s_cmp_eq_u32 s3, %d' % m)
        a('s_cselect_b64 vcc, -1, 0')
        a('v_cndmask_b32 %s, v15, v14, vcc' % v(16 + 2 * m))
    a('s_mul_i32 s25, s3, 15360')
    a('v_add_u32 v8, s25, v2')
    a('s_mul_i32 s25, s18, 160')
    a('v_mul_u32_u24 v12, 0x500, v12')
    a('v_lshrrev_b32 v13, 4, v0')
    a('v_lshl_add_u32 v9, v13, 3, v12')
    a('v_lshl_add_u32 v12, v13, 4, v12')
    for i in range(10):
        A = AC + 2 * i
        a('v_pk_mul_f32 %s, %s, v[16:17] op_sel_hi:[1,0]' % (v(A, 2), v(A, 2)))
    a('s_waitcnt lgkmcnt(0)')
    a('s_barrier')
    for m in range(1, 4):
        for nt in range(5):
            a('ds_read_b128 %s, v8 offset:%d' % (v(accr(m, nt), 4), ((m - 1) * 5 + nt) * 1024))
    for m in range(1, 4):
        a('s_waitcnt lgkmcnt(%d)' % (5 * (3 - m)))
        for i in range(10):
            A = AC + 2 * i
            a('v_pk_fma_f32 %s, %s, %s, %s op_sel_hi:[1,0,1]' % (v(A, 2), v(A + 20 * m, 2), v(16 + 2 * m, 2), v(A, 2)))
    for i in range(10):
        a('v_cvt_pk_bf16_f32 %s, %s, %s' % (v(24 + i), v(AC + 2 * i), v(AC + 2 * i + 1)))
    a('buffer_store_dwordx4 v[24:27], v12, s[12:15], s25 offen')
    a('buffer_store_dwordx4 v[28:31], v12, s[12:15], s25 offen offset:64')
    a('buffer_store_dwordx2 v[32:33], v9, s[12:15], s25 offen offset:128')
    a('L2_end:')
    a('s_endpgm')
    return AC + 80

def desc(name, nv):
    nv = (nv + 7) // 8 * 8
    return '''.p2align 6
.amdhsa_kernel %s
  .amdhsa_next_free_vgpr %d
  .amdhsa_next_free_sgpr 102
  .amdhsa_accum_offset %d
  .amdhsa_group_segment_fixed_size 0
  .amdhsa_kernarg_size 80
  .amdhsa_user_sgpr_count 2
  .amdhsa_user_sgpr_kernarg_segment_ptr 1
  .amdhsa_system_sgpr_workgroup_id_x 1
.end_amdhsa_kernel
''' % (name, nv, nv)

def main():
    for arg in sys.argv[2:]:
        k, val = arg.split('='); setattr(cfg, k, int(val))
    a = Asm()
    gen_k1(a)
    nv2 = gen_k2(a)
    body = a.finish()
    hdr = '''; gated mix of sliding-window dilated attention and ReLU FFN, two launches.
; launch 1: qkv projection + attention, FFN up projection + relu, weight re-layout + gate
; launch 2: output projections (wo, w2) and gated mix
; @launch kernel=%s grid=(256,1,1) block=(512,1,1) lds=%d
; @launch kernel=%s grid=(256,1,1) block=(256,1,1) lds=%d
.amdgcn_target "amdgcn-amd-amdhsa--gfx950"
.text
''' % (K1, 3 * SLOT, K2, 61440)
    out = hdr + body + '.section .rodata,"a"\n' + desc(K1, 256) + desc(K2, nv2)
    open(sys.argv[1], 'w').write(out)
    print('nops inserted:', a.nops, 'bytes', len(out))

main()
```

```python
import sys, math, struct
from asmlib import Asm, v, s

NAME = 'gated_mix__sliding_local_dilated__dense_activation_relu__prompt'
K1 = NAME + '_kernel'
K2 = 'gm_stage2_kernel'

WS_A = 0
WS_B = 0x900000
WS_G = 0xC00000
WS_SIZE = 0xC02000
RSTRIDE = 68 * 4096
NBSTRIDE = 68 * 5120
SLOT = 50176
XOFF = 33792
BAD = 0x40000000

class Cfg:
    ra = 1
    rb = 5
    rc = 3
    rd = 5
    prof = 0
    k2depth = 4
    k2prio = 1
    pw = 35
    stpol = 1
cfg = Cfg()

def stp():
    return ['', ' sc1', ' sc0 sc1', ' nt', ' sc1 nt', ' sc0 sc1 nt'][cfg.stpol]

def f32(x):
    return '0x%08x' % struct.unpack('<I', struct.pack('<f', x))[0]

def srd(a, d, lo, size):
    a('s_mov_b32 %s, %s' % (s(d), s(lo)))
    a('s_mov_b32 %s, %s' % (s(d + 1), s(lo + 1)))
    a('s_mov_b32 %s, %d' % (s(d + 2), size))
    a('s_mov_b32 %s, 0x00020000' % s(d + 3))

PROF = 0xD00000
def stamp(a, i):
    if cfg.prof:
        a('s_memrealtime %s' % s(80 + 2 * i, 2))
        a('s_memtime %s' % s(72 + 2 * i, 2))
def stamp_flush(a, kern, wsreg):
    if not cfg.prof: return
    a('s_memrealtime s[86:87]')
    a('s_memtime s[78:79]')
    a('s_mov_b32 s88, %s' % s(wsreg)); a('s_mov_b32 s89, %s' % s(wsreg + 1))
    a('s_mov_b32 s90, 0x1000000'); a('s_mov_b32 s91, 0x00020000')
    a('s_lshl_b32 s92, s2, 3'); a('s_add_u32 s92, s92, s3'); a('s_lshl_b32 s92, s92, 6')
    a('s_add_u32 s92, s92, %d' % (PROF + kern * 256 * 8 * 64))
    a('s_waitcnt lgkmcnt(0)')
    a('s_mov_b64 exec, 1')
    a('v_mov_b32 v0, 0')
    for i in range(8): a('v_mov_b32 %s, %s' % (v(4 + i), s(80 + i)))
    a('buffer_store_dwordx4 v[4:7], v0, s[88:91], s92 offen')
    a('buffer_store_dwordx4 v[8:11], v0, s[88:91], s92 offen offset:16')
    for i in range(8): a('v_mov_b32 %s, %s' % (v(12 + i), s(72 + i)))
    a('buffer_store_dwordx4 v[12:15], v0, s[88:91], s92 offen offset:32')
    a('buffer_store_dwordx4 v[16:19], v0, s[88:91], s92 offen offset:48')

def interleave(a, mf, rd, first=1, per=1):
    rd = list(rd)
    for i, m in enumerate(mf):
        a(m)
        for _ in range(per):
            if rd: a(rd.pop(0))
    for x in rd: a(x)

SETS = (16, 64)
ACC = 112
def acc(t, n): return ACC + (t * 8 + n) * 4
VXA0, VXA1, VWM, VWQ, VWV = 4, 5, 6, 7, 8

def k1_reads(att, st, ks):
    base = SETS[st]
    xa = VXA1 if ks else VXA0
    r = []
    xs = ['ds_read_b128 %s, %s offset:%d' % (v(base + 4 * t, 4), v(xa), t * 2048) for t in range(4)]
    ws = []
    for n in range(8):
        if att:
            reg, off = [(VWM, 0), (VWM, 40), (VWM, 160), (VWM, 200), (VWQ, 0), (VWM, 320), (VWM, 360), (VWV, 0)][n]
        else:
            reg, off = VWM, 32 * n
        for h in range(2):
            ws.append('ds_read_b64_tr_b16 %s, %s offset:%d' % (v(base + 16 + 4 * n + 2 * h, 2), v(reg), off + ks * 16896 + h * 512))
    r = ws[:2] + xs + ws[2:]
    return r

def k1_mfmas(att, st):
    base = SETS[st]
    m = []
    for n in range(8):
        for t in range(4):
            W = v(base + 16 + 4 * n, 4); X = v(base + 4 * t, 4); A = v(acc(t, n), 4)
            if att and n >= 5:
                m.append('v_mfma_f32_16x16x32_bf16 %s, %s, %s, %s' % (A, X, W, A))
            else:
                m.append('v_mfma_f32_16x16x32_bf16 %s, %s, %s, %s' % (A, W, X, A))
    return m

def k1_mainloop(a, att, tag):
    a('s_barrier')
    stamp(a, 1)
    for x in k1_reads(att, 0, 0): a(x)
    a('s_mov_b32 s48, 0')
    a('s_mov_b32 s49, 0')
    a('s_waitcnt lgkmcnt(0)')
    a('L_%s_loop:' % tag)
    pre = ['s_add_u32 s49, s49, 1', 's_cmp_eq_u32 s49, 3', 's_cselect_b32 s50, s51, s52', 's_cselect_b32 s49, 0, s49']
    adv = ['v_add_u32 %s, s50, %s' % (v(r), v(r)) for r in ([VXA0, VXA1, VWM, VWQ, VWV] if att else [VXA0, VXA1, VWM])]
    interleave(a, k1_mfmas(att, 0), k1_reads(att, 1, 1) + pre + adv)
    a('s_waitcnt lgkmcnt(0)')
    a('s_barrier')
    interleave(a, k1_mfmas(att, 1), k1_reads(att, 0, 0) + ['s_add_u32 s48, s48, 1', 's_cmp_lt_u32 s48, 10'])
    a('s_waitcnt lgkmcnt(0)')
    a('s_cbranch_scc1 L_%s_loop' % tag)
    stamp(a, 2)

def tok_addr(a, dst, vj, tmp, vloc):
    a('v_lshrrev_b32 %s, 5, %s' % (v(tmp), v(vj)))
    a('v_mul_u32_u24 %s, s54, %s' % (v(dst), v(tmp)))
    a('v_and_b32 %s, 16, %s' % (v(tmp), v(vj)))
    a('v_lshl_add_u32 %s, %s, 7, %s' % (v(dst), v(tmp), v(dst)))
    a('v_and_b32 %s, 15, %s' % (v(tmp), v(vj)))
    a('v_lshl_add_u32 %s, %s, 4, %s' % (v(dst), v(tmp), v(dst)))
    a('v_cmp_gt_u32 vcc, 0x400, %s' % v(vj))
    a('v_cmp_le_u32 s[56:57], s53, %s' % v(vloc))
    a('s_and_b64 vcc, vcc, s[56:57]')
    a('v_mov_b32 %s, %s' % (v(tmp), hex(BAD)))
    a('v_cndmask_b32 %s, %s, %s, vcc' % (v(dst), v(tmp), v(dst)))

def gen_k1(a):
    a('.globl %s' % K1); a('.p2align 8'); a('.type %s,@function' % K1)
    a('%s:' % K1)
    a('s_cmp_ge_u32 s2, 256')
    a('s_cbranch_scc1 L1_end')
    stamp(a, 0); stamp(a, 1); stamp(a, 2)
    a('s_load_dwordx4 s[4:7], s[0:1], 0')
    a('s_load_dwordx2 s[8:9], s[0:1], 16')
    a('s_load_dwordx4 s[12:15], s[0:1], 32')
    a('s_load_dwordx2 s[10:11], s[0:1], 48')
    a('s_load_dwordx2 s[16:17], s[0:1], 72')
    a('v_lshrrev_b32 v1, 6, v0')
    a('v_and_b32 v0, 63, v0')
    a('v_readfirstlane_b32 s3, v1')
    a('s_and_b32 s33, s2, 7')
    a('s_lshr_b32 s34, s2, 3')
    a('s_lshr_b32 s35, s33, 2')
    a('s_and_b32 s36, s33, 3')
    a('s_cmp_ge_u32 s34, 30')
    a('s_cbranch_scc1 L1_prep')
    a('s_cmp_ge_u32 s34, 18')
    a('s_cbranch_scc1 L1_ffn_setup')
    a('s_and_b32 s38, s34, 1')
    a('s_lshl_b32 s46, s36, 1')
    a('s_add_u32 s38, s38, s46')
    a('s_mul_i32 s37, s35, 9')
    a('s_lshr_b32 s46, s34, 1')
    a('s_add_u32 s37, s37, s46')
    a('s_mul_i32 s45, s46, %d' % cfg.ra)
    a('s_and_b32 s47, s38, 1')
    a('s_mul_i32 s47, s47, %d' % cfg.rb)
    a('s_add_u32 s45, s45, s47')
    a('s_mul_i32 s39, s37, 114')
    a('s_movk_i32 s40, 3840')
    a('s_movk_i32 s41, 29')
    a('s_movk_i32 s42, 1120')
    a('s_mul_i32 s43, s38, 160')
    a('s_mov_b32 s44, 0')
    a('s_waitcnt lgkmcnt(0)')
    srd(a, 24, 6, 640 * 3840)
    a('s_branch L1_common')
    a('L1_ffn_setup:')
    a('s_mul_i32 s46, s36, 12')
    a('s_add_u32 s46, s46, s34')
    a('s_sub_u32 s46, s46, 18')
    a('s_lshr_b32 s38, s46, 3')
    a('s_and_b32 s46, s46, 7')
    a('s_lshl_b32 s37, s35, 3')
    a('s_add_u32 s37, s37, s46')
    a('s_mul_i32 s45, s46, %d' % cfg.ra)
    a('s_and_b32 s47, s38, 1')
    a('s_mul_i32 s47, s47, %d' % cfg.rd)
    a('s_add_u32 s45, s45, s47')
    a('s_add_u32 s45, s45, %d' % cfg.rc)
    a('s_lshl_b32 s39, s37, 7')
    a('s_movk_i32 s40, 3072')
    a('s_movk_i32 s41, 31')
    a('s_mov_b32 s42, 0')
    a('s_lshl_b32 s43, s38, 9')
    a('s_mov_b32 s44, 1')
    a('s_waitcnt lgkmcnt(0)')
    srd(a, 24, 12, 640 * 3072)
    a('L1_common:')
    srd(a, 20, 4, 2048 * 1280)
    a('s_cmp_lt_u32 s3, 4')
    a('s_cbranch_scc1 L1_consumer')
    a('s_setprio 3')
    a('s_sub_u32 s46, s3, 4')
    a('v_lshrrev_b32 v2, 3, v0')
    a('v_lshrrev_b32 v3, 4, v0')
    a('v_and_b32 v4, 7, v0')
    a('s_lshr_b32 s47, s46, 1')
    a('s_add_u32 s47, s47, s39')
    a('s_and_b32 s48, s46, 1')
    a('s_lshl_b32 s48, s48, 6')
    a('s_add_u32 s47, s47, s48')
    a('v_lshl_add_u32 v5, v2, 1, s47')
    a('v_mul_u32_u24 v5, 0x500, v5')
    a('v_xor_b32 v4, v4, v3')
    a('v_lshl_add_u32 v16, v4, 4, v5')
    a('v_xor_b32 v4, 4, v4')
    a('v_lshl_add_u32 v17, v4, 4, v5')
    a('v_add_u32 v17, %d, v17' % (16 * 1280))
    a('v_add_u32 v18, %d, v16' % (32 * 1280))
    a('v_add_u32 v19, %d, v17' % (32 * 1280))
    a('v_and_b32 v1, 31, v0')
    a('v_min_u32 v1, s41, v1')
    a('v_mul_u32_u24 v2, 13, v1')
    a('v_lshrrev_b32 v2, 7, v2')
    a('v_lshlrev_b32 v1, 4, v1')
    a('v_mad_u32_u24 v1, v2, s42, v1')
    a('v_add_u32 v1, s43, v1')
    a('v_lshrrev_b32 v2, 5, v0')
    a('v_lshlrev_b32 v2, 2, v2')
    a('s_lshl_b32 s47, s46, 4')
    a('v_add_u32 v2, s47, v2')
    a('v_mad_u32_u24 v8, v2, s40, v1')
    a('s_lshl_b32 s47, s40, 3')
    a('v_add_u32 v12, s47, v8')
    for e in range(1, 4):
        a('v_add_u32 %s, s40, %s' % (v(8 + e), v(7 + e)))
        a('v_add_u32 %s, s40, %s' % (v(12 + e), v(11 + e)))
    a('s_mul_i32 s47, s45, 205')
    a('s_lshr_b32 s47, s47, 11')
    a('s_mul_i32 s47, s47, 10')
    a('s_sub_u32 s45, s45, s47')
    a('s_mov_b32 s48, 0')
    a('s_mov_b32 s49, 0')
    a('s_mul_i32 s50, s46, %d' % (8 * 1056))
    a('s_lshl_b32 s51, s46, 12')
    a('s_add_u32 s51, s51, %d' % XOFF)
    a('s_lshl_b32 s53, s40, 6')
    a('L1_ld_loop:')
    a('s_cmp_lt_u32 s48, 2')
    a('s_cbranch_scc1 L1_ld_nowait')
    a('s_waitcnt vmcnt(12)')
    a('s_barrier')
    a('L1_ld_nowait:')
    a('s_mul_i32 s52, s45, s53')
    a('s_lshl_b32 s54, s45, 7')
    a('s_add_u32 m0, s49, s51')
    for e in range(4):
        if e: a('s_add_u32 m0, m0, 1024')
        a('buffer_load_dwordx4 %s, s[20:23], s54 offen lds' % v(16 + e))
    a('s_add_u32 m0, s49, s50')
    for e in range(8):
        if e: a('s_add_u32 m0, m0, 1056')
        a('buffer_load_dwordx4 %s, s[24:27], s52 offen lds' % v(8 + e))
    a('s_add_u32 s45, s45, 1')
    a('s_cmp_eq_u32 s45, 10')
    a('s_cselect_b32 s45, 0, s45')
    a('s_add_u32 s49, s49, %d' % SLOT)
    a('s_cmp_eq_u32 s49, %d' % (3 * SLOT))
    a('s_cselect_b32 s49, 0, s49')
    a('s_add_u32 s48, s48, 1')
    a('s_cmp_lt_u32 s48, 10')
    a('s_cbranch_scc1 L1_ld_loop')
    stamp(a, 1)
    a('s_cmp_eq_u32 s44, 1')
    a('s_cselect_b32 s47, s38, 4')
    a('s_cmp_lt_u32 s47, 4')
    a('s_waitcnt vmcnt(12)')
    a('s_barrier')
    a('s_cbranch_scc1 L1_ld_gate')
    a('s_waitcnt vmcnt(0)')
    a('s_barrier')
    stamp_flush(a, 0, 16)
    a('s_endpgm')
    gen_gate(a)
    a('L1_consumer:')
    srd(a, 28, 16, WS_SIZE)
    a('s_and_b32 s46, s3, 1')
    a('s_lshr_b32 s47, s3, 1')
    a('v_lshrrev_b32 v1, 4, v0')
    a('v_and_b32 v2, 15, v0')
    a('v_bfe_u32 v3, v2, 1, 3')
    a('v_xor_b32 v3, v3, v1')
    a('v_lshlrev_b32 v3, 4, v3')
    a('v_lshl_add_u32 v3, v2, 7, v3')
    a('s_lshl_b32 s48, s46, 13')
    a('s_add_u32 s48, s48, %d' % XOFF)
    a('v_add_u32 %s, s48, v3' % v(VXA0))
    a('v_xor_b32 %s, 64, %s' % (v(VXA1), v(VXA0)))
    a('v_lshrrev_b32 v3, 2, v0')
    a('v_mul_u32_u24 v3, 0x420, v3')
    a('v_and_b32 v15, 3, v0')
    a('v_lshl_add_u32 %s, v15, 3, v3' % v(VWM))
    a('s_mov_b32 s51, %d' % (-2 * SLOT & 0xffffffff))
    a('s_mov_b32 s52, %d' % SLOT)
    for i in range(128): a('v_mov_b32 %s, 0' % v(ACC + i))
    a('s_cmp_eq_u32 s44, 1')
    a('s_cbranch_scc1 L1_ffn')
    a('s_mul_i32 s48, s47, 80')
    a('v_add_u32 %s, s48, %s' % (v(VWM), v(VWM)))
    a('v_add_u32 v3, s48, v3')
    a('v_and_b32 v16, 1, v15')
    a('v_mad_u32_u24 v3, v16, 40, v3')
    a('v_add_u32 %s, 352, v3' % v(VWV))
    a('v_lshrrev_b32 v16, 1, v15')
    a('v_mul_u32_u24 v16, 160, v16')
    a('v_add3_u32 %s, v3, v16, 32' % v(VWQ))
    a('v_lshlrev_b32 v16, 2, v1')
    a('v_sub_u32 v16, v2, v16')
    a('v_mov_b32 v17, %s' % f32(-1e30))
    for r in range(4):
        a('v_subrev_u32 v18, %d, v16' % r)
        a('v_cmp_gt_u32 vcc, 8, v18')
        a('v_cndmask_b32 %s, v17, 0, vcc' % v(240 + r))
        a('v_cmp_gt_i32 vcc, -8, v18')
        a('v_cndmask_b32 %s, v17, 0, vcc' % v(244 + r))
        a('v_cmp_le_i32 vcc, 0, v18')
        a('v_cndmask_b32 %s, 0, -1, vcc' % v(20 + r))
        a('v_mov_b32 %s, 0x3f803f80' % v(250 + r))
    a('v_mov_b32 v17, 0xffff')
    a('v_bfi_b32 v248, v17, v20, v21')
    a('v_bfi_b32 v249, v17, v22, v23')
    a('s_mul_i32 s55, s37, 57')
    a('s_cmp_eq_u32 s37, 0')
    a('s_cselect_b32 s53, 0, 7')
    a('s_mov_b32 s54, %d' % RSTRIDE)
    a('s_lshl_b32 s58, s38, 1')
    a('s_add_u32 s58, s58, s47')
    a('s_lshl_b32 s58, s58, 12')
    a('s_lshl_b32 s59, s46, 10')
    a('s_add_u32 s58, s58, s59')
    a('v_lshlrev_b32 v19, 8, v1')
    for t in range(4):
        a('v_add_u32 v16, %d, v2' % (16 * t))
        a('v_add_u32 v17, s55, v16')
        tok_addr(a, 9 + t, 17, 18, 16)
        a('v_add_u32 %s, v19, %s' % (v(9 + t), v(9 + t)))
    a('s_lshr_b32 s60, s38, 1')
    a('s_add_u32 s60, s60, 16')
    a('s_lshl_b32 s60, s60, 12')
    a('s_add_u32 s59, s59, s60')
    a('s_and_b32 s60, s38, 1')
    a('s_lshl_b32 s60, s60, 1')
    a('s_add_u32 s60, s60, s47')
    a('s_lshl_b32 s60, s60, 8')
    a('s_add_u32 s59, s59, s60')
    a('v_and_b32 v19, 1, v1')
    a('v_lshlrev_b32 v19, 3, v19')
    a('v_lshrrev_b32 v20, 1, v1')
    a('v_lshl_add_u32 v20, v20, 4, v2')
    for u in range(2):
        a('v_add_u32 v16, %d, v20' % (32 * u))
        a('v_add_u32 v17, s55, v16')
        tok_addr(a, 13 + u, 17, 18, 16)
        a('v_add_u32 %s, v19, %s' % (v(13 + u), v(13 + u)))
    for g in range(4):
        m = 0xffff << (16 * g)
        a('s_mov_b32 %s, 0x%x' % (s(64 + 2 * g), m & 0xffffffff))
        a('s_mov_b32 %s, 0x%x' % (s(65 + 2 * g), m >> 32))
    cs = 20 ** -0.5 * math.log2(math.e)
    a('s_mov_b32 s62, %s' % f32(cs))
    a('s_mov_b32 s63, %s' % f32(-cs))
    k1_mainloop(a, True, 'att')
    gen_attention(a)
    if cfg.prof: a('s_waitcnt vmcnt(0)')
    stamp_flush(a, 0, 16)
    a('s_endpgm')
    a('L1_ffn:')
    a('s_lshl_b32 s48, s47, 8')
    a('v_add_u32 %s, s48, %s' % (v(VWM), v(VWM)))
    a('v_lshlrev_b32 v9, 4, v0')
    a('s_mul_i32 s58, s37, %d' % (2 * RSTRIDE))
    a('s_lshl_b32 s59, s38, 3')
    a('s_lshl_b32 s60, s47, 2')
    a('s_add_u32 s59, s59, s60')
    a('s_add_u32 s59, s59, 20')
    a('s_lshl_b32 s59, s59, 12')
    a('s_add_u32 s58, s58, s59')
    a('s_lshl_b32 s59, s46, 10')
    a('s_add_u32 s58, s58, s59')
    k1_mainloop(a, False, 'ffn')
    k = 0
    for m in range(4):
        for t in range(4):
            d = 16 + 4 * (k % 16); k += 1
            for h in range(2):
                A = acc(t, 2 * m + h)
                a('v_cvt_pk_bf16_f32 %s, %s, %s' % (v(d + 2 * h), v(A), v(A + 1)))
                a('v_cvt_pk_bf16_f32 %s, %s, %s' % (v(d + 2 * h + 1), v(A + 2), v(A + 3)))
            for i in range(4):
                a('v_pk_max_i16 %s, %s, 0' % (v(d + i), v(d + i)))
            a('s_add_u32 s59, s58, %d' % ((t >> 1) * RSTRIDE + m * 4096))
            a('buffer_store_dwordx4 %s, v9, s[28:31], s59 offen offset:%d' % (v(d, 4), (t & 1) * 2048) + stp())
    if cfg.prof: a('s_waitcnt vmcnt(0)')
    stamp_flush(a, 0, 16)
    a('s_endpgm')
    gen_prep(a)
    a('L1_end:')
    a('s_endpgm')

def gen_attention(a):
    KK = lambda t: 16 + 6 * t
    Q0 = lambda t: 40 + 8 * t
    Q1 = lambda t: 44 + 8 * t
    VP = lambda h, t: 72 + 8 * h + 2 * t
    M = lambda u: 96 + u
    SC = lambda u: 112 + 8 * u
    SP = lambda u: 116 + 8 * u
    P = lambda u: 176 + 4 * u
    SUM = lambda u: 208 + 4 * u
    def cvt(d, A):
        a('v_cvt_pk_bf16_f32 %s, %s, %s' % (v(d), v(A), v(A + 1)))
        a('v_cvt_pk_bf16_f32 %s, %s, %s' % (v(d + 1), v(A + 2), v(A + 3)))
    def conv_qk(t):
        cvt(Q1(t), acc(t, 4)); cvt(KK(t) + 2, acc(t, 4))
        cvt(Q0(t), acc(t, 0)); cvt(Q1(t) + 2, acc(t, 1))
        a('v_permlane32_swap_b32 %s, %s' % (v(Q1(t)), v(KK(t) + 2)))
        a('v_permlane32_swap_b32 %s, %s' % (v(Q1(t) + 1), v(KK(t) + 3)))
        cvt(KK(t), acc(t, 2)); cvt(KK(t) + 4, acc(t, 3))
        for i in range(2):
            a('v_cndmask_b32 %s, 0, %s, s[64:65]' % (v(Q0(t) + 2 + i), v(Q1(t) + i)))
            a('v_cndmask_b32 %s, 0, %s, s[66:67]' % (v(Q1(t) + i), v(Q1(t) + i)))
    def conv_v(t):
        for h in range(3): cvt(VP(h, t), acc(t, 5 + h))
    for t in range(4): conv_qk(t)
    conv_v(0); conv_v(1)
    Kop = lambda h, t: v(KK(t) + 2 * h, 4)
    Qop = lambda h, t: v(Q0(t) if h == 0 else Q1(t), 4)
    mf = []
    for h in range(2):
        for t in range(4):
            u = 4 * h + t
            mf.append('v_mfma_f32_16x16x32_bf16 %s, %s, %s, v[240:243]' % (v(SC(u), 4), Kop(h, t), Qop(h, t)))
            if t: mf.append('v_mfma_f32_16x16x32_bf16 %s, %s, %s, v[244:247]' % (v(SP(u), 4), Kop(h, t - 1), Qop(h, t)))
    cv = []
    for t in (2, 3):
        for h in range(3):
            A = acc(t, 5 + h); d = VP(h, t)
            cv.append('v_cvt_pk_bf16_f32 %s, %s, %s' % (v(d), v(A), v(A + 1)))
            cv.append('v_cvt_pk_bf16_f32 %s, %s, %s' % (v(d + 1), v(A + 2), v(A + 3)))
    interleave(a, mf, cv)
    for u in range(8):
        if u & 3:
            for r in range(4): a('v_max_f32 %s, %s, %s' % (v(SC(u) + r), v(SC(u) + r), v(SP(u) + r)))
        a('v_max3_f32 %s, %s, %s, %s' % (v(M(u)), v(SC(u)), v(SC(u) + 1), v(SC(u) + 2)))
        a('v_max_f32 %s, %s, %s' % (v(M(u)), v(M(u)), v(SC(u) + 3)))
    G = (0, 4)
    for b in G:
        a('v_permlane32_swap_b32 %s, %s' % (v(M(b)), v(M(b + 1))))
        a('v_permlane32_swap_b32 %s, %s' % (v(M(b + 2)), v(M(b + 3))))
    for b in G:
        a('v_max_f32 %s, %s, %s' % (v(M(b)), v(M(b)), v(M(b + 1))))
        a('v_max_f32 %s, %s, %s' % (v(M(b + 2)), v(M(b + 2)), v(M(b + 3))))
    for b in G: a('v_permlane16_swap_b32 %s, %s' % (v(M(b)), v(M(b + 2))))
    for b in G: a('v_max_f32 %s, %s, %s' % (v(M(b)), v(M(b)), v(M(b + 2))))
    for b in G: a('v_mul_f32 %s, s63, %s' % (v(M(b + 2)), v(M(b))))
    for b in G: a('v_mul_f32 %s, s63, %s' % (v(M(b)), v(M(b))))
    for b in G: a('v_permlane16_swap_b32 %s, %s' % (v(M(b)), v(M(b + 2))))
    for b in G:
        a('v_mov_b32 %s, %s' % (v(M(b + 1)), v(M(b))))
        a('v_mov_b32 %s, %s' % (v(M(b + 3)), v(M(b + 2))))
    for b in G:
        a('v_permlane32_swap_b32 %s, %s' % (v(M(b)), v(M(b + 1))))
        a('v_permlane32_swap_b32 %s, %s' % (v(M(b + 2)), v(M(b + 3))))
    pend = []
    for u in range(8):
        h, t = u >> 2, u & 3
        for r in range(4): a('v_fma_f32 %s, %s, s62, %s' % (v(SC(u) + r), v(SC(u) + r), v(M(u))))
        for r in range(4):
            a('v_exp_f32 %s, %s' % (v(SC(u) + r), v(SC(u) + r)))
            if pend: a(pend.pop(0))
        for x in pend: a(x)
        if t == 0:
            cvt(P(u) + 2, SC(u))
            op = 'v_mfma_f32_16x16x16_bf16'; B = v(P(u) + 2, 2); n = 2; o = 0
        else:
            cvt(P(u), SC(u))
            for i in range(2): a('v_and_b32 %s, %s, %s' % (v(P(u) + 2 + i), v(248 + i), v(P(u) + i)))
            for i in range(2): a('v_bfi_b32 %s, %s, 0, %s' % (v(P(u) + i), v(248 + i), v(P(u) + i)))
            op = 'v_mfma_f32_16x16x32_bf16'; B = v(P(u), 4); n = 4; o = -2
        pend = ['%s %s, %s, %s, 0' % (op, v(SUM(u), 4), v(250, n), B),
                '%s %s, %s, %s, 0' % (op, v(SC(u), 4), v(VP(h, t) + o, n), B),
                '%s %s, %s, %s, 0' % (op, v(SP(u), 4), v(VP(2, t) + o, n), B)]
    for x in pend: a(x)
    for u in range(8): a('v_rcp_f32 %s, %s' % (v(SUM(u)), v(SUM(u))))
    for t in range(4):
        for h in range(2):
            u = 4 * h + t
            for i in range(2):
                a('v_pk_mul_f32 %s, %s, %s op_sel_hi:[1,0]' % (v(SC(u) + 2 * i, 2), v(SC(u) + 2 * i, 2), v(SUM(u), 2)))
        for h in range(2): cvt(16 + 4 * t + 2 * h, SC(4 * h + t))
        a('buffer_store_dwordx4 %s, %s, s[28:31], s58 offen' % (v(16 + 4 * t, 4), v(9 + t)) + stp())
    for g in range(4):
        a('s_mov_b64 exec, %s' % s(64 + 2 * g, 2))
        for u2 in range(2):
            u = 4 * (g & 1) + 2 * u2 + (g >> 1)
            for i in range(2):
                a('v_pk_mul_f32 %s, %s, %s op_sel_hi:[1,0]' % (v(40 + 4 * u2 + 2 * i, 2), v(SP(u) + 2 * i, 2), v(SUM(u), 2)))
    a('s_mov_b64 exec, -1')
    for u2 in range(2):
        cvt(48 + 2 * u2, 40 + 4 * u2)
        a('buffer_store_dwordx2 %s, %s, s[28:31], s59 offen' % (v(48 + 2 * u2, 2), v(13 + u2)) + stp())

def gen_gate(a):
    GW, GX = 24, 64
    a('L1_ld_gate:')
    srd(a, 56, 10, 1280)
    srd(a, 28, 16, WS_SIZE)
    a('v_and_b32 v1, 7, v0')
    a('v_lshlrev_b32 v1, 4, v1')
    a('s_lshl_b32 s47, s38, 5')
    a('s_add_u32 s47, s47, s39')
    a('s_lshl_b32 s48, s46, 3')
    a('s_add_u32 s47, s47, s48')
    a('v_lshrrev_b32 v2, 3, v0')
    a('v_add_u32 v2, s47, v2')
    a('v_mul_u32_u24 v3, 0x500, v2')
    a('v_add_u32 v3, v3, v1')
    a('s_waitcnt vmcnt(0)')
    a('s_barrier')
    for i in range(10):
        a('buffer_load_dwordx4 %s, v1, s[56:59], 0 offen offset:%d' % (v(GW + 4 * i, 4), 128 * i))
    for i in range(10):
        a('buffer_load_dwordx4 %s, v3, s[20:23], 0 offen offset:%d' % (v(GX + 4 * i, 4), 128 * i))
    a('v_mov_b32 v9, 0')
    a('v_mov_b32 v10, 0')
    a('s_waitcnt vmcnt(0)')
    for i in range(40):
        a('v_dot2_f32_bf16 %s, %s, %s, %s' % (v(9 + (i & 1)), v(GX + i), v(GW + i), v(9 + (i & 1))))
    a('v_add_f32 v9, v9, v10')
    for pat in ('quad_perm:[1,0,3,2]', 'quad_perm:[2,3,0,1]', 'row_half_mirror'):
        a('v_add_f32_dpp v11, v9, v9 %s row_mask:0xf bank_mask:0xf' % pat)
        a('v_mov_b32 v9, v11')
    a('v_mul_f32 v9, %s, v9' % f32(-math.log2(math.e)))
    a('v_exp_f32 v9, v9')
    a('v_add_f32 v9, 1.0, v9')
    a('v_rcp_f32 v9, v9')
    a('v_lshlrev_b32 v2, 2, v2')
    a('v_mov_b32 v3, %s' % hex(BAD))
    a('v_cmp_eq_u32 vcc, 0, v1')
    a('v_cndmask_b32 v2, v3, v2, vcc')
    a('s_mov_b32 s60, %d' % WS_G)
    a('buffer_store_dword v9, v2, s[28:31], s60 offen' + stp())
    if cfg.prof: a('s_waitcnt vmcnt(0)')
    stamp_flush(a, 0, 16)
    a('s_endpgm')

def gen_prep(a):
    PITCH = 176
    LW = 32 * PITCH
    a('L1_prep:')
    a('s_sub_u32 s37, s34, 30')
    a('s_lshl_b32 s37, s37, 3')
    a('s_add_u32 s37, s37, s33')
    a('s_waitcnt lgkmcnt(0)')
    srd(a, 24, 8, 640 * 1280)
    srd(a, 40, 14, 1536 * 1280)
    srd(a, 28, 16, WS_SIZE)
    U = lambda u: 24 + 20 * u
    GW = 124
    GX = 164
    a('s_mul_i32 s48, s3, 160')
    a('s_mul_i32 s49, s3, %d' % LW)
    a('s_movk_i32 s50, 205')
    a('s_movk_i32 s51, 1280')
    a('s_movk_i32 s52, %d' % PITCH)
    for e in range(5):
        a('v_add_u32 v1, %d, v0' % (64 * e))
        a('v_mul_u32_u24 v2, s50, v1')
        a('v_lshrrev_b32 v2, 11, v2')
        a('v_mul_u32_u24 v3, 10, v2')
        a('v_sub_u32 v1, v1, v3')
        a('v_lshlrev_b32 v1, 4, v1')
        a('v_mad_u32_u24 %s, v2, s52, v1' % v(19 + e))
        a('v_add_u32 %s, s49, %s' % (v(19 + e), v(19 + e)))
        a('v_and_b32 v3, 3, v2')
        a('v_mad_u32_u24 v1, v3, s51, v1')
        a('v_add_u32 %s, s48, v1' % v(4 + e))
        a('v_lshrrev_b32 %s, 3, v2' % v(9 + e))
        a('v_bfe_u32 %s, v2, 2, 1' % v(14 + e))
    def addrs(al, be):
        a('s_movk_i32 s53, %d' % (al * 1280) if al * 1280 < 32768 else 's_mov_b32 s53, %d' % (al * 1280))
        a('s_movk_i32 s54, %d' % (be * 1280))
        for e in range(5):
            a('v_mad_u32_u24 %s, %s, s53, %s' % (v(244 + e), v(9 + e), v(4 + e)))
            a('v_mad_u32_u24 %s, %s, s54, %s' % (v(244 + e), v(14 + e), v(244 + e)))
    addrs(4, 16)
    a('s_mul_i32 s55, s37, %d' % (3 * 32 * 1280))
    for u in range(3):
        for e in range(5):
            a('buffer_load_dwordx4 %s, %s, s[40:43], s55 offen' % (v(U(u) + 4 * e, 4), v(244 + e)))
        if u < 2: a('s_add_u32 s55, s55, %d' % (32 * 1280))
    addrs(4, 20)
    a('s_mul_i32 s55, s37, %d' % (40 * 1280))
    for e in range(5):
        a('buffer_load_dwordx4 %s, %s, s[24:27], s55 offen' % (v(U(3) + 4 * e, 4), v(244 + e)))
    a('s_and_b32 s56, s37, 3')
    a('s_lshr_b32 s61, s37, 2')
    a('s_lshr_b32 s62, s3, 1')
    a('s_cmp_lg_u32 s61, s62')
    a('s_cbranch_scc1 L1_prep_norem')
    addrs(40, 20)
    a('s_mul_i32 s55, s56, %d' % (160 * 1280))
    a('s_add_u32 s55, s55, %d' % (16 * 1280))
    for e in range(5):
        a('buffer_load_dwordx4 %s, %s, s[24:27], s55 offen' % (v(U(4) + 4 * e, 4), v(244 + e)))
    a('L1_prep_norem:')
    a('v_lshrrev_b32 v4, 4, v0')
    a('v_bfe_u32 v5, v0, 2, 2')
    a('v_lshl_add_u32 v4, v4, 3, v5')
    a('v_mul_u32_u24 v4, s52, v4')
    a('v_add_u32 v4, s49, v4')
    a('v_and_b32 v5, 3, v0')
    a('v_lshl_add_u32 v6, v5, 3, v4')
    a('v_lshl_add_u32 v5, v5, 4, v4')
    a('v_lshlrev_b32 v7, 4, v0')
    a('v_add_u32 v8, 4096, v7')
    a('s_mul_i32 s59, s3, %d' % NBSTRIDE)
    a('s_add_u32 s59, s59, %d' % WS_B)
    for u in range(5):
        if u == 4:
            a('s_cmp_lg_u32 s61, s62')
            a('s_cbranch_scc1 L1_prep_done')
        a('s_waitcnt vmcnt(%d)' % (15 if u < 4 else 20))
        for e in range(5):
            a('ds_write_b128 %s, %s' % (v(19 + e), v(U(u) + 4 * e, 4)))
        if u < 3:
            a('s_mul_i32 s60, s37, 3'); a('s_add_u32 s60, s60, %d' % (20 + u))
        elif u == 3:
            a('s_mov_b32 s60, s37')
        else:
            a('s_add_u32 s60, s56, 16')
        a('s_mul_i32 s60, s60, 5120')
        a('s_add_u32 s60, s60, s59')
        a('s_waitcnt lgkmcnt(0)')
        for nt in range(5):
            for h in range(2):
                if nt < 4: reg, off = 5, 64 * (nt >> 1) + 8 * (nt & 1)
                else: reg, off = 6, 128
                a('ds_read_b64_tr_b16 %s, %s offset:%d' % (v(U(u) + 4 * nt + 2 * h, 2), v(reg), off + h * 4 * PITCH))
        a('s_waitcnt lgkmcnt(0)')
        for nt in range(5):
            a('buffer_store_dwordx4 %s, %s, s[28:31], s60 offen offset:%d' % (v(U(u) + 4 * nt, 4), v(7 if nt < 4 else 8), (nt & 3) * 1024) + stp())
    a('L1_prep_done:')
    if cfg.prof: a('s_waitcnt vmcnt(0)')
    stamp_flush(a, 0, 16)
    a('s_endpgm')

def gen_k2(a):
    D = cfg.k2depth
    RING = 16
    AC = RING + 36 * D
    accr = lambda m, nt: AC + (m * 5 + nt) * 4
    Bq = lambda q, nt: RING + 36 * q + 4 * nt
    Aq = lambda q, m: RING + 36 * q + 20 + 4 * m
    a('.globl %s' % K2); a('.p2align 8'); a('.type %s,@function' % K2)
    a('%s:' % K2)
    a('s_cmp_ge_u32 s2, 256')
    a('s_cbranch_scc1 L2_end')
    stamp(a, 0)
    a('s_load_dwordx2 s[4:5], s[0:1], 72')
    a('s_load_dwordx2 s[6:7], s[0:1], 56')
    a('v_lshrrev_b32 v1, 6, v0')
    a('v_and_b32 v0, 63, v0')
    a('v_readfirstlane_b32 s3, v1')
    a('s_and_b32 s16, s2, 7')
    a('s_lshr_b32 s17, s2, 3')
    a('s_and_b32 s18, s16, 1')
    a('s_lshl_b32 s18, s18, 2')
    a('s_and_b32 s19, s17, 3')
    a('s_add_u32 s18, s18, s19')
    a('s_lshr_b32 s19, s16, 1')
    a('s_lshl_b32 s19, s19, 3')
    a('s_lshr_b32 s20, s17, 2')
    a('s_add_u32 s19, s19, s20')
    a('s_lshl_b32 s20, s3, 4')
    a('s_add_u32 s20, s20, 4')
    a('s_cmp_eq_u32 s3, 0')
    a('s_cselect_b32 s20, 0, s20')
    if cfg.k2prio:
        a('s_cbranch_scc0 L2_noprio')
        a('s_setprio 3')
        a('L2_noprio:')
    a('s_cselect_b32 s21, %d, %d' % (20 // D - 1, 16 // D - 1))
    a('s_mul_i32 s22, s19, %d' % RSTRIDE)
    a('s_lshl_b32 s23, s20, 12')
    a('s_add_u32 s22, s22, s23')
    a('s_mul_i32 s23, s18, %d' % NBSTRIDE)
    a('s_mul_i32 s24, s20, 5120')
    a('s_add_u32 s23, s23, s24')
    a('s_add_u32 s23, s23, %d' % WS_B)
    a('v_lshlrev_b32 v2, 4, v0')
    a('v_add_u32 v3, 4096, v2')
    for m in range(4):
        a('s_add_u32 s24, s3, %d' % m)
        a('s_and_b32 s24, s24, 3')
        a('s_lshl_b32 s25, s24, 10')
        a('v_add_u32 %s, s25, v2' % v(4 + m))
        if m:
            a('s_mul_i32 s25, s24, 15360')
            a('s_add_u32 s25, s25, %d' % ((m - 1) * 5120))
            a('v_add_u32 %s, s25, v2' % v(8 + m))
    a('s_lshl_b32 s24, s19, 6')
    a('s_lshr_b32 s25, s3, 1')
    a('s_lshl_b32 s25, s25, 5')
    a('s_add_u32 s24, s24, s25')
    a('s_and_b32 s25, s3, 1')
    a('s_add_u32 s24, s24, s25')
    a('v_and_b32 v12, 15, v0')
    a('v_lshl_add_u32 v12, v12, 1, s24')
    a('v_lshlrev_b32 v13, 2, v12')
    a('s_mov_b32 s26, %d' % WS_G)
    a('s_waitcnt lgkmcnt(0)')
    srd(a, 8, 4, WS_SIZE)
    def ldB(q, nt): return 'buffer_load_dwordx4 %s, %s, s[8:11], s23 offen offset:%d' % (v(Bq(q, nt), 4), v(2 if nt < 4 else 3), (nt & 3) * 1024)
    def ldA(q, m): return 'buffer_load_dwordx4 %s, %s, s[8:11], s22 offen' % (v(Aq(q, m), 4), v(4 + m))
    adv = ['s_add_u32 s22, s22, 4096', 's_add_u32 s23, s23, 5120']
    a('buffer_load_dword v14, v13, s[8:11], s26 offen')
    for q in range(D):
        for nt in range(5): a(ldB(q, nt))
        for m in range(4): a(ldA(q, m))
        for x in adv: a(x)
    srd(a, 12, 6, 2048 * 1280)
    for i in range(80): a('v_mov_b32 %s, 0' % v(AC + i))
    def step(q, load, cnt):
        a('s_waitcnt vmcnt(%d)' % cnt)
        for nt in range(5):
            for m in range(4):
                A = v(accr(m, nt), 4)
                a('v_mfma_f32_16x16x32_bf16 %s, %s, %s, %s' % (A, v(Bq(q, nt), 4), v(Aq(q, m), 4), A))
                if load and nt == 4: a(ldA(q, m)) if False else None
            if load: a(ldB(q, nt))
        if load:
            for m in range(4): a(ldA(q, m))
            for x in adv: a(x)
    if cfg.prof: a('s_waitcnt vmcnt(%d)' % (9 * (D - 1)))
    stamp(a, 1)
    a('L2_loop:')
    for q in range(D): step(q, True, 9 * (D - 1))
    a('s_sub_u32 s21, s21, 1')
    a('s_cmp_lg_u32 s21, 0')
    a('s_cbranch_scc1 L2_loop')
    for q in range(D): step(q, False, 9 * (D - 1 - q))
    stamp(a, 2)
    for m in range(1, 4):
        for nt in range(5):
            a('ds_write_b128 %s, %s offset:%d' % (v(8 + m), v(accr(m, nt), 4), nt * 1024))
    a('v_sub_f32 v15, 1.0, v14')
    for m in range(4):
        a('s_cmp_eq_u32 s3, %d' % m)
        a('s_cselect_b64 vcc, -1, 0')
        a('v_cndmask_b32 %s, v15, v14, vcc' % v(16 + 2 * m))
    a('s_mul_i32 s25, s3, 15360')
    a('v_add_u32 v8, s25, v2')
    a('s_mul_i32 s25, s18, 160')
    a('v_mul_u32_u24 v12, 0x500, v12')
    a('v_lshrrev_b32 v13, 4, v0')
    a('v_lshl_add_u32 v9, v13, 3, v12')
    a('v_lshl_add_u32 v12, v13, 4, v12')
    for i in range(10):
        A = AC + 2 * i
        a('v_pk_mul_f32 %s, %s, v[16:17] op_sel_hi:[1,0]' % (v(A, 2), v(A, 2)))
    a('s_waitcnt lgkmcnt(0)')
    a('s_barrier')
    for m in range(1, 4):
        for nt in range(5):
            a('ds_read_b128 %s, v8 offset:%d' % (v(accr(m, nt), 4), ((m - 1) * 5 + nt) * 1024))
    for m in range(1, 4):
        a('s_waitcnt lgkmcnt(%d)' % (5 * (3 - m)))
        for i in range(10):
            A = AC + 2 * i
            a('v_pk_fma_f32 %s, %s, %s, %s op_sel_hi:[1,0,1]' % (v(A, 2), v(A + 20 * m, 2), v(16 + 2 * m, 2), v(A, 2)))
    for i in range(10):
        a('v_cvt_pk_bf16_f32 %s, %s, %s' % (v(24 + i), v(AC + 2 * i), v(AC + 2 * i + 1)))
    a('buffer_store_dwordx4 v[24:27], v12, s[12:15], s25 offen')
    a('buffer_store_dwordx4 v[28:31], v12, s[12:15], s25 offen offset:64')
    a('buffer_store_dwordx2 v[32:33], v9, s[12:15], s25 offen offset:128')
    if cfg.prof: a('s_waitcnt vmcnt(0)')
    stamp_flush(a, 1, 4)
    a('L2_end:')
    a('s_endpgm')
    return AC + 80

def desc(name, nv):
    nv = (nv + 7) // 8 * 8
    return '''.p2align 6
.amdhsa_kernel %s
  .amdhsa_next_free_vgpr %d
  .amdhsa_next_free_sgpr 102
  .amdhsa_accum_offset %d
  .amdhsa_group_segment_fixed_size 0
  .amdhsa_kernarg_size 80
  .amdhsa_user_sgpr_count 2
  .amdhsa_user_sgpr_kernarg_segment_ptr 1
  .amdhsa_system_sgpr_workgroup_id_x 1
.end_amdhsa_kernel
''' % (name, nv, nv)

def main():
    for arg in sys.argv[2:]:
        k, val = arg.split('='); setattr(cfg, k, int(val))
    a = Asm()
    gen_k1(a)
    nv2 = gen_k2(a)
    body = a.finish()
    hdr = '''; gated mix of sliding-window dilated attention and ReLU FFN, two launches.
; launch 1: qkv projection + attention, FFN up projection + relu, weight re-layout + gate
; launch 2: output projections (wo, w2) and gated mix
; @launch kernel=%s grid=(256,1,1) block=(512,1,1) lds=%d
; @launch kernel=%s grid=(256,1,1) block=(256,1,1) lds=%d
.amdgcn_target "amdgcn-amd-amdhsa--gfx950"
.text
''' % (K1, 3 * SLOT, K2, 61440)
    out = hdr + body + '.section .rodata,"a"\n' + desc(K1, 256) + desc(K2, nv2)
    open(sys.argv[1], 'w').write(out)
    print('nops inserted:', a.nops, 'bytes', len(out))

main()
```

```python
import sys, math, struct
from asmlib import Asm, v, s

NAME = 'gated_mix__sliding_local_dilated__dense_activation_relu__prompt'
K1 = NAME + '_kernel'
K2 = 'gm_stage2_kernel'

WS_A = 0
WS_B = 0x900000
WS_G = 0xC00000
WS_SIZE = 0xC02000
RSTRIDE = 68 * 4096
NBSTRIDE = 68 * 5120
SLOT = 50176
XOFF = 33792
BAD = 0x40000000

class Cfg:
    ra = 1
    rb = 5
    rc = 3
    rd = 5
    prof = 0
    k2depth = 4
    k2prio = 1
    pw = 35
    scr = 0
    stpol = 1
cfg = Cfg()

def stp():
    return ['', ' sc1', ' sc0 sc1', ' nt', ' sc1 nt', ' sc0 sc1 nt'][cfg.stpol]

def f32(x):
    return '0x%08x' % struct.unpack('<I', struct.pack('<f', x))[0]

def srd(a, d, lo, size):
    a('s_mov_b32 %s, %s' % (s(d), s(lo)))
    a('s_mov_b32 %s, %s' % (s(d + 1), s(lo + 1)))
    a('s_mov_b32 %s, %d' % (s(d + 2), size))
    a('s_mov_b32 %s, 0x00020000' % s(d + 3))

PROF = 0xD00000
def stamp(a, i):
    if cfg.prof:
        a('s_memrealtime %s' % s(80 + 2 * i, 2))
        a('s_memtime %s' % s(72 + 2 * i, 2))
def stamp_flush(a, kern, wsreg):
    if not cfg.prof: return
    a('s_memrealtime s[86:87]')
    a('s_memtime s[78:79]')
    a('s_mov_b32 s88, %s' % s(wsreg)); a('s_mov_b32 s89, %s' % s(wsreg + 1))
    a('s_mov_b32 s90, 0x1000000'); a('s_mov_b32 s91, 0x00020000')
    a('s_lshl_b32 s92, s2, 3'); a('s_add_u32 s92, s92, s3'); a('s_lshl_b32 s92, s92, 6')
    a('s_add_u32 s92, s92, %d' % (PROF + kern * 256 * 8 * 64))
    a('s_waitcnt lgkmcnt(0)')
    a('s_mov_b64 exec, 1')
    a('v_mov_b32 v0, 0')
    for i in range(8): a('v_mov_b32 %s, %s' % (v(4 + i), s(80 + i)))
    a('buffer_store_dwordx4 v[4:7], v0, s[88:91], s92 offen')
    a('buffer_store_dwordx4 v[8:11], v0, s[88:91], s92 offen offset:16')
    for i in range(8): a('v_mov_b32 %s, %s' % (v(12 + i), s(72 + i)))
    a('buffer_store_dwordx4 v[12:15], v0, s[88:91], s92 offen offset:32')
    a('buffer_store_dwordx4 v[16:19], v0, s[88:91], s92 offen offset:48')

def interleave(a, mf, rd, first=1, per=1):
    rd = list(rd)
    for i, m in enumerate(mf):
        a(m)
        for _ in range(per):
            if rd: a(rd.pop(0))
    for x in rd: a(x)

SETS = (16, 64)
ACC = 112
def acc(t, n): return ACC + (t * 8 + n) * 4
VXA0, VXA1, VWM, VWQ, VWV = 4, 5, 6, 7, 8

def k1_reads(att, st, ks):
    base = SETS[st]
    xa = VXA1 if ks else VXA0
    r = []
    xs = ['ds_read_b128 %s, %s offset:%d' % (v(base + 4 * t, 4), v(xa), t * 2048) for t in range(4)]
    ws = []
    for n in range(8):
        if att:
            reg, off = [(VWM, 0), (VWM, 40), (VWM, 160), (VWM, 200), (VWQ, 0), (VWM, 320), (VWM, 360), (VWV, 0)][n]
        else:
            reg, off = VWM, 32 * n
        for h in range(2):
            ws.append('ds_read_b64_tr_b16 %s, %s offset:%d' % (v(base + 16 + 4 * n + 2 * h, 2), v(reg), off + ks * 16896 + h * 512))
    r = ws[:2] + xs + ws[2:]
    return r

def k1_mfmas(att, st):
    base = SETS[st]
    m = []
    for n in range(8):
        for t in range(4):
            W = v(base + 16 + 4 * n, 4); X = v(base + 4 * t, 4); A = v(acc(t, n), 4)
            if att and n >= 5:
                m.append('v_mfma_f32_16x16x32_bf16 %s, %s, %s, %s' % (A, X, W, A))
            else:
                m.append('v_mfma_f32_16x16x32_bf16 %s, %s, %s, %s' % (A, W, X, A))
    return m

def k1_mainloop(a, att, tag):
    a('s_barrier')
    stamp(a, 1)
    for x in k1_reads(att, 0, 0): a(x)
    a('s_mov_b32 s48, 0')
    a('s_mov_b32 s49, 0')
    a('s_waitcnt lgkmcnt(0)')
    a('L_%s_loop:' % tag)
    pre = ['s_add_u32 s49, s49, 1', 's_cmp_eq_u32 s49, 3', 's_cselect_b32 s50, s51, s52', 's_cselect_b32 s49, 0, s49']
    adv = ['v_add_u32 %s, s50, %s' % (v(r), v(r)) for r in ([VXA0, VXA1, VWM, VWQ, VWV] if att else [VXA0, VXA1, VWM])]
    interleave(a, k1_mfmas(att, 0), k1_reads(att, 1, 1) + pre + adv)
    a('s_waitcnt lgkmcnt(0)')
    a('s_barrier')
    interleave(a, k1_mfmas(att, 1), k1_reads(att, 0, 0) + ['s_add_u32 s48, s48, 1', 's_cmp_lt_u32 s48, 10'])
    a('s_waitcnt lgkmcnt(0)')
    a('s_cbranch_scc1 L_%s_loop' % tag)
    stamp(a, 2)

def tok_addr(a, dst, vj, tmp, vloc):
    a('v_lshrrev_b32 %s, 5, %s' % (v(tmp), v(vj)))
    a('v_mul_u32_u24 %s, s54, %s' % (v(dst), v(tmp)))
    a('v_and_b32 %s, 16, %s' % (v(tmp), v(vj)))
    a('v_lshl_add_u32 %s, %s, 7, %s' % (v(dst), v(tmp), v(dst)))
    a('v_and_b32 %s, 15, %s' % (v(tmp), v(vj)))
    a('v_lshl_add_u32 %s, %s, 4, %s' % (v(dst), v(tmp), v(dst)))
    a('v_cmp_gt_u32 vcc, 0x400, %s' % v(vj))
    a('v_cmp_le_u32 s[56:57], s53, %s' % v(vloc))
    a('s_and_b64 vcc, vcc, s[56:57]')
    a('v_mov_b32 %s, %s' % (v(tmp), hex(BAD)))
    a('v_cndmask_b32 %s, %s, %s, vcc' % (v(dst), v(tmp), v(dst)))

def gen_k1(a):
    a('.globl %s' % K1); a('.p2align 8'); a('.type %s,@function' % K1)
    a('%s:' % K1)
    a('s_cmp_ge_u32 s2, 256')
    a('s_cbranch_scc1 L1_end')
    stamp(a, 0); stamp(a, 1); stamp(a, 2)
    a('s_load_dwordx4 s[4:7], s[0:1], 0')
    a('s_load_dwordx2 s[8:9], s[0:1], 16')
    a('s_load_dwordx4 s[12:15], s[0:1], 32')
    a('s_load_dwordx2 s[10:11], s[0:1], 48')
    a('s_load_dwordx2 s[16:17], s[0:1], 72')
    a('v_lshrrev_b32 v1, 6, v0')
    a('v_and_b32 v0, 63, v0')
    a('v_readfirstlane_b32 s3, v1')
    if cfg.scr & 1:
        a('s_lshr_b32 s33, s2, 5'); a('s_and_b32 s34, s2, 31')
    else:
        a('s_and_b32 s33, s2, 7')
        a('s_lshr_b32 s34, s2, 3')
    a('s_lshr_b32 s35, s33, 2')
    a('s_and_b32 s36, s33, 3')
    a('s_cmp_ge_u32 s34, 30')
    a('s_cbranch_scc1 L1_prep')
    a('s_cmp_ge_u32 s34, 18')
    a('s_cbranch_scc1 L1_ffn_setup')
    a('s_and_b32 s38, s34, 1')
    a('s_lshl_b32 s46, s36, 1')
    a('s_add_u32 s38, s38, s46')
    a('s_mul_i32 s37, s35, 9')
    a('s_lshr_b32 s46, s34, 1')
    a('s_add_u32 s37, s37, s46')
    a('s_mul_i32 s45, s46, %d' % cfg.ra)
    a('s_and_b32 s47, s38, 1')
    a('s_mul_i32 s47, s47, %d' % cfg.rb)
    a('s_add_u32 s45, s45, s47')
    a('s_mul_i32 s39, s37, 114')
    a('s_movk_i32 s40, 3840')
    a('s_movk_i32 s41, 29')
    a('s_movk_i32 s42, 1120')
    a('s_mul_i32 s43, s38, 160')
    a('s_mov_b32 s44, 0')
    a('s_waitcnt lgkmcnt(0)')
    srd(a, 24, 6, 640 * 3840)
    a('s_branch L1_common')
    a('L1_ffn_setup:')
    a('s_mul_i32 s46, s36, 12')
    a('s_add_u32 s46, s46, s34')
    a('s_sub_u32 s46, s46, 18')
    a('s_lshr_b32 s38, s46, 3')
    a('s_and_b32 s46, s46, 7')
    a('s_lshl_b32 s37, s35, 3')
    a('s_add_u32 s37, s37, s46')
    a('s_mul_i32 s45, s46, %d' % cfg.ra)
    a('s_and_b32 s47, s38, 1')
    a('s_mul_i32 s47, s47, %d' % cfg.rd)
    a('s_add_u32 s45, s45, s47')
    a('s_add_u32 s45, s45, %d' % cfg.rc)
    a('s_lshl_b32 s39, s37, 7')
    a('s_movk_i32 s40, 3072')
    a('s_movk_i32 s41, 31')
    a('s_mov_b32 s42, 0')
    a('s_lshl_b32 s43, s38, 9')
    a('s_mov_b32 s44, 1')
    a('s_waitcnt lgkmcnt(0)')
    srd(a, 24, 12, 640 * 3072)
    a('L1_common:')
    srd(a, 20, 4, 2048 * 1280)
    a('s_cmp_lt_u32 s3, 4')
    a('s_cbranch_scc1 L1_consumer')
    a('s_setprio 3')
    a('s_sub_u32 s46, s3, 4')
    a('v_lshrrev_b32 v2, 3, v0')
    a('v_lshrrev_b32 v3, 4, v0')
    a('v_and_b32 v4, 7, v0')
    a('s_lshr_b32 s47, s46, 1')
    a('s_add_u32 s47, s47, s39')
    a('s_and_b32 s48, s46, 1')
    a('s_lshl_b32 s48, s48, 6')
    a('s_add_u32 s47, s47, s48')
    a('v_lshl_add_u32 v5, v2, 1, s47')
    a('v_mul_u32_u24 v5, 0x500, v5')
    a('v_xor_b32 v4, v4, v3')
    a('v_lshl_add_u32 v16, v4, 4, v5')
    a('v_xor_b32 v4, 4, v4')
    a('v_lshl_add_u32 v17, v4, 4, v5')
    a('v_add_u32 v17, %d, v17' % (16 * 1280))
    a('v_add_u32 v18, %d, v16' % (32 * 1280))
    a('v_add_u32 v19, %d, v17' % (32 * 1280))
    a('v_and_b32 v1, 31, v0')
    a('v_min_u32 v1, s41, v1')
    a('v_mul_u32_u24 v2, 13, v1')
    a('v_lshrrev_b32 v2, 7, v2')
    a('v_lshlrev_b32 v1, 4, v1')
    a('v_mad_u32_u24 v1, v2, s42, v1')
    a('v_add_u32 v1, s43, v1')
    a('v_lshrrev_b32 v2, 5, v0')
    a('v_lshlrev_b32 v2, 2, v2')
    a('s_lshl_b32 s47, s46, 4')
    a('v_add_u32 v2, s47, v2')
    a('v_mad_u32_u24 v8, v2, s40, v1')
    a('s_lshl_b32 s47, s40, 3')
    a('v_add_u32 v12, s47, v8')
    for e in range(1, 4):
        a('v_add_u32 %s, s40, %s' % (v(8 + e), v(7 + e)))
        a('v_add_u32 %s, s40, %s' % (v(12 + e), v(11 + e)))
    a('s_mul_i32 s47, s45, 205')
    a('s_lshr_b32 s47, s47, 11')
    a('s_mul_i32 s47, s47, 10')
    a('s_sub_u32 s45, s45, s47')
    a('s_mov_b32 s48, 0')
    a('s_mov_b32 s49, 0')
    a('s_mul_i32 s50, s46, %d' % (8 * 1056))
    a('s_lshl_b32 s51, s46, 12')
    a('s_add_u32 s51, s51, %d' % XOFF)
    a('s_lshl_b32 s53, s40, 6')
    a('L1_ld_loop:')
    a('s_cmp_lt_u32 s48, 2')
    a('s_cbranch_scc1 L1_ld_nowait')
    a('s_waitcnt vmcnt(12)')
    a('s_barrier')
    a('L1_ld_nowait:')
    a('s_mul_i32 s52, s45, s53')
    a('s_lshl_b32 s54, s45, 7')
    a('s_add_u32 m0, s49, s51')
    for e in range(4):
        if e: a('s_add_u32 m0, m0, 1024')
        a('buffer_load_dwordx4 %s, s[20:23], s54 offen lds' % v(16 + e))
    a('s_add_u32 m0, s49, s50')
    for e in range(8):
        if e: a('s_add_u32 m0, m0, 1056')
        a('buffer_load_dwordx4 %s, s[24:27], s52 offen lds' % v(8 + e))
    a('s_add_u32 s45, s45, 1')
    a('s_cmp_eq_u32 s45, 10')
    a('s_cselect_b32 s45, 0, s45')
    a('s_add_u32 s49, s49, %d' % SLOT)
    a('s_cmp_eq_u32 s49, %d' % (3 * SLOT))
    a('s_cselect_b32 s49, 0, s49')
    a('s_add_u32 s48, s48, 1')
    a('s_cmp_lt_u32 s48, 10')
    a('s_cbranch_scc1 L1_ld_loop')
    stamp(a, 1)
    a('s_cmp_eq_u32 s44, 1')
    a('s_cselect_b32 s47, s38, 4')
    a('s_cmp_lt_u32 s47, 4')
    a('s_waitcnt vmcnt(12)')
    a('s_barrier')
    a('s_cbranch_scc1 L1_ld_gate')
    a('s_waitcnt vmcnt(0)')
    a('s_barrier')
    stamp_flush(a, 0, 16)
    a('s_endpgm')
    gen_gate(a)
    a('L1_consumer:')
    srd(a, 28, 16, WS_SIZE)
    a('s_and_b32 s46, s3, 1')
    a('s_lshr_b32 s47, s3, 1')
    a('v_lshrrev_b32 v1, 4, v0')
    a('v_and_b32 v2, 15, v0')
    a('v_bfe_u32 v3, v2, 1, 3')
    a('v_xor_b32 v3, v3, v1')
    a('v_lshlrev_b32 v3, 4, v3')
    a('v_lshl_add_u32 v3, v2, 7, v3')
    a('s_lshl_b32 s48, s46, 13')
    a('s_add_u32 s48, s48, %d' % XOFF)
    a('v_add_u32 %s, s48, v3' % v(VXA0))
    a('v_xor_b32 %s, 64, %s' % (v(VXA1), v(VXA0)))
    a('v_lshrrev_b32 v3, 2, v0')
    a('v_mul_u32_u24 v3, 0x420, v3')
    a('v_and_b32 v15, 3, v0')
    a('v_lshl_add_u32 %s, v15, 3, v3' % v(VWM))
    a('s_mov_b32 s51, %d' % (-2 * SLOT & 0xffffffff))
    a('s_mov_b32 s52, %d' % SLOT)
    for i in range(128): a('v_mov_b32 %s, 0' % v(ACC + i))
    a('s_cmp_eq_u32 s44, 1')
    a('s_cbranch_scc1 L1_ffn')
    a('s_mul_i32 s48, s47, 80')
    a('v_add_u32 %s, s48, %s' % (v(VWM), v(VWM)))
    a('v_add_u32 v3, s48, v3')
    a('v_and_b32 v16, 1, v15')
    a('v_mad_u32_u24 v3, v16, 40, v3')
    a('v_add_u32 %s, 352, v3' % v(VWV))
    a('v_lshrrev_b32 v16, 1, v15')
    a('v_mul_u32_u24 v16, 160, v16')
    a('v_add3_u32 %s, v3, v16, 32' % v(VWQ))
    a('v_lshlrev_b32 v16, 2, v1')
    a('v_sub_u32 v16, v2, v16')
    a('v_mov_b32 v17, %s' % f32(-1e30))
    for r in range(4):
        a('v_subrev_u32 v18, %d, v16' % r)
        a('v_cmp_gt_u32 vcc, 8, v18')
        a('v_cndmask_b32 %s, v17, 0, vcc' % v(240 + r))
        a('v_cmp_gt_i32 vcc, -8, v18')
        a('v_cndmask_b32 %s, v17, 0, vcc' % v(244 + r))
        a('v_cmp_le_i32 vcc, 0, v18')
        a('v_cndmask_b32 %s, 0, -1, vcc' % v(20 + r))
        a('v_mov_b32 %s, 0x3f803f80' % v(250 + r))
    a('v_mov_b32 v17, 0xffff')
    a('v_bfi_b32 v248, v17, v20, v21')
    a('v_bfi_b32 v249, v17, v22, v23')
    a('s_mul_i32 s55, s37, 57')
    a('s_cmp_eq_u32 s37, 0')
    a('s_cselect_b32 s53, 0, 7')
    a('s_mov_b32 s54, %d' % RSTRIDE)
    a('s_lshl_b32 s58, s38, 1')
    a('s_add_u32 s58, s58, s47')
    a('s_lshl_b32 s58, s58, 12')
    a('s_lshl_b32 s59, s46, 10')
    a('s_add_u32 s58, s58, s59')
    a('v_lshlrev_b32 v19, 8, v1')
    for t in range(4):
        a('v_add_u32 v16, %d, v2' % (16 * t))
        a('v_add_u32 v17, s55, v16')
        tok_addr(a, 9 + t, 17, 18, 16)
        a('v_add_u32 %s, v19, %s' % (v(9 + t), v(9 + t)))
    a('s_lshr_b32 s60, s38, 1')
    a('s_add_u32 s60, s60, 16')
    a('s_lshl_b32 s60, s60, 12')
    a('s_add_u32 s59, s59, s60')
    a('s_and_b32 s60, s38, 1')
    a('s_lshl_b32 s60, s60, 1')
    a('s_add_u32 s60, s60, s47')
    a('s_lshl_b32 s60, s60, 8')
    a('s_add_u32 s59, s59, s60')
    a('v_and_b32 v19, 1, v1')
    a('v_lshlrev_b32 v19, 3, v19')
    a('v_lshrrev_b32 v20, 1, v1')
    a('v_lshl_add_u32 v20, v20, 4, v2')
    for u in range(2):
        a('v_add_u32 v16, %d, v20' % (32 * u))
        a('v_add_u32 v17, s55, v16')
        tok_addr(a, 13 + u, 17, 18, 16)
        a('v_add_u32 %s, v19, %s' % (v(13 + u), v(13 + u)))
    for g in range(4):
        m = 0xffff << (16 * g)
        a('s_mov_b32 %s, 0x%x' % (s(64 + 2 * g), m & 0xffffffff))
        a('s_mov_b32 %s, 0x%x' % (s(65 + 2 * g), m >> 32))
    cs = 20 ** -0.5 * math.log2(math.e)
    a('s_mov_b32 s62, %s' % f32(cs))
    a('s_mov_b32 s63, %s' % f32(-cs))
    k1_mainloop(a, True, 'att')
    gen_attention(a)
    if cfg.prof: a('s_waitcnt vmcnt(0)')
    stamp_flush(a, 0, 16)
    a('s_endpgm')
    a('L1_ffn:')
    a('s_lshl_b32 s48, s47, 8')
    a('v_add_u32 %s, s48, %s' % (v(VWM), v(VWM)))
    a('v_lshlrev_b32 v9, 4, v0')
    a('s_mul_i32 s58, s37, %d' % (2 * RSTRIDE))
    a('s_lshl_b32 s59, s38, 3')
    a('s_lshl_b32 s60, s47, 2')
    a('s_add_u32 s59, s59, s60')
    a('s_add_u32 s59, s59, 20')
    a('s_lshl_b32 s59, s59, 12')
    a('s_add_u32 s58, s58, s59')
    a('s_lshl_b32 s59, s46, 10')
    a('s_add_u32 s58, s58, s59')
    k1_mainloop(a, False, 'ffn')
    k = 0
    for m in range(4):
        for t in range(4):
            d = 16 + 4 * (k % 16); k += 1
            for h in range(2):
                A = acc(t, 2 * m + h)
                a('v_cvt_pk_bf16_f32 %s, %s, %s' % (v(d + 2 * h), v(A), v(A + 1)))
                a('v_cvt_pk_bf16_f32 %s, %s, %s' % (v(d + 2 * h + 1), v(A + 2), v(A + 3)))
            for i in range(4):
                a('v_pk_max_i16 %s, %s, 0' % (v(d + i), v(d + i)))
            a('s_add_u32 s59, s58, %d' % ((t >> 1) * RSTRIDE + m * 4096))
            a('buffer_store_dwordx4 %s, v9, s[28:31], s59 offen offset:%d' % (v(d, 4), (t & 1) * 2048) + stp())
    if cfg.prof: a('s_waitcnt vmcnt(0)')
    stamp_flush(a, 0, 16)
    a('s_endpgm')
    gen_prep(a)
    a('L1_end:')
    a('s_endpgm')

def gen_attention(a):
    KK = lambda t: 16 + 6 * t
    Q0 = lambda t: 40 + 8 * t
    Q1 = lambda t: 44 + 8 * t
    VP = lambda h, t: 72 + 8 * h + 2 * t
    M = lambda u: 96 + u
    SC = lambda u: 112 + 8 * u
    SP = lambda u: 116 + 8 * u
    P = lambda u: 176 + 4 * u
    SUM = lambda u: 208 + 4 * u
    def cvt(d, A):
        a('v_cvt_pk_bf16_f32 %s, %s, %s' % (v(d), v(A), v(A + 1)))
        a('v_cvt_pk_bf16_f32 %s, %s, %s' % (v(d + 1), v(A + 2), v(A + 3)))
    def conv_qk(t):
        cvt(Q1(t), acc(t, 4)); cvt(KK(t) + 2, acc(t, 4))
        cvt(Q0(t), acc(t, 0)); cvt(Q1(t) + 2, acc(t, 1))
        a('v_permlane32_swap_b32 %s, %s' % (v(Q1(t)), v(KK(t) + 2)))
        a('v_permlane32_swap_b32 %s, %s' % (v(Q1(t) + 1), v(KK(t) + 3)))
        cvt(KK(t), acc(t, 2)); cvt(KK(t) + 4, acc(t, 3))
        for i in range(2):
            a('v_cndmask_b32 %s, 0, %s, s[64:65]' % (v(Q0(t) + 2 + i), v(Q1(t) + i)))
            a('v_cndmask_b32 %s, 0, %s, s[66:67]' % (v(Q1(t) + i), v(Q1(t) + i)))
    def conv_v(t):
        for h in range(3): cvt(VP(h, t), acc(t, 5 + h))
    for t in range(4): conv_qk(t)
    conv_v(0); conv_v(1)
    Kop = lambda h, t: v(KK(t) + 2 * h, 4)
    Qop = lambda h, t: v(Q0(t) if h == 0 else Q1(t), 4)
    mf = []
    for h in range(2):
        for t in range(4):
            u = 4 * h + t
            mf.append('v_mfma_f32_16x16x32_bf16 %s, %s, %s, v[240:243]' % (v(SC(u), 4), Kop(h, t), Qop(h, t)))
            if t: mf.append('v_mfma_f32_16x16x32_bf16 %s, %s, %s, v[244:247]' % (v(SP(u), 4), Kop(h, t - 1), Qop(h, t)))
    cv = []
    for t in (2, 3):
        for h in range(3):
            A = acc(t, 5 + h); d = VP(h, t)
            cv.append('v_cvt_pk_bf16_f32 %s, %s, %s' % (v(d), v(A), v(A + 1)))
            cv.append('v_cvt_pk_bf16_f32 %s, %s, %s' % (v(d + 1), v(A + 2), v(A + 3)))
    interleave(a, mf, cv)
    for u in range(8):
        if u & 3:
            for r in range(4): a('v_max_f32 %s, %s, %s' % (v(SC(u) + r), v(SC(u) + r), v(SP(u) + r)))
        a('v_max3_f32 %s, %s, %s, %s' % (v(M(u)), v(SC(u)), v(SC(u) + 1), v(SC(u) + 2)))
        a('v_max_f32 %s, %s, %s' % (v(M(u)), v(M(u)), v(SC(u) + 3)))
    G = (0, 4)
    for b in G:
        a('v_permlane32_swap_b32 %s, %s' % (v(M(b)), v(M(b + 1))))
        a('v_permlane32_swap_b32 %s, %s' % (v(M(b + 2)), v(M(b + 3))))
    for b in G:
        a('v_max_f32 %s, %s, %s' % (v(M(b)), v(M(b)), v(M(b + 1))))
        a('v_max_f32 %s, %s, %s' % (v(M(b + 2)), v(M(b + 2)), v(M(b + 3))))
    for b in G: a('v_permlane16_swap_b32 %s, %s' % (v(M(b)), v(M(b + 2))))
    for b in G: a('v_max_f32 %s, %s, %s' % (v(M(b)), v(M(b)), v(M(b + 2))))
    for b in G: a('v_mul_f32 %s, s63, %s' % (v(M(b + 2)), v(M(b))))
    for b in G: a('v_mul_f32 %s, s63, %s' % (v(M(b)), v(M(b))))
    for b in G: a('v_permlane16_swap_b32 %s, %s' % (v(M(b)), v(M(b + 2))))
    for b in G:
        a('v_mov_b32 %s, %s' % (v(M(b + 1)), v(M(b))))
        a('v_mov_b32 %s, %s' % (v(M(b + 3)), v(M(b + 2))))
    for b in G:
        a('v_permlane32_swap_b32 %s, %s' % (v(M(b)), v(M(b + 1))))
        a('v_permlane32_swap_b32 %s, %s' % (v(M(b + 2)), v(M(b + 3))))
    pend = []
    for u in range(8):
        h, t = u >> 2, u & 3
        for r in range(4): a('v_fma_f32 %s, %s, s62, %s' % (v(SC(u) + r), v(SC(u) + r), v(M(u))))
        for r in range(4):
            a('v_exp_f32 %s, %s' % (v(SC(u) + r), v(SC(u) + r)))
            if pend: a(pend.pop(0))
        for x in pend: a(x)
        if t == 0:
            cvt(P(u) + 2, SC(u))
            op = 'v_mfma_f32_16x16x16_bf16'; B = v(P(u) + 2, 2); n = 2; o = 0
        else:
            cvt(P(u), SC(u))
            for i in range(2): a('v_and_b32 %s, %s, %s' % (v(P(u) + 2 + i), v(248 + i), v(P(u) + i)))
            for i in range(2): a('v_bfi_b32 %s, %s, 0, %s' % (v(P(u) + i), v(248 + i), v(P(u) + i)))
            op = 'v_mfma_f32_16x16x32_bf16'; B = v(P(u), 4); n = 4; o = -2
        pend = ['%s %s, %s, %s, 0' % (op, v(SUM(u), 4), v(250, n), B),
                '%s %s, %s, %s, 0' % (op, v(SC(u), 4), v(VP(h, t) + o, n), B),
                '%s %s, %s, %s, 0' % (op, v(SP(u), 4), v(VP(2, t) + o, n), B)]
    for x in pend: a(x)
    for u in range(8): a('v_rcp_f32 %s, %s' % (v(SUM(u)), v(SUM(u))))
    for t in range(4):
        for h in range(2):
            u = 4 * h + t
            for i in range(2):
                a('v_pk_mul_f32 %s, %s, %s op_sel_hi:[1,0]' % (v(SC(u) + 2 * i, 2), v(SC(u) + 2 * i, 2), v(SUM(u), 2)))
        for h in range(2): cvt(16 + 4 * t + 2 * h, SC(4 * h + t))
        a('buffer_store_dwordx4 %s, %s, s[28:31], s58 offen' % (v(16 + 4 * t, 4), v(9 + t)) + stp())
    for g in range(4):
        a('s_mov_b64 exec, %s' % s(64 + 2 * g, 2))
        for u2 in range(2):
            u = 4 * (g & 1) + 2 * u2 + (g >> 1)
            for i in range(2):
                a('v_pk_mul_f32 %s, %s, %s op_sel_hi:[1,0]' % (v(40 + 4 * u2 + 2 * i, 2), v(SP(u) + 2 * i, 2), v(SUM(u), 2)))
    a('s_mov_b64 exec, -1')
    for u2 in range(2):
        cvt(48 + 2 * u2, 40 + 4 * u2)
        a('buffer_store_dwordx2 %s, %s, s[28:31], s59 offen' % (v(48 + 2 * u2, 2), v(13 + u2)) + stp())

def gen_gate(a):
    GW, GX = 24, 64
    a('L1_ld_gate:')
    srd(a, 56, 10, 1280)
    srd(a, 28, 16, WS_SIZE)
    a('v_and_b32 v1, 7, v0')
    a('v_lshlrev_b32 v1, 4, v1')
    a('s_lshl_b32 s47, s38, 5')
    a('s_add_u32 s47, s47, s39')
    a('s_lshl_b32 s48, s46, 3')
    a('s_add_u32 s47, s47, s48')
    a('v_lshrrev_b32 v2, 3, v0')
    a('v_add_u32 v2, s47, v2')
    a('v_mul_u32_u24 v3, 0x500, v2')
    a('v_add_u32 v3, v3, v1')
    a('s_waitcnt vmcnt(0)')
    a('s_barrier')
    for i in range(10):
        a('buffer_load_dwordx4 %s, v1, s[56:59], 0 offen offset:%d' % (v(GW + 4 * i, 4), 128 * i))
    for i in range(10):
        a('buffer_load_dwordx4 %s, v3, s[20:23], 0 offen offset:%d' % (v(GX + 4 * i, 4), 128 * i))
    a('v_mov_b32 v9, 0')
    a('v_mov_b32 v10, 0')
    a('s_waitcnt vmcnt(0)')
    for i in range(40):
        a('v_dot2_f32_bf16 %s, %s, %s, %s' % (v(9 + (i & 1)), v(GX + i), v(GW + i), v(9 + (i & 1))))
    a('v_add_f32 v9, v9, v10')
    for pat in ('quad_perm:[1,0,3,2]', 'quad_perm:[2,3,0,1]', 'row_half_mirror'):
        a('v_add_f32_dpp v11, v9, v9 %s row_mask:0xf bank_mask:0xf' % pat)
        a('v_mov_b32 v9, v11')
    a('v_mul_f32 v9, %s, v9' % f32(-math.log2(math.e)))
    a('v_exp_f32 v9, v9')
    a('v_add_f32 v9, 1.0, v9')
    a('v_rcp_f32 v9, v9')
    a('v_lshlrev_b32 v2, 2, v2')
    a('v_mov_b32 v3, %s' % hex(BAD))
    a('v_cmp_eq_u32 vcc, 0, v1')
    a('v_cndmask_b32 v2, v3, v2, vcc')
    a('s_mov_b32 s60, %d' % WS_G)
    a('buffer_store_dword v9, v2, s[28:31], s60 offen' + stp())
    if cfg.prof: a('s_waitcnt vmcnt(0)')
    stamp_flush(a, 0, 16)
    a('s_endpgm')

def gen_prep(a):
    PITCH = 176
    LW = 32 * PITCH
    a('L1_prep:')
    a('s_sub_u32 s37, s34, 30')
    a('s_lshl_b32 s37, s37, 3')
    a('s_add_u32 s37, s37, s33')
    a('s_waitcnt lgkmcnt(0)')
    srd(a, 24, 8, 640 * 1280)
    srd(a, 40, 14, 1536 * 1280)
    srd(a, 28, 16, WS_SIZE)
    U = lambda u: 24 + 20 * u
    GW = 124
    GX = 164
    a('s_mul_i32 s48, s3, 160')
    a('s_mul_i32 s49, s3, %d' % LW)
    a('s_movk_i32 s50, 205')
    a('s_movk_i32 s51, 1280')
    a('s_movk_i32 s52, %d' % PITCH)
    for e in range(5):
        a('v_add_u32 v1, %d, v0' % (64 * e))
        a('v_mul_u32_u24 v2, s50, v1')
        a('v_lshrrev_b32 v2, 11, v2')
        a('v_mul_u32_u24 v3, 10, v2')
        a('v_sub_u32 v1, v1, v3')
        a('v_lshlrev_b32 v1, 4, v1')
        a('v_mad_u32_u24 %s, v2, s52, v1' % v(19 + e))
        a('v_add_u32 %s, s49, %s' % (v(19 + e), v(19 + e)))
        a('v_and_b32 v3, 3, v2')
        a('v_mad_u32_u24 v1, v3, s51, v1')
        a('v_add_u32 %s, s48, v1' % v(4 + e))
        a('v_lshrrev_b32 %s, 3, v2' % v(9 + e))
        a('v_bfe_u32 %s, v2, 2, 1' % v(14 + e))
    def addrs(al, be):
        a('s_movk_i32 s53, %d' % (al * 1280) if al * 1280 < 32768 else 's_mov_b32 s53, %d' % (al * 1280))
        a('s_movk_i32 s54, %d' % (be * 1280))
        for e in range(5):
            a('v_mad_u32_u24 %s, %s, s53, %s' % (v(244 + e), v(9 + e), v(4 + e)))
            a('v_mad_u32_u24 %s, %s, s54, %s' % (v(244 + e), v(14 + e), v(244 + e)))
    addrs(4, 16)
    a('s_mul_i32 s55, s37, %d' % (3 * 32 * 1280))
    for u in range(3):
        for e in range(5):
            a('buffer_load_dwordx4 %s, %s, s[40:43], s55 offen' % (v(U(u) + 4 * e, 4), v(244 + e)))
        if u < 2: a('s_add_u32 s55, s55, %d' % (32 * 1280))
    addrs(4, 20)
    a('s_mul_i32 s55, s37, %d' % (40 * 1280))
    for e in range(5):
        a('buffer_load_dwordx4 %s, %s, s[24:27], s55 offen' % (v(U(3) + 4 * e, 4), v(244 + e)))
    a('s_and_b32 s56, s37, 3')
    a('s_lshr_b32 s61, s37, 2')
    a('s_lshr_b32 s62, s3, 1')
    a('s_cmp_lg_u32 s61, s62')
    a('s_cbranch_scc1 L1_prep_norem')
    addrs(40, 20)
    a('s_mul_i32 s55, s56, %d' % (160 * 1280))
    a('s_add_u32 s55, s55, %d' % (16 * 1280))
    for e in range(5):
        a('buffer_load_dwordx4 %s, %s, s[24:27], s55 offen' % (v(U(4) + 4 * e, 4), v(244 + e)))
    a('L1_prep_norem:')
    a('v_lshrrev_b32 v4, 4, v0')
    a('v_bfe_u32 v5, v0, 2, 2')
    a('v_lshl_add_u32 v4, v4, 3, v5')
    a('v_mul_u32_u24 v4, s52, v4')
    a('v_add_u32 v4, s49, v4')
    a('v_and_b32 v5, 3, v0')
    a('v_lshl_add_u32 v6, v5, 3, v4')
    a('v_lshl_add_u32 v5, v5, 4, v4')
    a('v_lshlrev_b32 v7, 4, v0')
    a('v_add_u32 v8, 4096, v7')
    a('s_mul_i32 s59, s3, %d' % NBSTRIDE)
    a('s_add_u32 s59, s59, %d' % WS_B)
    for u in range(5):
        if u == 4:
            a('s_cmp_lg_u32 s61, s62')
            a('s_cbranch_scc1 L1_prep_done')
        a('s_waitcnt vmcnt(%d)' % (15 if u < 4 else 20))
        for e in range(5):
            a('ds_write_b128 %s, %s' % (v(19 + e), v(U(u) + 4 * e, 4)))
        if u < 3:
            a('s_mul_i32 s60, s37, 3'); a('s_add_u32 s60, s60, %d' % (20 + u))
        elif u == 3:
            a('s_mov_b32 s60, s37')
        else:
            a('s_add_u32 s60, s56, 16')
        a('s_mul_i32 s60, s60, 5120')
        a('s_add_u32 s60, s60, s59')
        a('s_waitcnt lgkmcnt(0)')
        for nt in range(5):
            for h in range(2):
                if nt < 4: reg, off = 5, 64 * (nt >> 1) + 8 * (nt & 1)
                else: reg, off = 6, 128
                a('ds_read_b64_tr_b16 %s, %s offset:%d' % (v(U(u) + 4 * nt + 2 * h, 2), v(reg), off + h * 4 * PITCH))
        a('s_waitcnt lgkmcnt(0)')
        for nt in range(5):
            a('buffer_store_dwordx4 %s, %s, s[28:31], s60 offen offset:%d' % (v(U(u) + 4 * nt, 4), v(7 if nt < 4 else 8), (nt & 3) * 1024) + stp())
    a('L1_prep_done:')
    if cfg.prof: a('s_waitcnt vmcnt(0)')
    stamp_flush(a, 0, 16)
    a('s_endpgm')

def gen_k2(a):
    D = cfg.k2depth
    RING = 16
    AC = RING + 36 * D
    accr = lambda m, nt: AC + (m * 5 + nt) * 4
    Bq = lambda q, nt: RING + 36 * q + 4 * nt
    Aq = lambda q, m: RING + 36 * q + 20 + 4 * m
    a('.globl %s' % K2); a('.p2align 8'); a('.type %s,@function' % K2)
    a('%s:' % K2)
    a('s_cmp_ge_u32 s2, 256')
    a('s_cbranch_scc1 L2_end')
    stamp(a, 0)
    a('s_load_dwordx2 s[4:5], s[0:1], 72')
    a('s_load_dwordx2 s[6:7], s[0:1], 56')
    a('v_lshrrev_b32 v1, 6, v0')
    a('v_and_b32 v0, 63, v0')
    a('v_readfirstlane_b32 s3, v1')
    if cfg.scr & 2:
        a('s_lshr_b32 s16, s2, 5'); a('s_and_b32 s17, s2, 31')
    else:
        a('s_and_b32 s16, s2, 7')
        a('s_lshr_b32 s17, s2, 3')
    a('s_and_b32 s18, s16, 1')
    a('s_lshl_b32 s18, s18, 2')
    a('s_and_b32 s19, s17, 3')
    a('s_add_u32 s18, s18, s19')
    a('s_lshr_b32 s19, s16, 1')
    a('s_lshl_b32 s19, s19, 3')
    a('s_lshr_b32 s20, s17, 2')
    a('s_add_u32 s19, s19, s20')
    a('s_lshl_b32 s20, s3, 4')
    a('s_add_u32 s20, s20, 4')
    a('s_cmp_eq_u32 s3, 0')
    a('s_cselect_b32 s20, 0, s20')
    if cfg.k2prio:
        a('s_cbranch_scc0 L2_noprio')
        a('s_setprio 3')
        a('L2_noprio:')
    a('s_cselect_b32 s21, %d, %d' % (20 // D - 1, 16 // D - 1))
    a('s_mul_i32 s22, s19, %d' % RSTRIDE)
    a('s_lshl_b32 s23, s20, 12')
    a('s_add_u32 s22, s22, s23')
    a('s_mul_i32 s23, s18, %d' % NBSTRIDE)
    a('s_mul_i32 s24, s20, 5120')
    a('s_add_u32 s23, s23, s24')
    a('s_add_u32 s23, s23, %d' % WS_B)
    a('v_lshlrev_b32 v2, 4, v0')
    a('v_add_u32 v3, 4096, v2')
    for m in range(4):
        a('s_add_u32 s24, s3, %d' % m)
        a('s_and_b32 s24, s24, 3')
        a('s_lshl_b32 s25, s24, 10')
        a('v_add_u32 %s, s25, v2' % v(4 + m))
        if m:
            a('s_mul_i32 s25, s24, 15360')
            a('s_add_u32 s25, s25, %d' % ((m - 1) * 5120))
            a('v_add_u32 %s, s25, v2' % v(8 + m))
    a('s_lshl_b32 s24, s19, 6')
    a('s_lshr_b32 s25, s3, 1')
    a('s_lshl_b32 s25, s25, 5')
    a('s_add_u32 s24, s24, s25')
    a('s_and_b32 s25, s3, 1')
    a('s_add_u32 s24, s24, s25')
    a('v_and_b32 v12, 15, v0')
    a('v_lshl_add_u32 v12, v12, 1, s24')
    a('v_lshlrev_b32 v13, 2, v12')
    a('s_mov_b32 s26, %d' % WS_G)
    a('s_waitcnt lgkmcnt(0)')
    srd(a, 8, 4, WS_SIZE)
    def ldB(q, nt): return 'buffer_load_dwordx4 %s, %s, s[8:11], s23 offen offset:%d' % (v(Bq(q, nt), 4), v(2 if nt < 4 else 3), (nt & 3) * 1024)
    def ldA(q, m): return 'buffer_load_dwordx4 %s, %s, s[8:11], s22 offen' % (v(Aq(q, m), 4), v(4 + m))
    adv = ['s_add_u32 s22, s22, 4096', 's_add_u32 s23, s23, 5120']
    a('buffer_load_dword v14, v13, s[8:11], s26 offen')
    for q in range(D):
        for nt in range(5): a(ldB(q, nt))
        for m in range(4): a(ldA(q, m))
        for x in adv: a(x)
    srd(a, 12, 6, 2048 * 1280)
    for i in range(80): a('v_mov_b32 %s, 0' % v(AC + i))
    def step(q, load, cnt):
        a('s_waitcnt vmcnt(%d)' % cnt)
        for nt in range(5):
            for m in range(4):
                A = v(accr(m, nt), 4)
                a('v_mfma_f32_16x16x32_bf16 %s, %s, %s, %s' % (A, v(Bq(q, nt), 4), v(Aq(q, m), 4), A))
                if load and nt == 4: a(ldA(q, m)) if False else None
            if load: a(ldB(q, nt))
        if load:
            for m in range(4): a(ldA(q, m))
            for x in adv: a(x)
    if cfg.prof: a('s_waitcnt vmcnt(%d)' % (9 * (D - 1)))
    stamp(a, 1)
    a('L2_loop:')
    for q in range(D): step(q, True, 9 * (D - 1))
    a('s_sub_u32 s21, s21, 1')
    a('s_cmp_lg_u32 s21, 0')
    a('s_cbranch_scc1 L2_loop')
    for q in range(D): step(q, False, 9 * (D - 1 - q))
    stamp(a, 2)
    for m in range(1, 4):
        for nt in range(5):
            a('ds_write_b128 %s, %s offset:%d' % (v(8 + m), v(accr(m, nt), 4), nt * 1024))
    a('v_sub_f32 v15, 1.0, v14')
    for m in range(4):
        a('s_cmp_eq_u32 s3, %d' % m)
        a('s_cselect_b64 vcc, -1, 0')
        a('v_cndmask_b32 %s, v15, v14, vcc' % v(16 + 2 * m))
    a('s_mul_i32 s25, s3, 15360')
    a('v_add_u32 v8, s25, v2')
    a('s_mul_i32 s25, s18, 160')
    a('v_mul_u32_u24 v12, 0x500, v12')
    a('v_lshrrev_b32 v13, 4, v0')
    a('v_lshl_add_u32 v9, v13, 3, v12')
    a('v_lshl_add_u32 v12, v13, 4, v12')
    for i in range(10):
        A = AC + 2 * i
        a('v_pk_mul_f32 %s, %s, v[16:17] op_sel_hi:[1,0]' % (v(A, 2), v(A, 2)))
    a('s_waitcnt lgkmcnt(0)')
    a('s_barrier')
    for m in range(1, 4):
        for nt in range(5):
            a('ds_read_b128 %s, v8 offset:%d' % (v(accr(m, nt), 4), ((m - 1) * 5 + nt) * 1024))
    for m in range(1, 4):
        a('s_waitcnt lgkmcnt(%d)' % (5 * (3 - m)))
        for i in range(10):
            A = AC + 2 * i
            a('v_pk_fma_f32 %s, %s, %s, %s op_sel_hi:[1,0,1]' % (v(A, 2), v(A + 20 * m, 2), v(16 + 2 * m, 2), v(A, 2)))
    for i in range(10):
        a('v_cvt_pk_bf16_f32 %s, %s, %s' % (v(24 + i), v(AC + 2 * i), v(AC + 2 * i + 1)))
    a('buffer_store_dwordx4 v[24:27], v12, s[12:15], s25 offen')
    a('buffer_store_dwordx4 v[28:31], v12, s[12:15], s25 offen offset:64')
    a('buffer_store_dwordx2 v[32:33], v9, s[12:15], s25 offen offset:128')
    if cfg.prof: a('s_waitcnt vmcnt(0)')
    stamp_flush(a, 1, 4)
    a('L2_end:')
    a('s_endpgm')
    return AC + 80

def desc(name, nv):
    nv = (nv + 7) // 8 * 8
    return '''.p2align 6
.amdhsa_kernel %s
  .amdhsa_next_free_vgpr %d
  .amdhsa_next_free_sgpr 102
  .amdhsa_accum_offset %d
  .amdhsa_group_segment_fixed_size 0
  .amdhsa_kernarg_size 80
  .amdhsa_user_sgpr_count 2
  .amdhsa_user_sgpr_kernarg_segment_ptr 1
  .amdhsa_system_sgpr_workgroup_id_x 1
.end_amdhsa_kernel
''' % (name, nv, nv)

def main():
    for arg in sys.argv[2:]:
        k, val = arg.split('='); setattr(cfg, k, int(val))
    a = Asm()
    gen_k1(a)
    nv2 = gen_k2(a)
    body = a.finish()
    hdr = '''; gated mix of sliding-window dilated attention and ReLU FFN, two launches.
; launch 1: qkv projection + attention, FFN up projection + relu, weight re-layout + gate
; launch 2: output projections (wo, w2) and gated mix
; @launch kernel=%s grid=(256,1,1) block=(512,1,1) lds=%d
; @launch kernel=%s grid=(256,1,1) block=(256,1,1) lds=%d
.amdgcn_target "amdgcn-amd-amdhsa--gfx950"
.text
''' % (K1, 3 * SLOT, K2, 61440)
    out = hdr + body + '.section .rodata,"a"\n' + desc(K1, 256) + desc(K2, nv2)
    open(sys.argv[1], 'w').write(out)
    print('nops inserted:', a.nops, 'bytes', len(out))

main()
```

```python
import sys, math, struct
from asmlib import Asm, v, s

NAME = 'gated_mix__sliding_local_dilated__dense_activation_relu__prompt'
K1 = NAME + '_kernel'
K2 = 'gm_stage2_kernel'

WS_A = 0
WS_B = 0x900000
WS_G = 0xC00000
WS_SIZE = 0xC02000
RSTRIDE = 68 * 4096
NBSTRIDE = 68 * 5120
SLOT = 50176
XOFF = 33792
BAD = 0x40000000

class Cfg:
    ra = 1
    rb = 5
    rc = 3
    rd = 5
    prof = 0
    k2depth = 4
    k2prio = 1
    pw = 35
    scr = 0
    k2st = 0
    stpol = 1
cfg = Cfg()

def stp(p=None):
    return ['', ' sc1', ' sc0 sc1', ' nt', ' sc1 nt', ' sc0 sc1 nt'][cfg.stpol if p is None else p]

def f32(x):
    return '0x%08x' % struct.unpack('<I', struct.pack('<f', x))[0]

def srd(a, d, lo, size):
    a('s_mov_b32 %s, %s' % (s(d), s(lo)))
    a('s_mov_b32 %s, %s' % (s(d + 1), s(lo + 1)))
    a('s_mov_b32 %s, %d' % (s(d + 2), size))
    a('s_mov_b32 %s, 0x00020000' % s(d + 3))

PROF = 0xD00000
def stamp(a, i):
    if cfg.prof:
        a('s_memrealtime %s' % s(80 + 2 * i, 2))
        a('s_memtime %s' % s(72 + 2 * i, 2))
def stamp_flush(a, kern, wsreg):
    if not cfg.prof: return
    a('s_memrealtime s[86:87]')
    a('s_memtime s[78:79]')
    a('s_mov_b32 s88, %s' % s(wsreg)); a('s_mov_b32 s89, %s' % s(wsreg + 1))
    a('s_mov_b32 s90, 0x1000000'); a('s_mov_b32 s91, 0x00020000')
    a('s_lshl_b32 s92, s2, 3'); a('s_add_u32 s92, s92, s3'); a('s_lshl_b32 s92, s92, 6')
    a('s_add_u32 s92, s92, %d' % (PROF + kern * 256 * 8 * 64))
    a('s_waitcnt lgkmcnt(0)')
    a('s_mov_b64 exec, 1')
    a('v_mov_b32 v0, 0')
    for i in range(8): a('v_mov_b32 %s, %s' % (v(4 + i), s(80 + i)))
    a('buffer_store_dwordx4 v[4:7], v0, s[88:91], s92 offen')
    a('buffer_store_dwordx4 v[8:11], v0, s[88:91], s92 offen offset:16')
    for i in range(8): a('v_mov_b32 %s, %s' % (v(12 + i), s(72 + i)))
    a('buffer_store_dwordx4 v[12:15], v0, s[88:91], s92 offen offset:32')
    a('buffer_store_dwordx4 v[16:19], v0, s[88:91], s92 offen offset:48')

def interleave(a, mf, rd, first=1, per=1):
    rd = list(rd)
    for i, m in enumerate(mf):
        a(m)
        for _ in range(per):
            if rd: a(rd.pop(0))
    for x in rd: a(x)

SETS = (16, 64)
ACC = 112
def acc(t, n): return ACC + (t * 8 + n) * 4
VXA0, VXA1, VWM, VWQ, VWV = 4, 5, 6, 7, 8

def k1_reads(att, st, ks):
    base = SETS[st]
    xa = VXA1 if ks else VXA0
    r = []
    xs = ['ds_read_b128 %s, %s offset:%d' % (v(base + 4 * t, 4), v(xa), t * 2048) for t in range(4)]
    ws = []
    for n in range(8):
        if att:
            reg, off = [(VWM, 0), (VWM, 40), (VWM, 160), (VWM, 200), (VWQ, 0), (VWM, 320), (VWM, 360), (VWV, 0)][n]
        else:
            reg, off = VWM, 32 * n
        for h in range(2):
            ws.append('ds_read_b64_tr_b16 %s, %s offset:%d' % (v(base + 16 + 4 * n + 2 * h, 2), v(reg), off + ks * 16896 + h * 512))
    r = ws[:2] + xs + ws[2:]
    return r

def k1_mfmas(att, st):
    base = SETS[st]
    m = []
    for n in range(8):
        for t in range(4):
            W = v(base + 16 + 4 * n, 4); X = v(base + 4 * t, 4); A = v(acc(t, n), 4)
            if att and n >= 5:
                m.append('v_mfma_f32_16x16x32_bf16 %s, %s, %s, %s' % (A, X, W, A))
            else:
                m.append('v_mfma_f32_16x16x32_bf16 %s, %s, %s, %s' % (A, W, X, A))
    return m

def k1_mainloop(a, att, tag):
    a('s_barrier')
    stamp(a, 1)
    for x in k1_reads(att, 0, 0): a(x)
    a('s_mov_b32 s48, 0')
    a('s_mov_b32 s49, 0')
    a('s_waitcnt lgkmcnt(0)')
    a('L_%s_loop:' % tag)
    pre = ['s_add_u32 s49, s49, 1', 's_cmp_eq_u32 s49, 3', 's_cselect_b32 s50, s51, s52', 's_cselect_b32 s49, 0, s49']
    adv = ['v_add_u32 %s, s50, %s' % (v(r), v(r)) for r in ([VXA0, VXA1, VWM, VWQ, VWV] if att else [VXA0, VXA1, VWM])]
    interleave(a, k1_mfmas(att, 0), k1_reads(att, 1, 1) + pre + adv)
    a('s_waitcnt lgkmcnt(0)')
    a('s_barrier')
    interleave(a, k1_mfmas(att, 1), k1_reads(att, 0, 0) + ['s_add_u32 s48, s48, 1', 's_cmp_lt_u32 s48, 10'])
    a('s_waitcnt lgkmcnt(0)')
    a('s_cbranch_scc1 L_%s_loop' % tag)
    stamp(a, 2)

def tok_addr(a, dst, vj, tmp, vloc):
    a('v_lshrrev_b32 %s, 5, %s' % (v(tmp), v(vj)))
    a('v_mul_u32_u24 %s, s54, %s' % (v(dst), v(tmp)))
    a('v_and_b32 %s, 16, %s' % (v(tmp), v(vj)))
    a('v_lshl_add_u32 %s, %s, 7, %s' % (v(dst), v(tmp), v(dst)))
    a('v_and_b32 %s, 15, %s' % (v(tmp), v(vj)))
    a('v_lshl_add_u32 %s, %s, 4, %s' % (v(dst), v(tmp), v(dst)))
    a('v_cmp_gt_u32 vcc, 0x400, %s' % v(vj))
    a('v_cmp_le_u32 s[56:57], s53, %s' % v(vloc))
    a('s_and_b64 vcc, vcc, s[56:57]')
    a('v_mov_b32 %s, %s' % (v(tmp), hex(BAD)))
    a('v_cndmask_b32 %s, %s, %s, vcc' % (v(dst), v(tmp), v(dst)))

def gen_k1(a):
    a('.globl %s' % K1); a('.p2align 8'); a('.type %s,@function' % K1)
    a('%s:' % K1)
    a('s_cmp_ge_u32 s2, 256')
    a('s_cbranch_scc1 L1_end')
    stamp(a, 0); stamp(a, 1); stamp(a, 2)
    a('s_load_dwordx4 s[4:7], s[0:1], 0')
    a('s_load_dwordx2 s[8:9], s[0:1], 16')
    a('s_load_dwordx4 s[12:15], s[0:1], 32')
    a('s_load_dwordx2 s[10:11], s[0:1], 48')
    a('s_load_dwordx2 s[16:17], s[0:1], 72')
    a('v_lshrrev_b32 v1, 6, v0')
    a('v_and_b32 v0, 63, v0')
    a('v_readfirstlane_b32 s3, v1')
    if cfg.scr & 1:
        a('s_lshr_b32 s33, s2, 5'); a('s_and_b32 s34, s2, 31')
    else:
        a('s_and_b32 s33, s2, 7')
        a('s_lshr_b32 s34, s2, 3')
    a('s_lshr_b32 s35, s33, 2')
    a('s_and_b32 s36, s33, 3')
    a('s_cmp_ge_u32 s34, 30')
    a('s_cbranch_scc1 L1_prep')
    a('s_cmp_ge_u32 s34, 18')
    a('s_cbranch_scc1 L1_ffn_setup')
    a('s_and_b32 s38, s34, 1')
    a('s_lshl_b32 s46, s36, 1')
    a('s_add_u32 s38, s38, s46')
    a('s_mul_i32 s37, s35, 9')
    a('s_lshr_b32 s46, s34, 1')
    a('s_add_u32 s37, s37, s46')
    a('s_mul_i32 s45, s46, %d' % cfg.ra)
    a('s_and_b32 s47, s38, 1')
    a('s_mul_i32 s47, s47, %d' % cfg.rb)
    a('s_add_u32 s45, s45, s47')
    a('s_mul_i32 s39, s37, 114')
    a('s_movk_i32 s40, 3840')
    a('s_movk_i32 s41, 29')
    a('s_movk_i32 s42, 1120')
    a('s_mul_i32 s43, s38, 160')
    a('s_mov_b32 s44, 0')
    a('s_waitcnt lgkmcnt(0)')
    srd(a, 24, 6, 640 * 3840)
    a('s_branch L1_common')
    a('L1_ffn_setup:')
    a('s_mul_i32 s46, s36, 12')
    a('s_add_u32 s46, s46, s34')
    a('s_sub_u32 s46, s46, 18')
    a('s_lshr_b32 s38, s46, 3')
    a('s_and_b32 s46, s46, 7')
    a('s_lshl_b32 s37, s35, 3')
    a('s_add_u32 s37, s37, s46')
    a('s_mul_i32 s45, s46, %d' % cfg.ra)
    a('s_and_b32 s47, s38, 1')
    a('s_mul_i32 s47, s47, %d' % cfg.rd)
    a('s_add_u32 s45, s45, s47')
    a('s_add_u32 s45, s45, %d' % cfg.rc)
    a('s_lshl_b32 s39, s37, 7')
    a('s_movk_i32 s40, 3072')
    a('s_movk_i32 s41, 31')
    a('s_mov_b32 s42, 0')
    a('s_lshl_b32 s43, s38, 9')
    a('s_mov_b32 s44, 1')
    a('s_waitcnt lgkmcnt(0)')
    srd(a, 24, 12, 640 * 3072)
    a('L1_common:')
    srd(a, 20, 4, 2048 * 1280)
    a('s_cmp_lt_u32 s3, 4')
    a('s_cbranch_scc1 L1_consumer')
    a('s_setprio 3')
    a('s_sub_u32 s46, s3, 4')
    a('v_lshrrev_b32 v2, 3, v0')
    a('v_lshrrev_b32 v3, 4, v0')
    a('v_and_b32 v4, 7, v0')
    a('s_lshr_b32 s47, s46, 1')
    a('s_add_u32 s47, s47, s39')
    a('s_and_b32 s48, s46, 1')
    a('s_lshl_b32 s48, s48, 6')
    a('s_add_u32 s47, s47, s48')
    a('v_lshl_add_u32 v5, v2, 1, s47')
    a('v_mul_u32_u24 v5, 0x500, v5')
    a('v_xor_b32 v4, v4, v3')
    a('v_lshl_add_u32 v16, v4, 4, v5')
    a('v_xor_b32 v4, 4, v4')
    a('v_lshl_add_u32 v17, v4, 4, v5')
    a('v_add_u32 v17, %d, v17' % (16 * 1280))
    a('v_add_u32 v18, %d, v16' % (32 * 1280))
    a('v_add_u32 v19, %d, v17' % (32 * 1280))
    a('v_and_b32 v1, 31, v0')
    a('v_min_u32 v1, s41, v1')
    a('v_mul_u32_u24 v2, 13, v1')
    a('v_lshrrev_b32 v2, 7, v2')
    a('v_lshlrev_b32 v1, 4, v1')
    a('v_mad_u32_u24 v1, v2, s42, v1')
    a('v_add_u32 v1, s43, v1')
    a('v_lshrrev_b32 v2, 5, v0')
    a('v_lshlrev_b32 v2, 2, v2')
    a('s_lshl_b32 s47, s46, 4')
    a('v_add_u32 v2, s47, v2')
    a('v_mad_u32_u24 v8, v2, s40, v1')
    a('s_lshl_b32 s47, s40, 3')
    a('v_add_u32 v12, s47, v8')
    for e in range(1, 4):
        a('v_add_u32 %s, s40, %s' % (v(8 + e), v(7 + e)))
        a('v_add_u32 %s, s40, %s' % (v(12 + e), v(11 + e)))
    a('s_mul_i32 s47, s45, 205')
    a('s_lshr_b32 s47, s47, 11')
    a('s_mul_i32 s47, s47, 10')
    a('s_sub_u32 s45, s45, s47')
    a('s_mov_b32 s48, 0')
    a('s_mov_b32 s49, 0')
    a('s_mul_i32 s50, s46, %d' % (8 * 1056))
    a('s_lshl_b32 s51, s46, 12')
    a('s_add_u32 s51, s51, %d' % XOFF)
    a('s_lshl_b32 s53, s40, 6')
    a('L1_ld_loop:')
    a('s_cmp_lt_u32 s48, 2')
    a('s_cbranch_scc1 L1_ld_nowait')
    a('s_waitcnt vmcnt(12)')
    a('s_barrier')
    a('L1_ld_nowait:')
    a('s_mul_i32 s52, s45, s53')
    a('s_lshl_b32 s54, s45, 7')
    a('s_add_u32 m0, s49, s51')
    for e in range(4):
        if e: a('s_add_u32 m0, m0, 1024')
        a('buffer_load_dwordx4 %s, s[20:23], s54 offen lds' % v(16 + e))
    a('s_add_u32 m0, s49, s50')
    for e in range(8):
        if e: a('s_add_u32 m0, m0, 1056')
        a('buffer_load_dwordx4 %s, s[24:27], s52 offen lds' % v(8 + e))
    a('s_add_u32 s45, s45, 1')
    a('s_cmp_eq_u32 s45, 10')
    a('s_cselect_b32 s45, 0, s45')
    a('s_add_u32 s49, s49, %d' % SLOT)
    a('s_cmp_eq_u32 s49, %d' % (3 * SLOT))
    a('s_cselect_b32 s49, 0, s49')
    a('s_add_u32 s48, s48, 1')
    a('s_cmp_lt_u32 s48, 10')
    a('s_cbranch_scc1 L1_ld_loop')
    stamp(a, 1)
    a('s_cmp_eq_u32 s44, 1')
    a('s_cselect_b32 s47, s38, 4')
    a('s_cmp_lt_u32 s47, 4')
    a('s_waitcnt vmcnt(12)')
    a('s_barrier')
    a('s_cbranch_scc1 L1_ld_gate')
    a('s_waitcnt vmcnt(0)')
    a('s_barrier')
    stamp_flush(a, 0, 16)
    a('s_endpgm')
    gen_gate(a)
    a('L1_consumer:')
    srd(a, 28, 16, WS_SIZE)
    a('s_and_b32 s46, s3, 1')
    a('s_lshr_b32 s47, s3, 1')
    a('v_lshrrev_b32 v1, 4, v0')
    a('v_and_b32 v2, 15, v0')
    a('v_bfe_u32 v3, v2, 1, 3')
    a('v_xor_b32 v3, v3, v1')
    a('v_lshlrev_b32 v3, 4, v3')
    a('v_lshl_add_u32 v3, v2, 7, v3')
    a('s_lshl_b32 s48, s46, 13')
    a('s_add_u32 s48, s48, %d' % XOFF)
    a('v_add_u32 %s, s48, v3' % v(VXA0))
    a('v_xor_b32 %s, 64, %s' % (v(VXA1), v(VXA0)))
    a('v_lshrrev_b32 v3, 2, v0')
    a('v_mul_u32_u24 v3, 0x420, v3')
    a('v_and_b32 v15, 3, v0')
    a('v_lshl_add_u32 %s, v15, 3, v3' % v(VWM))
    a('s_mov_b32 s51, %d' % (-2 * SLOT & 0xffffffff))
    a('s_mov_b32 s52, %d' % SLOT)
    for i in range(128): a('v_mov_b32 %s, 0' % v(ACC + i))
    a('s_cmp_eq_u32 s44, 1')
    a('s_cbranch_scc1 L1_ffn')
    a('s_mul_i32 s48, s47, 80')
    a('v_add_u32 %s, s48, %s' % (v(VWM), v(VWM)))
    a('v_add_u32 v3, s48, v3')
    a('v_and_b32 v16, 1, v15')
    a('v_mad_u32_u24 v3, v16, 40, v3')
    a('v_add_u32 %s, 352, v3' % v(VWV))
    a('v_lshrrev_b32 v16, 1, v15')
    a('v_mul_u32_u24 v16, 160, v16')
    a('v_add3_u32 %s, v3, v16, 32' % v(VWQ))
    a('v_lshlrev_b32 v16, 2, v1')
    a('v_sub_u32 v16, v2, v16')
    a('v_mov_b32 v17, %s' % f32(-1e30))
    for r in range(4):
        a('v_subrev_u32 v18, %d, v16' % r)
        a('v_cmp_gt_u32 vcc, 8, v18')
        a('v_cndmask_b32 %s, v17, 0, vcc' % v(240 + r))
        a('v_cmp_gt_i32 vcc, -8, v18')
        a('v_cndmask_b32 %s, v17, 0, vcc' % v(244 + r))
        a('v_cmp_le_i32 vcc, 0, v18')
        a('v_cndmask_b32 %s, 0, -1, vcc' % v(20 + r))
        a('v_mov_b32 %s, 0x3f803f80' % v(250 + r))
    a('v_mov_b32 v17, 0xffff')
    a('v_bfi_b32 v248, v17, v20, v21')
    a('v_bfi_b32 v249, v17, v22, v23')
    a('s_mul_i32 s55, s37, 57')
    a('s_cmp_eq_u32 s37, 0')
    a('s_cselect_b32 s53, 0, 7')
    a('s_mov_b32 s54, %d' % RSTRIDE)
    a('s_lshl_b32 s58, s38, 1')
    a('s_add_u32 s58, s58, s47')
    a('s_lshl_b32 s58, s58, 12')
    a('s_lshl_b32 s59, s46, 10')
    a('s_add_u32 s58, s58, s59')
    a('v_lshlrev_b32 v19, 8, v1')
    for t in range(4):
        a('v_add_u32 v16, %d, v2' % (16 * t))
        a('v_add_u32 v17, s55, v16')
        tok_addr(a, 9 + t, 17, 18, 16)
        a('v_add_u32 %s, v19, %s' % (v(9 + t), v(9 + t)))
    a('s_lshr_b32 s60, s38, 1')
    a('s_add_u32 s60, s60, 16')
    a('s_lshl_b32 s60, s60, 12')
    a('s_add_u32 s59, s59, s60')
    a('s_and_b32 s60, s38, 1')
    a('s_lshl_b32 s60, s60, 1')
    a('s_add_u32 s60, s60, s47')
    a('s_lshl_b32 s60, s60, 8')
    a('s_add_u32 s59, s59, s60')
    a('v_and_b32 v19, 1, v1')
    a('v_lshlrev_b32 v19, 3, v19')
    a('v_lshrrev_b32 v20, 1, v1')
    a('v_lshl_add_u32 v20, v20, 4, v2')
    for u in range(2):
        a('v_add_u32 v16, %d, v20' % (32 * u))
        a('v_add_u32 v17, s55, v16')
        tok_addr(a, 13 + u, 17, 18, 16)
        a('v_add_u32 %s, v19, %s' % (v(13 + u), v(13 + u)))
    for g in range(4):
        m = 0xffff << (16 * g)
        a('s_mov_b32 %s, 0x%x' % (s(64 + 2 * g), m & 0xffffffff))
        a('s_mov_b32 %s, 0x%x' % (s(65 + 2 * g), m >> 32))
    cs = 20 ** -0.5 * math.log2(math.e)
    a('s_mov_b32 s62, %s' % f32(cs))
    a('s_mov_b32 s63, %s' % f32(-cs))
    k1_mainloop(a, True, 'att')
    gen_attention(a)
    if cfg.prof: a('s_waitcnt vmcnt(0)')
    stamp_flush(a, 0, 16)
    a('s_endpgm')
    a('L1_ffn:')
    a('s_lshl_b32 s48, s47, 8')
    a('v_add_u32 %s, s48, %s' % (v(VWM), v(VWM)))
    a('v_lshlrev_b32 v9, 4, v0')
    a('s_mul_i32 s58, s37, %d' % (2 * RSTRIDE))
    a('s_lshl_b32 s59, s38, 3')
    a('s_lshl_b32 s60, s47, 2')
    a('s_add_u32 s59, s59, s60')
    a('s_add_u32 s59, s59, 20')
    a('s_lshl_b32 s59, s59, 12')
    a('s_add_u32 s58, s58, s59')
    a('s_lshl_b32 s59, s46, 10')
    a('s_add_u32 s58, s58, s59')
    k1_mainloop(a, False, 'ffn')
    k = 0
    for m in range(4):
        for t in range(4):
            d = 16 + 4 * (k % 16); k += 1
            for h in range(2):
                A = acc(t, 2 * m + h)
                a('v_cvt_pk_bf16_f32 %s, %s, %s' % (v(d + 2 * h), v(A), v(A + 1)))
                a('v_cvt_pk_bf16_f32 %s, %s, %s' % (v(d + 2 * h + 1), v(A + 2), v(A + 3)))
            for i in range(4):
                a('v_pk_max_i16 %s, %s, 0' % (v(d + i), v(d + i)))
            a('s_add_u32 s59, s58, %d' % ((t >> 1) * RSTRIDE + m * 4096))
            a('buffer_store_dwordx4 %s, v9, s[28:31], s59 offen offset:%d' % (v(d, 4), (t & 1) * 2048) + stp())
    if cfg.prof: a('s_waitcnt vmcnt(0)')
    stamp_flush(a, 0, 16)
    a('s_endpgm')
    gen_prep(a)
    a('L1_end:')
    a('s_endpgm')

def gen_attention(a):
    KK = lambda t: 16 + 6 * t
    Q0 = lambda t: 40 + 8 * t
    Q1 = lambda t: 44 + 8 * t
    VP = lambda h, t: 72 + 8 * h + 2 * t
    M = lambda u: 96 + u
    SC = lambda u: 112 + 8 * u
    SP = lambda u: 116 + 8 * u
    P = lambda u: 176 + 4 * u
    SUM = lambda u: 208 + 4 * u
    def cvt(d, A):
        a('v_cvt_pk_bf16_f32 %s, %s, %s' % (v(d), v(A), v(A + 1)))
        a('v_cvt_pk_bf16_f32 %s, %s, %s' % (v(d + 1), v(A + 2), v(A + 3)))
    def conv_qk(t):
        cvt(Q1(t), acc(t, 4)); cvt(KK(t) + 2, acc(t, 4))
        cvt(Q0(t), acc(t, 0)); cvt(Q1(t) + 2, acc(t, 1))
        a('v_permlane32_swap_b32 %s, %s' % (v(Q1(t)), v(KK(t) + 2)))
        a('v_permlane32_swap_b32 %s, %s' % (v(Q1(t) + 1), v(KK(t) + 3)))
        cvt(KK(t), acc(t, 2)); cvt(KK(t) + 4, acc(t, 3))
        for i in range(2):
            a('v_cndmask_b32 %s, 0, %s, s[64:65]' % (v(Q0(t) + 2 + i), v(Q1(t) + i)))
            a('v_cndmask_b32 %s, 0, %s, s[66:67]' % (v(Q1(t) + i), v(Q1(t) + i)))
    def conv_v(t):
        for h in range(3): cvt(VP(h, t), acc(t, 5 + h))
    for t in range(4): conv_qk(t)
    conv_v(0); conv_v(1)
    Kop = lambda h, t: v(KK(t) + 2 * h, 4)
    Qop = lambda h, t: v(Q0(t) if h == 0 else Q1(t), 4)
    mf = []
    for h in range(2):
        for t in range(4):
            u = 4 * h + t
            mf.append('v_mfma_f32_16x16x32_bf16 %s, %s, %s, v[240:243]' % (v(SC(u), 4), Kop(h, t), Qop(h, t)))
            if t: mf.append('v_mfma_f32_16x16x32_bf16 %s, %s, %s, v[244:247]' % (v(SP(u), 4), Kop(h, t - 1), Qop(h, t)))
    cv = []
    for t in (2, 3):
        for h in range(3):
            A = acc(t, 5 + h); d = VP(h, t)
            cv.append('v_cvt_pk_bf16_f32 %s, %s, %s' % (v(d), v(A), v(A + 1)))
            cv.append('v_cvt_pk_bf16_f32 %s, %s, %s' % (v(d + 1), v(A + 2), v(A + 3)))
    interleave(a, mf, cv)
    for u in range(8):
        if u & 3:
            for r in range(4): a('v_max_f32 %s, %s, %s' % (v(SC(u) + r), v(SC(u) + r), v(SP(u) + r)))
        a('v_max3_f32 %s, %s, %s, %s' % (v(M(u)), v(SC(u)), v(SC(u) + 1), v(SC(u) + 2)))
        a('v_max_f32 %s, %s, %s' % (v(M(u)), v(M(u)), v(SC(u) + 3)))
    G = (0, 4)
    for b in G:
        a('v_permlane32_swap_b32 %s, %s' % (v(M(b)), v(M(b + 1))))
        a('v_permlane32_swap_b32 %s, %s' % (v(M(b + 2)), v(M(b + 3))))
    for b in G:
        a('v_max_f32 %s, %s, %s' % (v(M(b)), v(M(b)), v(M(b + 1))))
        a('v_max_f32 %s, %s, %s' % (v(M(b + 2)), v(M(b + 2)), v(M(b + 3))))
    for b in G: a('v_permlane16_swap_b32 %s, %s' % (v(M(b)), v(M(b + 2))))
    for b in G: a('v_max_f32 %s, %s, %s' % (v(M(b)), v(M(b)), v(M(b + 2))))
    for b in G: a('v_mul_f32 %s, s63, %s' % (v(M(b + 2)), v(M(b))))
    for b in G: a('v_mul_f32 %s, s63, %s' % (v(M(b)), v(M(b))))
    for b in G: a('v_permlane16_swap_b32 %s, %s' % (v(M(b)), v(M(b + 2))))
    for b in G:
        a('v_mov_b32 %s, %s' % (v(M(b + 1)), v(M(b))))
        a('v_mov_b32 %s, %s' % (v(M(b + 3)), v(M(b + 2))))
    for b in G:
        a('v_permlane32_swap_b32 %s, %s' % (v(M(b)), v(M(b + 1))))
        a('v_permlane32_swap_b32 %s, %s' % (v(M(b + 2)), v(M(b + 3))))
    pend = []
    for u in range(8):
        h, t = u >> 2, u & 3
        for r in range(4): a('v_fma_f32 %s, %s, s62, %s' % (v(SC(u) + r), v(SC(u) + r), v(M(u))))
        for r in range(4):
            a('v_exp_f32 %s, %s' % (v(SC(u) + r), v(SC(u) + r)))
            if pend: a(pend.pop(0))
        for x in pend: a(x)
        if t == 0:
            cvt(P(u) + 2, SC(u))
            op = 'v_mfma_f32_16x16x16_bf16'; B = v(P(u) + 2, 2); n = 2; o = 0
        else:
            cvt(P(u), SC(u))
            for i in range(2): a('v_and_b32 %s, %s, %s' % (v(P(u) + 2 + i), v(248 + i), v(P(u) + i)))
            for i in range(2): a('v_bfi_b32 %s, %s, 0, %s' % (v(P(u) + i), v(248 + i), v(P(u) + i)))
            op = 'v_mfma_f32_16x16x32_bf16'; B = v(P(u), 4); n = 4; o = -2
        pend = ['%s %s, %s, %s, 0' % (op, v(SUM(u), 4), v(250, n), B),
                '%s %s, %s, %s, 0' % (op, v(SC(u), 4), v(VP(h, t) + o, n), B),
                '%s %s, %s, %s, 0' % (op, v(SP(u), 4), v(VP(2, t) + o, n), B)]
    for x in pend: a(x)
    for u in range(8): a('v_rcp_f32 %s, %s' % (v(SUM(u)), v(SUM(u))))
    for t in range(4):
        for h in range(2):
            u = 4 * h + t
            for i in range(2):
                a('v_pk_mul_f32 %s, %s, %s op_sel_hi:[1,0]' % (v(SC(u) + 2 * i, 2), v(SC(u) + 2 * i, 2), v(SUM(u), 2)))
        for h in range(2): cvt(16 + 4 * t + 2 * h, SC(4 * h + t))
        a('buffer_store_dwordx4 %s, %s, s[28:31], s58 offen' % (v(16 + 4 * t, 4), v(9 + t)) + stp())
    for g in range(4):
        a('s_mov_b64 exec, %s' % s(64 + 2 * g, 2))
        for u2 in range(2):
            u = 4 * (g & 1) + 2 * u2 + (g >> 1)
            for i in range(2):
                a('v_pk_mul_f32 %s, %s, %s op_sel_hi:[1,0]' % (v(40 + 4 * u2 + 2 * i, 2), v(SP(u) + 2 * i, 2), v(SUM(u), 2)))
    a('s_mov_b64 exec, -1')
    for u2 in range(2):
        cvt(48 + 2 * u2, 40 + 4 * u2)
        a('buffer_store_dwordx2 %s, %s, s[28:31], s59 offen' % (v(48 + 2 * u2, 2), v(13 + u2)) + stp())

def gen_gate(a):
    GW, GX = 24, 64
    a('L1_ld_gate:')
    srd(a, 56, 10, 1280)
    srd(a, 28, 16, WS_SIZE)
    a('v_and_b32 v1, 7, v0')
    a('v_lshlrev_b32 v1, 4, v1')
    a('s_lshl_b32 s47, s38, 5')
    a('s_add_u32 s47, s47, s39')
    a('s_lshl_b32 s48, s46, 3')
    a('s_add_u32 s47, s47, s48')
    a('v_lshrrev_b32 v2, 3, v0')
    a('v_add_u32 v2, s47, v2')
    a('v_mul_u32_u24 v3, 0x500, v2')
    a('v_add_u32 v3, v3, v1')
    a('s_waitcnt vmcnt(0)')
    a('s_barrier')
    for i in range(10):
        a('buffer_load_dwordx4 %s, v1, s[56:59], 0 offen offset:%d' % (v(GW + 4 * i, 4), 128 * i))
    for i in range(10):
        a('buffer_load_dwordx4 %s, v3, s[20:23], 0 offen offset:%d' % (v(GX + 4 * i, 4), 128 * i))
    a('v_mov_b32 v9, 0')
    a('v_mov_b32 v10, 0')
    a('s_waitcnt vmcnt(0)')
    for i in range(40):
        a('v_dot2_f32_bf16 %s, %s, %s, %s' % (v(9 + (i & 1)), v(GX + i), v(GW + i), v(9 + (i & 1))))
    a('v_add_f32 v9, v9, v10')
    for pat in ('quad_perm:[1,0,3,2]', 'quad_perm:[2,3,0,1]', 'row_half_mirror'):
        a('v_add_f32_dpp v11, v9, v9 %s row_mask:0xf bank_mask:0xf' % pat)
        a('v_mov_b32 v9, v11')
    a('v_mul_f32 v9, %s, v9' % f32(-math.log2(math.e)))
    a('v_exp_f32 v9, v9')
    a('v_add_f32 v9, 1.0, v9')
    a('v_rcp_f32 v9, v9')
    a('v_lshlrev_b32 v2, 2, v2')
    a('v_mov_b32 v3, %s' % hex(BAD))
    a('v_cmp_eq_u32 vcc, 0, v1')
    a('v_cndmask_b32 v2, v3, v2, vcc')
    a('s_mov_b32 s60, %d' % WS_G)
    a('buffer_store_dword v9, v2, s[28:31], s60 offen' + stp())
    if cfg.prof: a('s_waitcnt vmcnt(0)')
    stamp_flush(a, 0, 16)
    a('s_endpgm')

def gen_prep(a):
    PITCH = 176
    LW = 32 * PITCH
    a('L1_prep:')
    a('s_sub_u32 s37, s34, 30')
    a('s_lshl_b32 s37, s37, 3')
    a('s_add_u32 s37, s37, s33')
    a('s_waitcnt lgkmcnt(0)')
    srd(a, 24, 8, 640 * 1280)
    srd(a, 40, 14, 1536 * 1280)
    srd(a, 28, 16, WS_SIZE)
    U = lambda u: 24 + 20 * u
    GW = 124
    GX = 164
    a('s_mul_i32 s48, s3, 160')
    a('s_mul_i32 s49, s3, %d' % LW)
    a('s_movk_i32 s50, 205')
    a('s_movk_i32 s51, 1280')
    a('s_movk_i32 s52, %d' % PITCH)
    for e in range(5):
        a('v_add_u32 v1, %d, v0' % (64 * e))
        a('v_mul_u32_u24 v2, s50, v1')
        a('v_lshrrev_b32 v2, 11, v2')
        a('v_mul_u32_u24 v3, 10, v2')
        a('v_sub_u32 v1, v1, v3')
        a('v_lshlrev_b32 v1, 4, v1')
        a('v_mad_u32_u24 %s, v2, s52, v1' % v(19 + e))
        a('v_add_u32 %s, s49, %s' % (v(19 + e), v(19 + e)))
        a('v_and_b32 v3, 3, v2')
        a('v_mad_u32_u24 v1, v3, s51, v1')
        a('v_add_u32 %s, s48, v1' % v(4 + e))
        a('v_lshrrev_b32 %s, 3, v2' % v(9 + e))
        a('v_bfe_u32 %s, v2, 2, 1' % v(14 + e))
    def addrs(al, be):
        a('s_movk_i32 s53, %d' % (al * 1280) if al * 1280 < 32768 else 's_mov_b32 s53, %d' % (al * 1280))
        a('s_movk_i32 s54, %d' % (be * 1280))
        for e in range(5):
            a('v_mad_u32_u24 %s, %s, s53, %s' % (v(244 + e), v(9 + e), v(4 + e)))
            a('v_mad_u32_u24 %s, %s, s54, %s' % (v(244 + e), v(14 + e), v(244 + e)))
    addrs(4, 16)
    a('s_mul_i32 s55, s37, %d' % (3 * 32 * 1280))
    for u in range(3):
        for e in range(5):
            a('buffer_load_dwordx4 %s, %s, s[40:43], s55 offen' % (v(U(u) + 4 * e, 4), v(244 + e)))
        if u < 2: a('s_add_u32 s55, s55, %d' % (32 * 1280))
    addrs(4, 20)
    a('s_mul_i32 s55, s37, %d' % (40 * 1280))
    for e in range(5):
        a('buffer_load_dwordx4 %s, %s, s[24:27], s55 offen' % (v(U(3) + 4 * e, 4), v(244 + e)))
    a('s_and_b32 s56, s37, 3')
    a('s_lshr_b32 s61, s37, 2')
    a('s_lshr_b32 s62, s3, 1')
    a('s_cmp_lg_u32 s61, s62')
    a('s_cbranch_scc1 L1_prep_norem')
    addrs(40, 20)
    a('s_mul_i32 s55, s56, %d' % (160 * 1280))
    a('s_add_u32 s55, s55, %d' % (16 * 1280))
    for e in range(5):
        a('buffer_load_dwordx4 %s, %s, s[24:27], s55 offen' % (v(U(4) + 4 * e, 4), v(244 + e)))
    a('L1_prep_norem:')
    a('v_lshrrev_b32 v4, 4, v0')
    a('v_bfe_u32 v5, v0, 2, 2')
    a('v_lshl_add_u32 v4, v4, 3, v5')
    a('v_mul_u32_u24 v4, s52, v4')
    a('v_add_u32 v4, s49, v4')
    a('v_and_b32 v5, 3, v0')
    a('v_lshl_add_u32 v6, v5, 3, v4')
    a('v_lshl_add_u32 v5, v5, 4, v4')
    a('v_lshlrev_b32 v7, 4, v0')
    a('v_add_u32 v8, 4096, v7')
    a('s_mul_i32 s59, s3, %d' % NBSTRIDE)
    a('s_add_u32 s59, s59, %d' % WS_B)
    for u in range(5):
        if u == 4:
            a('s_cmp_lg_u32 s61, s62')
            a('s_cbranch_scc1 L1_prep_done')
        a('s_waitcnt vmcnt(%d)' % (15 if u < 4 else 20))
        for e in range(5):
            a('ds_write_b128 %s, %s' % (v(19 + e), v(U(u) + 4 * e, 4)))
        if u < 3:
            a('s_mul_i32 s60, s37, 3'); a('s_add_u32 s60, s60, %d' % (20 + u))
        elif u == 3:
            a('s_mov_b32 s60, s37')
        else:
            a('s_add_u32 s60, s56, 16')
        a('s_mul_i32 s60, s60, 5120')
        a('s_add_u32 s60, s60, s59')
        a('s_waitcnt lgkmcnt(0)')
        for nt in range(5):
            for h in range(2):
                if nt < 4: reg, off = 5, 64 * (nt >> 1) + 8 * (nt & 1)
                else: reg, off = 6, 128
                a('ds_read_b64_tr_b16 %s, %s offset:%d' % (v(U(u) + 4 * nt + 2 * h, 2), v(reg), off + h * 4 * PITCH))
        a('s_waitcnt lgkmcnt(0)')
        for nt in range(5):
            a('buffer_store_dwordx4 %s, %s, s[28:31], s60 offen offset:%d' % (v(U(u) + 4 * nt, 4), v(7 if nt < 4 else 8), (nt & 3) * 1024) + stp())
    a('L1_prep_done:')
    if cfg.prof: a('s_waitcnt vmcnt(0)')
    stamp_flush(a, 0, 16)
    a('s_endpgm')

def gen_k2(a):
    D = cfg.k2depth
    RING = 16
    AC = RING + 36 * D
    accr = lambda m, nt: AC + (m * 5 + nt) * 4
    Bq = lambda q, nt: RING + 36 * q + 4 * nt
    Aq = lambda q, m: RING + 36 * q + 20 + 4 * m
    a('.globl %s' % K2); a('.p2align 8'); a('.type %s,@function' % K2)
    a('%s:' % K2)
    a('s_cmp_ge_u32 s2, 256')
    a('s_cbranch_scc1 L2_end')
    stamp(a, 0)
    a('s_load_dwordx2 s[4:5], s[0:1], 72')
    a('s_load_dwordx2 s[6:7], s[0:1], 56')
    a('v_lshrrev_b32 v1, 6, v0')
    a('v_and_b32 v0, 63, v0')
    a('v_readfirstlane_b32 s3, v1')
    if cfg.scr & 2:
        a('s_lshr_b32 s16, s2, 5'); a('s_and_b32 s17, s2, 31')
    else:
        a('s_and_b32 s16, s2, 7')
        a('s_lshr_b32 s17, s2, 3')
    a('s_and_b32 s18, s16, 1')
    a('s_lshl_b32 s18, s18, 2')
    a('s_and_b32 s19, s17, 3')
    a('s_add_u32 s18, s18, s19')
    a('s_lshr_b32 s19, s16, 1')
    a('s_lshl_b32 s19, s19, 3')
    a('s_lshr_b32 s20, s17, 2')
    a('s_add_u32 s19, s19, s20')
    a('s_lshl_b32 s20, s3, 4')
    a('s_add_u32 s20, s20, 4')
    a('s_cmp_eq_u32 s3, 0')
    a('s_cselect_b32 s20, 0, s20')
    if cfg.k2prio:
        a('s_cbranch_scc0 L2_noprio')
        a('s_setprio 3')
        a('L2_noprio:')
    a('s_cselect_b32 s21, %d, %d' % (20 // D - 1, 16 // D - 1))
    a('s_mul_i32 s22, s19, %d' % RSTRIDE)
    a('s_lshl_b32 s23, s20, 12')
    a('s_add_u32 s22, s22, s23')
    a('s_mul_i32 s23, s18, %d' % NBSTRIDE)
    a('s_mul_i32 s24, s20, 5120')
    a('s_add_u32 s23, s23, s24')
    a('s_add_u32 s23, s23, %d' % WS_B)
    a('v_lshlrev_b32 v2, 4, v0')
    a('v_add_u32 v3, 4096, v2')
    for m in range(4):
        a('s_add_u32 s24, s3, %d' % m)
        a('s_and_b32 s24, s24, 3')
        a('s_lshl_b32 s25, s24, 10')
        a('v_add_u32 %s, s25, v2' % v(4 + m))
        if m:
            a('s_mul_i32 s25, s24, 15360')
            a('s_add_u32 s25, s25, %d' % ((m - 1) * 5120))
            a('v_add_u32 %s, s25, v2' % v(8 + m))
    a('s_lshl_b32 s24, s19, 6')
    a('s_lshr_b32 s25, s3, 1')
    a('s_lshl_b32 s25, s25, 5')
    a('s_add_u32 s24, s24, s25')
    a('s_and_b32 s25, s3, 1')
    a('s_add_u32 s24, s24, s25')
    a('v_and_b32 v12, 15, v0')
    a('v_lshl_add_u32 v12, v12, 1, s24')
    a('v_lshlrev_b32 v13, 2, v12')
    a('s_mov_b32 s26, %d' % WS_G)
    a('s_waitcnt lgkmcnt(0)')
    srd(a, 8, 4, WS_SIZE)
    def ldB(q, nt): return 'buffer_load_dwordx4 %s, %s, s[8:11], s23 offen offset:%d' % (v(Bq(q, nt), 4), v(2 if nt < 4 else 3), (nt & 3) * 1024)
    def ldA(q, m): return 'buffer_load_dwordx4 %s, %s, s[8:11], s22 offen' % (v(Aq(q, m), 4), v(4 + m))
    adv = ['s_add_u32 s22, s22, 4096', 's_add_u32 s23, s23, 5120']
    a('buffer_load_dword v14, v13, s[8:11], s26 offen')
    for q in range(D):
        for nt in range(5): a(ldB(q, nt))
        for m in range(4): a(ldA(q, m))
        for x in adv: a(x)
    srd(a, 12, 6, 2048 * 1280)
    for i in range(80): a('v_mov_b32 %s, 0' % v(AC + i))
    def step(q, load, cnt):
        a('s_waitcnt vmcnt(%d)' % cnt)
        for nt in range(5):
            for m in range(4):
                A = v(accr(m, nt), 4)
                a('v_mfma_f32_16x16x32_bf16 %s, %s, %s, %s' % (A, v(Bq(q, nt), 4), v(Aq(q, m), 4), A))
                if load and nt == 4: a(ldA(q, m)) if False else None
            if load: a(ldB(q, nt))
        if load:
            for m in range(4): a(ldA(q, m))
            for x in adv: a(x)
    if cfg.prof: a('s_waitcnt vmcnt(%d)' % (9 * (D - 1)))
    stamp(a, 1)
    a('L2_loop:')
    for q in range(D): step(q, True, 9 * (D - 1))
    a('s_sub_u32 s21, s21, 1')
    a('s_cmp_lg_u32 s21, 0')
    a('s_cbranch_scc1 L2_loop')
    for q in range(D): step(q, False, 9 * (D - 1 - q))
    stamp(a, 2)
    for m in range(1, 4):
        for nt in range(5):
            a('ds_write_b128 %s, %s offset:%d' % (v(8 + m), v(accr(m, nt), 4), nt * 1024))
    a('v_sub_f32 v15, 1.0, v14')
    for m in range(4):
        a('s_cmp_eq_u32 s3, %d' % m)
        a('s_cselect_b64 vcc, -1, 0')
        a('v_cndmask_b32 %s, v15, v14, vcc' % v(16 + 2 * m))
    a('s_mul_i32 s25, s3, 15360')
    a('v_add_u32 v8, s25, v2')
    a('s_mul_i32 s25, s18, 160')
    a('v_mul_u32_u24 v12, 0x500, v12')
    a('v_lshrrev_b32 v13, 4, v0')
    a('v_lshl_add_u32 v9, v13, 3, v12')
    a('v_lshl_add_u32 v12, v13, 4, v12')
    for i in range(10):
        A = AC + 2 * i
        a('v_pk_mul_f32 %s, %s, v[16:17] op_sel_hi:[1,0]' % (v(A, 2), v(A, 2)))
    a('s_waitcnt lgkmcnt(0)')
    a('s_barrier')
    for m in range(1, 4):
        for nt in range(5):
            a('ds_read_b128 %s, v8 offset:%d' % (v(accr(m, nt), 4), ((m - 1) * 5 + nt) * 1024))
    for m in range(1, 4):
        a('s_waitcnt lgkmcnt(%d)' % (5 * (3 - m)))
        for i in range(10):
            A = AC + 2 * i
            a('v_pk_fma_f32 %s, %s, %s, %s op_sel_hi:[1,0,1]' % (v(A, 2), v(A + 20 * m, 2), v(16 + 2 * m, 2), v(A, 2)))
    for i in range(10):
        a('v_cvt_pk_bf16_f32 %s, %s, %s' % (v(24 + i), v(AC + 2 * i), v(AC + 2 * i + 1)))
    a('buffer_store_dwordx4 v[24:27], v12, s[12:15], s25 offen' + stp(cfg.k2st))
    a('buffer_store_dwordx4 v[28:31], v12, s[12:15], s25 offen offset:64' + stp(cfg.k2st))
    a('buffer_store_dwordx2 v[32:33], v9, s[12:15], s25 offen offset:128' + stp(cfg.k2st))
    if cfg.prof: a('s_waitcnt vmcnt(0)')
    stamp_flush(a, 1, 4)
    a('L2_end:')
    a('s_endpgm')
    return AC + 80

def desc(name, nv):
    nv = (nv + 7) // 8 * 8
    return '''.p2align 6
.amdhsa_kernel %s
  .amdhsa_next_free_vgpr %d
  .amdhsa_next_free_sgpr 102
  .amdhsa_accum_offset %d
  .amdhsa_group_segment_fixed_size 0
  .amdhsa_kernarg_size 80
  .amdhsa_user_sgpr_count 2
  .amdhsa_user_sgpr_kernarg_segment_ptr 1
  .amdhsa_system_sgpr_workgroup_id_x 1
.end_amdhsa_kernel
''' % (name, nv, nv)

def main():
    for arg in sys.argv[2:]:
        k, val = arg.split('='); setattr(cfg, k, int(val))
    a = Asm()
    gen_k1(a)
    nv2 = gen_k2(a)
    body = a.finish()
    hdr = '''; gated mix of sliding-window dilated attention and ReLU FFN, two launches.
; launch 1: qkv projection + attention, FFN up projection + relu, weight re-layout + gate
; launch 2: output projections (wo, w2) and gated mix
; @launch kernel=%s grid=(256,1,1) block=(512,1,1) lds=%d
; @launch kernel=%s grid=(256,1,1) block=(256,1,1) lds=%d
.amdgcn_target "amdgcn-amd-amdhsa--gfx950"
.text
''' % (K1, 3 * SLOT, K2, 61440)
    out = hdr + body + '.section .rodata,"a"\n' + desc(K1, 256) + desc(K2, nv2)
    open(sys.argv[1], 'w').write(out)
    print('nops inserted:', a.nops, 'bytes', len(out))

main()
```

```python
import sys, math, struct
from asmlib import Asm, v, s

NAME = 'gated_mix__sliding_local_dilated__dense_activation_relu__prompt'
K1 = NAME + '_kernel'
K2 = 'gm_stage2_kernel'

WS_A = 0
WS_B = 0x900000
WS_G = 0xC00000
WS_SIZE = 0xC02000
RSTRIDE = 68 * 4096
NBSTRIDE = 68 * 5120
SLOT = 50176
XOFF = 33792
BAD = 0x40000000

class Cfg:
    ra = 1
    rb = 5
    rc = 3
    rd = 5
    prof = 0
    k2depth = 4
    k2prio = 1
    pw = 35
    scr = 0
    k2st = 0
    stpol = 1
cfg = Cfg()

def stp(p=None):
    return ['', ' sc1', ' sc0 sc1', ' nt', ' sc1 nt', ' sc0 sc1 nt'][cfg.stpol if p is None else p]

def f32(x):
    return '0x%08x' % struct.unpack('<I', struct.pack('<f', x))[0]

def srd(a, d, lo, size):
    a('s_mov_b32 %s, %s' % (s(d), s(lo)))
    a('s_mov_b32 %s, %s' % (s(d + 1), s(lo + 1)))
    a('s_mov_b32 %s, %d' % (s(d + 2), size))
    a('s_mov_b32 %s, 0x00020000' % s(d + 3))

PROF = 0xD00000
def stamp(a, i):
    if cfg.prof:
        a('s_memrealtime %s' % s(80 + 2 * i, 2))
        a('s_memtime %s' % s(72 + 2 * i, 2))
def stamp_flush(a, kern, wsreg, role=2):
    if not cfg.prof: return
    a('s_memrealtime s[86:87]')
    a('s_memtime s[78:79]')
    if cfg.prof == 2:
        a('s_load_dwordx2 s[88:89], s[0:1], 64')
        a('s_mov_b32 s90, 256'); a('s_mov_b32 s91, 0x00020000')
        a('s_waitcnt lgkmcnt(0)')
        a('s_mov_b64 exec, 1')
        a('v_mov_b32 v0, 0')
        a('s_not_b32 s80, s80')
        for i in range(4):
            a('v_mov_b32 %s, %s' % (v(4 + i), s(80 + 2 * i)))
            a('buffer_atomic_umax %s, v0, s[88:91], 0 offen offset:%d' % (v(4 + i), role * 16 + 4 * i))
        return
    a('s_mov_b32 s88, %s' % s(wsreg)); a('s_mov_b32 s89, %s' % s(wsreg + 1))
    a('s_mov_b32 s90, 0x1000000'); a('s_mov_b32 s91, 0x00020000')
    a('s_lshl_b32 s92, s2, 3'); a('s_add_u32 s92, s92, s3'); a('s_lshl_b32 s92, s92, 6')
    a('s_add_u32 s92, s92, %d' % (PROF + kern * 256 * 8 * 64))
    a('s_waitcnt lgkmcnt(0)')
    a('s_mov_b64 exec, 1')
    a('v_mov_b32 v0, 0')
    for i in range(8): a('v_mov_b32 %s, %s' % (v(4 + i), s(80 + i)))
    a('buffer_store_dwordx4 v[4:7], v0, s[88:91], s92 offen')
    a('buffer_store_dwordx4 v[8:11], v0, s[88:91], s92 offen offset:16')
    for i in range(8): a('v_mov_b32 %s, %s' % (v(12 + i), s(72 + i)))
    a('buffer_store_dwordx4 v[12:15], v0, s[88:91], s92 offen offset:32')
    a('buffer_store_dwordx4 v[16:19], v0, s[88:91], s92 offen offset:48')

def interleave(a, mf, rd, first=1, per=1):
    rd = list(rd)
    for i, m in enumerate(mf):
        a(m)
        for _ in range(per):
            if rd: a(rd.pop(0))
    for x in rd: a(x)

SETS = (16, 64)
ACC = 112
def acc(t, n): return ACC + (t * 8 + n) * 4
VXA0, VXA1, VWM, VWQ, VWV = 4, 5, 6, 7, 8

def k1_reads(att, st, ks):
    base = SETS[st]
    xa = VXA1 if ks else VXA0
    r = []
    xs = ['ds_read_b128 %s, %s offset:%d' % (v(base + 4 * t, 4), v(xa), t * 2048) for t in range(4)]
    ws = []
    for n in range(8):
        if att:
            reg, off = [(VWM, 0), (VWM, 40), (VWM, 160), (VWM, 200), (VWQ, 0), (VWM, 320), (VWM, 360), (VWV, 0)][n]
        else:
            reg, off = VWM, 32 * n
        for h in range(2):
            ws.append('ds_read_b64_tr_b16 %s, %s offset:%d' % (v(base + 16 + 4 * n + 2 * h, 2), v(reg), off + ks * 16896 + h * 512))
    r = ws[:2] + xs + ws[2:]
    return r

def k1_mfmas(att, st):
    base = SETS[st]
    m = []
    for n in range(8):
        for t in range(4):
            W = v(base + 16 + 4 * n, 4); X = v(base + 4 * t, 4); A = v(acc(t, n), 4)
            if att and n >= 5:
                m.append('v_mfma_f32_16x16x32_bf16 %s, %s, %s, %s' % (A, X, W, A))
            else:
                m.append('v_mfma_f32_16x16x32_bf16 %s, %s, %s, %s' % (A, W, X, A))
    return m

def k1_mainloop(a, att, tag):
    a('s_barrier')
    stamp(a, 1)
    for x in k1_reads(att, 0, 0): a(x)
    a('s_mov_b32 s48, 0')
    a('s_mov_b32 s49, 0')
    a('s_waitcnt lgkmcnt(0)')
    a('L_%s_loop:' % tag)
    pre = ['s_add_u32 s49, s49, 1', 's_cmp_eq_u32 s49, 3', 's_cselect_b32 s50, s51, s52', 's_cselect_b32 s49, 0, s49']
    adv = ['v_add_u32 %s, s50, %s' % (v(r), v(r)) for r in ([VXA0, VXA1, VWM, VWQ, VWV] if att else [VXA0, VXA1, VWM])]
    interleave(a, k1_mfmas(att, 0), k1_reads(att, 1, 1) + pre + adv)
    a('s_waitcnt lgkmcnt(0)')
    a('s_barrier')
    interleave(a, k1_mfmas(att, 1), k1_reads(att, 0, 0) + ['s_add_u32 s48, s48, 1', 's_cmp_lt_u32 s48, 10'])
    a('s_waitcnt lgkmcnt(0)')
    a('s_cbranch_scc1 L_%s_loop' % tag)
    stamp(a, 2)

def tok_addr(a, dst, vj, tmp, vloc):
    a('v_lshrrev_b32 %s, 5, %s' % (v(tmp), v(vj)))
    a('v_mul_u32_u24 %s, s54, %s' % (v(dst), v(tmp)))
    a('v_and_b32 %s, 16, %s' % (v(tmp), v(vj)))
    a('v_lshl_add_u32 %s, %s, 7, %s' % (v(dst), v(tmp), v(dst)))
    a('v_and_b32 %s, 15, %s' % (v(tmp), v(vj)))
    a('v_lshl_add_u32 %s, %s, 4, %s' % (v(dst), v(tmp), v(dst)))
    a('v_cmp_gt_u32 vcc, 0x400, %s' % v(vj))
    a('v_cmp_le_u32 s[56:57], s53, %s' % v(vloc))
    a('s_and_b64 vcc, vcc, s[56:57]')
    a('v_mov_b32 %s, %s' % (v(tmp), hex(BAD)))
    a('v_cndmask_b32 %s, %s, %s, vcc' % (v(dst), v(tmp), v(dst)))

def gen_k1(a):
    a('.globl %s' % K1); a('.p2align 8'); a('.type %s,@function' % K1)
    a('%s:' % K1)
    a('s_cmp_ge_u32 s2, 256')
    a('s_cbranch_scc1 L1_end')
    stamp(a, 0); stamp(a, 1); stamp(a, 2)
    a('s_load_dwordx4 s[4:7], s[0:1], 0')
    a('s_load_dwordx2 s[8:9], s[0:1], 16')
    a('s_load_dwordx4 s[12:15], s[0:1], 32')
    a('s_load_dwordx2 s[10:11], s[0:1], 48')
    a('s_load_dwordx2 s[16:17], s[0:1], 72')
    a('v_lshrrev_b32 v1, 6, v0')
    a('v_and_b32 v0, 63, v0')
    a('v_readfirstlane_b32 s3, v1')
    if cfg.scr & 1:
        a('s_lshr_b32 s33, s2, 5'); a('s_and_b32 s34, s2, 31')
    else:
        a('s_and_b32 s33, s2, 7')
        a('s_lshr_b32 s34, s2, 3')
    a('s_lshr_b32 s35, s33, 2')
    a('s_and_b32 s36, s33, 3')
    a('s_cmp_ge_u32 s34, 30')
    a('s_cbranch_scc1 L1_prep')
    a('s_cmp_ge_u32 s34, 18')
    a('s_cbranch_scc1 L1_ffn_setup')
    a('s_and_b32 s38, s34, 1')
    a('s_lshl_b32 s46, s36, 1')
    a('s_add_u32 s38, s38, s46')
    a('s_mul_i32 s37, s35, 9')
    a('s_lshr_b32 s46, s34, 1')
    a('s_add_u32 s37, s37, s46')
    a('s_mul_i32 s45, s46, %d' % cfg.ra)
    a('s_and_b32 s47, s38, 1')
    a('s_mul_i32 s47, s47, %d' % cfg.rb)
    a('s_add_u32 s45, s45, s47')
    a('s_mul_i32 s39, s37, 114')
    a('s_movk_i32 s40, 3840')
    a('s_movk_i32 s41, 29')
    a('s_movk_i32 s42, 1120')
    a('s_mul_i32 s43, s38, 160')
    a('s_mov_b32 s44, 0')
    a('s_waitcnt lgkmcnt(0)')
    srd(a, 24, 6, 640 * 3840)
    a('s_branch L1_common')
    a('L1_ffn_setup:')
    a('s_mul_i32 s46, s36, 12')
    a('s_add_u32 s46, s46, s34')
    a('s_sub_u32 s46, s46, 18')
    a('s_lshr_b32 s38, s46, 3')
    a('s_and_b32 s46, s46, 7')
    a('s_lshl_b32 s37, s35, 3')
    a('s_add_u32 s37, s37, s46')
    a('s_mul_i32 s45, s46, %d' % cfg.ra)
    a('s_and_b32 s47, s38, 1')
    a('s_mul_i32 s47, s47, %d' % cfg.rd)
    a('s_add_u32 s45, s45, s47')
    a('s_add_u32 s45, s45, %d' % cfg.rc)
    a('s_lshl_b32 s39, s37, 7')
    a('s_movk_i32 s40, 3072')
    a('s_movk_i32 s41, 31')
    a('s_mov_b32 s42, 0')
    a('s_lshl_b32 s43, s38, 9')
    a('s_mov_b32 s44, 1')
    a('s_waitcnt lgkmcnt(0)')
    srd(a, 24, 12, 640 * 3072)
    a('L1_common:')
    srd(a, 20, 4, 2048 * 1280)
    a('s_cmp_lt_u32 s3, 4')
    a('s_cbranch_scc1 L1_consumer')
    a('s_setprio 3')
    a('s_sub_u32 s46, s3, 4')
    a('v_lshrrev_b32 v2, 3, v0')
    a('v_lshrrev_b32 v3, 4, v0')
    a('v_and_b32 v4, 7, v0')
    a('s_lshr_b32 s47, s46, 1')
    a('s_add_u32 s47, s47, s39')
    a('s_and_b32 s48, s46, 1')
    a('s_lshl_b32 s48, s48, 6')
    a('s_add_u32 s47, s47, s48')
    a('v_lshl_add_u32 v5, v2, 1, s47')
    a('v_mul_u32_u24 v5, 0x500, v5')
    a('v_xor_b32 v4, v4, v3')
    a('v_lshl_add_u32 v16, v4, 4, v5')
    a('v_xor_b32 v4, 4, v4')
    a('v_lshl_add_u32 v17, v4, 4, v5')
    a('v_add_u32 v17, %d, v17' % (16 * 1280))
    a('v_add_u32 v18, %d, v16' % (32 * 1280))
    a('v_add_u32 v19, %d, v17' % (32 * 1280))
    a('v_and_b32 v1, 31, v0')
    a('v_min_u32 v1, s41, v1')
    a('v_mul_u32_u24 v2, 13, v1')
    a('v_lshrrev_b32 v2, 7, v2')
    a('v_lshlrev_b32 v1, 4, v1')
    a('v_mad_u32_u24 v1, v2, s42, v1')
    a('v_add_u32 v1, s43, v1')
    a('v_lshrrev_b32 v2, 5, v0')
    a('v_lshlrev_b32 v2, 2, v2')
    a('s_lshl_b32 s47, s46, 4')
    a('v_add_u32 v2, s47, v2')
    a('v_mad_u32_u24 v8, v2, s40, v1')
    a('s_lshl_b32 s47, s40, 3')
    a('v_add_u32 v12, s47, v8')
    for e in range(1, 4):
        a('v_add_u32 %s, s40, %s' % (v(8 + e), v(7 + e)))
        a('v_add_u32 %s, s40, %s' % (v(12 + e), v(11 + e)))
    a('s_mul_i32 s47, s45, 205')
    a('s_lshr_b32 s47, s47, 11')
    a('s_mul_i32 s47, s47, 10')
    a('s_sub_u32 s45, s45, s47')
    a('s_mov_b32 s48, 0')
    a('s_mov_b32 s49, 0')
    a('s_mul_i32 s50, s46, %d' % (8 * 1056))
    a('s_lshl_b32 s51, s46, 12')
    a('s_add_u32 s51, s51, %d' % XOFF)
    a('s_lshl_b32 s53, s40, 6')
    a('L1_ld_loop:')
    a('s_cmp_lt_u32 s48, 2')
    a('s_cbranch_scc1 L1_ld_nowait')
    a('s_waitcnt vmcnt(12)')
    a('s_barrier')
    a('L1_ld_nowait:')
    a('s_mul_i32 s52, s45, s53')
    a('s_lshl_b32 s54, s45, 7')
    a('s_add_u32 m0, s49, s51')
    for e in range(4):
        if e: a('s_add_u32 m0, m0, 1024')
        a('buffer_load_dwordx4 %s, s[20:23], s54 offen lds' % v(16 + e))
    a('s_add_u32 m0, s49, s50')
    for e in range(8):
        if e: a('s_add_u32 m0, m0, 1056')
        a('buffer_load_dwordx4 %s, s[24:27], s52 offen lds' % v(8 + e))
    a('s_add_u32 s45, s45, 1')
    a('s_cmp_eq_u32 s45, 10')
    a('s_cselect_b32 s45, 0, s45')
    a('s_add_u32 s49, s49, %d' % SLOT)
    a('s_cmp_eq_u32 s49, %d' % (3 * SLOT))
    a('s_cselect_b32 s49, 0, s49')
    a('s_add_u32 s48, s48, 1')
    a('s_cmp_lt_u32 s48, 10')
    a('s_cbranch_scc1 L1_ld_loop')
    stamp(a, 1)
    a('s_cmp_eq_u32 s44, 1')
    a('s_cselect_b32 s47, s38, 4')
    a('s_cmp_lt_u32 s47, 4')
    a('s_waitcnt vmcnt(12)')
    a('s_barrier')
    a('s_cbranch_scc1 L1_ld_gate')
    a('s_waitcnt vmcnt(0)')
    a('s_barrier')
    stamp_flush(a, 0, 16)
    a('s_endpgm')
    gen_gate(a)
    a('L1_consumer:')
    srd(a, 28, 16, WS_SIZE)
    a('s_and_b32 s46, s3, 1')
    a('s_lshr_b32 s47, s3, 1')
    a('v_lshrrev_b32 v1, 4, v0')
    a('v_and_b32 v2, 15, v0')
    a('v_bfe_u32 v3, v2, 1, 3')
    a('v_xor_b32 v3, v3, v1')
    a('v_lshlrev_b32 v3, 4, v3')
    a('v_lshl_add_u32 v3, v2, 7, v3')
    a('s_lshl_b32 s48, s46, 13')
    a('s_add_u32 s48, s48, %d' % XOFF)
    a('v_add_u32 %s, s48, v3' % v(VXA0))
    a('v_xor_b32 %s, 64, %s' % (v(VXA1), v(VXA0)))
    a('v_lshrrev_b32 v3, 2, v0')
    a('v_mul_u32_u24 v3, 0x420, v3')
    a('v_and_b32 v15, 3, v0')
    a('v_lshl_add_u32 %s, v15, 3, v3' % v(VWM))
    a('s_mov_b32 s51, %d' % (-2 * SLOT & 0xffffffff))
    a('s_mov_b32 s52, %d' % SLOT)
    for i in range(128): a('v_mov_b32 %s, 0' % v(ACC + i))
    a('s_cmp_eq_u32 s44, 1')
    a('s_cbranch_scc1 L1_ffn')
    a('s_mul_i32 s48, s47, 80')
    a('v_add_u32 %s, s48, %s' % (v(VWM), v(VWM)))
    a('v_add_u32 v3, s48, v3')
    a('v_and_b32 v16, 1, v15')
    a('v_mad_u32_u24 v3, v16, 40, v3')
    a('v_add_u32 %s, 352, v3' % v(VWV))
    a('v_lshrrev_b32 v16, 1, v15')
    a('v_mul_u32_u24 v16, 160, v16')
    a('v_add3_u32 %s, v3, v16, 32' % v(VWQ))
    a('v_lshlrev_b32 v16, 2, v1')
    a('v_sub_u32 v16, v2, v16')
    a('v_mov_b32 v17, %s' % f32(-1e30))
    for r in range(4):
        a('v_subrev_u32 v18, %d, v16' % r)
        a('v_cmp_gt_u32 vcc, 8, v18')
        a('v_cndmask_b32 %s, v17, 0, vcc' % v(240 + r))
        a('v_cmp_gt_i32 vcc, -8, v18')
        a('v_cndmask_b32 %s, v17, 0, vcc' % v(244 + r))
        a('v_cmp_le_i32 vcc, 0, v18')
        a('v_cndmask_b32 %s, 0, -1, vcc' % v(20 + r))
        a('v_mov_b32 %s, 0x3f803f80' % v(250 + r))
    a('v_mov_b32 v17, 0xffff')
    a('v_bfi_b32 v248, v17, v20, v21')
    a('v_bfi_b32 v249, v17, v22, v23')
    a('s_mul_i32 s55, s37, 57')
    a('s_cmp_eq_u32 s37, 0')
    a('s_cselect_b32 s53, 0, 7')
    a('s_mov_b32 s54, %d' % RSTRIDE)
    a('s_lshl_b32 s58, s38, 1')
    a('s_add_u32 s58, s58, s47')
    a('s_lshl_b32 s58, s58, 12')
    a('s_lshl_b32 s59, s46, 10')
    a('s_add_u32 s58, s58, s59')
    a('v_lshlrev_b32 v19, 8, v1')
    for t in range(4):
        a('v_add_u32 v16, %d, v2' % (16 * t))
        a('v_add_u32 v17, s55, v16')
        tok_addr(a, 9 + t, 17, 18, 16)
        a('v_add_u32 %s, v19, %s' % (v(9 + t), v(9 + t)))
    a('s_lshr_b32 s60, s38, 1')
    a('s_add_u32 s60, s60, 16')
    a('s_lshl_b32 s60, s60, 12')
    a('s_add_u32 s59, s59, s60')
    a('s_and_b32 s60, s38, 1')
    a('s_lshl_b32 s60, s60, 1')
    a('s_add_u32 s60, s60, s47')
    a('s_lshl_b32 s60, s60, 8')
    a('s_add_u32 s59, s59, s60')
    a('v_and_b32 v19, 1, v1')
    a('v_lshlrev_b32 v19, 3, v19')
    a('v_lshrrev_b32 v20, 1, v1')
    a('v_lshl_add_u32 v20, v20, 4, v2')
    for u in range(2):
        a('v_add_u32 v16, %d, v20' % (32 * u))
        a('v_add_u32 v17, s55, v16')
        tok_addr(a, 13 + u, 17, 18, 16)
        a('v_add_u32 %s, v19, %s' % (v(13 + u), v(13 + u)))
    for g in range(4):
        m = 0xffff << (16 * g)
        a('s_mov_b32 %s, 0x%x' % (s(64 + 2 * g), m & 0xffffffff))
        a('s_mov_b32 %s, 0x%x' % (s(65 + 2 * g), m >> 32))
    cs = 20 ** -0.5 * math.log2(math.e)
    a('s_mov_b32 s62, %s' % f32(cs))
    a('s_mov_b32 s63, %s' % f32(-cs))
    k1_mainloop(a, True, 'att')
    gen_attention(a)
    if cfg.prof: a('s_waitcnt vmcnt(0)')
    stamp_flush(a, 0, 16, 0)
    a('s_endpgm')
    a('L1_ffn:')
    a('s_lshl_b32 s48, s47, 8')
    a('v_add_u32 %s, s48, %s' % (v(VWM), v(VWM)))
    a('v_lshlrev_b32 v9, 4, v0')
    a('s_mul_i32 s58, s37, %d' % (2 * RSTRIDE))
    a('s_lshl_b32 s59, s38, 3')
    a('s_lshl_b32 s60, s47, 2')
    a('s_add_u32 s59, s59, s60')
    a('s_add_u32 s59, s59, 20')
    a('s_lshl_b32 s59, s59, 12')
    a('s_add_u32 s58, s58, s59')
    a('s_lshl_b32 s59, s46, 10')
    a('s_add_u32 s58, s58, s59')
    k1_mainloop(a, False, 'ffn')
    k = 0
    for m in range(4):
        for t in range(4):
            d = 16 + 4 * (k % 16); k += 1
            for h in range(2):
                A = acc(t, 2 * m + h)
                a('v_cvt_pk_bf16_f32 %s, %s, %s' % (v(d + 2 * h), v(A), v(A + 1)))
                a('v_cvt_pk_bf16_f32 %s, %s, %s' % (v(d + 2 * h + 1), v(A + 2), v(A + 3)))
            for i in range(4):
                a('v_pk_max_i16 %s, %s, 0' % (v(d + i), v(d + i)))
            a('s_add_u32 s59, s58, %d' % ((t >> 1) * RSTRIDE + m * 4096))
            a('buffer_store_dwordx4 %s, v9, s[28:31], s59 offen offset:%d' % (v(d, 4), (t & 1) * 2048) + stp())
    if cfg.prof: a('s_waitcnt vmcnt(0)')
    stamp_flush(a, 0, 16, 1)
    a('s_endpgm')
    gen_prep(a)
    a('L1_end:')
    a('s_endpgm')

def gen_attention(a):
    KK = lambda t: 16 + 6 * t
    Q0 = lambda t: 40 + 8 * t
    Q1 = lambda t: 44 + 8 * t
    VP = lambda h, t: 72 + 8 * h + 2 * t
    M = lambda u: 96 + u
    SC = lambda u: 112 + 8 * u
    SP = lambda u: 116 + 8 * u
    P = lambda u: 176 + 4 * u
    SUM = lambda u: 208 + 4 * u
    def cvt(d, A):
        a('v_cvt_pk_bf16_f32 %s, %s, %s' % (v(d), v(A), v(A + 1)))
        a('v_cvt_pk_bf16_f32 %s, %s, %s' % (v(d + 1), v(A + 2), v(A + 3)))
    def conv_qk(t):
        cvt(Q1(t), acc(t, 4)); cvt(KK(t) + 2, acc(t, 4))
        cvt(Q0(t), acc(t, 0)); cvt(Q1(t) + 2, acc(t, 1))
        a('v_permlane32_swap_b32 %s, %s' % (v(Q1(t)), v(KK(t) + 2)))
        a('v_permlane32_swap_b32 %s, %s' % (v(Q1(t) + 1), v(KK(t) + 3)))
        cvt(KK(t), acc(t, 2)); cvt(KK(t) + 4, acc(t, 3))
        for i in range(2):
            a('v_cndmask_b32 %s, 0, %s, s[64:65]' % (v(Q0(t) + 2 + i), v(Q1(t) + i)))
            a('v_cndmask_b32 %s, 0, %s, s[66:67]' % (v(Q1(t) + i), v(Q1(t) + i)))
    def conv_v(t):
        for h in range(3): cvt(VP(h, t), acc(t, 5 + h))
    for t in range(4): conv_qk(t)
    conv_v(0); conv_v(1)
    Kop = lambda h, t: v(KK(t) + 2 * h, 4)
    Qop = lambda h, t: v(Q0(t) if h == 0 else Q1(t), 4)
    mf = []
    for h in range(2):
        for t in range(4):
            u = 4 * h + t
            mf.append('v_mfma_f32_16x16x32_bf16 %s, %s, %s, v[240:243]' % (v(SC(u), 4), Kop(h, t), Qop(h, t)))
            if t: mf.append('v_mfma_f32_16x16x32_bf16 %s, %s, %s, v[244:247]' % (v(SP(u), 4), Kop(h, t - 1), Qop(h, t)))
    cv = []
    for t in (2, 3):
        for h in range(3):
            A = acc(t, 5 + h); d = VP(h, t)
            cv.append('v_cvt_pk_bf16_f32 %s, %s, %s' % (v(d), v(A), v(A + 1)))
            cv.append('v_cvt_pk_bf16_f32 %s, %s, %s' % (v(d + 1), v(A + 2), v(A + 3)))
    interleave(a, mf, cv)
    for u in range(8):
        if u & 3:
            for r in range(4): a('v_max_f32 %s, %s, %s' % (v(SC(u) + r), v(SC(u) + r), v(SP(u) + r)))
        a('v_max3_f32 %s, %s, %s, %s' % (v(M(u)), v(SC(u)), v(SC(u) + 1), v(SC(u) + 2)))
        a('v_max_f32 %s, %s, %s' % (v(M(u)), v(M(u)), v(SC(u) + 3)))
    G = (0, 4)
    for b in G:
        a('v_permlane32_swap_b32 %s, %s' % (v(M(b)), v(M(b + 1))))
        a('v_permlane32_swap_b32 %s, %s' % (v(M(b + 2)), v(M(b + 3))))
    for b in G:
        a('v_max_f32 %s, %s, %s' % (v(M(b)), v(M(b)), v(M(b + 1))))
        a('v_max_f32 %s, %s, %s' % (v(M(b + 2)), v(M(b + 2)), v(M(b + 3))))
    for b in G: a('v_permlane16_swap_b32 %s, %s' % (v(M(b)), v(M(b + 2))))
    for b in G: a('v_max_f32 %s, %s, %s' % (v(M(b)), v(M(b)), v(M(b + 2))))
    for b in G: a('v_mul_f32 %s, s63, %s' % (v(M(b + 2)), v(M(b))))
    for b in G: a('v_mul_f32 %s, s63, %s' % (v(M(b)), v(M(b))))
    for b in G: a('v_permlane16_swap_b32 %s, %s' % (v(M(b)), v(M(b + 2))))
    for b in G:
        a('v_mov_b32 %s, %s' % (v(M(b + 1)), v(M(b))))
        a('v_mov_b32 %s, %s' % (v(M(b + 3)), v(M(b + 2))))
    for b in G:
        a('v_permlane32_swap_b32 %s, %s' % (v(M(b)), v(M(b + 1))))
        a('v_permlane32_swap_b32 %s, %s' % (v(M(b + 2)), v(M(b + 3))))
    pend = []
    for u in range(8):
        h, t = u >> 2, u & 3
        for r in range(4): a('v_fma_f32 %s, %s, s62, %s' % (v(SC(u) + r), v(SC(u) + r), v(M(u))))
        for r in range(4):
            a('v_exp_f32 %s, %s' % (v(SC(u) + r), v(SC(u) + r)))
            if pend: a(pend.pop(0))
        for x in pend: a(x)
        if t == 0:
            cvt(P(u) + 2, SC(u))
            op = 'v_mfma_f32_16x16x16_bf16'; B = v(P(u) + 2, 2); n = 2; o = 0
        else:
            cvt(P(u), SC(u))
            for i in range(2): a('v_and_b32 %s, %s, %s' % (v(P(u) + 2 + i), v(248 + i), v(P(u) + i)))
            for i in range(2): a('v_bfi_b32 %s, %s, 0, %s' % (v(P(u) + i), v(248 + i), v(P(u) + i)))
            op = 'v_mfma_f32_16x16x32_bf16'; B = v(P(u), 4); n = 4; o = -2
        pend = ['%s %s, %s, %s, 0' % (op, v(SUM(u), 4), v(250, n), B),
                '%s %s, %s, %s, 0' % (op, v(SC(u), 4), v(VP(h, t) + o, n), B),
                '%s %s, %s, %s, 0' % (op, v(SP(u), 4), v(VP(2, t) + o, n), B)]
    for x in pend: a(x)
    for u in range(8): a('v_rcp_f32 %s, %s' % (v(SUM(u)), v(SUM(u))))
    for t in range(4):
        for h in range(2):
            u = 4 * h + t
            for i in range(2):
                a('v_pk_mul_f32 %s, %s, %s op_sel_hi:[1,0]' % (v(SC(u) + 2 * i, 2), v(SC(u) + 2 * i, 2), v(SUM(u), 2)))
        for h in range(2): cvt(16 + 4 * t + 2 * h, SC(4 * h + t))
        a('buffer_store_dwordx4 %s, %s, s[28:31], s58 offen' % (v(16 + 4 * t, 4), v(9 + t)) + stp())
    for g in range(4):
        a('s_mov_b64 exec, %s' % s(64 + 2 * g, 2))
        for u2 in range(2):
            u = 4 * (g & 1) + 2 * u2 + (g >> 1)
            for i in range(2):
                a('v_pk_mul_f32 %s, %s, %s op_sel_hi:[1,0]' % (v(40 + 4 * u2 + 2 * i, 2), v(SP(u) + 2 * i, 2), v(SUM(u), 2)))
    a('s_mov_b64 exec, -1')
    for u2 in range(2):
        cvt(48 + 2 * u2, 40 + 4 * u2)
        a('buffer_store_dwordx2 %s, %s, s[28:31], s59 offen' % (v(48 + 2 * u2, 2), v(13 + u2)) + stp())

def gen_gate(a):
    GW, GX = 24, 64
    a('L1_ld_gate:')
    srd(a, 56, 10, 1280)
    srd(a, 28, 16, WS_SIZE)
    a('v_and_b32 v1, 7, v0')
    a('v_lshlrev_b32 v1, 4, v1')
    a('s_lshl_b32 s47, s38, 5')
    a('s_add_u32 s47, s47, s39')
    a('s_lshl_b32 s48, s46, 3')
    a('s_add_u32 s47, s47, s48')
    a('v_lshrrev_b32 v2, 3, v0')
    a('v_add_u32 v2, s47, v2')
    a('v_mul_u32_u24 v3, 0x500, v2')
    a('v_add_u32 v3, v3, v1')
    a('s_waitcnt vmcnt(0)')
    a('s_barrier')
    for i in range(10):
        a('buffer_load_dwordx4 %s, v1, s[56:59], 0 offen offset:%d' % (v(GW + 4 * i, 4), 128 * i))
    for i in range(10):
        a('buffer_load_dwordx4 %s, v3, s[20:23], 0 offen offset:%d' % (v(GX + 4 * i, 4), 128 * i))
    a('v_mov_b32 v9, 0')
    a('v_mov_b32 v10, 0')
    a('s_waitcnt vmcnt(0)')
    for i in range(40):
        a('v_dot2_f32_bf16 %s, %s, %s, %s' % (v(9 + (i & 1)), v(GX + i), v(GW + i), v(9 + (i & 1))))
    a('v_add_f32 v9, v9, v10')
    for pat in ('quad_perm:[1,0,3,2]', 'quad_perm:[2,3,0,1]', 'row_half_mirror'):
        a('v_add_f32_dpp v11, v9, v9 %s row_mask:0xf bank_mask:0xf' % pat)
        a('v_mov_b32 v9, v11')
    a('v_mul_f32 v9, %s, v9' % f32(-math.log2(math.e)))
    a('v_exp_f32 v9, v9')
    a('v_add_f32 v9, 1.0, v9')
    a('v_rcp_f32 v9, v9')
    a('v_lshlrev_b32 v2, 2, v2')
    a('v_mov_b32 v3, %s' % hex(BAD))
    a('v_cmp_eq_u32 vcc, 0, v1')
    a('v_cndmask_b32 v2, v3, v2, vcc')
    a('s_mov_b32 s60, %d' % WS_G)
    a('buffer_store_dword v9, v2, s[28:31], s60 offen' + stp())
    if cfg.prof: a('s_waitcnt vmcnt(0)')
    stamp_flush(a, 0, 16)
    a('s_endpgm')

def gen_prep(a):
    PITCH = 176
    LW = 32 * PITCH
    a('L1_prep:')
    a('s_sub_u32 s37, s34, 30')
    a('s_lshl_b32 s37, s37, 3')
    a('s_add_u32 s37, s37, s33')
    a('s_waitcnt lgkmcnt(0)')
    srd(a, 24, 8, 640 * 1280)
    srd(a, 40, 14, 1536 * 1280)
    srd(a, 28, 16, WS_SIZE)
    U = lambda u: 24 + 20 * u
    GW = 124
    GX = 164
    a('s_mul_i32 s48, s3, 160')
    a('s_mul_i32 s49, s3, %d' % LW)
    a('s_movk_i32 s50, 205')
    a('s_movk_i32 s51, 1280')
    a('s_movk_i32 s52, %d' % PITCH)
    for e in range(5):
        a('v_add_u32 v1, %d, v0' % (64 * e))
        a('v_mul_u32_u24 v2, s50, v1')
        a('v_lshrrev_b32 v2, 11, v2')
        a('v_mul_u32_u24 v3, 10, v2')
        a('v_sub_u32 v1, v1, v3')
        a('v_lshlrev_b32 v1, 4, v1')
        a('v_mad_u32_u24 %s, v2, s52, v1' % v(19 + e))
        a('v_add_u32 %s, s49, %s' % (v(19 + e), v(19 + e)))
        a('v_and_b32 v3, 3, v2')
        a('v_mad_u32_u24 v1, v3, s51, v1')
        a('v_add_u32 %s, s48, v1' % v(4 + e))
        a('v_lshrrev_b32 %s, 3, v2' % v(9 + e))
        a('v_bfe_u32 %s, v2, 2, 1' % v(14 + e))
    def addrs(al, be):
        a('s_movk_i32 s53, %d' % (al * 1280) if al * 1280 < 32768 else 's_mov_b32 s53, %d' % (al * 1280))
        a('s_movk_i32 s54, %d' % (be * 1280))
        for e in range(5):
            a('v_mad_u32_u24 %s, %s, s53, %s' % (v(244 + e), v(9 + e), v(4 + e)))
            a('v_mad_u32_u24 %s, %s, s54, %s' % (v(244 + e), v(14 + e), v(244 + e)))
    addrs(4, 16)
    a('s_mul_i32 s55, s37, %d' % (3 * 32 * 1280))
    for u in range(3):
        for e in range(5):
            a('buffer_load_dwordx4 %s, %s, s[40:43], s55 offen' % (v(U(u) + 4 * e, 4), v(244 + e)))
        if u < 2: a('s_add_u32 s55, s55, %d' % (32 * 1280))
    addrs(4, 20)
    a('s_mul_i32 s55, s37, %d' % (40 * 1280))
    for e in range(5):
        a('buffer_load_dwordx4 %s, %s, s[24:27], s55 offen' % (v(U(3) + 4 * e, 4), v(244 + e)))
    a('s_and_b32 s56, s37, 3')
    a('s_lshr_b32 s61, s37, 2')
    a('s_lshr_b32 s62, s3, 1')
    a('s_cmp_lg_u32 s61, s62')
    a('s_cbranch_scc1 L1_prep_norem')
    addrs(40, 20)
    a('s_mul_i32 s55, s56, %d' % (160 * 1280))
    a('s_add_u32 s55, s55, %d' % (16 * 1280))
    for e in range(5):
        a('buffer_load_dwordx4 %s, %s, s[24:27], s55 offen' % (v(U(4) + 4 * e, 4), v(244 + e)))
    a('L1_prep_norem:')
    a('v_lshrrev_b32 v4, 4, v0')
    a('v_bfe_u32 v5, v0, 2, 2')
    a('v_lshl_add_u32 v4, v4, 3, v5')
    a('v_mul_u32_u24 v4, s52, v4')
    a('v_add_u32 v4, s49, v4')
    a('v_and_b32 v5, 3, v0')
    a('v_lshl_add_u32 v6, v5, 3, v4')
    a('v_lshl_add_u32 v5, v5, 4, v4')
    a('v_lshlrev_b32 v7, 4, v0')
    a('v_add_u32 v8, 4096, v7')
    a('s_mul_i32 s59, s3, %d' % NBSTRIDE)
    a('s_add_u32 s59, s59, %d' % WS_B)
    for u in range(5):
        if u == 4:
            a('s_cmp_lg_u32 s61, s62')
            a('s_cbranch_scc1 L1_prep_done')
        a('s_waitcnt vmcnt(%d)' % (15 if u < 4 else 20))
        for e in range(5):
            a('ds_write_b128 %s, %s' % (v(19 + e), v(U(u) + 4 * e, 4)))
        if u < 3:
            a('s_mul_i32 s60, s37, 3'); a('s_add_u32 s60, s60, %d' % (20 + u))
        elif u == 3:
            a('s_mov_b32 s60, s37')
        else:
            a('s_add_u32 s60, s56, 16')
        a('s_mul_i32 s60, s60, 5120')
        a('s_add_u32 s60, s60, s59')
        a('s_waitcnt lgkmcnt(0)')
        for nt in range(5):
            for h in range(2):
                if nt < 4: reg, off = 5, 64 * (nt >> 1) + 8 * (nt & 1)
                else: reg, off = 6, 128
                a('ds_read_b64_tr_b16 %s, %s offset:%d' % (v(U(u) + 4 * nt + 2 * h, 2), v(reg), off + h * 4 * PITCH))
        a('s_waitcnt lgkmcnt(0)')
        for nt in range(5):
            a('buffer_store_dwordx4 %s, %s, s[28:31], s60 offen offset:%d' % (v(U(u) + 4 * nt, 4), v(7 if nt < 4 else 8), (nt & 3) * 1024) + stp())
    a('L1_prep_done:')
    if cfg.prof: a('s_waitcnt vmcnt(0)')
    stamp_flush(a, 0, 16, 3)
    a('s_endpgm')

def gen_k2(a):
    D = cfg.k2depth
    RING = 16
    AC = RING + 36 * D
    accr = lambda m, nt: AC + (m * 5 + nt) * 4
    Bq = lambda q, nt: RING + 36 * q + 4 * nt
    Aq = lambda q, m: RING + 36 * q + 20 + 4 * m
    a('.globl %s' % K2); a('.p2align 8'); a('.type %s,@function' % K2)
    a('%s:' % K2)
    a('s_cmp_ge_u32 s2, 256')
    a('s_cbranch_scc1 L2_end')
    stamp(a, 0)
    a('s_load_dwordx2 s[4:5], s[0:1], 72')
    a('s_load_dwordx2 s[6:7], s[0:1], 56')
    a('v_lshrrev_b32 v1, 6, v0')
    a('v_and_b32 v0, 63, v0')
    a('v_readfirstlane_b32 s3, v1')
    if cfg.scr & 2:
        a('s_lshr_b32 s16, s2, 5'); a('s_and_b32 s17, s2, 31')
    else:
        a('s_and_b32 s16, s2, 7')
        a('s_lshr_b32 s17, s2, 3')
    a('s_and_b32 s18, s16, 1')
    a('s_lshl_b32 s18, s18, 2')
    a('s_and_b32 s19, s17, 3')
    a('s_add_u32 s18, s18, s19')
    a('s_lshr_b32 s19, s16, 1')
    a('s_lshl_b32 s19, s19, 3')
    a('s_lshr_b32 s20, s17, 2')
    a('s_add_u32 s19, s19, s20')
    a('s_lshl_b32 s20, s3, 4')
    a('s_add_u32 s20, s20, 4')
    a('s_cmp_eq_u32 s3, 0')
    a('s_cselect_b32 s20, 0, s20')
    if cfg.k2prio:
        a('s_cbranch_scc0 L2_noprio')
        a('s_setprio 3')
        a('L2_noprio:')
    a('s_cselect_b32 s21, %d, %d' % (20 // D - 1, 16 // D - 1))
    a('s_mul_i32 s22, s19, %d' % RSTRIDE)
    a('s_lshl_b32 s23, s20, 12')
    a('s_add_u32 s22, s22, s23')
    a('s_mul_i32 s23, s18, %d' % NBSTRIDE)
    a('s_mul_i32 s24, s20, 5120')
    a('s_add_u32 s23, s23, s24')
    a('s_add_u32 s23, s23, %d' % WS_B)
    a('v_lshlrev_b32 v2, 4, v0')
    a('v_add_u32 v3, 4096, v2')
    for m in range(4):
        a('s_add_u32 s24, s3, %d' % m)
        a('s_and_b32 s24, s24, 3')
        a('s_lshl_b32 s25, s24, 10')
        a('v_add_u32 %s, s25, v2' % v(4 + m))
        if m:
            a('s_mul_i32 s25, s24, 15360')
            a('s_add_u32 s25, s25, %d' % ((m - 1) * 5120))
            a('v_add_u32 %s, s25, v2' % v(8 + m))
    a('s_lshl_b32 s24, s19, 6')
    a('s_lshr_b32 s25, s3, 1')
    a('s_lshl_b32 s25, s25, 5')
    a('s_add_u32 s24, s24, s25')
    a('s_and_b32 s25, s3, 1')
    a('s_add_u32 s24, s24, s25')
    a('v_and_b32 v12, 15, v0')
    a('v_lshl_add_u32 v12, v12, 1, s24')
    a('v_lshlrev_b32 v13, 2, v12')
    a('s_mov_b32 s26, %d' % WS_G)
    a('s_waitcnt lgkmcnt(0)')
    srd(a, 8, 4, WS_SIZE)
    def ldB(q, nt): return 'buffer_load_dwordx4 %s, %s, s[8:11], s23 offen offset:%d' % (v(Bq(q, nt), 4), v(2 if nt < 4 else 3), (nt & 3) * 1024)
    def ldA(q, m): return 'buffer_load_dwordx4 %s, %s, s[8:11], s22 offen' % (v(Aq(q, m), 4), v(4 + m))
    adv = ['s_add_u32 s22, s22, 4096', 's_add_u32 s23, s23, 5120']
    a('buffer_load_dword v14, v13, s[8:11], s26 offen')
    for q in range(D):
        for nt in range(5): a(ldB(q, nt))
        for m in range(4): a(ldA(q, m))
        for x in adv: a(x)
    srd(a, 12, 6, 2048 * 1280)
    for i in range(80): a('v_mov_b32 %s, 0' % v(AC + i))
    def step(q, load, cnt):
        a('s_waitcnt vmcnt(%d)' % cnt)
        for nt in range(5):
            for m in range(4):
                A = v(accr(m, nt), 4)
                a('v_mfma_f32_16x16x32_bf16 %s, %s, %s, %s' % (A, v(Bq(q, nt), 4), v(Aq(q, m), 4), A))
                if load and nt == 4: a(ldA(q, m)) if False else None
            if load: a(ldB(q, nt))
        if load:
            for m in range(4): a(ldA(q, m))
            for x in adv: a(x)
    if cfg.prof: a('s_waitcnt vmcnt(%d)' % (9 * (D - 1)))
    stamp(a, 1)
    a('L2_loop:')
    for q in range(D): step(q, True, 9 * (D - 1))
    a('s_sub_u32 s21, s21, 1')
    a('s_cmp_lg_u32 s21, 0')
    a('s_cbranch_scc1 L2_loop')
    for q in range(D): step(q, False, 9 * (D - 1 - q))
    stamp(a, 2)
    for m in range(1, 4):
        for nt in range(5):
            a('ds_write_b128 %s, %s offset:%d' % (v(8 + m), v(accr(m, nt), 4), nt * 1024))
    a('v_sub_f32 v15, 1.0, v14')
    for m in range(4):
        a('s_cmp_eq_u32 s3, %d' % m)
        a('s_cselect_b64 vcc, -1, 0')
        a('v_cndmask_b32 %s, v15, v14, vcc' % v(16 + 2 * m))
    a('s_mul_i32 s25, s3, 15360')
    a('v_add_u32 v8, s25, v2')
    a('s_mul_i32 s25, s18, 160')
    a('v_mul_u32_u24 v12, 0x500, v12')
    a('v_lshrrev_b32 v13, 4, v0')
    a('v_lshl_add_u32 v9, v13, 3, v12')
    a('v_lshl_add_u32 v12, v13, 4, v12')
    for i in range(10):
        A = AC + 2 * i
        a('v_pk_mul_f32 %s, %s, v[16:17] op_sel_hi:[1,0]' % (v(A, 2), v(A, 2)))
    a('s_waitcnt lgkmcnt(0)')
    a('s_barrier')
    for m in range(1, 4):
        for nt in range(5):
            a('ds_read_b128 %s, v8 offset:%d' % (v(accr(m, nt), 4), ((m - 1) * 5 + nt) * 1024))
    for m in range(1, 4):
        a('s_waitcnt lgkmcnt(%d)' % (5 * (3 - m)))
        for i in range(10):
            A = AC + 2 * i
            a('v_pk_fma_f32 %s, %s, %s, %s op_sel_hi:[1,0,1]' % (v(A, 2), v(A + 20 * m, 2), v(16 + 2 * m, 2), v(A, 2)))
    for i in range(10):
        a('v_cvt_pk_bf16_f32 %s, %s, %s' % (v(24 + i), v(AC + 2 * i), v(AC + 2 * i + 1)))
    a('buffer_store_dwordx4 v[24:27], v12, s[12:15], s25 offen' + stp(cfg.k2st))
    a('buffer_store_dwordx4 v[28:31], v12, s[12:15], s25 offen offset:64' + stp(cfg.k2st))
    a('buffer_store_dwordx2 v[32:33], v9, s[12:15], s25 offen offset:128' + stp(cfg.k2st))
    if cfg.prof: a('s_waitcnt vmcnt(0)')
    stamp_flush(a, 1, 4)
    a('L2_end:')
    a('s_endpgm')
    return AC + 80

def desc(name, nv):
    nv = (nv + 7) // 8 * 8
    return '''.p2align 6
.amdhsa_kernel %s
  .amdhsa_next_free_vgpr %d
  .amdhsa_next_free_sgpr 102
  .amdhsa_accum_offset %d
  .amdhsa_group_segment_fixed_size 0
  .amdhsa_kernarg_size 80
  .amdhsa_user_sgpr_count 2
  .amdhsa_user_sgpr_kernarg_segment_ptr 1
  .amdhsa_system_sgpr_workgroup_id_x 1
.end_amdhsa_kernel
''' % (name, nv, nv)

def main():
    for arg in sys.argv[2:]:
        k, val = arg.split('='); setattr(cfg, k, int(val))
    a = Asm()
    gen_k1(a)
    nv2 = gen_k2(a)
    body = a.finish()
    hdr = '''; gated mix of sliding-window dilated attention and ReLU FFN, two launches.
; launch 1: qkv projection + attention, FFN up projection + relu, weight re-layout + gate
; launch 2: output projections (wo, w2) and gated mix
; @launch kernel=%s grid=(256,1,1) block=(512,1,1) lds=%d
; @launch kernel=%s grid=(256,1,1) block=(256,1,1) lds=%d
.amdgcn_target "amdgcn-amd-amdhsa--gfx950"
.text
''' % (K1, 3 * SLOT, K2, 61440)
    out = hdr + body + '.section .rodata,"a"\n' + desc(K1, 256) + desc(K2, nv2)
    open(sys.argv[1], 'w').write(out)
    print('nops inserted:', a.nops, 'bytes', len(out))

main()
```

```python
import sys, math, struct
from asmlib import Asm, v, s

NAME = 'gated_mix__sliding_local_dilated__dense_activation_relu__prompt'
K1 = NAME + '_kernel'
K2 = 'gm_stage2_kernel'

WS_A = 0
WS_B = 0x900000
WS_G = 0xC00000
WS_SIZE = 0xC02000
RSTRIDE = 68 * 4096
NBSTRIDE = 68 * 5120
SLOT = 50176
XOFF = 33792
BAD = 0x40000000

class Cfg:
    ra = 1
    rb = 5
    rc = 3
    rd = 5
    prof = 0
    k2depth = 4
    k2prio = 1
    pw = 35
    scr = 0
    k2st = 0
    stpol = 1
cfg = Cfg()

def stp(p=None):
    return ['', ' sc1', ' sc0 sc1', ' nt', ' sc1 nt', ' sc0 sc1 nt'][cfg.stpol if p is None else p]

def f32(x):
    return '0x%08x' % struct.unpack('<I', struct.pack('<f', x))[0]

def srd(a, d, lo, size):
    a('s_mov_b32 %s, %s' % (s(d), s(lo)))
    a('s_mov_b32 %s, %s' % (s(d + 1), s(lo + 1)))
    a('s_mov_b32 %s, %d' % (s(d + 2), size))
    a('s_mov_b32 %s, 0x00020000' % s(d + 3))

PROF = 0xD00000
def stamp(a, i):
    if cfg.prof:
        a('s_memrealtime %s' % s(80 + 2 * i, 2))
        a('s_memtime %s' % s(72 + 2 * i, 2))
def stamp_flush(a, kern, wsreg, role=2):
    if not cfg.prof: return
    a('s_memrealtime s[86:87]')
    a('s_memtime s[78:79]')
    if cfg.prof == 3 and kern == 1:
        a('s_or_b32 s92, s2, s3')
        a('s_cmp_lg_u32 s92, 0')
        a('s_cbranch_scc1 L2_end')
        a('s_load_dwordx2 s[88:89], s[0:1], 64')
        a('s_mov_b32 s90, 256'); a('s_mov_b32 s91, 0x00020000')
        a('s_mov_b32 s92, s4'); a('s_mov_b32 s93, s5'); a('s_mov_b32 s94, 0x1000000'); a('s_mov_b32 s95, 0x00020000')
        a('s_mov_b32 s96, %d' % PROF)
        a('s_waitcnt lgkmcnt(0)')
        for j in range(4):
            a('v_add_u32 v1, %d, v0' % (64 * j))
            a('v_lshlrev_b32 v2, 9, v1')
            a('buffer_load_dwordx4 v[4:7], v2, s[92:95], s96 offen')
            a('buffer_load_dwordx4 v[8:11], v2, s[92:95], s96 offen offset:16')
            a('v_mov_b32 v3, 0')
            a('v_cmp_le_u32 vcc, 144, v1')
            a('v_cndmask_b32 v3, v3, 16, vcc')
            a('v_cmp_le_u32 vcc, 240, v1')
            a('v_cndmask_b32 v3, v3, 48, vcc')
            a('s_waitcnt vmcnt(0)')
            a('v_not_b32 v4, v4')
            for i in range(4):
                a('buffer_atomic_umax %s, v3, s[88:91], 0 offen offset:%d' % (v(4 + 2 * i), 4 * i))
            a('s_waitcnt vmcnt(0)')
        a('s_mov_b64 exec, 1')
        a('v_mov_b32 v0, 0')
        a('s_not_b32 s80, s80')
        for i in range(4):
            a('v_mov_b32 %s, %s' % (v(4 + i), s(80 + 2 * i)))
            a('buffer_atomic_umax %s, v0, s[88:91], 0 offen offset:%d' % (v(4 + i), role * 16 + 4 * i))
        return
    if cfg.prof == 2:
        a('s_load_dwordx2 s[88:89], s[0:1], 64')
        a('s_mov_b32 s90, 256'); a('s_mov_b32 s91, 0x00020000')
        a('s_waitcnt lgkmcnt(0)')
        a('s_mov_b64 exec, 1')
        a('v_mov_b32 v0, 0')
        a('s_not_b32 s80, s80')
        for i in range(4):
            a('v_mov_b32 %s, %s' % (v(4 + i), s(80 + 2 * i)))
            a('buffer_atomic_umax %s, v0, s[88:91], 0 offen offset:%d' % (v(4 + i), role * 16 + 4 * i))
        return
    a('s_mov_b32 s88, %s' % s(wsreg)); a('s_mov_b32 s89, %s' % s(wsreg + 1))
    a('s_mov_b32 s90, 0x1000000'); a('s_mov_b32 s91, 0x00020000')
    a('s_lshl_b32 s92, s2, 3'); a('s_add_u32 s92, s92, s3'); a('s_lshl_b32 s92, s92, 6')
    a('s_add_u32 s92, s92, %d' % (PROF + kern * 256 * 8 * 64))
    a('s_waitcnt lgkmcnt(0)')
    a('s_mov_b64 exec, 1')
    a('v_mov_b32 v0, 0')
    for i in range(8): a('v_mov_b32 %s, %s' % (v(4 + i), s(80 + i)))
    a('buffer_store_dwordx4 v[4:7], v0, s[88:91], s92 offen')
    a('buffer_store_dwordx4 v[8:11], v0, s[88:91], s92 offen offset:16')
    for i in range(8): a('v_mov_b32 %s, %s' % (v(12 + i), s(72 + i)))
    a('buffer_store_dwordx4 v[12:15], v0, s[88:91], s92 offen offset:32')
    a('buffer_store_dwordx4 v[16:19], v0, s[88:91], s92 offen offset:48')

def interleave(a, mf, rd, first=1, per=1):
    rd = list(rd)
    for i, m in enumerate(mf):
        a(m)
        for _ in range(per):
            if rd: a(rd.pop(0))
    for x in rd: a(x)

SETS = (16, 64)
ACC = 112
def acc(t, n): return ACC + (t * 8 + n) * 4
VXA0, VXA1, VWM, VWQ, VWV = 4, 5, 6, 7, 8

def k1_reads(att, st, ks):
    base = SETS[st]
    xa = VXA1 if ks else VXA0
    r = []
    xs = ['ds_read_b128 %s, %s offset:%d' % (v(base + 4 * t, 4), v(xa), t * 2048) for t in range(4)]
    ws = []
    for n in range(8):
        if att:
            reg, off = [(VWM, 0), (VWM, 40), (VWM, 160), (VWM, 200), (VWQ, 0), (VWM, 320), (VWM, 360), (VWV, 0)][n]
        else:
            reg, off = VWM, 32 * n
        for h in range(2):
            ws.append('ds_read_b64_tr_b16 %s, %s offset:%d' % (v(base + 16 + 4 * n + 2 * h, 2), v(reg), off + ks * 16896 + h * 512))
    r = ws[:2] + xs + ws[2:]
    return r

def k1_mfmas(att, st):
    base = SETS[st]
    m = []
    for n in range(8):
        for t in range(4):
            W = v(base + 16 + 4 * n, 4); X = v(base + 4 * t, 4); A = v(acc(t, n), 4)
            if att and n >= 5:
                m.append('v_mfma_f32_16x16x32_bf16 %s, %s, %s, %s' % (A, X, W, A))
            else:
                m.append('v_mfma_f32_16x16x32_bf16 %s, %s, %s, %s' % (A, W, X, A))
    return m

def k1_mainloop(a, att, tag):
    a('s_barrier')
    stamp(a, 1)
    for x in k1_reads(att, 0, 0): a(x)
    a('s_mov_b32 s48, 0')
    a('s_mov_b32 s49, 0')
    a('s_waitcnt lgkmcnt(0)')
    a('L_%s_loop:' % tag)
    pre = ['s_add_u32 s49, s49, 1', 's_cmp_eq_u32 s49, 3', 's_cselect_b32 s50, s51, s52', 's_cselect_b32 s49, 0, s49']
    adv = ['v_add_u32 %s, s50, %s' % (v(r), v(r)) for r in ([VXA0, VXA1, VWM, VWQ, VWV] if att else [VXA0, VXA1, VWM])]
    interleave(a, k1_mfmas(att, 0), k1_reads(att, 1, 1) + pre + adv)
    a('s_waitcnt lgkmcnt(0)')
    a('s_barrier')
    interleave(a, k1_mfmas(att, 1), k1_reads(att, 0, 0) + ['s_add_u32 s48, s48, 1', 's_cmp_lt_u32 s48, 10'])
    a('s_waitcnt lgkmcnt(0)')
    a('s_cbranch_scc1 L_%s_loop' % tag)
    stamp(a, 2)

def tok_addr(a, dst, vj, tmp, vloc):
    a('v_lshrrev_b32 %s, 5, %s' % (v(tmp), v(vj)))
    a('v_mul_u32_u24 %s, s54, %s' % (v(dst), v(tmp)))
    a('v_and_b32 %s, 16, %s' % (v(tmp), v(vj)))
    a('v_lshl_add_u32 %s, %s, 7, %s' % (v(dst), v(tmp), v(dst)))
    a('v_and_b32 %s, 15, %s' % (v(tmp), v(vj)))
    a('v_lshl_add_u32 %s, %s, 4, %s' % (v(dst), v(tmp), v(dst)))
    a('v_cmp_gt_u32 vcc, 0x400, %s' % v(vj))
    a('v_cmp_le_u32 s[56:57], s53, %s' % v(vloc))
    a('s_and_b64 vcc, vcc, s[56:57]')
    a('v_mov_b32 %s, %s' % (v(tmp), hex(BAD)))
    a('v_cndmask_b32 %s, %s, %s, vcc' % (v(dst), v(tmp), v(dst)))

def gen_k1(a):
    a('.globl %s' % K1); a('.p2align 8'); a('.type %s,@function' % K1)
    a('%s:' % K1)
    a('s_cmp_ge_u32 s2, 256')
    a('s_cbranch_scc1 L1_end')
    stamp(a, 0); stamp(a, 1); stamp(a, 2)
    a('s_load_dwordx4 s[4:7], s[0:1], 0')
    a('s_load_dwordx2 s[8:9], s[0:1], 16')
    a('s_load_dwordx4 s[12:15], s[0:1], 32')
    a('s_load_dwordx2 s[10:11], s[0:1], 48')
    a('s_load_dwordx2 s[16:17], s[0:1], 72')
    a('v_lshrrev_b32 v1, 6, v0')
    a('v_and_b32 v0, 63, v0')
    a('v_readfirstlane_b32 s3, v1')
    if cfg.scr & 1:
        a('s_lshr_b32 s33, s2, 5'); a('s_and_b32 s34, s2, 31')
    else:
        a('s_and_b32 s33, s2, 7')
        a('s_lshr_b32 s34, s2, 3')
    a('s_lshr_b32 s35, s33, 2')
    a('s_and_b32 s36, s33, 3')
    a('s_cmp_ge_u32 s34, 30')
    a('s_cbranch_scc1 L1_prep')
    a('s_cmp_ge_u32 s34, 18')
    a('s_cbranch_scc1 L1_ffn_setup')
    a('s_and_b32 s38, s34, 1')
    a('s_lshl_b32 s46, s36, 1')
    a('s_add_u32 s38, s38, s46')
    a('s_mul_i32 s37, s35, 9')
    a('s_lshr_b32 s46, s34, 1')
    a('s_add_u32 s37, s37, s46')
    a('s_mul_i32 s45, s46, %d' % cfg.ra)
    a('s_and_b32 s47, s38, 1')
    a('s_mul_i32 s47, s47, %d' % cfg.rb)
    a('s_add_u32 s45, s45, s47')
    a('s_mul_i32 s39, s37, 114')
    a('s_movk_i32 s40, 3840')
    a('s_movk_i32 s41, 29')
    a('s_movk_i32 s42, 1120')
    a('s_mul_i32 s43, s38, 160')
    a('s_mov_b32 s44, 0')
    a('s_waitcnt lgkmcnt(0)')
    srd(a, 24, 6, 640 * 3840)
    a('s_branch L1_common')
    a('L1_ffn_setup:')
    a('s_mul_i32 s46, s36, 12')
    a('s_add_u32 s46, s46, s34')
    a('s_sub_u32 s46, s46, 18')
    a('s_lshr_b32 s38, s46, 3')
    a('s_and_b32 s46, s46, 7')
    a('s_lshl_b32 s37, s35, 3')
    a('s_add_u32 s37, s37, s46')
    a('s_mul_i32 s45, s46, %d' % cfg.ra)
    a('s_and_b32 s47, s38, 1')
    a('s_mul_i32 s47, s47, %d' % cfg.rd)
    a('s_add_u32 s45, s45, s47')
    a('s_add_u32 s45, s45, %d' % cfg.rc)
    a('s_lshl_b32 s39, s37, 7')
    a('s_movk_i32 s40, 3072')
    a('s_movk_i32 s41, 31')
    a('s_mov_b32 s42, 0')
    a('s_lshl_b32 s43, s38, 9')
    a('s_mov_b32 s44, 1')
    a('s_waitcnt lgkmcnt(0)')
    srd(a, 24, 12, 640 * 3072)
    a('L1_common:')
    srd(a, 20, 4, 2048 * 1280)
    a('s_cmp_lt_u32 s3, 4')
    a('s_cbranch_scc1 L1_consumer')
    a('s_setprio 3')
    a('s_sub_u32 s46, s3, 4')
    a('v_lshrrev_b32 v2, 3, v0')
    a('v_lshrrev_b32 v3, 4, v0')
    a('v_and_b32 v4, 7, v0')
    a('s_lshr_b32 s47, s46, 1')
    a('s_add_u32 s47, s47, s39')
    a('s_and_b32 s48, s46, 1')
    a('s_lshl_b32 s48, s48, 6')
    a('s_add_u32 s47, s47, s48')
    a('v_lshl_add_u32 v5, v2, 1, s47')
    a('v_mul_u32_u24 v5, 0x500, v5')
    a('v_xor_b32 v4, v4, v3')
    a('v_lshl_add_u32 v16, v4, 4, v5')
    a('v_xor_b32 v4, 4, v4')
    a('v_lshl_add_u32 v17, v4, 4, v5')
    a('v_add_u32 v17, %d, v17' % (16 * 1280))
    a('v_add_u32 v18, %d, v16' % (32 * 1280))
    a('v_add_u32 v19, %d, v17' % (32 * 1280))
    a('v_and_b32 v1, 31, v0')
    a('v_min_u32 v1, s41, v1')
    a('v_mul_u32_u24 v2, 13, v1')
    a('v_lshrrev_b32 v2, 7, v2')
    a('v_lshlrev_b32 v1, 4, v1')
    a('v_mad_u32_u24 v1, v2, s42, v1')
    a('v_add_u32 v1, s43, v1')
    a('v_lshrrev_b32 v2, 5, v0')
    a('v_lshlrev_b32 v2, 2, v2')
    a('s_lshl_b32 s47, s46, 4')
    a('v_add_u32 v2, s47, v2')
    a('v_mad_u32_u24 v8, v2, s40, v1')
    a('s_lshl_b32 s47, s40, 3')
    a('v_add_u32 v12, s47, v8')
    for e in range(1, 4):
        a('v_add_u32 %s, s40, %s' % (v(8 + e), v(7 + e)))
        a('v_add_u32 %s, s40, %s' % (v(12 + e), v(11 + e)))
    a('s_mul_i32 s47, s45, 205')
    a('s_lshr_b32 s47, s47, 11')
    a('s_mul_i32 s47, s47, 10')
    a('s_sub_u32 s45, s45, s47')
    a('s_mov_b32 s48, 0')
    a('s_mov_b32 s49, 0')
    a('s_mul_i32 s50, s46, %d' % (8 * 1056))
    a('s_lshl_b32 s51, s46, 12')
    a('s_add_u32 s51, s51, %d' % XOFF)
    a('s_lshl_b32 s53, s40, 6')
    a('L1_ld_loop:')
    a('s_cmp_lt_u32 s48, 2')
    a('s_cbranch_scc1 L1_ld_nowait')
    a('s_waitcnt vmcnt(12)')
    a('s_barrier')
    a('L1_ld_nowait:')
    a('s_mul_i32 s52, s45, s53')
    a('s_lshl_b32 s54, s45, 7')
    a('s_add_u32 m0, s49, s51')
    for e in range(4):
        if e: a('s_add_u32 m0, m0, 1024')
        a('buffer_load_dwordx4 %s, s[20:23], s54 offen lds' % v(16 + e))
    a('s_add_u32 m0, s49, s50')
    for e in range(8):
        if e: a('s_add_u32 m0, m0, 1056')
        a('buffer_load_dwordx4 %s, s[24:27], s52 offen lds' % v(8 + e))
    a('s_add_u32 s45, s45, 1')
    a('s_cmp_eq_u32 s45, 10')
    a('s_cselect_b32 s45, 0, s45')
    a('s_add_u32 s49, s49, %d' % SLOT)
    a('s_cmp_eq_u32 s49, %d' % (3 * SLOT))
    a('s_cselect_b32 s49, 0, s49')
    a('s_add_u32 s48, s48, 1')
    a('s_cmp_lt_u32 s48, 10')
    a('s_cbranch_scc1 L1_ld_loop')
    stamp(a, 1)
    a('s_cmp_eq_u32 s44, 1')
    a('s_cselect_b32 s47, s38, 4')
    a('s_cmp_lt_u32 s47, 4')
    a('s_waitcnt vmcnt(12)')
    a('s_barrier')
    a('s_cbranch_scc1 L1_ld_gate')
    a('s_waitcnt vmcnt(0)')
    a('s_barrier')
    stamp_flush(a, 0, 16)
    a('s_endpgm')
    gen_gate(a)
    a('L1_consumer:')
    srd(a, 28, 16, WS_SIZE)
    a('s_and_b32 s46, s3, 1')
    a('s_lshr_b32 s47, s3, 1')
    a('v_lshrrev_b32 v1, 4, v0')
    a('v_and_b32 v2, 15, v0')
    a('v_bfe_u32 v3, v2, 1, 3')
    a('v_xor_b32 v3, v3, v1')
    a('v_lshlrev_b32 v3, 4, v3')
    a('v_lshl_add_u32 v3, v2, 7, v3')
    a('s_lshl_b32 s48, s46, 13')
    a('s_add_u32 s48, s48, %d' % XOFF)
    a('v_add_u32 %s, s48, v3' % v(VXA0))
    a('v_xor_b32 %s, 64, %s' % (v(VXA1), v(VXA0)))
    a('v_lshrrev_b32 v3, 2, v0')
    a('v_mul_u32_u24 v3, 0x420, v3')
    a('v_and_b32 v15, 3, v0')
    a('v_lshl_add_u32 %s, v15, 3, v3' % v(VWM))
    a('s_mov_b32 s51, %d' % (-2 * SLOT & 0xffffffff))
    a('s_mov_b32 s52, %d' % SLOT)
    for i in range(128): a('v_mov_b32 %s, 0' % v(ACC + i))
    a('s_cmp_eq_u32 s44, 1')
    a('s_cbranch_scc1 L1_ffn')
    a('s_mul_i32 s48, s47, 80')
    a('v_add_u32 %s, s48, %s' % (v(VWM), v(VWM)))
    a('v_add_u32 v3, s48, v3')
    a('v_and_b32 v16, 1, v15')
    a('v_mad_u32_u24 v3, v16, 40, v3')
    a('v_add_u32 %s, 352, v3' % v(VWV))
    a('v_lshrrev_b32 v16, 1, v15')
    a('v_mul_u32_u24 v16, 160, v16')
    a('v_add3_u32 %s, v3, v16, 32' % v(VWQ))
    a('v_lshlrev_b32 v16, 2, v1')
    a('v_sub_u32 v16, v2, v16')
    a('v_mov_b32 v17, %s' % f32(-1e30))
    for r in range(4):
        a('v_subrev_u32 v18, %d, v16' % r)
        a('v_cmp_gt_u32 vcc, 8, v18')
        a('v_cndmask_b32 %s, v17, 0, vcc' % v(240 + r))
        a('v_cmp_gt_i32 vcc, -8, v18')
        a('v_cndmask_b32 %s, v17, 0, vcc' % v(244 + r))
        a('v_cmp_le_i32 vcc, 0, v18')
        a('v_cndmask_b32 %s, 0, -1, vcc' % v(20 + r))
        a('v_mov_b32 %s, 0x3f803f80' % v(250 + r))
    a('v_mov_b32 v17, 0xffff')
    a('v_bfi_b32 v248, v17, v20, v21')
    a('v_bfi_b32 v249, v17, v22, v23')
    a('s_mul_i32 s55, s37, 57')
    a('s_cmp_eq_u32 s37, 0')
    a('s_cselect_b32 s53, 0, 7')
    a('s_mov_b32 s54, %d' % RSTRIDE)
    a('s_lshl_b32 s58, s38, 1')
    a('s_add_u32 s58, s58, s47')
    a('s_lshl_b32 s58, s58, 12')
    a('s_lshl_b32 s59, s46, 10')
    a('s_add_u32 s58, s58, s59')
    a('v_lshlrev_b32 v19, 8, v1')
    for t in range(4):
        a('v_add_u32 v16, %d, v2' % (16 * t))
        a('v_add_u32 v17, s55, v16')
        tok_addr(a, 9 + t, 17, 18, 16)
        a('v_add_u32 %s, v19, %s' % (v(9 + t), v(9 + t)))
    a('s_lshr_b32 s60, s38, 1')
    a('s_add_u32 s60, s60, 16')
    a('s_lshl_b32 s60, s60, 12')
    a('s_add_u32 s59, s59, s60')
    a('s_and_b32 s60, s38, 1')
    a('s_lshl_b32 s60, s60, 1')
    a('s_add_u32 s60, s60, s47')
    a('s_lshl_b32 s60, s60, 8')
    a('s_add_u32 s59, s59, s60')
    a('v_and_b32 v19, 1, v1')
    a('v_lshlrev_b32 v19, 3, v19')
    a('v_lshrrev_b32 v20, 1, v1')
    a('v_lshl_add_u32 v20, v20, 4, v2')
    for u in range(2):
        a('v_add_u32 v16, %d, v20' % (32 * u))
        a('v_add_u32 v17, s55, v16')
        tok_addr(a, 13 + u, 17, 18, 16)
        a('v_add_u32 %s, v19, %s' % (v(13 + u), v(13 + u)))
    for g in range(4):
        m = 0xffff << (16 * g)
        a('s_mov_b32 %s, 0x%x' % (s(64 + 2 * g), m & 0xffffffff))
        a('s_mov_b32 %s, 0x%x' % (s(65 + 2 * g), m >> 32))
    cs = 20 ** -0.5 * math.log2(math.e)
    a('s_mov_b32 s62, %s' % f32(cs))
    a('s_mov_b32 s63, %s' % f32(-cs))
    k1_mainloop(a, True, 'att')
    gen_attention(a)
    if cfg.prof: a('s_waitcnt vmcnt(0)')
    stamp_flush(a, 0, 16, 0)
    a('s_endpgm')
    a('L1_ffn:')
    a('s_lshl_b32 s48, s47, 8')
    a('v_add_u32 %s, s48, %s' % (v(VWM), v(VWM)))
    a('v_lshlrev_b32 v9, 4, v0')
    a('s_mul_i32 s58, s37, %d' % (2 * RSTRIDE))
    a('s_lshl_b32 s59, s38, 3')
    a('s_lshl_b32 s60, s47, 2')
    a('s_add_u32 s59, s59, s60')
    a('s_add_u32 s59, s59, 20')
    a('s_lshl_b32 s59, s59, 12')
    a('s_add_u32 s58, s58, s59')
    a('s_lshl_b32 s59, s46, 10')
    a('s_add_u32 s58, s58, s59')
    k1_mainloop(a, False, 'ffn')
    k = 0
    for m in range(4):
        for t in range(4):
            d = 16 + 4 * (k % 16); k += 1
            for h in range(2):
                A = acc(t, 2 * m + h)
                a('v_cvt_pk_bf16_f32 %s, %s, %s' % (v(d + 2 * h), v(A), v(A + 1)))
                a('v_cvt_pk_bf16_f32 %s, %s, %s' % (v(d + 2 * h + 1), v(A + 2), v(A + 3)))
            for i in range(4):
                a('v_pk_max_i16 %s, %s, 0' % (v(d + i), v(d + i)))
            a('s_add_u32 s59, s58, %d' % ((t >> 1) * RSTRIDE + m * 4096))
            a('buffer_store_dwordx4 %s, v9, s[28:31], s59 offen offset:%d' % (v(d, 4), (t & 1) * 2048) + stp())
    if cfg.prof: a('s_waitcnt vmcnt(0)')
    stamp_flush(a, 0, 16, 1)
    a('s_endpgm')
    gen_prep(a)
    a('L1_end:')
    a('s_endpgm')

def gen_attention(a):
    KK = lambda t: 16 + 6 * t
    Q0 = lambda t: 40 + 8 * t
    Q1 = lambda t: 44 + 8 * t
    VP = lambda h, t: 72 + 8 * h + 2 * t
    M = lambda u: 96 + u
    SC = lambda u: 112 + 8 * u
    SP = lambda u: 116 + 8 * u
    P = lambda u: 176 + 4 * u
    SUM = lambda u: 208 + 4 * u
    def cvt(d, A):
        a('v_cvt_pk_bf16_f32 %s, %s, %s' % (v(d), v(A), v(A + 1)))
        a('v_cvt_pk_bf16_f32 %s, %s, %s' % (v(d + 1), v(A + 2), v(A + 3)))
    def conv_qk(t):
        cvt(Q1(t), acc(t, 4)); cvt(KK(t) + 2, acc(t, 4))
        cvt(Q0(t), acc(t, 0)); cvt(Q1(t) + 2, acc(t, 1))
        a('v_permlane32_swap_b32 %s, %s' % (v(Q1(t)), v(KK(t) + 2)))
        a('v_permlane32_swap_b32 %s, %s' % (v(Q1(t) + 1), v(KK(t) + 3)))
        cvt(KK(t), acc(t, 2)); cvt(KK(t) + 4, acc(t, 3))
        for i in range(2):
            a('v_cndmask_b32 %s, 0, %s, s[64:65]' % (v(Q0(t) + 2 + i), v(Q1(t) + i)))
            a('v_cndmask_b32 %s, 0, %s, s[66:67]' % (v(Q1(t) + i), v(Q1(t) + i)))
    def conv_v(t):
        for h in range(3): cvt(VP(h, t), acc(t, 5 + h))
    for t in range(4): conv_qk(t)
    conv_v(0); conv_v(1)
    Kop = lambda h, t: v(KK(t) + 2 * h, 4)
    Qop = lambda h, t: v(Q0(t) if h == 0 else Q1(t), 4)
    mf = []
    for h in range(2):
        for t in range(4):
            u = 4 * h + t
            mf.append('v_mfma_f32_16x16x32_bf16 %s, %s, %s, v[240:243]' % (v(SC(u), 4), Kop(h, t), Qop(h, t)))
            if t: mf.append('v_mfma_f32_16x16x32_bf16 %s, %s, %s, v[244:247]' % (v(SP(u), 4), Kop(h, t - 1), Qop(h, t)))
    cv = []
    for t in (2, 3):
        for h in range(3):
            A = acc(t, 5 + h); d = VP(h, t)
            cv.append('v_cvt_pk_bf16_f32 %s, %s, %s' % (v(d), v(A), v(A + 1)))
            cv.append('v_cvt_pk_bf16_f32 %s, %s, %s' % (v(d + 1), v(A + 2), v(A + 3)))
    interleave(a, mf, cv)
    for u in range(8):
        if u & 3:
            for r in range(4): a('v_max_f32 %s, %s, %s' % (v(SC(u) + r), v(SC(u) + r), v(SP(u) + r)))
        a('v_max3_f32 %s, %s, %s, %s' % (v(M(u)), v(SC(u)), v(SC(u) + 1), v(SC(u) + 2)))
        a('v_max_f32 %s, %s, %s' % (v(M(u)), v(M(u)), v(SC(u) + 3)))
    G = (0, 4)
    for b in G:
        a('v_permlane32_swap_b32 %s, %s' % (v(M(b)), v(M(b + 1))))
        a('v_permlane32_swap_b32 %s, %s' % (v(M(b + 2)), v(M(b + 3))))
    for b in G:
        a('v_max_f32 %s, %s, %s' % (v(M(b)), v(M(b)), v(M(b + 1))))
        a('v_max_f32 %s, %s, %s' % (v(M(b + 2)), v(M(b + 2)), v(M(b + 3))))
    for b in G: a('v_permlane16_swap_b32 %s, %s' % (v(M(b)), v(M(b + 2))))
    for b in G: a('v_max_f32 %s, %s, %s' % (v(M(b)), v(M(b)), v(M(b + 2))))
    for b in G: a('v_mul_f32 %s, s63, %s' % (v(M(b + 2)), v(M(b))))
    for b in G: a('v_mul_f32 %s, s63, %s' % (v(M(b)), v(M(b))))
    for b in G: a('v_permlane16_swap_b32 %s, %s' % (v(M(b)), v(M(b + 2))))
    for b in G:
        a('v_mov_b32 %s, %s' % (v(M(b + 1)), v(M(b))))
        a('v_mov_b32 %s, %s' % (v(M(b + 3)), v(M(b + 2))))
    for b in G:
        a('v_permlane32_swap_b32 %s, %s' % (v(M(b)), v(M(b + 1))))
        a('v_permlane32_swap_b32 %s, %s' % (v(M(b + 2)), v(M(b + 3))))
    pend = []
    for u in range(8):
        h, t = u >> 2, u & 3
        for r in range(4): a('v_fma_f32 %s, %s, s62, %s' % (v(SC(u) + r), v(SC(u) + r), v(M(u))))
        for r in range(4):
            a('v_exp_f32 %s, %s' % (v(SC(u) + r), v(SC(u) + r)))
            if pend: a(pend.pop(0))
        for x in pend: a(x)
        if t == 0:
            cvt(P(u) + 2, SC(u))
            op = 'v_mfma_f32_16x16x16_bf16'; B = v(P(u) + 2, 2); n = 2; o = 0
        else:
            cvt(P(u), SC(u))
            for i in range(2): a('v_and_b32 %s, %s, %s' % (v(P(u) + 2 + i), v(248 + i), v(P(u) + i)))
            for i in range(2): a('v_bfi_b32 %s, %s, 0, %s' % (v(P(u) + i), v(248 + i), v(P(u) + i)))
            op = 'v_mfma_f32_16x16x32_bf16'; B = v(P(u), 4); n = 4; o = -2
        pend = ['%s %s, %s, %s, 0' % (op, v(SUM(u), 4), v(250, n), B),
                '%s %s, %s, %s, 0' % (op, v(SC(u), 4), v(VP(h, t) + o, n), B),
                '%s %s, %s, %s, 0' % (op, v(SP(u), 4), v(VP(2, t) + o, n), B)]
    for x in pend: a(x)
    for u in range(8): a('v_rcp_f32 %s, %s' % (v(SUM(u)), v(SUM(u))))
    for t in range(4):
        for h in range(2):
            u = 4 * h + t
            for i in range(2):
                a('v_pk_mul_f32 %s, %s, %s op_sel_hi:[1,0]' % (v(SC(u) + 2 * i, 2), v(SC(u) + 2 * i, 2), v(SUM(u), 2)))
        for h in range(2): cvt(16 + 4 * t + 2 * h, SC(4 * h + t))
        a('buffer_store_dwordx4 %s, %s, s[28:31], s58 offen' % (v(16 + 4 * t, 4), v(9 + t)) + stp())
    for g in range(4):
        a('s_mov_b64 exec, %s' % s(64 + 2 * g, 2))
        for u2 in range(2):
            u = 4 * (g & 1) + 2 * u2 + (g >> 1)
            for i in range(2):
                a('v_pk_mul_f32 %s, %s, %s op_sel_hi:[1,0]' % (v(40 + 4 * u2 + 2 * i, 2), v(SP(u) + 2 * i, 2), v(SUM(u), 2)))
    a('s_mov_b64 exec, -1')
    for u2 in range(2):
        cvt(48 + 2 * u2, 40 + 4 * u2)
        a('buffer_store_dwordx2 %s, %s, s[28:31], s59 offen' % (v(48 + 2 * u2, 2), v(13 + u2)) + stp())

def gen_gate(a):
    GW, GX = 24, 64
    a('L1_ld_gate:')
    srd(a, 56, 10, 1280)
    srd(a, 28, 16, WS_SIZE)
    a('v_and_b32 v1, 7, v0')
    a('v_lshlrev_b32 v1, 4, v1')
    a('s_lshl_b32 s47, s38, 5')
    a('s_add_u32 s47, s47, s39')
    a('s_lshl_b32 s48, s46, 3')
    a('s_add_u32 s47, s47, s48')
    a('v_lshrrev_b32 v2, 3, v0')
    a('v_add_u32 v2, s47, v2')
    a('v_mul_u32_u24 v3, 0x500, v2')
    a('v_add_u32 v3, v3, v1')
    a('s_waitcnt vmcnt(0)')
    a('s_barrier')
    for i in range(10):
        a('buffer_load_dwordx4 %s, v1, s[56:59], 0 offen offset:%d' % (v(GW + 4 * i, 4), 128 * i))
    for i in range(10):
        a('buffer_load_dwordx4 %s, v3, s[20:23], 0 offen offset:%d' % (v(GX + 4 * i, 4), 128 * i))
    a('v_mov_b32 v9, 0')
    a('v_mov_b32 v10, 0')
    a('s_waitcnt vmcnt(0)')
    for i in range(40):
        a('v_dot2_f32_bf16 %s, %s, %s, %s' % (v(9 + (i & 1)), v(GX + i), v(GW + i), v(9 + (i & 1))))
    a('v_add_f32 v9, v9, v10')
    for pat in ('quad_perm:[1,0,3,2]', 'quad_perm:[2,3,0,1]', 'row_half_mirror'):
        a('v_add_f32_dpp v11, v9, v9 %s row_mask:0xf bank_mask:0xf' % pat)
        a('v_mov_b32 v9, v11')
    a('v_mul_f32 v9, %s, v9' % f32(-math.log2(math.e)))
    a('v_exp_f32 v9, v9')
    a('v_add_f32 v9, 1.0, v9')
    a('v_rcp_f32 v9, v9')
    a('v_lshlrev_b32 v2, 2, v2')
    a('v_mov_b32 v3, %s' % hex(BAD))
    a('v_cmp_eq_u32 vcc, 0, v1')
    a('v_cndmask_b32 v2, v3, v2, vcc')
    a('s_mov_b32 s60, %d' % WS_G)
    a('buffer_store_dword v9, v2, s[28:31], s60 offen' + stp())
    if cfg.prof: a('s_waitcnt vmcnt(0)')
    stamp_flush(a, 0, 16)
    a('s_endpgm')

def gen_prep(a):
    PITCH = 176
    LW = 32 * PITCH
    a('L1_prep:')
    a('s_sub_u32 s37, s34, 30')
    a('s_lshl_b32 s37, s37, 3')
    a('s_add_u32 s37, s37, s33')
    a('s_waitcnt lgkmcnt(0)')
    srd(a, 24, 8, 640 * 1280)
    srd(a, 40, 14, 1536 * 1280)
    srd(a, 28, 16, WS_SIZE)
    U = lambda u: 24 + 20 * u
    GW = 124
    GX = 164
    a('s_mul_i32 s48, s3, 160')
    a('s_mul_i32 s49, s3, %d' % LW)
    a('s_movk_i32 s50, 205')
    a('s_movk_i32 s51, 1280')
    a('s_movk_i32 s52, %d' % PITCH)
    for e in range(5):
        a('v_add_u32 v1, %d, v0' % (64 * e))
        a('v_mul_u32_u24 v2, s50, v1')
        a('v_lshrrev_b32 v2, 11, v2')
        a('v_mul_u32_u24 v3, 10, v2')
        a('v_sub_u32 v1, v1, v3')
        a('v_lshlrev_b32 v1, 4, v1')
        a('v_mad_u32_u24 %s, v2, s52, v1' % v(19 + e))
        a('v_add_u32 %s, s49, %s' % (v(19 + e), v(19 + e)))
        a('v_and_b32 v3, 3, v2')
        a('v_mad_u32_u24 v1, v3, s51, v1')
        a('v_add_u32 %s, s48, v1' % v(4 + e))
        a('v_lshrrev_b32 %s, 3, v2' % v(9 + e))
        a('v_bfe_u32 %s, v2, 2, 1' % v(14 + e))
    def addrs(al, be):
        a('s_movk_i32 s53, %d' % (al * 1280) if al * 1280 < 32768 else 's_mov_b32 s53, %d' % (al * 1280))
        a('s_movk_i32 s54, %d' % (be * 1280))
        for e in range(5):
            a('v_mad_u32_u24 %s, %s, s53, %s' % (v(244 + e), v(9 + e), v(4 + e)))
            a('v_mad_u32_u24 %s, %s, s54, %s' % (v(244 + e), v(14 + e), v(244 + e)))
    addrs(4, 16)
    a('s_mul_i32 s55, s37, %d' % (3 * 32 * 1280))
    for u in range(3):
        for e in range(5):
            a('buffer_load_dwordx4 %s, %s, s[40:43], s55 offen' % (v(U(u) + 4 * e, 4), v(244 + e)))
        if u < 2: a('s_add_u32 s55, s55, %d' % (32 * 1280))
    addrs(4, 20)
    a('s_mul_i32 s55, s37, %d' % (40 * 1280))
    for e in range(5):
        a('buffer_load_dwordx4 %s, %s, s[24:27], s55 offen' % (v(U(3) + 4 * e, 4), v(244 + e)))
    a('s_and_b32 s56, s37, 3')
    a('s_lshr_b32 s61, s37, 2')
    a('s_lshr_b32 s62, s3, 1')
    a('s_cmp_lg_u32 s61, s62')
    a('s_cbranch_scc1 L1_prep_norem')
    addrs(40, 20)
    a('s_mul_i32 s55, s56, %d' % (160 * 1280))
    a('s_add_u32 s55, s55, %d' % (16 * 1280))
    for e in range(5):
        a('buffer_load_dwordx4 %s, %s, s[24:27], s55 offen' % (v(U(4) + 4 * e, 4), v(244 + e)))
    a('L1_prep_norem:')
    a('v_lshrrev_b32 v4, 4, v0')
    a('v_bfe_u32 v5, v0, 2, 2')
    a('v_lshl_add_u32 v4, v4, 3, v5')
    a('v_mul_u32_u24 v4, s52, v4')
    a('v_add_u32 v4, s49, v4')
    a('v_and_b32 v5, 3, v0')
    a('v_lshl_add_u32 v6, v5, 3, v4')
    a('v_lshl_add_u32 v5, v5, 4, v4')
    a('v_lshlrev_b32 v7, 4, v0')
    a('v_add_u32 v8, 4096, v7')
    a('s_mul_i32 s59, s3, %d' % NBSTRIDE)
    a('s_add_u32 s59, s59, %d' % WS_B)
    for u in range(5):
        if u == 4:
            a('s_cmp_lg_u32 s61, s62')
            a('s_cbranch_scc1 L1_prep_done')
        a('s_waitcnt vmcnt(%d)' % (15 if u < 4 else 20))
        for e in range(5):
            a('ds_write_b128 %s, %s' % (v(19 + e), v(U(u) + 4 * e, 4)))
        if u < 3:
            a('s_mul_i32 s60, s37, 3'); a('s_add_u32 s60, s60, %d' % (20 + u))
        elif u == 3:
            a('s_mov_b32 s60, s37')
        else:
            a('s_add_u32 s60, s56, 16')
        a('s_mul_i32 s60, s60, 5120')
        a('s_add_u32 s60, s60, s59')
        a('s_waitcnt lgkmcnt(0)')
        for nt in range(5):
            for h in range(2):
                if nt < 4: reg, off = 5, 64 * (nt >> 1) + 8 * (nt & 1)
                else: reg, off = 6, 128
                a('ds_read_b64_tr_b16 %s, %s offset:%d' % (v(U(u) + 4 * nt + 2 * h, 2), v(reg), off + h * 4 * PITCH))
        a('s_waitcnt lgkmcnt(0)')
        for nt in range(5):
            a('buffer_store_dwordx4 %s, %s, s[28:31], s60 offen offset:%d' % (v(U(u) + 4 * nt, 4), v(7 if nt < 4 else 8), (nt & 3) * 1024) + stp())
    a('L1_prep_done:')
    if cfg.prof: a('s_waitcnt vmcnt(0)')
    stamp_flush(a, 0, 16, 3)
    a('s_endpgm')

def gen_k2(a):
    D = cfg.k2depth
    RING = 16
    AC = RING + 36 * D
    accr = lambda m, nt: AC + (m * 5 + nt) * 4
    Bq = lambda q, nt: RING + 36 * q + 4 * nt
    Aq = lambda q, m: RING + 36 * q + 20 + 4 * m
    a('.globl %s' % K2); a('.p2align 8'); a('.type %s,@function' % K2)
    a('%s:' % K2)
    a('s_cmp_ge_u32 s2, 256')
    a('s_cbranch_scc1 L2_end')
    stamp(a, 0)
    a('s_load_dwordx2 s[4:5], s[0:1], 72')
    a('s_load_dwordx2 s[6:7], s[0:1], 56')
    a('v_lshrrev_b32 v1, 6, v0')
    a('v_and_b32 v0, 63, v0')
    a('v_readfirstlane_b32 s3, v1')
    if cfg.scr & 2:
        a('s_lshr_b32 s16, s2, 5'); a('s_and_b32 s17, s2, 31')
    else:
        a('s_and_b32 s16, s2, 7')
        a('s_lshr_b32 s17, s2, 3')
    a('s_and_b32 s18, s16, 1')
    a('s_lshl_b32 s18, s18, 2')
    a('s_and_b32 s19, s17, 3')
    a('s_add_u32 s18, s18, s19')
    a('s_lshr_b32 s19, s16, 1')
    a('s_lshl_b32 s19, s19, 3')
    a('s_lshr_b32 s20, s17, 2')
    a('s_add_u32 s19, s19, s20')
    a('s_lshl_b32 s20, s3, 4')
    a('s_add_u32 s20, s20, 4')
    a('s_cmp_eq_u32 s3, 0')
    a('s_cselect_b32 s20, 0, s20')
    if cfg.k2prio:
        a('s_cbranch_scc0 L2_noprio')
        a('s_setprio 3')
        a('L2_noprio:')
    a('s_cselect_b32 s21, %d, %d' % (20 // D - 1, 16 // D - 1))
    a('s_mul_i32 s22, s19, %d' % RSTRIDE)
    a('s_lshl_b32 s23, s20, 12')
    a('s_add_u32 s22, s22, s23')
    a('s_mul_i32 s23, s18, %d' % NBSTRIDE)
    a('s_mul_i32 s24, s20, 5120')
    a('s_add_u32 s23, s23, s24')
    a('s_add_u32 s23, s23, %d' % WS_B)
    a('v_lshlrev_b32 v2, 4, v0')
    a('v_add_u32 v3, 4096, v2')
    for m in range(4):
        a('s_add_u32 s24, s3, %d' % m)
        a('s_and_b32 s24, s24, 3')
        a('s_lshl_b32 s25, s24, 10')
        a('v_add_u32 %s, s25, v2' % v(4 + m))
        if m:
            a('s_mul_i32 s25, s24, 15360')
            a('s_add_u32 s25, s25, %d' % ((m - 1) * 5120))
            a('v_add_u32 %s, s25, v2' % v(8 + m))
    a('s_lshl_b32 s24, s19, 6')
    a('s_lshr_b32 s25, s3, 1')
    a('s_lshl_b32 s25, s25, 5')
    a('s_add_u32 s24, s24, s25')
    a('s_and_b32 s25, s3, 1')
    a('s_add_u32 s24, s24, s25')
    a('v_and_b32 v12, 15, v0')
    a('v_lshl_add_u32 v12, v12, 1, s24')
    a('v_lshlrev_b32 v13, 2, v12')
    a('s_mov_b32 s26, %d' % WS_G)
    a('s_waitcnt lgkmcnt(0)')
    srd(a, 8, 4, WS_SIZE)
    def ldB(q, nt): return 'buffer_load_dwordx4 %s, %s, s[8:11], s23 offen offset:%d' % (v(Bq(q, nt), 4), v(2 if nt < 4 else 3), (nt & 3) * 1024)
    def ldA(q, m): return 'buffer_load_dwordx4 %s, %s, s[8:11], s22 offen' % (v(Aq(q, m), 4), v(4 + m))
    adv = ['s_add_u32 s22, s22, 4096', 's_add_u32 s23, s23, 5120']
    a('buffer_load_dword v14, v13, s[8:11], s26 offen')
    for q in range(D):
        for nt in range(5): a(ldB(q, nt))
        for m in range(4): a(ldA(q, m))
        for x in adv: a(x)
    srd(a, 12, 6, 2048 * 1280)
    for i in range(80): a('v_mov_b32 %s, 0' % v(AC + i))
    def step(q, load, cnt):
        a('s_waitcnt vmcnt(%d)' % cnt)
        for nt in range(5):
            for m in range(4):
                A = v(accr(m, nt), 4)
                a('v_mfma_f32_16x16x32_bf16 %s, %s, %s, %s' % (A, v(Bq(q, nt), 4), v(Aq(q, m), 4), A))
                if load and nt == 4: a(ldA(q, m)) if False else None
            if load: a(ldB(q, nt))
        if load:
            for m in range(4): a(ldA(q, m))
            for x in adv: a(x)
    if cfg.prof: a('s_waitcnt vmcnt(%d)' % (9 * (D - 1)))
    stamp(a, 1)
    a('L2_loop:')
    for q in range(D): step(q, True, 9 * (D - 1))
    a('s_sub_u32 s21, s21, 1')
    a('s_cmp_lg_u32 s21, 0')
    a('s_cbranch_scc1 L2_loop')
    for q in range(D): step(q, False, 9 * (D - 1 - q))
    stamp(a, 2)
    for m in range(1, 4):
        for nt in range(5):
            a('ds_write_b128 %s, %s offset:%d' % (v(8 + m), v(accr(m, nt), 4), nt * 1024))
    a('v_sub_f32 v15, 1.0, v14')
    for m in range(4):
        a('s_cmp_eq_u32 s3, %d' % m)
        a('s_cselect_b64 vcc, -1, 0')
        a('v_cndmask_b32 %s, v15, v14, vcc' % v(16 + 2 * m))
    a('s_mul_i32 s25, s3, 15360')
    a('v_add_u32 v8, s25, v2')
    a('s_mul_i32 s25, s18, 160')
    a('v_mul_u32_u24 v12, 0x500, v12')
    a('v_lshrrev_b32 v13, 4, v0')
    a('v_lshl_add_u32 v9, v13, 3, v12')
    a('v_lshl_add_u32 v12, v13, 4, v12')
    for i in range(10):
        A = AC + 2 * i
        a('v_pk_mul_f32 %s, %s, v[16:17] op_sel_hi:[1,0]' % (v(A, 2), v(A, 2)))
    a('s_waitcnt lgkmcnt(0)')
    a('s_barrier')
    for m in range(1, 4):
        for nt in range(5):
            a('ds_read_b128 %s, v8 offset:%d' % (v(accr(m, nt), 4), ((m - 1) * 5 + nt) * 1024))
    for m in range(1, 4):
        a('s_waitcnt lgkmcnt(%d)' % (5 * (3 - m)))
        for i in range(10):
            A = AC + 2 * i
            a('v_pk_fma_f32 %s, %s, %s, %s op_sel_hi:[1,0,1]' % (v(A, 2), v(A + 20 * m, 2), v(16 + 2 * m, 2), v(A, 2)))
    for i in range(10):
        a('v_cvt_pk_bf16_f32 %s, %s, %s' % (v(24 + i), v(AC + 2 * i), v(AC + 2 * i + 1)))
    a('buffer_store_dwordx4 v[24:27], v12, s[12:15], s25 offen' + stp(cfg.k2st))
    a('buffer_store_dwordx4 v[28:31], v12, s[12:15], s25 offen offset:64' + stp(cfg.k2st))
    a('buffer_store_dwordx2 v[32:33], v9, s[12:15], s25 offen offset:128' + stp(cfg.k2st))
    if cfg.prof: a('s_waitcnt vmcnt(0)')
    stamp_flush(a, 1, 4)
    a('L2_end:')
    a('s_endpgm')
    return AC + 80

def desc(name, nv):
    nv = (nv + 7) // 8 * 8
    return '''.p2align 6
.amdhsa_kernel %s
  .amdhsa_next_free_vgpr %d
  .amdhsa_next_free_sgpr 102
  .amdhsa_accum_offset %d
  .amdhsa_group_segment_fixed_size 0
  .amdhsa_kernarg_size 80
  .amdhsa_user_sgpr_count 2
  .amdhsa_user_sgpr_kernarg_segment_ptr 1
  .amdhsa_system_sgpr_workgroup_id_x 1
.end_amdhsa_kernel
''' % (name, nv, nv)

def main():
    for arg in sys.argv[2:]:
        k, val = arg.split('='); setattr(cfg, k, int(val))
    a = Asm()
    gen_k1(a)
    nv2 = gen_k2(a)
    body = a.finish()
    hdr = '''; gated mix of sliding-window dilated attention and ReLU FFN, two launches.
; launch 1: qkv projection + attention, FFN up projection + relu, weight re-layout + gate
; launch 2: output projections (wo, w2) and gated mix
; @launch kernel=%s grid=(256,1,1) block=(512,1,1) lds=%d
; @launch kernel=%s grid=(256,1,1) block=(256,1,1) lds=%d
.amdgcn_target "amdgcn-amd-amdhsa--gfx950"
.text
''' % (K1, 3 * SLOT, K2, 61440)
    out = hdr + body + '.section .rodata,"a"\n' + desc(K1, 256) + desc(K2, nv2)
    open(sys.argv[1], 'w').write(out)
    print('nops inserted:', a.nops, 'bytes', len(out))

main()
```

```python
import sys, math, struct
from asmlib import Asm, v, s

NAME = 'gated_mix__sliding_local_dilated__dense_activation_relu__prompt'
K1 = NAME + '_kernel'
K2 = 'gm_stage2_kernel'

WS_A = 0
WS_B = 0x900000
WS_G = 0xC00000
WS_SIZE = 0xC02000
RSTRIDE = 68 * 4096
NBSTRIDE = 68 * 5120
SLOT = 50176
XOFF = 33792
BAD = 0x40000000

class Cfg:
    ra = 0
    rb = 0
    rc = 0
    rd = 0
    prof = 0
    k2depth = 4
    k2prio = 1
    pw = 35
    scr = 0
    sel = -1
    sel0 = 0
    tpos = 100022222
    pf = 0
    pf0 = 1
    pf1 = 0
    pfo = 1
    pfx = 0
    rx = 0
    rmask = 15
    rsh = 0
    touch = 1
    lp = 0
    k2st = 0
    stpol = 1
cfg = Cfg()

def stp(p=None):
    return ['', ' sc1', ' sc0 sc1', ' nt', ' sc1 nt', ' sc0 sc1 nt'][cfg.stpol if p is None else p]

def f32(x):
    return '0x%08x' % struct.unpack('<I', struct.pack('<f', x))[0]

def srd(a, d, lo, size):
    a('s_mov_b32 %s, %s' % (s(d), s(lo)))
    a('s_mov_b32 %s, %s' % (s(d + 1), s(lo + 1)))
    a('s_mov_b32 %s, %d' % (s(d + 2), size))
    a('s_mov_b32 %s, 0x00020000' % s(d + 3))

PROF = 0xD00000
def stamp(a, i):
    if cfg.prof:
        a('s_memrealtime %s' % s(80 + 2 * i, 2))
        a('s_memtime %s' % s(72 + 2 * i, 2))
def stamp_flush(a, kern, wsreg, role=2):
    if not cfg.prof: return
    a('s_memrealtime s[86:87]')
    a('s_memtime s[78:79]')
    if cfg.prof == 3 and kern == 1:
        a('s_or_b32 s92, s2, s3')
        a('s_cmp_lg_u32 s92, 0')
        a('s_cbranch_scc1 L2_end')
        a('s_load_dwordx2 s[88:89], s[0:1], 64')
        a('s_mov_b32 s90, 256'); a('s_mov_b32 s91, 0x00020000')
        a('s_mov_b32 s92, s4'); a('s_mov_b32 s93, s5'); a('s_mov_b32 s94, 0x1000000'); a('s_mov_b32 s95, 0x00020000')
        a('s_mov_b32 s96, %d' % PROF)
        a('s_waitcnt lgkmcnt(0)')
        for j in range(4):
            a('v_add_u32 v1, %d, v0' % (64 * j))
            a('v_lshlrev_b32 v2, 9, v1')
            a('buffer_load_dwordx4 v[4:7], v2, s[92:95], s96 offen')
            a('buffer_load_dwordx4 v[8:11], v2, s[92:95], s96 offen offset:16')
            a('v_mov_b32 v3, 0')
            a('v_cmp_le_u32 vcc, 144, v1')
            a('v_cndmask_b32 v3, v3, 16, vcc')
            a('v_cmp_le_u32 vcc, 240, v1')
            a('v_cndmask_b32 v3, v3, 48, vcc')
            a('s_waitcnt vmcnt(0)')
            a('v_not_b32 v4, v4')
            for i in range(4):
                a('buffer_atomic_umax %s, v3, s[88:91], 0 offen offset:%d' % (v(4 + 2 * i), 4 * i))
            a('s_waitcnt vmcnt(0)')
        a('s_mov_b64 exec, 1')
        a('v_mov_b32 v0, 0')
        a('s_not_b32 s80, s80')
        for i in range(4):
            a('v_mov_b32 %s, %s' % (v(4 + i), s(80 + 2 * i)))
            a('buffer_atomic_umax %s, v0, s[88:91], 0 offen offset:%d' % (v(4 + i), role * 16 + 4 * i))
        if cfg.sel >= 0:
            a('s_waitcnt vmcnt(0)')
            a('v_mov_b32 v8, 0'); a('v_mov_b32 v9, 0')
            a('buffer_atomic_umax v8, v0, s[88:91], 0 offen offset:%d sc0' % (4 * cfg.sel0))
            a('buffer_atomic_umax v9, v0, s[88:91], 0 offen offset:%d sc0' % (4 * cfg.sel))
            a('s_waitcnt vmcnt(0)')
            a('v_readfirstlane_b32 s92, v8'); a('v_readfirstlane_b32 s93, v9')
            if cfg.sel0 % 4 == 0: a('s_not_b32 s92, s92')
            if cfg.sel % 4 == 0: a('s_not_b32 s93, s93')
            a('s_sub_u32 s92, s93, s92')
            a('s_min_u32 s92, s92, 5000')
            a('s_lshl_b32 s92, s92, 2')
            a('s_memrealtime s[94:95]')
            a('s_waitcnt lgkmcnt(0)')
            a('L2_spin:')
            a('s_memrealtime s[96:97]')
            a('s_waitcnt lgkmcnt(0)')
            a('s_sub_u32 s96, s96, s94')
            a('s_cmp_lt_u32 s96, s92')
            a('s_cbranch_scc1 L2_spin')
        return
    if cfg.prof == 2:
        a('s_load_dwordx2 s[88:89], s[0:1], 64')
        a('s_mov_b32 s90, 256'); a('s_mov_b32 s91, 0x00020000')
        a('s_waitcnt lgkmcnt(0)')
        a('s_mov_b64 exec, 1')
        a('v_mov_b32 v0, 0')
        a('s_not_b32 s80, s80')
        for i in range(4):
            a('v_mov_b32 %s, %s' % (v(4 + i), s(80 + 2 * i)))
            a('buffer_atomic_umax %s, v0, s[88:91], 0 offen offset:%d' % (v(4 + i), role * 16 + 4 * i))
        return
    a('s_mov_b32 s88, %s' % s(wsreg)); a('s_mov_b32 s89, %s' % s(wsreg + 1))
    a('s_mov_b32 s90, 0x1000000'); a('s_mov_b32 s91, 0x00020000')
    a('s_lshl_b32 s92, s2, 3'); a('s_add_u32 s92, s92, s3'); a('s_lshl_b32 s92, s92, 6')
    a('s_add_u32 s92, s92, %d' % (PROF + kern * 256 * 8 * 64))
    a('s_waitcnt lgkmcnt(0)')
    a('s_mov_b64 exec, 1')
    a('v_mov_b32 v0, 0')
    for i in range(8): a('v_mov_b32 %s, %s' % (v(4 + i), s(80 + i)))
    a('buffer_store_dwordx4 v[4:7], v0, s[88:91], s92 offen')
    a('buffer_store_dwordx4 v[8:11], v0, s[88:91], s92 offen offset:16')
    for i in range(8): a('v_mov_b32 %s, %s' % (v(12 + i), s(72 + i)))
    a('buffer_store_dwordx4 v[12:15], v0, s[88:91], s92 offen offset:32')
    a('buffer_store_dwordx4 v[16:19], v0, s[88:91], s92 offen offset:48')

def interleave(a, mf, rd, first=1, per=1):
    rd = list(rd)
    for i, m in enumerate(mf):
        a(m)
        for _ in range(per):
            if rd: a(rd.pop(0))
    for x in rd: a(x)

SETS = (16, 64)
ACC = 112
def acc(t, n): return ACC + (t * 8 + n) * 4
VXA0, VXA1, VWM, VWQ, VWV = 4, 5, 6, 7, 8

def k1_reads(att, st, ks):
    base = SETS[st]
    xa = VXA1 if ks else VXA0
    r = []
    xs = ['ds_read_b128 %s, %s offset:%d' % (v(base + 4 * t, 4), v(xa), t * 2048) for t in range(4)]
    ws = []
    for n in range(8):
        if att:
            reg, off = [(VWM, 0), (VWM, 40), (VWM, 160), (VWM, 200), (VWQ, 0), (VWM, 320), (VWM, 360), (VWV, 0)][n]
        else:
            reg, off = VWM, 32 * n
        for h in range(2):
            ws.append('ds_read_b64_tr_b16 %s, %s offset:%d' % (v(base + 16 + 4 * n + 2 * h, 2), v(reg), off + ks * 16896 + h * 512))
    r = ws[:2] + xs + ws[2:]
    return r

def k1_mfmas(att, st):
    base = SETS[st]
    m = []
    for n in range(8):
        for t in range(4):
            W = v(base + 16 + 4 * n, 4); X = v(base + 4 * t, 4); A = v(acc(t, n), 4)
            if att and n >= 5:
                m.append('v_mfma_f32_16x16x32_bf16 %s, %s, %s, %s' % (A, X, W, A))
            else:
                m.append('v_mfma_f32_16x16x32_bf16 %s, %s, %s, %s' % (A, W, X, A))
    return m

def k1_mainloop(a, att, tag):
    a('s_barrier')
    stamp(a, 1)
    for x in k1_reads(att, 0, 0): a(x)
    a('s_mov_b32 s48, 0')
    a('s_mov_b32 s49, 0')
    a('s_waitcnt lgkmcnt(0)')
    a('L_%s_loop:' % tag)
    pre = ['s_add_u32 s49, s49, 1', 's_cmp_eq_u32 s49, 3', 's_cselect_b32 s50, s51, s52', 's_cselect_b32 s49, 0, s49']
    adv = ['v_add_u32 %s, s50, %s' % (v(r), v(r)) for r in ([VXA0, VXA1, VWM, VWQ, VWV] if att else [VXA0, VXA1, VWM])]
    interleave(a, k1_mfmas(att, 0), k1_reads(att, 1, 1) + pre + adv)
    a('s_waitcnt lgkmcnt(0)')
    a('s_barrier')
    interleave(a, k1_mfmas(att, 1), k1_reads(att, 0, 0) + ['s_add_u32 s48, s48, 1', 's_cmp_lt_u32 s48, 10'])
    a('s_waitcnt lgkmcnt(0)')
    a('s_cbranch_scc1 L_%s_loop' % tag)
    stamp(a, 2)

def tok_addr(a, dst, vj, tmp, vloc):
    a('v_lshrrev_b32 %s, 5, %s' % (v(tmp), v(vj)))
    a('v_mul_u32_u24 %s, s54, %s' % (v(dst), v(tmp)))
    a('v_and_b32 %s, 16, %s' % (v(tmp), v(vj)))
    a('v_lshl_add_u32 %s, %s, 7, %s' % (v(dst), v(tmp), v(dst)))
    a('v_and_b32 %s, 15, %s' % (v(tmp), v(vj)))
    a('v_lshl_add_u32 %s, %s, 4, %s' % (v(dst), v(tmp), v(dst)))
    a('v_cmp_gt_u32 vcc, 0x400, %s' % v(vj))
    a('v_cmp_le_u32 s[56:57], s53, %s' % v(vloc))
    a('s_and_b64 vcc, vcc, s[56:57]')
    a('v_mov_b32 %s, %s' % (v(tmp), hex(BAD)))
    a('v_cndmask_b32 %s, %s, %s, vcc' % (v(dst), v(tmp), v(dst)))

def touch_setup(a, wreg, va, vd):
    srd(a, 56, 6, 640 * 3840)
    srd(a, 60, 12, 640 * 3072)
    a('s_lshl_b32 s64, s33, 7')
    a('s_lshl_b32 s65, s34, 2')
    a('s_add_u32 s64, s64, s65')
    a('s_add_u32 s64, s64, %s' % wreg)
    if cfg.touch >= 3:
        sh = 7 if cfg.touch in (3, 5) else 6
        per = 128 >> sh
        a('v_lshlrev_b32 %s, %d, v0' % (v(va), sh))
        a('v_mov_b32 %s, %s' % (v(va + 5), hex(BAD)))
        for i, (nl, base) in enumerate(((20, 0), (17, 64 * 3840), (14, 64 * 3072))):
            a('s_mul_i32 s65, s64, %d' % (nl * 128))
            a('s_add_u32 s65, s65, %d' % base)
            a('v_add_u32 %s, s65, %s' % (v(va + 1 + i), v(va)))
            a('v_cmp_gt_u32 vcc, %d, v0' % (nl * per))
            a('v_cndmask_b32 %s, %s, %s, vcc' % (v(va + 1 + i), v(va + 5), v(va + 1 + i)))
        L = lambda i, sr: 'buffer_load_dword %s, %s, %s, 0 offen' % (v(vd + i), v(va + 1 + i), sr)
        return [L(0, 's[20:23]'), L(1, 's[56:59]'), L(2, 's[60:63]')], []
    a('s_lshl_b32 s65, s64, 10')
    a('v_lshl_add_u32 %s, v0, 4, s65' % v(va))
    a('v_add_u32 %s, %d, %s' % (v(va + 1), 64 * 3840 + (2 << 20), v(va)))
    a('v_add_u32 %s, %d, %s' % (v(va + 2), 64 * 3072 + (1 << 20), v(va)))
    a('s_mul_i32 s65, s64, 2560')
    a('v_lshrrev_b32 %s, 5, v0' % v(va + 3))
    a('v_mul_u32_u24 %s, 0x500, %s' % (v(va + 3), v(va + 3)))
    a('v_and_b32 %s, 31, v0' % v(va + 4))
    a('v_lshl_add_u32 %s, %s, 4, %s' % (v(va + 3), v(va + 4), v(va + 3)))
    a('v_lshrrev_b32 %s, 3, v0' % v(va + 4))
    a('v_mul_u32_u24 %s, 0x500, %s' % (v(va + 4), v(va + 4)))
    a('v_and_b32 %s, 7, v0' % v(va + 5))
    a('v_lshl_add_u32 %s, %s, 4, %s' % (v(va + 4), v(va + 5), v(va + 4)))
    a('v_mov_b32 %s, %s' % (v(va + 5), hex(BAD)))
    a('v_cmp_gt_u32 vcc, 16, v0')
    a('v_cndmask_b32 %s, %s, %s, vcc' % (v(va + 4), v(va + 5), v(va + 4)))
    a('s_mov_b32 s66, %d' % (64 * 3840))
    a('s_mov_b32 s67, %d' % (64 * 3072))
    a('s_mov_b32 s68, %d' % (64 * 3840 + (1 << 20)))
    L = lambda i, r, sr, so, off: 'buffer_load_dwordx4 %s, %s, %s, %s offen offset:%d' % (v(vd + 4 * i, 4), v(r), sr, so, off)
    ta = [L(0, va + 3, 's[20:23]', 's65', 128), L(1, va, 's[56:59]', 's66', 0), L(2, va, 's[60:63]', 's67', 0)]
    tb = [L(3, va + 3, 's[20:23]', 's65', 640), L(4, va, 's[56:59]', 's68', 0), L(5, va + 2, 's[60:63]', '0', 0),
          L(6, va + 4, 's[20:23]', 's65', 1152), L(7, va + 1, 's[56:59]', '0', 0)]
    return ta, tb

def gen_k1(a):
    a('.globl %s' % K1); a('.p2align 8'); a('.type %s,@function' % K1)
    a('%s:' % K1)
    a('s_cmp_ge_u32 s2, 256')
    a('s_cbranch_scc1 L1_end')
    stamp(a, 0); stamp(a, 1); stamp(a, 2)
    a('s_load_dwordx4 s[4:7], s[0:1], 0')
    a('s_load_dwordx2 s[8:9], s[0:1], 16')
    a('s_load_dwordx4 s[12:15], s[0:1], 32')
    a('s_load_dwordx2 s[10:11], s[0:1], 48')
    a('s_load_dwordx2 s[16:17], s[0:1], 72')
    a('v_lshrrev_b32 v1, 6, v0')
    a('v_and_b32 v0, 63, v0')
    a('v_readfirstlane_b32 s3, v1')
    if cfg.scr & 1:
        a('s_lshr_b32 s33, s2, 5'); a('s_and_b32 s34, s2, 31')
    else:
        a('s_and_b32 s33, s2, 7')
        a('s_lshr_b32 s34, s2, 3')
    a('s_lshr_b32 s35, s33, 2')
    a('s_and_b32 s36, s33, 3')
    a('s_cmp_ge_u32 s34, 30')
    a('s_cbranch_scc1 L1_prep')
    a('s_cmp_ge_u32 s34, 18')
    a('s_cbranch_scc1 L1_ffn_setup')
    a('s_and_b32 s38, s34, 1')
    a('s_lshl_b32 s46, s36, 1')
    a('s_add_u32 s38, s38, s46')
    a('s_mul_i32 s37, s35, 9')
    a('s_lshr_b32 s46, s34, 1')
    a('s_add_u32 s37, s37, s46')
    a('s_and_b32 s45, s46, %d' % cfg.rmask)
    a('s_mul_i32 s45, s45, %d' % cfg.ra)
    if cfg.rsh: a('s_lshr_b32 s45, s45, %d' % cfg.rsh)
    a('s_and_b32 s47, s38, 1')
    a('s_mul_i32 s47, s47, %d' % cfg.rb)
    a('s_add_u32 s45, s45, s47')
    a('s_mul_i32 s39, s37, 114')
    a('s_movk_i32 s40, 3840')
    a('s_movk_i32 s41, 29')
    a('s_movk_i32 s42, 1120')
    a('s_mul_i32 s43, s38, 160')
    a('s_mov_b32 s44, 0')
    a('s_waitcnt lgkmcnt(0)')
    srd(a, 24, 6, 640 * 3840)
    a('s_branch L1_common')
    a('L1_ffn_setup:')
    a('s_mul_i32 s46, s36, 12')
    a('s_add_u32 s46, s46, s34')
    a('s_sub_u32 s46, s46, 18')
    a('s_lshr_b32 s38, s46, 3')
    a('s_and_b32 s46, s46, 7')
    a('s_lshl_b32 s37, s35, 3')
    a('s_add_u32 s37, s37, s46')
    a('s_and_b32 s45, s46, %d' % cfg.rmask)
    a('s_mul_i32 s45, s45, %d' % cfg.ra)
    if cfg.rsh: a('s_lshr_b32 s45, s45, %d' % cfg.rsh)
    a('s_and_b32 s47, s38, 1')
    a('s_mul_i32 s47, s47, %d' % cfg.rd)
    a('s_add_u32 s45, s45, s47')
    a('s_add_u32 s45, s45, %d' % cfg.rc)
    a('s_lshl_b32 s39, s37, 7')
    a('s_movk_i32 s40, 3072')
    a('s_movk_i32 s41, 31')
    a('s_mov_b32 s42, 0')
    a('s_lshl_b32 s43, s38, 9')
    a('s_mov_b32 s44, 1')
    a('s_waitcnt lgkmcnt(0)')
    srd(a, 24, 12, 640 * 3072)
    a('L1_common:')
    srd(a, 20, 4, 2048 * 1280)
    a('s_cmp_lt_u32 s3, 4')
    a('s_cbranch_scc1 L1_consumer')
    a('s_setprio 3')
    a('s_sub_u32 s46, s3, 4')
    a('v_lshrrev_b32 v2, 3, v0')
    a('v_lshrrev_b32 v3, 4, v0')
    a('v_and_b32 v4, 7, v0')
    a('s_lshr_b32 s47, s46, 1')
    a('s_add_u32 s47, s47, s39')
    a('s_and_b32 s48, s46, 1')
    a('s_lshl_b32 s48, s48, 6')
    a('s_add_u32 s47, s47, s48')
    a('v_lshl_add_u32 v5, v2, 1, s47')
    a('v_mul_u32_u24 v5, 0x500, v5')
    a('v_xor_b32 v4, v4, v3')
    a('v_lshl_add_u32 v16, v4, 4, v5')
    a('v_xor_b32 v4, 4, v4')
    a('v_lshl_add_u32 v17, v4, 4, v5')
    a('v_add_u32 v17, %d, v17' % (16 * 1280))
    a('v_add_u32 v18, %d, v16' % (32 * 1280))
    a('v_add_u32 v19, %d, v17' % (32 * 1280))
    a('v_and_b32 v1, 31, v0')
    a('v_min_u32 v1, s41, v1')
    a('v_mul_u32_u24 v2, 13, v1')
    a('v_lshrrev_b32 v2, 7, v2')
    a('v_lshlrev_b32 v1, 4, v1')
    a('v_mad_u32_u24 v1, v2, s42, v1')
    a('v_add_u32 v1, s43, v1')
    a('v_lshrrev_b32 v2, 5, v0')
    a('v_lshlrev_b32 v2, 2, v2')
    a('s_lshl_b32 s47, s46, 4')
    a('v_add_u32 v2, s47, v2')
    a('v_mad_u32_u24 v8, v2, s40, v1')
    a('s_lshl_b32 s47, s40, 3')
    a('v_add_u32 v12, s47, v8')
    for e in range(1, 4):
        a('v_add_u32 %s, s40, %s' % (v(8 + e), v(7 + e)))
        a('v_add_u32 %s, s40, %s' % (v(12 + e), v(11 + e)))
    if cfg.rx:
        a('s_mul_i32 s47, s33, %d' % cfg.rx)
        a('s_lshr_b32 s47, s47, 2')
        a('s_add_u32 s45, s45, s47')
    a('s_mul_i32 s47, s45, 205')
    a('s_lshr_b32 s47, s47, 11')
    a('s_mul_i32 s47, s47, 10')
    a('s_sub_u32 s45, s45, s47')
    a('s_mov_b32 s48, 0')
    a('s_mov_b32 s49, 0')
    a('s_mul_i32 s50, s46, %d' % (8 * 1056))
    a('s_lshl_b32 s51, s46, 12')
    a('s_add_u32 s51, s51, %d' % XOFF)
    a('s_lshl_b32 s53, s40, 6')
    def ld_stage(first=False):
        a('s_mul_i32 s52, s45, s53')
        a('s_lshl_b32 s54, s45, 7')
        a('s_add_u32 m0, s49, s51')
        for e in range(4):
            if e: a('s_add_u32 m0, m0, 1024')
            a('buffer_load_dwordx4 %s, s[20:23], s54 offen lds' % v(16 + e))
        a('s_add_u32 m0, s49, s50')
        for e in range(8):
            if e: a('s_add_u32 m0, m0, 1056')
            a('buffer_load_dwordx4 %s, s[24:27], s52 offen lds' % v(8 + e))
        a('s_add_u32 s45, s45, 1')
        a('s_cmp_eq_u32 s45, 10')
        a('s_cselect_b32 s45, 0, s45')
        a('s_add_u32 s49, s49, %d' % SLOT)
        a('s_cmp_eq_u32 s49, %d' % (3 * SLOT))
        a('s_cselect_b32 s49, 0, s49')
    ld_stage()
    tl = []
    if cfg.touch:
        ta, tb = touch_setup(a, 's46', 32, 40)
        tl = list(zip([int(c) for c in str(cfg.tpos)[1:]], ta + tb))
    seq = []
    for j in range(10):
        if j >= 2: seq.append(('w', j - 2))
        seq.append(('d', j))
        seq += [('t', x) for p, x in tl if p == j]
    seq.append(('w', 8))
    last = max([p for p, x in tl] + [1]) + 3
    for i, x in enumerate(seq):
        if i == 0: continue
        if x[0] == 'd':
            ld_stage()
            if x[1] == last: break
        elif x[0] == 't': a(x[1])
        else:
            pos = seq.index(('d', x[1]))
            cnt = sum(12 if y[0] == 'd' else 1 if y[0] == 't' else 0 for y in seq[pos + 1:i])
            if x[1] + 2 == last:
                assert cnt == 12
                a('s_mov_b32 s48, %d' % last)
                a('s_waitcnt vmcnt(12)')
                a('L1_ld_loop:')
            else:
                a('s_waitcnt vmcnt(%d)' % cnt)
            if cfg.lp and x[1] == 0: stamp(a, 1)
            if cfg.lp and x[1] == 1: stamp(a, 2)
            a('s_barrier')
    a('s_add_u32 s48, s48, 1')
    a('s_cmp_lt_u32 s48, 10')
    a('s_waitcnt vmcnt(12)')
    a('s_cbranch_scc1 L1_ld_loop')
    if not cfg.lp: stamp(a, 1)
    a('s_cmp_eq_u32 s44, 1')
    a('s_cselect_b32 s47, s38, 4')
    a('s_cmp_lt_u32 s47, 4')
    a('s_barrier')
    a('s_cbranch_scc1 L1_ld_gate')
    a('s_waitcnt vmcnt(0)')
    a('s_barrier')
    stamp_flush(a, 0, 16)
    a('s_endpgm')
    gen_gate(a)
    a('L1_consumer:')
    srd(a, 28, 16, WS_SIZE)
    a('s_and_b32 s46, s3, 1')
    a('s_lshr_b32 s47, s3, 1')
    a('v_lshrrev_b32 v1, 4, v0')
    a('v_and_b32 v2, 15, v0')
    a('v_bfe_u32 v3, v2, 1, 3')
    a('v_xor_b32 v3, v3, v1')
    a('v_lshlrev_b32 v3, 4, v3')
    a('v_lshl_add_u32 v3, v2, 7, v3')
    a('s_lshl_b32 s48, s46, 13')
    a('s_add_u32 s48, s48, %d' % XOFF)
    a('v_add_u32 %s, s48, v3' % v(VXA0))
    a('v_xor_b32 %s, 64, %s' % (v(VXA1), v(VXA0)))
    a('v_lshrrev_b32 v3, 2, v0')
    a('v_mul_u32_u24 v3, 0x420, v3')
    a('v_and_b32 v15, 3, v0')
    a('v_lshl_add_u32 %s, v15, 3, v3' % v(VWM))
    a('s_mov_b32 s51, %d' % (-2 * SLOT & 0xffffffff))
    a('s_mov_b32 s52, %d' % SLOT)
    for i in range(128): a('v_mov_b32 %s, 0' % v(ACC + i))
    a('s_cmp_eq_u32 s44, 1')
    a('s_cbranch_scc1 L1_ffn')
    a('s_mul_i32 s48, s47, 80')
    a('v_add_u32 %s, s48, %s' % (v(VWM), v(VWM)))
    a('v_add_u32 v3, s48, v3')
    a('v_and_b32 v16, 1, v15')
    a('v_mad_u32_u24 v3, v16, 40, v3')
    a('v_add_u32 %s, 352, v3' % v(VWV))
    a('v_lshrrev_b32 v16, 1, v15')
    a('v_mul_u32_u24 v16, 160, v16')
    a('v_add3_u32 %s, v3, v16, 32' % v(VWQ))
    a('v_lshlrev_b32 v16, 2, v1')
    a('v_sub_u32 v16, v2, v16')
    a('v_mov_b32 v17, %s' % f32(-1e30))
    for r in range(4):
        a('v_subrev_u32 v18, %d, v16' % r)
        a('v_cmp_gt_u32 vcc, 8, v18')
        a('v_cndmask_b32 %s, v17, 0, vcc' % v(240 + r))
        a('v_cmp_gt_i32 vcc, -8, v18')
        a('v_cndmask_b32 %s, v17, 0, vcc' % v(244 + r))
        a('v_cmp_le_i32 vcc, 0, v18')
        a('v_cndmask_b32 %s, 0, -1, vcc' % v(20 + r))
        a('v_mov_b32 %s, 0x3f803f80' % v(250 + r))
    a('v_mov_b32 v17, 0xffff')
    a('v_bfi_b32 v248, v17, v20, v21')
    a('v_bfi_b32 v249, v17, v22, v23')
    a('s_mul_i32 s55, s37, 57')
    a('s_cmp_eq_u32 s37, 0')
    a('s_cselect_b32 s53, 0, 7')
    a('s_mov_b32 s54, %d' % RSTRIDE)
    a('s_lshl_b32 s58, s38, 1')
    a('s_add_u32 s58, s58, s47')
    a('s_lshl_b32 s58, s58, 12')
    a('s_lshl_b32 s59, s46, 10')
    a('s_add_u32 s58, s58, s59')
    a('v_lshlrev_b32 v19, 8, v1')
    for t in range(4):
        a('v_add_u32 v16, %d, v2' % (16 * t))
        a('v_add_u32 v17, s55, v16')
        tok_addr(a, 9 + t, 17, 18, 16)
        a('v_add_u32 %s, v19, %s' % (v(9 + t), v(9 + t)))
    a('s_lshr_b32 s60, s38, 1')
    a('s_add_u32 s60, s60, 16')
    a('s_lshl_b32 s60, s60, 12')
    a('s_add_u32 s59, s59, s60')
    a('s_and_b32 s60, s38, 1')
    a('s_lshl_b32 s60, s60, 1')
    a('s_add_u32 s60, s60, s47')
    a('s_lshl_b32 s60, s60, 8')
    a('s_add_u32 s59, s59, s60')
    a('v_and_b32 v19, 1, v1')
    a('v_lshlrev_b32 v19, 3, v19')
    a('v_lshrrev_b32 v20, 1, v1')
    a('v_lshl_add_u32 v20, v20, 4, v2')
    for u in range(2):
        a('v_add_u32 v16, %d, v20' % (32 * u))
        a('v_add_u32 v17, s55, v16')
        tok_addr(a, 13 + u, 17, 18, 16)
        a('v_add_u32 %s, v19, %s' % (v(13 + u), v(13 + u)))
    for g in range(4):
        m = 0xffff << (16 * g)
        a('s_mov_b32 %s, 0x%x' % (s(64 + 2 * g), m & 0xffffffff))
        a('s_mov_b32 %s, 0x%x' % (s(65 + 2 * g), m >> 32))
    cs = 20 ** -0.5 * math.log2(math.e)
    a('s_mov_b32 s62, %s' % f32(cs))
    a('s_mov_b32 s63, %s' % f32(-cs))
    k1_mainloop(a, True, 'att')
    gen_attention(a)
    if cfg.prof: a('s_waitcnt vmcnt(0)')
    stamp_flush(a, 0, 16, 0)
    a('s_endpgm')
    a('L1_ffn:')
    a('s_lshl_b32 s48, s47, 8')
    a('v_add_u32 %s, s48, %s' % (v(VWM), v(VWM)))
    a('v_lshlrev_b32 v9, 4, v0')
    a('s_mul_i32 s58, s37, %d' % (2 * RSTRIDE))
    a('s_lshl_b32 s59, s38, 3')
    a('s_lshl_b32 s60, s47, 2')
    a('s_add_u32 s59, s59, s60')
    a('s_add_u32 s59, s59, 20')
    a('s_lshl_b32 s59, s59, 12')
    a('s_add_u32 s58, s58, s59')
    a('s_lshl_b32 s59, s46, 10')
    a('s_add_u32 s58, s58, s59')
    k1_mainloop(a, False, 'ffn')
    k = 0
    for m in range(4):
        for t in range(4):
            d = 16 + 4 * (k % 16); k += 1
            for h in range(2):
                A = acc(t, 2 * m + h)
                a('v_cvt_pk_bf16_f32 %s, %s, %s' % (v(d + 2 * h), v(A), v(A + 1)))
                a('v_cvt_pk_bf16_f32 %s, %s, %s' % (v(d + 2 * h + 1), v(A + 2), v(A + 3)))
            for i in range(4):
                a('v_pk_max_i16 %s, %s, 0' % (v(d + i), v(d + i)))
            a('s_add_u32 s59, s58, %d' % ((t >> 1) * RSTRIDE + m * 4096))
            a('buffer_store_dwordx4 %s, v9, s[28:31], s59 offen offset:%d' % (v(d, 4), (t & 1) * 2048) + stp())
    if cfg.prof: a('s_waitcnt vmcnt(0)')
    stamp_flush(a, 0, 16, 1)
    a('s_endpgm')
    gen_prep(a)
    a('L1_end:')
    a('s_endpgm')

def gen_attention(a):
    KK = lambda t: 16 + 6 * t
    Q0 = lambda t: 40 + 8 * t
    Q1 = lambda t: 44 + 8 * t
    VP = lambda h, t: 72 + 8 * h + 2 * t
    M = lambda u: 96 + u
    SC = lambda u: 112 + 8 * u
    SP = lambda u: 116 + 8 * u
    P = lambda u: 176 + 4 * u
    SUM = lambda u: 208 + 4 * u
    def cvt(d, A):
        a('v_cvt_pk_bf16_f32 %s, %s, %s' % (v(d), v(A), v(A + 1)))
        a('v_cvt_pk_bf16_f32 %s, %s, %s' % (v(d + 1), v(A + 2), v(A + 3)))
    def conv_qk(t):
        cvt(Q1(t), acc(t, 4)); cvt(KK(t) + 2, acc(t, 4))
        cvt(Q0(t), acc(t, 0)); cvt(Q1(t) + 2, acc(t, 1))
        a('v_permlane32_swap_b32 %s, %s' % (v(Q1(t)), v(KK(t) + 2)))
        a('v_permlane32_swap_b32 %s, %s' % (v(Q1(t) + 1), v(KK(t) + 3)))
        cvt(KK(t), acc(t, 2)); cvt(KK(t) + 4, acc(t, 3))
        for i in range(2):
            a('v_cndmask_b32 %s, 0, %s, s[64:65]' % (v(Q0(t) + 2 + i), v(Q1(t) + i)))
            a('v_cndmask_b32 %s, 0, %s, s[66:67]' % (v(Q1(t) + i), v(Q1(t) + i)))
    def conv_v(t):
        for h in range(3): cvt(VP(h, t), acc(t, 5 + h))
    for t in range(4): conv_qk(t)
    conv_v(0); conv_v(1)
    Kop = lambda h, t: v(KK(t) + 2 * h, 4)
    Qop = lambda h, t: v(Q0(t) if h == 0 else Q1(t), 4)
    mf = []
    for h in range(2):
        for t in range(4):
            u = 4 * h + t
            mf.append('v_mfma_f32_16x16x32_bf16 %s, %s, %s, v[240:243]' % (v(SC(u), 4), Kop(h, t), Qop(h, t)))
            if t: mf.append('v_mfma_f32_16x16x32_bf16 %s, %s, %s, v[244:247]' % (v(SP(u), 4), Kop(h, t - 1), Qop(h, t)))
    cv = []
    for t in (2, 3):
        for h in range(3):
            A = acc(t, 5 + h); d = VP(h, t)
            cv.append('v_cvt_pk_bf16_f32 %s, %s, %s' % (v(d), v(A), v(A + 1)))
            cv.append('v_cvt_pk_bf16_f32 %s, %s, %s' % (v(d + 1), v(A + 2), v(A + 3)))
    interleave(a, mf, cv)
    for u in range(8):
        if u & 3:
            for r in range(4): a('v_max_f32 %s, %s, %s' % (v(SC(u) + r), v(SC(u) + r), v(SP(u) + r)))
        a('v_max3_f32 %s, %s, %s, %s' % (v(M(u)), v(SC(u)), v(SC(u) + 1), v(SC(u) + 2)))
        a('v_max_f32 %s, %s, %s' % (v(M(u)), v(M(u)), v(SC(u) + 3)))
    G = (0, 4)
    for b in G:
        a('v_permlane32_swap_b32 %s, %s' % (v(M(b)), v(M(b + 1))))
        a('v_permlane32_swap_b32 %s, %s' % (v(M(b + 2)), v(M(b + 3))))
    for b in G:
        a('v_max_f32 %s, %s, %s' % (v(M(b)), v(M(b)), v(M(b + 1))))
        a('v_max_f32 %s, %s, %s' % (v(M(b + 2)), v(M(b + 2)), v(M(b + 3))))
    for b in G: a('v_permlane16_swap_b32 %s, %s' % (v(M(b)), v(M(b + 2))))
    for b in G: a('v_max_f32 %s, %s, %s' % (v(M(b)), v(M(b)), v(M(b + 2))))
    for b in G: a('v_mul_f32 %s, s63, %s' % (v(M(b + 2)), v(M(b))))
    for b in G: a('v_mul_f32 %s, s63, %s' % (v(M(b)), v(M(b))))
    for b in G: a('v_permlane16_swap_b32 %s, %s' % (v(M(b)), v(M(b + 2))))
    for b in G:
        a('v_mov_b32 %s, %s' % (v(M(b + 1)), v(M(b))))
        a('v_mov_b32 %s, %s' % (v(M(b + 3)), v(M(b + 2))))
    for b in G:
        a('v_permlane32_swap_b32 %s, %s' % (v(M(b)), v(M(b + 1))))
        a('v_permlane32_swap_b32 %s, %s' % (v(M(b + 2)), v(M(b + 3))))
    pend = []
    for u in range(8):
        h, t = u >> 2, u & 3
        for r in range(4): a('v_fma_f32 %s, %s, s62, %s' % (v(SC(u) + r), v(SC(u) + r), v(M(u))))
        for r in range(4):
            a('v_exp_f32 %s, %s' % (v(SC(u) + r), v(SC(u) + r)))
            if pend: a(pend.pop(0))
        for x in pend: a(x)
        if t == 0:
            cvt(P(u) + 2, SC(u))
            op = 'v_mfma_f32_16x16x16_bf16'; B = v(P(u) + 2, 2); n = 2; o = 0
        else:
            cvt(P(u), SC(u))
            for i in range(2): a('v_and_b32 %s, %s, %s' % (v(P(u) + 2 + i), v(248 + i), v(P(u) + i)))
            for i in range(2): a('v_bfi_b32 %s, %s, 0, %s' % (v(P(u) + i), v(248 + i), v(P(u) + i)))
            op = 'v_mfma_f32_16x16x32_bf16'; B = v(P(u), 4); n = 4; o = -2
        pend = ['%s %s, %s, %s, 0' % (op, v(SUM(u), 4), v(250, n), B),
                '%s %s, %s, %s, 0' % (op, v(SC(u), 4), v(VP(h, t) + o, n), B),
                '%s %s, %s, %s, 0' % (op, v(SP(u), 4), v(VP(2, t) + o, n), B)]
    for x in pend: a(x)
    for u in range(8): a('v_rcp_f32 %s, %s' % (v(SUM(u)), v(SUM(u))))
    for t in range(4):
        for h in range(2):
            u = 4 * h + t
            for i in range(2):
                a('v_pk_mul_f32 %s, %s, %s op_sel_hi:[1,0]' % (v(SC(u) + 2 * i, 2), v(SC(u) + 2 * i, 2), v(SUM(u), 2)))
        for h in range(2): cvt(16 + 4 * t + 2 * h, SC(4 * h + t))
        a('buffer_store_dwordx4 %s, %s, s[28:31], s58 offen' % (v(16 + 4 * t, 4), v(9 + t)) + stp())
    for g in range(4):
        a('s_mov_b64 exec, %s' % s(64 + 2 * g, 2))
        for u2 in range(2):
            u = 4 * (g & 1) + 2 * u2 + (g >> 1)
            for i in range(2):
                a('v_pk_mul_f32 %s, %s, %s op_sel_hi:[1,0]' % (v(40 + 4 * u2 + 2 * i, 2), v(SP(u) + 2 * i, 2), v(SUM(u), 2)))
    a('s_mov_b64 exec, -1')
    for u2 in range(2):
        cvt(48 + 2 * u2, 40 + 4 * u2)
        a('buffer_store_dwordx2 %s, %s, s[28:31], s59 offen' % (v(48 + 2 * u2, 2), v(13 + u2)) + stp())

def gen_gate(a):
    GW, GX = 24, 64
    a('L1_ld_gate:')
    srd(a, 56, 10, 1280)
    srd(a, 28, 16, WS_SIZE)
    a('v_and_b32 v1, 7, v0')
    a('v_lshlrev_b32 v1, 4, v1')
    a('s_lshl_b32 s47, s38, 5')
    a('s_add_u32 s47, s47, s39')
    a('s_lshl_b32 s48, s46, 3')
    a('s_add_u32 s47, s47, s48')
    a('v_lshrrev_b32 v2, 3, v0')
    a('v_add_u32 v2, s47, v2')
    a('v_mul_u32_u24 v3, 0x500, v2')
    a('v_add_u32 v3, v3, v1')
    a('s_waitcnt vmcnt(0)')
    a('s_barrier')
    for i in range(10):
        a('buffer_load_dwordx4 %s, v1, s[56:59], 0 offen offset:%d' % (v(GW + 4 * i, 4), 128 * i))
    for i in range(10):
        a('buffer_load_dwordx4 %s, v3, s[20:23], 0 offen offset:%d' % (v(GX + 4 * i, 4), 128 * i))
    a('v_mov_b32 v9, 0')
    a('v_mov_b32 v10, 0')
    a('s_waitcnt vmcnt(0)')
    for i in range(40):
        a('v_dot2_f32_bf16 %s, %s, %s, %s' % (v(9 + (i & 1)), v(GX + i), v(GW + i), v(9 + (i & 1))))
    a('v_add_f32 v9, v9, v10')
    for pat in ('quad_perm:[1,0,3,2]', 'quad_perm:[2,3,0,1]', 'row_half_mirror'):
        a('v_add_f32_dpp v11, v9, v9 %s row_mask:0xf bank_mask:0xf' % pat)
        a('v_mov_b32 v9, v11')
    a('v_mul_f32 v9, %s, v9' % f32(-math.log2(math.e)))
    a('v_exp_f32 v9, v9')
    a('v_add_f32 v9, 1.0, v9')
    a('v_rcp_f32 v9, v9')
    a('v_lshlrev_b32 v2, 2, v2')
    a('v_mov_b32 v3, %s' % hex(BAD))
    a('v_cmp_eq_u32 vcc, 0, v1')
    a('v_cndmask_b32 v2, v3, v2, vcc')
    a('s_mov_b32 s60, %d' % WS_G)
    a('buffer_store_dword v9, v2, s[28:31], s60 offen' + stp())
    if cfg.prof: a('s_waitcnt vmcnt(0)')
    stamp_flush(a, 0, 16)
    a('s_endpgm')

def gen_prep(a):
    PITCH = 176
    LW = 32 * PITCH
    a('L1_prep:')
    a('s_sub_u32 s37, s34, 30')
    a('s_lshl_b32 s37, s37, 3')
    a('s_add_u32 s37, s37, s33')
    a('s_waitcnt lgkmcnt(0)')
    srd(a, 24, 8, 640 * 1280)
    srd(a, 40, 14, 1536 * 1280)
    srd(a, 28, 16, WS_SIZE)
    if cfg.touch:
        a('s_cmp_lt_u32 s3, 4')
        a('s_cbranch_scc0 L1_prep_not')
        srd(a, 20, 4, 2048 * 1280)
        ta, tb = touch_setup(a, 's3', 124, 132)
        for x in ta + tb: a(x)
        a('L1_prep_not:')
    U = lambda u: 24 + 20 * u
    GW = 124
    GX = 164
    a('s_mul_i32 s48, s3, 160')
    a('s_mul_i32 s49, s3, %d' % LW)
    a('s_movk_i32 s50, 205')
    a('s_movk_i32 s51, 1280')
    a('s_movk_i32 s52, %d' % PITCH)
    for e in range(5):
        a('v_add_u32 v1, %d, v0' % (64 * e))
        a('v_mul_u32_u24 v2, s50, v1')
        a('v_lshrrev_b32 v2, 11, v2')
        a('v_mul_u32_u24 v3, 10, v2')
        a('v_sub_u32 v1, v1, v3')
        a('v_lshlrev_b32 v1, 4, v1')
        a('v_mad_u32_u24 %s, v2, s52, v1' % v(19 + e))
        a('v_add_u32 %s, s49, %s' % (v(19 + e), v(19 + e)))
        a('v_and_b32 v3, 3, v2')
        a('v_mad_u32_u24 v1, v3, s51, v1')
        a('v_add_u32 %s, s48, v1' % v(4 + e))
        a('v_lshrrev_b32 %s, 3, v2' % v(9 + e))
        a('v_bfe_u32 %s, v2, 2, 1' % v(14 + e))
    def addrs(al, be):
        a('s_movk_i32 s53, %d' % (al * 1280) if al * 1280 < 32768 else 's_mov_b32 s53, %d' % (al * 1280))
        a('s_movk_i32 s54, %d' % (be * 1280))
        for e in range(5):
            a('v_mad_u32_u24 %s, %s, s53, %s' % (v(244 + e), v(9 + e), v(4 + e)))
            a('v_mad_u32_u24 %s, %s, s54, %s' % (v(244 + e), v(14 + e), v(244 + e)))
    addrs(4, 16)
    a('s_mul_i32 s55, s37, %d' % (3 * 32 * 1280))
    for u in range(3):
        for e in range(5):
            a('buffer_load_dwordx4 %s, %s, s[40:43], s55 offen' % (v(U(u) + 4 * e, 4), v(244 + e)))
        if u < 2: a('s_add_u32 s55, s55, %d' % (32 * 1280))
    addrs(4, 20)
    a('s_mul_i32 s55, s37, %d' % (40 * 1280))
    for e in range(5):
        a('buffer_load_dwordx4 %s, %s, s[24:27], s55 offen' % (v(U(3) + 4 * e, 4), v(244 + e)))
    a('s_and_b32 s56, s37, 3')
    a('s_lshr_b32 s61, s37, 2')
    a('s_lshr_b32 s62, s3, 1')
    a('s_cmp_lg_u32 s61, s62')
    a('s_cbranch_scc1 L1_prep_norem')
    addrs(40, 20)
    a('s_mul_i32 s55, s56, %d' % (160 * 1280))
    a('s_add_u32 s55, s55, %d' % (16 * 1280))
    for e in range(5):
        a('buffer_load_dwordx4 %s, %s, s[24:27], s55 offen' % (v(U(4) + 4 * e, 4), v(244 + e)))
    a('L1_prep_norem:')
    a('v_lshrrev_b32 v4, 4, v0')
    a('v_bfe_u32 v5, v0, 2, 2')
    a('v_lshl_add_u32 v4, v4, 3, v5')
    a('v_mul_u32_u24 v4, s52, v4')
    a('v_add_u32 v4, s49, v4')
    a('v_and_b32 v5, 3, v0')
    a('v_lshl_add_u32 v6, v5, 3, v4')
    a('v_lshl_add_u32 v5, v5, 4, v4')
    a('v_lshlrev_b32 v7, 4, v0')
    a('v_add_u32 v8, 4096, v7')
    a('s_mul_i32 s59, s3, %d' % NBSTRIDE)
    a('s_add_u32 s59, s59, %d' % WS_B)
    for u in range(5):
        if u == 4:
            a('s_cmp_lg_u32 s61, s62')
            a('s_cbranch_scc1 L1_prep_done')
        a('s_waitcnt vmcnt(%d)' % (15 if u < 4 else 20))
        for e in range(5):
            a('ds_write_b128 %s, %s' % (v(19 + e), v(U(u) + 4 * e, 4)))
        if u < 3:
            a('s_mul_i32 s60, s37, 3'); a('s_add_u32 s60, s60, %d' % (20 + u))
        elif u == 3:
            a('s_mov_b32 s60, s37')
        else:
            a('s_add_u32 s60, s56, 16')
        a('s_mul_i32 s60, s60, 5120')
        a('s_add_u32 s60, s60, s59')
        a('s_waitcnt lgkmcnt(0)')
        for nt in range(5):
            for h in range(2):
                if nt < 4: reg, off = 5, 64 * (nt >> 1) + 8 * (nt & 1)
                else: reg, off = 6, 128
                a('ds_read_b64_tr_b16 %s, %s offset:%d' % (v(U(u) + 4 * nt + 2 * h, 2), v(reg), off + h * 4 * PITCH))
        a('s_waitcnt lgkmcnt(0)')
        for nt in range(5):
            a('buffer_store_dwordx4 %s, %s, s[28:31], s60 offen offset:%d' % (v(U(u) + 4 * nt, 4), v(7 if nt < 4 else 8), (nt & 3) * 1024) + stp())
    a('L1_prep_done:')
    if cfg.prof: a('s_waitcnt vmcnt(0)')
    stamp_flush(a, 0, 16, 3)
    a('s_endpgm')

def gen_k2(a):
    D = cfg.k2depth
    RING = 16
    AC = RING + 36 * D
    accr = lambda m, nt: AC + (m * 5 + nt) * 4
    Bq = lambda q, nt: RING + 36 * q + 4 * nt
    Aq = lambda q, m: RING + 36 * q + 20 + 4 * m
    a('.globl %s' % K2); a('.p2align 8'); a('.type %s,@function' % K2)
    a('%s:' % K2)
    a('s_cmp_ge_u32 s2, 256')
    a('s_cbranch_scc1 L2_end')
    stamp(a, 0)
    a('s_load_dwordx2 s[4:5], s[0:1], 72')
    a('s_load_dwordx2 s[6:7], s[0:1], 56')
    a('v_lshrrev_b32 v1, 6, v0')
    a('v_and_b32 v0, 63, v0')
    a('v_readfirstlane_b32 s3, v1')
    if cfg.scr & 2:
        a('s_lshr_b32 s16, s2, 5'); a('s_and_b32 s17, s2, 31')
    else:
        a('s_and_b32 s16, s2, 7')
        a('s_lshr_b32 s17, s2, 3')
    a('s_and_b32 s18, s16, 1')
    a('s_lshl_b32 s18, s18, 2')
    a('s_and_b32 s19, s17, 3')
    a('s_add_u32 s18, s18, s19')
    a('s_lshr_b32 s19, s16, 1')
    a('s_lshl_b32 s19, s19, 3')
    a('s_lshr_b32 s20, s17, 2')
    a('s_add_u32 s19, s19, s20')
    a('s_lshl_b32 s20, s3, 4')
    a('s_add_u32 s20, s20, 4')
    a('s_cmp_eq_u32 s3, 0')
    a('s_cselect_b32 s20, 0, s20')
    if cfg.k2prio:
        a('s_cbranch_scc0 L2_noprio')
        a('s_setprio 3')
        a('L2_noprio:')
    a('s_cselect_b32 s21, %d, %d' % (20 // D - 1, 16 // D - 1))
    a('s_mul_i32 s22, s19, %d' % RSTRIDE)
    a('s_lshl_b32 s23, s20, 12')
    a('s_add_u32 s22, s22, s23')
    a('s_mul_i32 s23, s18, %d' % NBSTRIDE)
    a('s_mul_i32 s24, s20, 5120')
    a('s_add_u32 s23, s23, s24')
    a('s_add_u32 s23, s23, %d' % WS_B)
    a('v_lshlrev_b32 v2, 4, v0')
    a('v_add_u32 v3, 4096, v2')
    for m in range(4):
        a('s_add_u32 s24, s3, %d' % m)
        a('s_and_b32 s24, s24, 3')
        a('s_lshl_b32 s25, s24, 10')
        a('v_add_u32 %s, s25, v2' % v(4 + m))
        if m:
            a('s_mul_i32 s25, s24, 15360')
            a('s_add_u32 s25, s25, %d' % ((m - 1) * 5120))
            a('v_add_u32 %s, s25, v2' % v(8 + m))
    a('s_lshl_b32 s24, s19, 6')
    a('s_lshr_b32 s25, s3, 1')
    a('s_lshl_b32 s25, s25, 5')
    a('s_add_u32 s24, s24, s25')
    a('s_and_b32 s25, s3, 1')
    a('s_add_u32 s24, s24, s25')
    a('v_and_b32 v12, 15, v0')
    a('v_lshl_add_u32 v12, v12, 1, s24')
    a('v_lshlrev_b32 v13, 2, v12')
    a('s_mov_b32 s26, %d' % WS_G)
    a('s_waitcnt lgkmcnt(0)')
    srd(a, 8, 4, WS_SIZE)
    def ldB(q, nt): return 'buffer_load_dwordx4 %s, %s, s[8:11], s23 offen offset:%d' % (v(Bq(q, nt), 4), v(2 if nt < 4 else 3), (nt & 3) * 1024)
    def ldA(q, m): return 'buffer_load_dwordx4 %s, %s, s[8:11], s22 offen' % (v(Aq(q, m), 4), v(4 + m))
    adv = ['s_add_u32 s22, s22, 4096', 's_add_u32 s23, s23, 5120']
    a('buffer_load_dword v14, v13, s[8:11], s26 offen')
    for q in range(D):
        for nt in range(5): a(ldB(q, nt))
        for m in range(4): a(ldA(q, m))
        for x in adv: a(x)
    srd(a, 12, 6, 2048 * 1280)
    for i in range(80): a('v_mov_b32 %s, 0' % v(AC + i))
    def step(q, load, cnt):
        a('s_waitcnt vmcnt(%d)' % cnt)
        for nt in range(5):
            for m in range(4):
                A = v(accr(m, nt), 4)
                a('v_mfma_f32_16x16x32_bf16 %s, %s, %s, %s' % (A, v(Bq(q, nt), 4), v(Aq(q, m), 4), A))
                if load and nt == 4: a(ldA(q, m)) if False else None
            if load: a(ldB(q, nt))
        if load:
            for m in range(4): a(ldA(q, m))
            for x in adv: a(x)
    if cfg.prof: a('s_waitcnt vmcnt(%d)' % (9 * (D - 1)))
    stamp(a, 1)
    a('L2_loop:')
    for q in range(D): step(q, True, 9 * (D - 1))
    a('s_sub_u32 s21, s21, 1')
    a('s_cmp_lg_u32 s21, 0')
    a('s_cbranch_scc1 L2_loop')
    for q in range(D): step(q, False, 9 * (D - 1 - q))
    stamp(a, 2)
    for m in range(1, 4):
        for nt in range(5):
            a('ds_write_b128 %s, %s offset:%d' % (v(8 + m), v(accr(m, nt), 4), nt * 1024))
    a('v_sub_f32 v15, 1.0, v14')
    for m in range(4):
        a('s_cmp_eq_u32 s3, %d' % m)
        a('s_cselect_b64 vcc, -1, 0')
        a('v_cndmask_b32 %s, v15, v14, vcc' % v(16 + 2 * m))
    a('s_mul_i32 s25, s3, 15360')
    a('v_add_u32 v8, s25, v2')
    a('s_mul_i32 s25, s18, 160')
    a('v_mul_u32_u24 v12, 0x500, v12')
    a('v_lshrrev_b32 v13, 4, v0')
    a('v_lshl_add_u32 v9, v13, 3, v12')
    a('v_lshl_add_u32 v12, v13, 4, v12')
    for i in range(10):
        A = AC + 2 * i
        a('v_pk_mul_f32 %s, %s, v[16:17] op_sel_hi:[1,0]' % (v(A, 2), v(A, 2)))
    a('s_waitcnt lgkmcnt(0)')
    a('s_barrier')
    for m in range(1, 4):
        for nt in range(5):
            a('ds_read_b128 %s, v8 offset:%d' % (v(accr(m, nt), 4), ((m - 1) * 5 + nt) * 1024))
    for m in range(1, 4):
        a('s_waitcnt lgkmcnt(%d)' % (5 * (3 - m)))
        for i in range(10):
            A = AC + 2 * i
            a('v_pk_fma_f32 %s, %s, %s, %s op_sel_hi:[1,0,1]' % (v(A, 2), v(A + 20 * m, 2), v(16 + 2 * m, 2), v(A, 2)))
    for i in range(10):
        a('v_cvt_pk_bf16_f32 %s, %s, %s' % (v(24 + i), v(AC + 2 * i), v(AC + 2 * i + 1)))
    a('buffer_store_dwordx4 v[24:27], v12, s[12:15], s25 offen' + stp(cfg.k2st))
    a('buffer_store_dwordx4 v[28:31], v12, s[12:15], s25 offen offset:64' + stp(cfg.k2st))
    a('buffer_store_dwordx2 v[32:33], v9, s[12:15], s25 offen offset:128' + stp(cfg.k2st))
    if cfg.prof: a('s_waitcnt vmcnt(0)')
    stamp_flush(a, 1, 4)
    a('L2_end:')
    a('s_endpgm')
    return AC + 80

def desc(name, nv):
    nv = (nv + 7) // 8 * 8
    return '''.p2align 6
.amdhsa_kernel %s
  .amdhsa_next_free_vgpr %d
  .amdhsa_next_free_sgpr 102
  .amdhsa_accum_offset %d
  .amdhsa_group_segment_fixed_size 0
  .amdhsa_kernarg_size 80
  .amdhsa_user_sgpr_count 2
  .amdhsa_user_sgpr_kernarg_segment_ptr 1
  .amdhsa_system_sgpr_workgroup_id_x 1
.end_amdhsa_kernel
''' % (name, nv, nv)

def main():
    for arg in sys.argv[2:]:
        k, val = arg.split('='); setattr(cfg, k, int(val))
    a = Asm()
    gen_k1(a)
    nv2 = gen_k2(a)
    body = a.finish()
    hdr = '''; gated mix of sliding-window dilated attention and ReLU FFN, two launches.
; launch 1: qkv projection + attention, FFN up projection + relu, weight re-layout + gate
; launch 2: output projections (wo, w2) and gated mix
; @launch kernel=%s grid=(256,1,1) block=(512,1,1) lds=%d
; @launch kernel=%s grid=(256,1,1) block=(256,1,1) lds=%d
.amdgcn_target "amdgcn-amd-amdhsa--gfx950"
.text
''' % (K1, 3 * SLOT, K2, 61440)
    out = hdr + body + '.section .rodata,"a"\n' + desc(K1, 256) + desc(K2, nv2)
    open(sys.argv[1], 'w').write(out)
    print('nops inserted:', a.nops, 'bytes', len(out))

main()
```

```python
import sys, math, struct
from asmlib import Asm, v, s

NAME = 'gated_mix__sliding_local_dilated__dense_activation_relu__prompt'
K1 = NAME + '_kernel'
K2 = 'gm_stage2_kernel'

WS_A = 0
WS_B = 0x900000
WS_G = 0xC00000
WS_SIZE = 0xC02000
RSTRIDE = 68 * 4096
NBSTRIDE = 68 * 5120
SLOT = 50176
XOFF = 33792
BAD = 0x40000000

class Cfg:
    ra = 1
    rb = 5
    rc = 3
    rd = 5
    prof = 0
    k2depth = 4
    k2prio = 1
    pw = 35
    scr = 0
    stm = 0
    str = 0
    stg = 0
    sel = -1
    sel0 = 0
    tpos = 100022222
    pf = 0
    pf0 = 1
    pf1 = 0
    pfo = 1
    pfx = 0
    rx = 0
    rmask = 15
    rsh = 0
    touch = 0
    lp = 0
    k2st = 0
    stpol = 1
cfg = Cfg()

def stp(p=None):
    return ['', ' sc1', ' sc0 sc1', ' nt', ' sc1 nt', ' sc0 sc1 nt'][cfg.stpol if p is None else p]

def f32(x):
    return '0x%08x' % struct.unpack('<I', struct.pack('<f', x))[0]

def srd(a, d, lo, size):
    a('s_mov_b32 %s, %s' % (s(d), s(lo)))
    a('s_mov_b32 %s, %s' % (s(d + 1), s(lo + 1)))
    a('s_mov_b32 %s, %d' % (s(d + 2), size))
    a('s_mov_b32 %s, 0x00020000' % s(d + 3))

PROF = 0xD00000
def stamp(a, i):
    if cfg.prof:
        a('s_memrealtime %s' % s(80 + 2 * i, 2))
        a('s_memtime %s' % s(72 + 2 * i, 2))
def stamp_flush(a, kern, wsreg, role=2):
    if not cfg.prof: return
    a('s_memrealtime s[86:87]')
    a('s_memtime s[78:79]')
    if cfg.prof == 3 and kern == 1:
        a('s_or_b32 s92, s2, s3')
        a('s_cmp_lg_u32 s92, 0')
        a('s_cbranch_scc1 L2_end')
        a('s_load_dwordx2 s[88:89], s[0:1], 64')
        a('s_mov_b32 s90, 256'); a('s_mov_b32 s91, 0x00020000')
        a('s_mov_b32 s92, s4'); a('s_mov_b32 s93, s5'); a('s_mov_b32 s94, 0x1000000'); a('s_mov_b32 s95, 0x00020000')
        a('s_mov_b32 s96, %d' % PROF)
        a('s_waitcnt lgkmcnt(0)')
        for j in range(4):
            a('v_add_u32 v1, %d, v0' % (64 * j))
            a('v_lshlrev_b32 v2, 9, v1')
            a('buffer_load_dwordx4 v[4:7], v2, s[92:95], s96 offen')
            a('buffer_load_dwordx4 v[8:11], v2, s[92:95], s96 offen offset:16')
            a('v_mov_b32 v3, 0')
            a('v_cmp_le_u32 vcc, 144, v1')
            a('v_cndmask_b32 v3, v3, 16, vcc')
            a('v_cmp_le_u32 vcc, 240, v1')
            a('v_cndmask_b32 v3, v3, 48, vcc')
            a('s_waitcnt vmcnt(0)')
            a('v_not_b32 v4, v4')
            for i in range(4):
                a('buffer_atomic_umax %s, v3, s[88:91], 0 offen offset:%d' % (v(4 + 2 * i), 4 * i))
            a('s_waitcnt vmcnt(0)')
        a('s_mov_b64 exec, 1')
        a('v_mov_b32 v0, 0')
        a('s_not_b32 s80, s80')
        for i in range(4):
            a('v_mov_b32 %s, %s' % (v(4 + i), s(80 + 2 * i)))
            a('buffer_atomic_umax %s, v0, s[88:91], 0 offen offset:%d' % (v(4 + i), role * 16 + 4 * i))
        if cfg.sel >= 0:
            a('s_waitcnt vmcnt(0)')
            a('v_mov_b32 v8, 0'); a('v_mov_b32 v9, 0')
            a('buffer_atomic_umax v8, v0, s[88:91], 0 offen offset:%d sc0' % (4 * cfg.sel0))
            a('buffer_atomic_umax v9, v0, s[88:91], 0 offen offset:%d sc0' % (4 * cfg.sel))
            a('s_waitcnt vmcnt(0)')
            a('v_readfirstlane_b32 s92, v8'); a('v_readfirstlane_b32 s93, v9')
            if cfg.sel0 % 4 == 0: a('s_not_b32 s92, s92')
            if cfg.sel % 4 == 0: a('s_not_b32 s93, s93')
            a('s_sub_u32 s92, s93, s92')
            a('s_min_u32 s92, s92, 5000')
            a('s_lshl_b32 s92, s92, 2')
            a('s_memrealtime s[94:95]')
            a('s_waitcnt lgkmcnt(0)')
            a('L2_spin:')
            a('s_memrealtime s[96:97]')
            a('s_waitcnt lgkmcnt(0)')
            a('s_sub_u32 s96, s96, s94')
            a('s_cmp_lt_u32 s96, s92')
            a('s_cbranch_scc1 L2_spin')
        return
    if cfg.prof == 2:
        a('s_load_dwordx2 s[88:89], s[0:1], 64')
        a('s_mov_b32 s90, 256'); a('s_mov_b32 s91, 0x00020000')
        a('s_waitcnt lgkmcnt(0)')
        a('s_mov_b64 exec, 1')
        a('v_mov_b32 v0, 0')
        a('s_not_b32 s80, s80')
        for i in range(4):
            a('v_mov_b32 %s, %s' % (v(4 + i), s(80 + 2 * i)))
            a('buffer_atomic_umax %s, v0, s[88:91], 0 offen offset:%d' % (v(4 + i), role * 16 + 4 * i))
        return
    a('s_mov_b32 s88, %s' % s(wsreg)); a('s_mov_b32 s89, %s' % s(wsreg + 1))
    a('s_mov_b32 s90, 0x1000000'); a('s_mov_b32 s91, 0x00020000')
    a('s_lshl_b32 s92, s2, 3'); a('s_add_u32 s92, s92, s3'); a('s_lshl_b32 s92, s92, 6')
    a('s_add_u32 s92, s92, %d' % (PROF + kern * 256 * 8 * 64))
    a('s_waitcnt lgkmcnt(0)')
    a('s_mov_b64 exec, 1')
    a('v_mov_b32 v0, 0')
    for i in range(8): a('v_mov_b32 %s, %s' % (v(4 + i), s(80 + i)))
    a('buffer_store_dwordx4 v[4:7], v0, s[88:91], s92 offen')
    a('buffer_store_dwordx4 v[8:11], v0, s[88:91], s92 offen offset:16')
    for i in range(8): a('v_mov_b32 %s, %s' % (v(12 + i), s(72 + i)))
    a('buffer_store_dwordx4 v[12:15], v0, s[88:91], s92 offen offset:32')
    a('buffer_store_dwordx4 v[16:19], v0, s[88:91], s92 offen offset:48')

def interleave(a, mf, rd, first=1, per=1):
    rd = list(rd)
    for i, m in enumerate(mf):
        a(m)
        for _ in range(per):
            if rd: a(rd.pop(0))
    for x in rd: a(x)

SETS = (16, 64)
ACC = 112
def acc(t, n): return ACC + (t * 8 + n) * 4
VXA0, VXA1, VWM, VWQ, VWV = 4, 5, 6, 7, 8

def k1_reads(att, st, ks):
    base = SETS[st]
    xa = VXA1 if ks else VXA0
    r = []
    xs = ['ds_read_b128 %s, %s offset:%d' % (v(base + 4 * t, 4), v(xa), t * 2048) for t in range(4)]
    ws = []
    for n in range(8):
        if att:
            reg, off = [(VWM, 0), (VWM, 40), (VWM, 160), (VWM, 200), (VWQ, 0), (VWM, 320), (VWM, 360), (VWV, 0)][n]
        else:
            reg, off = VWM, 32 * n
        for h in range(2):
            ws.append('ds_read_b64_tr_b16 %s, %s offset:%d' % (v(base + 16 + 4 * n + 2 * h, 2), v(reg), off + ks * 16896 + h * 512))
    r = ws[:2] + xs + ws[2:]
    return r

def k1_mfmas(att, st):
    base = SETS[st]
    m = []
    for n in range(8):
        for t in range(4):
            W = v(base + 16 + 4 * n, 4); X = v(base + 4 * t, 4); A = v(acc(t, n), 4)
            if att and n >= 5:
                m.append('v_mfma_f32_16x16x32_bf16 %s, %s, %s, %s' % (A, X, W, A))
            else:
                m.append('v_mfma_f32_16x16x32_bf16 %s, %s, %s, %s' % (A, W, X, A))
    return m

def k1_mainloop(a, att, tag):
    a('s_barrier')
    stamp(a, 1)
    for x in k1_reads(att, 0, 0): a(x)
    a('s_mov_b32 s48, 0')
    a('s_mov_b32 s49, 0')
    a('s_waitcnt lgkmcnt(0)')
    a('L_%s_loop:' % tag)
    pre = ['s_add_u32 s49, s49, 1', 's_cmp_eq_u32 s49, 3', 's_cselect_b32 s50, s51, s52', 's_cselect_b32 s49, 0, s49']
    adv = ['v_add_u32 %s, s50, %s' % (v(r), v(r)) for r in ([VXA0, VXA1, VWM, VWQ, VWV] if att else [VXA0, VXA1, VWM])]
    interleave(a, k1_mfmas(att, 0), k1_reads(att, 1, 1) + pre + adv)
    a('s_waitcnt lgkmcnt(0)')
    a('s_barrier')
    interleave(a, k1_mfmas(att, 1), k1_reads(att, 0, 0) + ['s_add_u32 s48, s48, 1', 's_cmp_lt_u32 s48, 10'])
    a('s_waitcnt lgkmcnt(0)')
    a('s_cbranch_scc1 L_%s_loop' % tag)
    stamp(a, 2)

def tok_addr(a, dst, vj, tmp, vloc):
    a('v_lshrrev_b32 %s, 5, %s' % (v(tmp), v(vj)))
    a('v_mul_u32_u24 %s, s54, %s' % (v(dst), v(tmp)))
    a('v_and_b32 %s, 16, %s' % (v(tmp), v(vj)))
    a('v_lshl_add_u32 %s, %s, 7, %s' % (v(dst), v(tmp), v(dst)))
    a('v_and_b32 %s, 15, %s' % (v(tmp), v(vj)))
    a('v_lshl_add_u32 %s, %s, 4, %s' % (v(dst), v(tmp), v(dst)))
    a('v_cmp_gt_u32 vcc, 0x400, %s' % v(vj))
    a('v_cmp_le_u32 s[56:57], s53, %s' % v(vloc))
    a('s_and_b64 vcc, vcc, s[56:57]')
    a('v_mov_b32 %s, %s' % (v(tmp), hex(BAD)))
    a('v_cndmask_b32 %s, %s, %s, vcc' % (v(dst), v(tmp), v(dst)))

def touch_setup(a, wreg, va, vd):
    srd(a, 56, 6, 640 * 3840)
    srd(a, 60, 12, 640 * 3072)
    a('s_lshl_b32 s64, s33, 7')
    a('s_lshl_b32 s65, s34, 2')
    a('s_add_u32 s64, s64, s65')
    a('s_add_u32 s64, s64, %s' % wreg)
    if cfg.touch >= 3:
        sh = 7 if cfg.touch in (3, 5) else 6
        per = 128 >> sh
        a('v_lshlrev_b32 %s, %d, v0' % (v(va), sh))
        a('v_mov_b32 %s, %s' % (v(va + 5), hex(BAD)))
        for i, (nl, base) in enumerate(((20, 0), (17, 64 * 3840), (14, 64 * 3072))):
            a('s_mul_i32 s65, s64, %d' % (nl * 128))
            a('s_add_u32 s65, s65, %d' % base)
            a('v_add_u32 %s, s65, %s' % (v(va + 1 + i), v(va)))
            a('v_cmp_gt_u32 vcc, %d, v0' % (nl * per))
            a('v_cndmask_b32 %s, %s, %s, vcc' % (v(va + 1 + i), v(va + 5), v(va + 1 + i)))
        L = lambda i, sr: 'buffer_load_dword %s, %s, %s, 0 offen' % (v(vd + i), v(va + 1 + i), sr)
        return [L(0, 's[20:23]'), L(1, 's[56:59]'), L(2, 's[60:63]')], []
    a('s_lshl_b32 s65, s64, 10')
    a('v_lshl_add_u32 %s, v0, 4, s65' % v(va))
    a('v_add_u32 %s, %d, %s' % (v(va + 1), 64 * 3840 + (2 << 20), v(va)))
    a('v_add_u32 %s, %d, %s' % (v(va + 2), 64 * 3072 + (1 << 20), v(va)))
    a('s_mul_i32 s65, s64, 2560')
    a('v_lshrrev_b32 %s, 5, v0' % v(va + 3))
    a('v_mul_u32_u24 %s, 0x500, %s' % (v(va + 3), v(va + 3)))
    a('v_and_b32 %s, 31, v0' % v(va + 4))
    a('v_lshl_add_u32 %s, %s, 4, %s' % (v(va + 3), v(va + 4), v(va + 3)))
    a('v_lshrrev_b32 %s, 3, v0' % v(va + 4))
    a('v_mul_u32_u24 %s, 0x500, %s' % (v(va + 4), v(va + 4)))
    a('v_and_b32 %s, 7, v0' % v(va + 5))
    a('v_lshl_add_u32 %s, %s, 4, %s' % (v(va + 4), v(va + 5), v(va + 4)))
    a('v_mov_b32 %s, %s' % (v(va + 5), hex(BAD)))
    a('v_cmp_gt_u32 vcc, 16, v0')
    a('v_cndmask_b32 %s, %s, %s, vcc' % (v(va + 4), v(va + 5), v(va + 4)))
    a('s_mov_b32 s66, %d' % (64 * 3840))
    a('s_mov_b32 s67, %d' % (64 * 3072))
    a('s_mov_b32 s68, %d' % (64 * 3840 + (1 << 20)))
    L = lambda i, r, sr, so, off: 'buffer_load_dwordx4 %s, %s, %s, %s offen offset:%d' % (v(vd + 4 * i, 4), v(r), sr, so, off)
    ta = [L(0, va + 3, 's[20:23]', 's65', 128), L(1, va, 's[56:59]', 's66', 0), L(2, va, 's[60:63]', 's67', 0)]
    tb = [L(3, va + 3, 's[20:23]', 's65', 640), L(4, va, 's[56:59]', 's68', 0), L(5, va + 2, 's[60:63]', '0', 0),
          L(6, va + 4, 's[20:23]', 's65', 1152), L(7, va + 1, 's[56:59]', '0', 0)]
    return ta, tb

def gen_k1(a):
    a('.globl %s' % K1); a('.p2align 8'); a('.type %s,@function' % K1)
    a('%s:' % K1)
    a('s_cmp_ge_u32 s2, 256')
    a('s_cbranch_scc1 L1_end')
    stamp(a, 0); stamp(a, 1); stamp(a, 2)
    a('s_load_dwordx4 s[4:7], s[0:1], 0')
    a('s_load_dwordx2 s[8:9], s[0:1], 16')
    a('s_load_dwordx4 s[12:15], s[0:1], 32')
    a('s_load_dwordx2 s[10:11], s[0:1], 48')
    a('s_load_dwordx2 s[16:17], s[0:1], 72')
    a('v_lshrrev_b32 v1, 6, v0')
    a('v_and_b32 v0, 63, v0')
    a('v_readfirstlane_b32 s3, v1')
    if cfg.scr & 1:
        a('s_lshr_b32 s33, s2, 5'); a('s_and_b32 s34, s2, 31')
    else:
        a('s_and_b32 s33, s2, 7')
        a('s_lshr_b32 s34, s2, 3')
    a('s_lshr_b32 s35, s33, 2')
    a('s_and_b32 s36, s33, 3')
    a('s_cmp_ge_u32 s34, 30')
    a('s_cbranch_scc1 L1_prep')
    a('s_cmp_ge_u32 s34, 18')
    a('s_cbranch_scc1 L1_ffn_setup')
    a('s_and_b32 s38, s34, 1')
    a('s_lshl_b32 s46, s36, 1')
    a('s_add_u32 s38, s38, s46')
    a('s_mul_i32 s37, s35, 9')
    a('s_lshr_b32 s46, s34, 1')
    a('s_add_u32 s37, s37, s46')
    a('s_and_b32 s45, s46, %d' % cfg.rmask)
    a('s_mul_i32 s45, s45, %d' % cfg.ra)
    if cfg.rsh: a('s_lshr_b32 s45, s45, %d' % cfg.rsh)
    a('s_and_b32 s47, s38, 1')
    a('s_mul_i32 s47, s47, %d' % cfg.rb)
    a('s_add_u32 s45, s45, s47')
    a('s_mul_i32 s39, s37, 114')
    a('s_movk_i32 s40, 3840')
    a('s_movk_i32 s41, 29')
    a('s_movk_i32 s42, 1120')
    a('s_mul_i32 s43, s38, 160')
    a('s_mov_b32 s44, 0')
    a('s_waitcnt lgkmcnt(0)')
    srd(a, 24, 6, 640 * 3840)
    a('s_branch L1_common')
    a('L1_ffn_setup:')
    a('s_mul_i32 s46, s36, 12')
    a('s_add_u32 s46, s46, s34')
    a('s_sub_u32 s46, s46, 18')
    a('s_lshr_b32 s38, s46, 3')
    a('s_and_b32 s46, s46, 7')
    a('s_lshl_b32 s37, s35, 3')
    a('s_add_u32 s37, s37, s46')
    a('s_and_b32 s45, s46, %d' % cfg.rmask)
    a('s_mul_i32 s45, s45, %d' % cfg.ra)
    if cfg.rsh: a('s_lshr_b32 s45, s45, %d' % cfg.rsh)
    a('s_and_b32 s47, s38, 1')
    a('s_mul_i32 s47, s47, %d' % cfg.rd)
    a('s_add_u32 s45, s45, s47')
    a('s_add_u32 s45, s45, %d' % cfg.rc)
    a('s_lshl_b32 s39, s37, 7')
    a('s_movk_i32 s40, 3072')
    a('s_movk_i32 s41, 31')
    a('s_mov_b32 s42, 0')
    a('s_lshl_b32 s43, s38, 9')
    a('s_mov_b32 s44, 1')
    a('s_waitcnt lgkmcnt(0)')
    srd(a, 24, 12, 640 * 3072)
    a('L1_common:')
    srd(a, 20, 4, 2048 * 1280)
    a('s_cmp_lt_u32 s3, 4')
    a('s_cbranch_scc1 L1_consumer')
    a('s_setprio 3')
    a('s_sub_u32 s46, s3, 4')
    a('v_lshrrev_b32 v2, 3, v0')
    a('v_lshrrev_b32 v3, 4, v0')
    a('v_and_b32 v4, 7, v0')
    a('s_lshr_b32 s47, s46, 1')
    a('s_add_u32 s47, s47, s39')
    a('s_and_b32 s48, s46, 1')
    a('s_lshl_b32 s48, s48, 6')
    a('s_add_u32 s47, s47, s48')
    a('v_lshl_add_u32 v5, v2, 1, s47')
    a('v_mul_u32_u24 v5, 0x500, v5')
    a('v_xor_b32 v4, v4, v3')
    a('v_lshl_add_u32 v16, v4, 4, v5')
    a('v_xor_b32 v4, 4, v4')
    a('v_lshl_add_u32 v17, v4, 4, v5')
    a('v_add_u32 v17, %d, v17' % (16 * 1280))
    a('v_add_u32 v18, %d, v16' % (32 * 1280))
    a('v_add_u32 v19, %d, v17' % (32 * 1280))
    a('v_and_b32 v1, 31, v0')
    a('v_min_u32 v1, s41, v1')
    a('v_mul_u32_u24 v2, 13, v1')
    a('v_lshrrev_b32 v2, 7, v2')
    a('v_lshlrev_b32 v1, 4, v1')
    a('v_mad_u32_u24 v1, v2, s42, v1')
    a('v_add_u32 v1, s43, v1')
    a('v_lshrrev_b32 v2, 5, v0')
    a('v_lshlrev_b32 v2, 2, v2')
    a('s_lshl_b32 s47, s46, 4')
    a('v_add_u32 v2, s47, v2')
    a('v_mad_u32_u24 v8, v2, s40, v1')
    a('s_lshl_b32 s47, s40, 3')
    a('v_add_u32 v12, s47, v8')
    for e in range(1, 4):
        a('v_add_u32 %s, s40, %s' % (v(8 + e), v(7 + e)))
        a('v_add_u32 %s, s40, %s' % (v(12 + e), v(11 + e)))
    if cfg.rx:
        a('s_mul_i32 s47, s33, %d' % cfg.rx)
        a('s_lshr_b32 s47, s47, 2')
        a('s_add_u32 s45, s45, s47')
    a('s_mul_i32 s47, s45, 205')
    a('s_lshr_b32 s47, s47, 11')
    a('s_mul_i32 s47, s47, 10')
    a('s_sub_u32 s45, s45, s47')
    a('s_mov_b32 s48, 0')
    a('s_mov_b32 s49, 0')
    a('s_mul_i32 s50, s46, %d' % (8 * 1056))
    a('s_lshl_b32 s51, s46, 12')
    a('s_add_u32 s51, s51, %d' % XOFF)
    a('s_lshl_b32 s53, s40, 6')
    def ld_stage(first=False):
        a('s_mul_i32 s52, s45, s53')
        a('s_lshl_b32 s54, s45, 7')
        a('s_add_u32 m0, s49, s51')
        for e in range(4):
            if e: a('s_add_u32 m0, m0, 1024')
            a('buffer_load_dwordx4 %s, s[20:23], s54 offen lds' % v(16 + e))
        a('s_add_u32 m0, s49, s50')
        for e in range(8):
            if e: a('s_add_u32 m0, m0, 1056')
            a('buffer_load_dwordx4 %s, s[24:27], s52 offen lds' % v(8 + e))
        a('s_add_u32 s45, s45, 1')
        a('s_cmp_eq_u32 s45, 10')
        a('s_cselect_b32 s45, 0, s45')
        a('s_add_u32 s49, s49, %d' % SLOT)
        a('s_cmp_eq_u32 s49, %d' % (3 * SLOT))
        a('s_cselect_b32 s49, 0, s49')
    ld_stage()
    tl = []
    if cfg.touch:
        ta, tb = touch_setup(a, 's46', 32, 40)
        tl = list(zip([int(c) for c in str(cfg.tpos)[1:]], ta + tb))
    seq = []
    for j in range(10):
        if j >= 2: seq.append(('w', j - 2))
        seq.append(('d', j))
        seq += [('t', x) for p, x in tl if p == j]
    seq.append(('w', 8))
    last = max([p for p, x in tl] + [1]) + 3
    for i, x in enumerate(seq):
        if i == 0: continue
        if x[0] == 'd':
            ld_stage()
            if x[1] == last: break
        elif x[0] == 't': a(x[1])
        else:
            pos = seq.index(('d', x[1]))
            cnt = sum(12 if y[0] == 'd' else 1 if y[0] == 't' else 0 for y in seq[pos + 1:i])
            if x[1] + 2 == last:
                assert cnt == 12
                a('s_mov_b32 s48, %d' % last)
                a('s_waitcnt vmcnt(12)')
                a('L1_ld_loop:')
            else:
                a('s_waitcnt vmcnt(%d)' % cnt)
            if cfg.lp and x[1] == 0: stamp(a, 1)
            if cfg.lp and x[1] == 1: stamp(a, 2)
            a('s_barrier')
    a('s_add_u32 s48, s48, 1')
    a('s_cmp_lt_u32 s48, 10')
    a('s_waitcnt vmcnt(12)')
    a('s_cbranch_scc1 L1_ld_loop')
    if not cfg.lp: stamp(a, 1)
    a('s_cmp_eq_u32 s44, 1')
    a('s_cselect_b32 s47, s38, 4')
    a('s_cmp_lt_u32 s47, 4')
    a('s_barrier')
    a('s_cbranch_scc1 L1_ld_gate')
    a('s_waitcnt vmcnt(0)')
    a('s_barrier')
    stamp_flush(a, 0, 16)
    a('s_endpgm')
    gen_gate(a)
    a('L1_consumer:')
    srd(a, 28, 16, WS_SIZE)
    a('s_and_b32 s46, s3, 1')
    a('s_lshr_b32 s47, s3, 1')
    a('v_lshrrev_b32 v1, 4, v0')
    a('v_and_b32 v2, 15, v0')
    a('v_bfe_u32 v3, v2, 1, 3')
    a('v_xor_b32 v3, v3, v1')
    a('v_lshlrev_b32 v3, 4, v3')
    a('v_lshl_add_u32 v3, v2, 7, v3')
    a('s_lshl_b32 s48, s46, 13')
    a('s_add_u32 s48, s48, %d' % XOFF)
    a('v_add_u32 %s, s48, v3' % v(VXA0))
    a('v_xor_b32 %s, 64, %s' % (v(VXA1), v(VXA0)))
    a('v_lshrrev_b32 v3, 2, v0')
    a('v_mul_u32_u24 v3, 0x420, v3')
    a('v_and_b32 v15, 3, v0')
    a('v_lshl_add_u32 %s, v15, 3, v3' % v(VWM))
    a('s_mov_b32 s51, %d' % (-2 * SLOT & 0xffffffff))
    a('s_mov_b32 s52, %d' % SLOT)
    for i in range(128): a('v_mov_b32 %s, 0' % v(ACC + i))
    a('s_cmp_eq_u32 s44, 1')
    a('s_cbranch_scc1 L1_ffn')
    a('s_mul_i32 s48, s47, 80')
    a('v_add_u32 %s, s48, %s' % (v(VWM), v(VWM)))
    a('v_add_u32 v3, s48, v3')
    a('v_and_b32 v16, 1, v15')
    a('v_mad_u32_u24 v3, v16, 40, v3')
    a('v_add_u32 %s, 352, v3' % v(VWV))
    a('v_lshrrev_b32 v16, 1, v15')
    a('v_mul_u32_u24 v16, 160, v16')
    a('v_add3_u32 %s, v3, v16, 32' % v(VWQ))
    a('v_lshlrev_b32 v16, 2, v1')
    a('v_sub_u32 v16, v2, v16')
    a('v_mov_b32 v17, %s' % f32(-1e30))
    for r in range(4):
        a('v_subrev_u32 v18, %d, v16' % r)
        a('v_cmp_gt_u32 vcc, 8, v18')
        a('v_cndmask_b32 %s, v17, 0, vcc' % v(240 + r))
        a('v_cmp_gt_i32 vcc, -8, v18')
        a('v_cndmask_b32 %s, v17, 0, vcc' % v(244 + r))
        a('v_cmp_le_i32 vcc, 0, v18')
        a('v_cndmask_b32 %s, 0, -1, vcc' % v(20 + r))
        a('v_mov_b32 %s, 0x3f803f80' % v(250 + r))
    a('v_mov_b32 v17, 0xffff')
    a('v_bfi_b32 v248, v17, v20, v21')
    a('v_bfi_b32 v249, v17, v22, v23')
    a('s_mul_i32 s55, s37, 57')
    a('s_cmp_eq_u32 s37, 0')
    a('s_cselect_b32 s53, 0, 7')
    a('s_mov_b32 s54, %d' % RSTRIDE)
    a('s_lshl_b32 s58, s38, 1')
    a('s_add_u32 s58, s58, s47')
    a('s_lshl_b32 s58, s58, 12')
    a('s_lshl_b32 s59, s46, 10')
    a('s_add_u32 s58, s58, s59')
    a('v_lshlrev_b32 v19, 8, v1')
    for t in range(4):
        a('v_add_u32 v16, %d, v2' % (16 * t))
        a('v_add_u32 v17, s55, v16')
        tok_addr(a, 9 + t, 17, 18, 16)
        a('v_add_u32 %s, v19, %s' % (v(9 + t), v(9 + t)))
    a('s_lshr_b32 s60, s38, 1')
    a('s_add_u32 s60, s60, 16')
    a('s_lshl_b32 s60, s60, 12')
    a('s_add_u32 s59, s59, s60')
    a('s_and_b32 s60, s38, 1')
    a('s_lshl_b32 s60, s60, 1')
    a('s_add_u32 s60, s60, s47')
    a('s_lshl_b32 s60, s60, 8')
    a('s_add_u32 s59, s59, s60')
    a('v_and_b32 v19, 1, v1')
    a('v_lshlrev_b32 v19, 3, v19')
    a('v_lshrrev_b32 v20, 1, v1')
    a('v_lshl_add_u32 v20, v20, 4, v2')
    for u in range(2):
        a('v_add_u32 v16, %d, v20' % (32 * u))
        a('v_add_u32 v17, s55, v16')
        tok_addr(a, 13 + u, 17, 18, 16)
        a('v_add_u32 %s, v19, %s' % (v(13 + u), v(13 + u)))
    for g in range(4):
        m = 0xffff << (16 * g)
        a('s_mov_b32 %s, 0x%x' % (s(64 + 2 * g), m & 0xffffffff))
        a('s_mov_b32 %s, 0x%x' % (s(65 + 2 * g), m >> 32))
    cs = 20 ** -0.5 * math.log2(math.e)
    a('s_mov_b32 s62, %s' % f32(cs))
    a('s_mov_b32 s63, %s' % f32(-cs))
    k1_mainloop(a, True, 'att')
    gen_attention(a)
    if cfg.prof: a('s_waitcnt vmcnt(0)')
    stamp_flush(a, 0, 16, 0)
    a('s_endpgm')
    a('L1_ffn:')
    a('s_lshl_b32 s48, s47, 8')
    a('v_add_u32 %s, s48, %s' % (v(VWM), v(VWM)))
    a('v_lshlrev_b32 v9, 4, v0')
    a('s_mul_i32 s58, s37, %d' % (2 * RSTRIDE))
    a('s_lshl_b32 s59, s38, 3')
    a('s_lshl_b32 s60, s47, 2')
    a('s_add_u32 s59, s59, s60')
    a('s_add_u32 s59, s59, 20')
    a('s_lshl_b32 s59, s59, 12')
    a('s_add_u32 s58, s58, s59')
    a('s_lshl_b32 s59, s46, 10')
    a('s_add_u32 s58, s58, s59')
    k1_mainloop(a, False, 'ffn')
    k = 0
    for m in range(4):
        for t in range(4):
            d = 16 + 4 * (k % 16); k += 1
            for h in range(2):
                A = acc(t, 2 * m + h)
                a('v_cvt_pk_bf16_f32 %s, %s, %s' % (v(d + 2 * h), v(A), v(A + 1)))
                a('v_cvt_pk_bf16_f32 %s, %s, %s' % (v(d + 2 * h + 1), v(A + 2), v(A + 3)))
            for i in range(4):
                a('v_pk_max_i16 %s, %s, 0' % (v(d + i), v(d + i)))
            a('s_add_u32 s59, s58, %d' % ((t >> 1) * RSTRIDE + m * 4096))
            a('buffer_store_dwordx4 %s, v9, s[28:31], s59 offen offset:%d' % (v(d, 4), (t & 1) * 2048) + stp())
    if cfg.prof: a('s_waitcnt vmcnt(0)')
    stamp_flush(a, 0, 16, 1)
    a('s_endpgm')
    gen_prep(a)
    a('L1_end:')
    a('s_endpgm')

def gen_attention(a):
    KK = lambda t: 16 + 6 * t
    Q0 = lambda t: 40 + 8 * t
    Q1 = lambda t: 44 + 8 * t
    VP = lambda h, t: 72 + 8 * h + 2 * t
    M = lambda u: 96 + u
    SC = lambda u: 112 + 8 * u
    SP = lambda u: 116 + 8 * u
    P = lambda u: 176 + 4 * u
    SUM = lambda u: 208 + 4 * u
    def cvt(d, A):
        a('v_cvt_pk_bf16_f32 %s, %s, %s' % (v(d), v(A), v(A + 1)))
        a('v_cvt_pk_bf16_f32 %s, %s, %s' % (v(d + 1), v(A + 2), v(A + 3)))
    def conv_qk(t):
        cvt(Q1(t), acc(t, 4)); cvt(KK(t) + 2, acc(t, 4))
        cvt(Q0(t), acc(t, 0)); cvt(Q1(t) + 2, acc(t, 1))
        a('v_permlane32_swap_b32 %s, %s' % (v(Q1(t)), v(KK(t) + 2)))
        a('v_permlane32_swap_b32 %s, %s' % (v(Q1(t) + 1), v(KK(t) + 3)))
        cvt(KK(t), acc(t, 2)); cvt(KK(t) + 4, acc(t, 3))
        for i in range(2):
            a('v_cndmask_b32 %s, 0, %s, s[64:65]' % (v(Q0(t) + 2 + i), v(Q1(t) + i)))
            a('v_cndmask_b32 %s, 0, %s, s[66:67]' % (v(Q1(t) + i), v(Q1(t) + i)))
    def conv_v(t):
        for h in range(3): cvt(VP(h, t), acc(t, 5 + h))
    for t in range(4): conv_qk(t)
    conv_v(0); conv_v(1)
    Kop = lambda h, t: v(KK(t) + 2 * h, 4)
    Qop = lambda h, t: v(Q0(t) if h == 0 else Q1(t), 4)
    mf = []
    for h in range(2):
        for t in range(4):
            u = 4 * h + t
            mf.append('v_mfma_f32_16x16x32_bf16 %s, %s, %s, v[240:243]' % (v(SC(u), 4), Kop(h, t), Qop(h, t)))
            if t: mf.append('v_mfma_f32_16x16x32_bf16 %s, %s, %s, v[244:247]' % (v(SP(u), 4), Kop(h, t - 1), Qop(h, t)))
    cv = []
    for t in (2, 3):
        for h in range(3):
            A = acc(t, 5 + h); d = VP(h, t)
            cv.append('v_cvt_pk_bf16_f32 %s, %s, %s' % (v(d), v(A), v(A + 1)))
            cv.append('v_cvt_pk_bf16_f32 %s, %s, %s' % (v(d + 1), v(A + 2), v(A + 3)))
    interleave(a, mf, cv)
    for u in range(8):
        if u & 3:
            for r in range(4): a('v_max_f32 %s, %s, %s' % (v(SC(u) + r), v(SC(u) + r), v(SP(u) + r)))
        a('v_max3_f32 %s, %s, %s, %s' % (v(M(u)), v(SC(u)), v(SC(u) + 1), v(SC(u) + 2)))
        a('v_max_f32 %s, %s, %s' % (v(M(u)), v(M(u)), v(SC(u) + 3)))
    G = (0, 4)
    for b in G:
        a('v_permlane32_swap_b32 %s, %s' % (v(M(b)), v(M(b + 1))))
        a('v_permlane32_swap_b32 %s, %s' % (v(M(b + 2)), v(M(b + 3))))
    for b in G:
        a('v_max_f32 %s, %s, %s' % (v(M(b)), v(M(b)), v(M(b + 1))))
        a('v_max_f32 %s, %s, %s' % (v(M(b + 2)), v(M(b + 2)), v(M(b + 3))))
    for b in G: a('v_permlane16_swap_b32 %s, %s' % (v(M(b)), v(M(b + 2))))
    for b in G: a('v_max_f32 %s, %s, %s' % (v(M(b)), v(M(b)), v(M(b + 2))))
    for b in G: a('v_mul_f32 %s, s63, %s' % (v(M(b + 2)), v(M(b))))
    for b in G: a('v_mul_f32 %s, s63, %s' % (v(M(b)), v(M(b))))
    for b in G: a('v_permlane16_swap_b32 %s, %s' % (v(M(b)), v(M(b + 2))))
    for b in G:
        a('v_mov_b32 %s, %s' % (v(M(b + 1)), v(M(b))))
        a('v_mov_b32 %s, %s' % (v(M(b + 3)), v(M(b + 2))))
    for b in G:
        a('v_permlane32_swap_b32 %s, %s' % (v(M(b)), v(M(b + 1))))
        a('v_permlane32_swap_b32 %s, %s' % (v(M(b + 2)), v(M(b + 3))))
    pend = []
    for u in range(8):
        h, t = u >> 2, u & 3
        for r in range(4): a('v_fma_f32 %s, %s, s62, %s' % (v(SC(u) + r), v(SC(u) + r), v(M(u))))
        for r in range(4):
            a('v_exp_f32 %s, %s' % (v(SC(u) + r), v(SC(u) + r)))
            if pend: a(pend.pop(0))
        for x in pend: a(x)
        if t == 0:
            cvt(P(u) + 2, SC(u))
            op = 'v_mfma_f32_16x16x16_bf16'; B = v(P(u) + 2, 2); n = 2; o = 0
        else:
            cvt(P(u), SC(u))
            for i in range(2): a('v_and_b32 %s, %s, %s' % (v(P(u) + 2 + i), v(248 + i), v(P(u) + i)))
            for i in range(2): a('v_bfi_b32 %s, %s, 0, %s' % (v(P(u) + i), v(248 + i), v(P(u) + i)))
            op = 'v_mfma_f32_16x16x32_bf16'; B = v(P(u), 4); n = 4; o = -2
        pend = ['%s %s, %s, %s, 0' % (op, v(SUM(u), 4), v(250, n), B),
                '%s %s, %s, %s, 0' % (op, v(SC(u), 4), v(VP(h, t) + o, n), B),
                '%s %s, %s, %s, 0' % (op, v(SP(u), 4), v(VP(2, t) + o, n), B)]
    for x in pend: a(x)
    for u in range(8): a('v_rcp_f32 %s, %s' % (v(SUM(u)), v(SUM(u))))
    for t in range(4):
        for h in range(2):
            u = 4 * h + t
            for i in range(2):
                a('v_pk_mul_f32 %s, %s, %s op_sel_hi:[1,0]' % (v(SC(u) + 2 * i, 2), v(SC(u) + 2 * i, 2), v(SUM(u), 2)))
        for h in range(2): cvt(16 + 4 * t + 2 * h, SC(4 * h + t))
        a('buffer_store_dwordx4 %s, %s, s[28:31], s58 offen' % (v(16 + 4 * t, 4), v(9 + t)) + stp(cfg.stm))
    for g in range(4):
        a('s_mov_b64 exec, %s' % s(64 + 2 * g, 2))
        for u2 in range(2):
            u = 4 * (g & 1) + 2 * u2 + (g >> 1)
            for i in range(2):
                a('v_pk_mul_f32 %s, %s, %s op_sel_hi:[1,0]' % (v(40 + 4 * u2 + 2 * i, 2), v(SP(u) + 2 * i, 2), v(SUM(u), 2)))
    a('s_mov_b64 exec, -1')
    for u2 in range(2):
        cvt(48 + 2 * u2, 40 + 4 * u2)
        a('buffer_store_dwordx2 %s, %s, s[28:31], s59 offen' % (v(48 + 2 * u2, 2), v(13 + u2)) + stp(cfg.str))

def gen_gate(a):
    GW, GX = 24, 64
    a('L1_ld_gate:')
    srd(a, 56, 10, 1280)
    srd(a, 28, 16, WS_SIZE)
    a('v_and_b32 v1, 7, v0')
    a('v_lshlrev_b32 v1, 4, v1')
    a('s_lshl_b32 s47, s38, 5')
    a('s_add_u32 s47, s47, s39')
    a('s_lshl_b32 s48, s46, 3')
    a('s_add_u32 s47, s47, s48')
    a('v_lshrrev_b32 v2, 3, v0')
    a('v_add_u32 v2, s47, v2')
    a('v_mul_u32_u24 v3, 0x500, v2')
    a('v_add_u32 v3, v3, v1')
    a('s_waitcnt vmcnt(0)')
    a('s_barrier')
    for i in range(10):
        a('buffer_load_dwordx4 %s, v1, s[56:59], 0 offen offset:%d' % (v(GW + 4 * i, 4), 128 * i))
    for i in range(10):
        a('buffer_load_dwordx4 %s, v3, s[20:23], 0 offen offset:%d' % (v(GX + 4 * i, 4), 128 * i))
    a('v_mov_b32 v9, 0')
    a('v_mov_b32 v10, 0')
    a('s_waitcnt vmcnt(0)')
    for i in range(40):
        a('v_dot2_f32_bf16 %s, %s, %s, %s' % (v(9 + (i & 1)), v(GX + i), v(GW + i), v(9 + (i & 1))))
    a('v_add_f32 v9, v9, v10')
    for pat in ('quad_perm:[1,0,3,2]', 'quad_perm:[2,3,0,1]', 'row_half_mirror'):
        a('v_add_f32_dpp v11, v9, v9 %s row_mask:0xf bank_mask:0xf' % pat)
        a('v_mov_b32 v9, v11')
    a('v_mul_f32 v9, %s, v9' % f32(-math.log2(math.e)))
    a('v_exp_f32 v9, v9')
    a('v_add_f32 v9, 1.0, v9')
    a('v_rcp_f32 v9, v9')
    a('v_lshlrev_b32 v2, 2, v2')
    a('v_mov_b32 v3, %s' % hex(BAD))
    a('v_cmp_eq_u32 vcc, 0, v1')
    a('v_cndmask_b32 v2, v3, v2, vcc')
    a('s_mov_b32 s60, %d' % WS_G)
    a('buffer_store_dword v9, v2, s[28:31], s60 offen' + stp(cfg.stg))
    if cfg.prof: a('s_waitcnt vmcnt(0)')
    stamp_flush(a, 0, 16)
    a('s_endpgm')

def gen_prep(a):
    PITCH = 176
    LW = 32 * PITCH
    a('L1_prep:')
    a('s_sub_u32 s37, s34, 30')
    a('s_lshl_b32 s37, s37, 3')
    a('s_add_u32 s37, s37, s33')
    a('s_waitcnt lgkmcnt(0)')
    srd(a, 24, 8, 640 * 1280)
    srd(a, 40, 14, 1536 * 1280)
    srd(a, 28, 16, WS_SIZE)
    if cfg.touch:
        a('s_cmp_lt_u32 s3, 4')
        a('s_cbranch_scc0 L1_prep_not')
        srd(a, 20, 4, 2048 * 1280)
        ta, tb = touch_setup(a, 's3', 124, 132)
        for x in ta + tb: a(x)
        a('L1_prep_not:')
    U = lambda u: 24 + 20 * u
    GW = 124
    GX = 164
    a('s_mul_i32 s48, s3, 160')
    a('s_mul_i32 s49, s3, %d' % LW)
    a('s_movk_i32 s50, 205')
    a('s_movk_i32 s51, 1280')
    a('s_movk_i32 s52, %d' % PITCH)
    for e in range(5):
        a('v_add_u32 v1, %d, v0' % (64 * e))
        a('v_mul_u32_u24 v2, s50, v1')
        a('v_lshrrev_b32 v2, 11, v2')
        a('v_mul_u32_u24 v3, 10, v2')
        a('v_sub_u32 v1, v1, v3')
        a('v_lshlrev_b32 v1, 4, v1')
        a('v_mad_u32_u24 %s, v2, s52, v1' % v(19 + e))
        a('v_add_u32 %s, s49, %s' % (v(19 + e), v(19 + e)))
        a('v_and_b32 v3, 3, v2')
        a('v_mad_u32_u24 v1, v3, s51, v1')
        a('v_add_u32 %s, s48, v1' % v(4 + e))
        a('v_lshrrev_b32 %s, 3, v2' % v(9 + e))
        a('v_bfe_u32 %s, v2, 2, 1' % v(14 + e))
    def addrs(al, be):
        a('s_movk_i32 s53, %d' % (al * 1280) if al * 1280 < 32768 else 's_mov_b32 s53, %d' % (al * 1280))
        a('s_movk_i32 s54, %d' % (be * 1280))
        for e in range(5):
            a('v_mad_u32_u24 %s, %s, s53, %s' % (v(244 + e), v(9 + e), v(4 + e)))
            a('v_mad_u32_u24 %s, %s, s54, %s' % (v(244 + e), v(14 + e), v(244 + e)))
    addrs(4, 16)
    a('s_mul_i32 s55, s37, %d' % (3 * 32 * 1280))
    for u in range(3):
        for e in range(5):
            a('buffer_load_dwordx4 %s, %s, s[40:43], s55 offen' % (v(U(u) + 4 * e, 4), v(244 + e)))
        if u < 2: a('s_add_u32 s55, s55, %d' % (32 * 1280))
    addrs(4, 20)
    a('s_mul_i32 s55, s37, %d' % (40 * 1280))
    for e in range(5):
        a('buffer_load_dwordx4 %s, %s, s[24:27], s55 offen' % (v(U(3) + 4 * e, 4), v(244 + e)))
    a('s_and_b32 s56, s37, 3')
    a('s_lshr_b32 s61, s37, 2')
    a('s_lshr_b32 s62, s3, 1')
    a('s_cmp_lg_u32 s61, s62')
    a('s_cbranch_scc1 L1_prep_norem')
    addrs(40, 20)
    a('s_mul_i32 s55, s56, %d' % (160 * 1280))
    a('s_add_u32 s55, s55, %d' % (16 * 1280))
    for e in range(5):
        a('buffer_load_dwordx4 %s, %s, s[24:27], s55 offen' % (v(U(4) + 4 * e, 4), v(244 + e)))
    a('L1_prep_norem:')
    a('v_lshrrev_b32 v4, 4, v0')
    a('v_bfe_u32 v5, v0, 2, 2')
    a('v_lshl_add_u32 v4, v4, 3, v5')
    a('v_mul_u32_u24 v4, s52, v4')
    a('v_add_u32 v4, s49, v4')
    a('v_and_b32 v5, 3, v0')
    a('v_lshl_add_u32 v6, v5, 3, v4')
    a('v_lshl_add_u32 v5, v5, 4, v4')
    a('v_lshlrev_b32 v7, 4, v0')
    a('v_add_u32 v8, 4096, v7')
    a('s_mul_i32 s59, s3, %d' % NBSTRIDE)
    a('s_add_u32 s59, s59, %d' % WS_B)
    for u in range(5):
        if u == 4:
            a('s_cmp_lg_u32 s61, s62')
            a('s_cbranch_scc1 L1_prep_done')
        a('s_waitcnt vmcnt(%d)' % (15 if u < 4 else 20))
        for e in range(5):
            a('ds_write_b128 %s, %s' % (v(19 + e), v(U(u) + 4 * e, 4)))
        if u < 3:
            a('s_mul_i32 s60, s37, 3'); a('s_add_u32 s60, s60, %d' % (20 + u))
        elif u == 3:
            a('s_mov_b32 s60, s37')
        else:
            a('s_add_u32 s60, s56, 16')
        a('s_mul_i32 s60, s60, 5120')
        a('s_add_u32 s60, s60, s59')
        a('s_waitcnt lgkmcnt(0)')
        for nt in range(5):
            for h in range(2):
                if nt < 4: reg, off = 5, 64 * (nt >> 1) + 8 * (nt & 1)
                else: reg, off = 6, 128
                a('ds_read_b64_tr_b16 %s, %s offset:%d' % (v(U(u) + 4 * nt + 2 * h, 2), v(reg), off + h * 4 * PITCH))
        a('s_waitcnt lgkmcnt(0)')
        for nt in range(5):
            a('buffer_store_dwordx4 %s, %s, s[28:31], s60 offen offset:%d' % (v(U(u) + 4 * nt, 4), v(7 if nt < 4 else 8), (nt & 3) * 1024) + stp())
    a('L1_prep_done:')
    if cfg.prof: a('s_waitcnt vmcnt(0)')
    stamp_flush(a, 0, 16, 3)
    a('s_endpgm')

def gen_k2(a):
    D = cfg.k2depth
    RING = 16
    AC = RING + 36 * D
    accr = lambda m, nt: AC + (m * 5 + nt) * 4
    Bq = lambda q, nt: RING + 36 * q + 4 * nt
    Aq = lambda q, m: RING + 36 * q + 20 + 4 * m
    a('.globl %s' % K2); a('.p2align 8'); a('.type %s,@function' % K2)
    a('%s:' % K2)
    a('s_cmp_ge_u32 s2, 256')
    a('s_cbranch_scc1 L2_end')
    stamp(a, 0)
    a('s_load_dwordx2 s[4:5], s[0:1], 72')
    a('s_load_dwordx2 s[6:7], s[0:1], 56')
    a('v_lshrrev_b32 v1, 6, v0')
    a('v_and_b32 v0, 63, v0')
    a('v_readfirstlane_b32 s3, v1')
    if cfg.scr & 2:
        a('s_lshr_b32 s16, s2, 5'); a('s_and_b32 s17, s2, 31')
    else:
        a('s_and_b32 s16, s2, 7')
        a('s_lshr_b32 s17, s2, 3')
    a('s_and_b32 s18, s16, 1')
    a('s_lshl_b32 s18, s18, 2')
    a('s_and_b32 s19, s17, 3')
    a('s_add_u32 s18, s18, s19')
    a('s_lshr_b32 s19, s16, 1')
    a('s_lshl_b32 s19, s19, 3')
    a('s_lshr_b32 s20, s17, 2')
    a('s_add_u32 s19, s19, s20')
    a('s_lshl_b32 s20, s3, 4')
    a('s_add_u32 s20, s20, 4')
    a('s_cmp_eq_u32 s3, 0')
    a('s_cselect_b32 s20, 0, s20')
    if cfg.k2prio:
        a('s_cbranch_scc0 L2_noprio')
        a('s_setprio 3')
        a('L2_noprio:')
    a('s_cselect_b32 s21, %d, %d' % (20 // D - 1, 16 // D - 1))
    a('s_mul_i32 s22, s19, %d' % RSTRIDE)
    a('s_lshl_b32 s23, s20, 12')
    a('s_add_u32 s22, s22, s23')
    a('s_mul_i32 s23, s18, %d' % NBSTRIDE)
    a('s_mul_i32 s24, s20, 5120')
    a('s_add_u32 s23, s23, s24')
    a('s_add_u32 s23, s23, %d' % WS_B)
    a('v_lshlrev_b32 v2, 4, v0')
    a('v_add_u32 v3, 4096, v2')
    for m in range(4):
        a('s_add_u32 s24, s3, %d' % m)
        a('s_and_b32 s24, s24, 3')
        a('s_lshl_b32 s25, s24, 10')
        a('v_add_u32 %s, s25, v2' % v(4 + m))
        if m:
            a('s_mul_i32 s25, s24, 15360')
            a('s_add_u32 s25, s25, %d' % ((m - 1) * 5120))
            a('v_add_u32 %s, s25, v2' % v(8 + m))
    a('s_lshl_b32 s24, s19, 6')
    a('s_lshr_b32 s25, s3, 1')
    a('s_lshl_b32 s25, s25, 5')
    a('s_add_u32 s24, s24, s25')
    a('s_and_b32 s25, s3, 1')
    a('s_add_u32 s24, s24, s25')
    a('v_and_b32 v12, 15, v0')
    a('v_lshl_add_u32 v12, v12, 1, s24')
    a('v_lshlrev_b32 v13, 2, v12')
    a('s_mov_b32 s26, %d' % WS_G)
    a('s_waitcnt lgkmcnt(0)')
    srd(a, 8, 4, WS_SIZE)
    def ldB(q, nt): return 'buffer_load_dwordx4 %s, %s, s[8:11], s23 offen offset:%d' % (v(Bq(q, nt), 4), v(2 if nt < 4 else 3), (nt & 3) * 1024)
    def ldA(q, m): return 'buffer_load_dwordx4 %s, %s, s[8:11], s22 offen' % (v(Aq(q, m), 4), v(4 + m))
    adv = ['s_add_u32 s22, s22, 4096', 's_add_u32 s23, s23, 5120']
    a('buffer_load_dword v14, v13, s[8:11], s26 offen')
    for q in range(D):
        for nt in range(5): a(ldB(q, nt))
        for m in range(4): a(ldA(q, m))
        for x in adv: a(x)
    srd(a, 12, 6, 2048 * 1280)
    for i in range(80): a('v_mov_b32 %s, 0' % v(AC + i))
    def step(q, load, cnt):
        a('s_waitcnt vmcnt(%d)' % cnt)
        for nt in range(5):
            for m in range(4):
                A = v(accr(m, nt), 4)
                a('v_mfma_f32_16x16x32_bf16 %s, %s, %s, %s' % (A, v(Bq(q, nt), 4), v(Aq(q, m), 4), A))
                if load and nt == 4: a(ldA(q, m)) if False else None
            if load: a(ldB(q, nt))
        if load:
            for m in range(4): a(ldA(q, m))
            for x in adv: a(x)
    if cfg.prof: a('s_waitcnt vmcnt(%d)' % (9 * (D - 1)))
    stamp(a, 1)
    a('L2_loop:')
    for q in range(D): step(q, True, 9 * (D - 1))
    a('s_sub_u32 s21, s21, 1')
    a('s_cmp_lg_u32 s21, 0')
    a('s_cbranch_scc1 L2_loop')
    for q in range(D): step(q, False, 9 * (D - 1 - q))
    stamp(a, 2)
    for m in range(1, 4):
        for nt in range(5):
            a('ds_write_b128 %s, %s offset:%d' % (v(8 + m), v(accr(m, nt), 4), nt * 1024))
    a('v_sub_f32 v15, 1.0, v14')
    for m in range(4):
        a('s_cmp_eq_u32 s3, %d' % m)
        a('s_cselect_b64 vcc, -1, 0')
        a('v_cndmask_b32 %s, v15, v14, vcc' % v(16 + 2 * m))
    a('s_mul_i32 s25, s3, 15360')
    a('v_add_u32 v8, s25, v2')
    a('s_mul_i32 s25, s18, 160')
    a('v_mul_u32_u24 v12, 0x500, v12')
    a('v_lshrrev_b32 v13, 4, v0')
    a('v_lshl_add_u32 v9, v13, 3, v12')
    a('v_lshl_add_u32 v12, v13, 4, v12')
    for i in range(10):
        A = AC + 2 * i
        a('v_pk_mul_f32 %s, %s, v[16:17] op_sel_hi:[1,0]' % (v(A, 2), v(A, 2)))
    a('s_waitcnt lgkmcnt(0)')
    a('s_barrier')
    for m in range(1, 4):
        for nt in range(5):
            a('ds_read_b128 %s, v8 offset:%d' % (v(accr(m, nt), 4), ((m - 1) * 5 + nt) * 1024))
    for m in range(1, 4):
        a('s_waitcnt lgkmcnt(%d)' % (5 * (3 - m)))
        for i in range(10):
            A = AC + 2 * i
            a('v_pk_fma_f32 %s, %s, %s, %s op_sel_hi:[1,0,1]' % (v(A, 2), v(A + 20 * m, 2), v(16 + 2 * m, 2), v(A, 2)))
    for i in range(10):
        a('v_cvt_pk_bf16_f32 %s, %s, %s' % (v(24 + i), v(AC + 2 * i), v(AC + 2 * i + 1)))
    a('buffer_store_dwordx4 v[24:27], v12, s[12:15], s25 offen' + stp(cfg.k2st))
    a('buffer_store_dwordx4 v[28:31], v12, s[12:15], s25 offen offset:64' + stp(cfg.k2st))
    a('buffer_store_dwordx2 v[32:33], v9, s[12:15], s25 offen offset:128' + stp(cfg.k2st))
    if cfg.prof: a('s_waitcnt vmcnt(0)')
    stamp_flush(a, 1, 4)
    a('L2_end:')
    a('s_endpgm')
    return AC + 80

def desc(name, nv):
    nv = (nv + 7) // 8 * 8
    return '''.p2align 6
.amdhsa_kernel %s
  .amdhsa_next_free_vgpr %d
  .amdhsa_next_free_sgpr 102
  .amdhsa_accum_offset %d
  .amdhsa_group_segment_fixed_size 0
  .amdhsa_kernarg_size 80
  .amdhsa_user_sgpr_count 2
  .amdhsa_user_sgpr_kernarg_segment_ptr 1
  .amdhsa_system_sgpr_workgroup_id_x 1
.end_amdhsa_kernel
''' % (name, nv, nv)

def main():
    for arg in sys.argv[2:]:
        k, val = arg.split('='); setattr(cfg, k, int(val))
    a = Asm()
    gen_k1(a)
    nv2 = gen_k2(a)
    body = a.finish()
    hdr = '''; gated mix of sliding-window dilated attention and ReLU FFN, two launches.
; launch 1: qkv projection + attention, FFN up projection + relu, weight re-layout + gate
; launch 2: output projections (wo, w2) and gated mix
; @launch kernel=%s grid=(256,1,1) block=(512,1,1) lds=%d
; @launch kernel=%s grid=(256,1,1) block=(256,1,1) lds=%d
.amdgcn_target "amdgcn-amd-amdhsa--gfx950"
.text
''' % (K1, 3 * SLOT, K2, 61440)
    out = hdr + body + '.section .rodata,"a"\n' + desc(K1, 256) + desc(K2, nv2)
    open(sys.argv[1], 'w').write(out)
    print('nops inserted:', a.nops, 'bytes', len(out))

main()
```

```python
import sys, math, struct
from asmlib import Asm, v, s

NAME = 'gated_mix__sliding_local_dilated__dense_activation_relu__prompt'
K1 = NAME + '_kernel'
K2 = 'gm_stage2_kernel'

WS_A = 0
WS_B = 0x900000
WS_G = 0xC00000
WS_SIZE = 0xC02000
RSTRIDE = 68 * 4096
NBSTRIDE = 68 * 5120
SLOT = 50176
XOFF = 33792
BAD = 0x40000000

class Cfg:
    ra = 1
    rb = 5
    rc = 3
    rd = 5
    prof = 0
    k2depth = 4
    k2prio = 1
    pw = 35
    scr = 0
    xcc = 0
    stm = 0
    str = 0
    stg = 0
    sel = -1
    sel0 = 0
    tpos = 100022222
    pf = 0
    pf0 = 1
    pf1 = 0
    pfo = 1
    pfx = 0
    rx = 0
    rmask = 15
    rsh = 0
    touch = 0
    lp = 0
    k2st = 0
    stpol = 1
cfg = Cfg()

def stp(p=None):
    return ['', ' sc1', ' sc0 sc1', ' nt', ' sc1 nt', ' sc0 sc1 nt'][cfg.stpol if p is None else p]

def f32(x):
    return '0x%08x' % struct.unpack('<I', struct.pack('<f', x))[0]

def srd(a, d, lo, size):
    a('s_mov_b32 %s, %s' % (s(d), s(lo)))
    a('s_mov_b32 %s, %s' % (s(d + 1), s(lo + 1)))
    a('s_mov_b32 %s, %d' % (s(d + 2), size))
    a('s_mov_b32 %s, 0x00020000' % s(d + 3))

PROF = 0xD00000
def stamp(a, i):
    if cfg.prof:
        a('s_memrealtime %s' % s(80 + 2 * i, 2))
        a('s_memtime %s' % s(72 + 2 * i, 2))
def stamp_flush(a, kern, wsreg, role=2):
    if not cfg.prof: return
    a('s_memrealtime s[86:87]')
    a('s_memtime s[78:79]')
    if cfg.prof == 3 and kern == 1:
        a('s_or_b32 s92, s2, s3')
        a('s_cmp_lg_u32 s92, 0')
        a('s_cbranch_scc1 L2_end')
        a('s_load_dwordx2 s[88:89], s[0:1], 64')
        a('s_mov_b32 s90, 256'); a('s_mov_b32 s91, 0x00020000')
        a('s_mov_b32 s92, s4'); a('s_mov_b32 s93, s5'); a('s_mov_b32 s94, 0x1000000'); a('s_mov_b32 s95, 0x00020000')
        a('s_mov_b32 s96, %d' % PROF)
        a('s_waitcnt lgkmcnt(0)')
        for j in range(4):
            a('v_add_u32 v1, %d, v0' % (64 * j))
            a('v_lshlrev_b32 v2, 9, v1')
            a('buffer_load_dwordx4 v[4:7], v2, s[92:95], s96 offen')
            a('buffer_load_dwordx4 v[8:11], v2, s[92:95], s96 offen offset:16')
            a('v_mov_b32 v3, 0')
            a('v_cmp_le_u32 vcc, 144, v1')
            a('v_cndmask_b32 v3, v3, 16, vcc')
            a('v_cmp_le_u32 vcc, 240, v1')
            a('v_cndmask_b32 v3, v3, 48, vcc')
            a('s_waitcnt vmcnt(0)')
            a('v_not_b32 v4, v4')
            for i in range(4):
                a('buffer_atomic_umax %s, v3, s[88:91], 0 offen offset:%d' % (v(4 + 2 * i), 4 * i))
            a('s_waitcnt vmcnt(0)')
        a('s_mov_b64 exec, 1')
        a('v_mov_b32 v0, 0')
        a('s_not_b32 s80, s80')
        for i in range(4):
            a('v_mov_b32 %s, %s' % (v(4 + i), s(80 + 2 * i)))
            a('buffer_atomic_umax %s, v0, s[88:91], 0 offen offset:%d' % (v(4 + i), role * 16 + 4 * i))
        if cfg.sel >= 0:
            a('s_waitcnt vmcnt(0)')
            a('v_mov_b32 v8, 0'); a('v_mov_b32 v9, 0')
            a('buffer_atomic_umax v8, v0, s[88:91], 0 offen offset:%d sc0' % (4 * cfg.sel0))
            a('buffer_atomic_umax v9, v0, s[88:91], 0 offen offset:%d sc0' % (4 * cfg.sel))
            a('s_waitcnt vmcnt(0)')
            a('v_readfirstlane_b32 s92, v8'); a('v_readfirstlane_b32 s93, v9')
            if cfg.sel0 % 4 == 0: a('s_not_b32 s92, s92')
            if cfg.sel % 4 == 0: a('s_not_b32 s93, s93')
            a('s_sub_u32 s92, s93, s92')
            a('s_min_u32 s92, s92, 5000')
            a('s_lshl_b32 s92, s92, 2')
            a('s_memrealtime s[94:95]')
            a('s_waitcnt lgkmcnt(0)')
            a('L2_spin:')
            a('s_memrealtime s[96:97]')
            a('s_waitcnt lgkmcnt(0)')
            a('s_sub_u32 s96, s96, s94')
            a('s_cmp_lt_u32 s96, s92')
            a('s_cbranch_scc1 L2_spin')
        return
    if cfg.prof == 2:
        a('s_load_dwordx2 s[88:89], s[0:1], 64')
        a('s_mov_b32 s90, 256'); a('s_mov_b32 s91, 0x00020000')
        a('s_waitcnt lgkmcnt(0)')
        a('s_mov_b64 exec, 1')
        a('v_mov_b32 v0, 0')
        a('s_not_b32 s80, s80')
        for i in range(4):
            a('v_mov_b32 %s, %s' % (v(4 + i), s(80 + 2 * i)))
            a('buffer_atomic_umax %s, v0, s[88:91], 0 offen offset:%d' % (v(4 + i), role * 16 + 4 * i))
        return
    if cfg.xcc:
        a('s_waitcnt lgkmcnt(0)')
        a('s_getreg_b32 s80, hwreg(HW_REG_XCC_ID, 0, 4)')
        a('s_sub_u32 s80, s80, s2'); a('s_and_b32 s80, s80, 7'); a('s_mul_i32 s80, s80, 100'); a('s_mov_b32 s82, s80')
    a('s_mov_b32 s88, %s' % s(wsreg)); a('s_mov_b32 s89, %s' % s(wsreg + 1))
    a('s_mov_b32 s90, 0x1000000'); a('s_mov_b32 s91, 0x00020000')
    a('s_lshl_b32 s92, s2, 3'); a('s_add_u32 s92, s92, s3'); a('s_lshl_b32 s92, s92, 6')
    a('s_add_u32 s92, s92, %d' % (PROF + kern * 256 * 8 * 64))
    a('s_waitcnt lgkmcnt(0)')
    a('s_mov_b64 exec, 1')
    a('v_mov_b32 v0, 0')
    for i in range(8): a('v_mov_b32 %s, %s' % (v(4 + i), s(80 + i)))
    a('buffer_store_dwordx4 v[4:7], v0, s[88:91], s92 offen')
    a('buffer_store_dwordx4 v[8:11], v0, s[88:91], s92 offen offset:16')
    for i in range(8): a('v_mov_b32 %s, %s' % (v(12 + i), s(72 + i)))
    a('buffer_store_dwordx4 v[12:15], v0, s[88:91], s92 offen offset:32')
    a('buffer_store_dwordx4 v[16:19], v0, s[88:91], s92 offen offset:48')

def interleave(a, mf, rd, first=1, per=1):
    rd = list(rd)
    for i, m in enumerate(mf):
        a(m)
        for _ in range(per):
            if rd: a(rd.pop(0))
    for x in rd: a(x)

SETS = (16, 64)
ACC = 112
def acc(t, n): return ACC + (t * 8 + n) * 4
VXA0, VXA1, VWM, VWQ, VWV = 4, 5, 6, 7, 8

def k1_reads(att, st, ks):
    base = SETS[st]
    xa = VXA1 if ks else VXA0
    r = []
    xs = ['ds_read_b128 %s, %s offset:%d' % (v(base + 4 * t, 4), v(xa), t * 2048) for t in range(4)]
    ws = []
    for n in range(8):
        if att:
            reg, off = [(VWM, 0), (VWM, 40), (VWM, 160), (VWM, 200), (VWQ, 0), (VWM, 320), (VWM, 360), (VWV, 0)][n]
        else:
            reg, off = VWM, 32 * n
        for h in range(2):
            ws.append('ds_read_b64_tr_b16 %s, %s offset:%d' % (v(base + 16 + 4 * n + 2 * h, 2), v(reg), off + ks * 16896 + h * 512))
    r = ws[:2] + xs + ws[2:]
    return r

def k1_mfmas(att, st):
    base = SETS[st]
    m = []
    for n in range(8):
        for t in range(4):
            W = v(base + 16 + 4 * n, 4); X = v(base + 4 * t, 4); A = v(acc(t, n), 4)
            if att and n >= 5:
                m.append('v_mfma_f32_16x16x32_bf16 %s, %s, %s, %s' % (A, X, W, A))
            else:
                m.append('v_mfma_f32_16x16x32_bf16 %s, %s, %s, %s' % (A, W, X, A))
    return m

def k1_mainloop(a, att, tag):
    a('s_barrier')
    stamp(a, 1)
    for x in k1_reads(att, 0, 0): a(x)
    a('s_mov_b32 s48, 0')
    a('s_mov_b32 s49, 0')
    a('s_waitcnt lgkmcnt(0)')
    a('L_%s_loop:' % tag)
    pre = ['s_add_u32 s49, s49, 1', 's_cmp_eq_u32 s49, 3', 's_cselect_b32 s50, s51, s52', 's_cselect_b32 s49, 0, s49']
    adv = ['v_add_u32 %s, s50, %s' % (v(r), v(r)) for r in ([VXA0, VXA1, VWM, VWQ, VWV] if att else [VXA0, VXA1, VWM])]
    interleave(a, k1_mfmas(att, 0), k1_reads(att, 1, 1) + pre + adv)
    a('s_waitcnt lgkmcnt(0)')
    a('s_barrier')
    interleave(a, k1_mfmas(att, 1), k1_reads(att, 0, 0) + ['s_add_u32 s48, s48, 1', 's_cmp_lt_u32 s48, 10'])
    a('s_waitcnt lgkmcnt(0)')
    a('s_cbranch_scc1 L_%s_loop' % tag)
    stamp(a, 2)

def tok_addr(a, dst, vj, tmp, vloc):
    a('v_lshrrev_b32 %s, 5, %s' % (v(tmp), v(vj)))
    a('v_mul_u32_u24 %s, s54, %s' % (v(dst), v(tmp)))
    a('v_and_b32 %s, 16, %s' % (v(tmp), v(vj)))
    a('v_lshl_add_u32 %s, %s, 7, %s' % (v(dst), v(tmp), v(dst)))
    a('v_and_b32 %s, 15, %s' % (v(tmp), v(vj)))
    a('v_lshl_add_u32 %s, %s, 4, %s' % (v(dst), v(tmp), v(dst)))
    a('v_cmp_gt_u32 vcc, 0x400, %s' % v(vj))
    a('v_cmp_le_u32 s[56:57], s53, %s' % v(vloc))
    a('s_and_b64 vcc, vcc, s[56:57]')
    a('v_mov_b32 %s, %s' % (v(tmp), hex(BAD)))
    a('v_cndmask_b32 %s, %s, %s, vcc' % (v(dst), v(tmp), v(dst)))

def touch_setup(a, wreg, va, vd):
    srd(a, 56, 6, 640 * 3840)
    srd(a, 60, 12, 640 * 3072)
    a('s_lshl_b32 s64, s33, 7')
    a('s_lshl_b32 s65, s34, 2')
    a('s_add_u32 s64, s64, s65')
    a('s_add_u32 s64, s64, %s' % wreg)
    if cfg.touch >= 3:
        sh = 7 if cfg.touch in (3, 5) else 6
        per = 128 >> sh
        a('v_lshlrev_b32 %s, %d, v0' % (v(va), sh))
        a('v_mov_b32 %s, %s' % (v(va + 5), hex(BAD)))
        for i, (nl, base) in enumerate(((20, 0), (17, 64 * 3840), (14, 64 * 3072))):
            a('s_mul_i32 s65, s64, %d' % (nl * 128))
            a('s_add_u32 s65, s65, %d' % base)
            a('v_add_u32 %s, s65, %s' % (v(va + 1 + i), v(va)))
            a('v_cmp_gt_u32 vcc, %d, v0' % (nl * per))
            a('v_cndmask_b32 %s, %s, %s, vcc' % (v(va + 1 + i), v(va + 5), v(va + 1 + i)))
        L = lambda i, sr: 'buffer_load_dword %s, %s, %s, 0 offen' % (v(vd + i), v(va + 1 + i), sr)
        return [L(0, 's[20:23]'), L(1, 's[56:59]'), L(2, 's[60:63]')], []
    a('s_lshl_b32 s65, s64, 10')
    a('v_lshl_add_u32 %s, v0, 4, s65' % v(va))
    a('v_add_u32 %s, %d, %s' % (v(va + 1), 64 * 3840 + (2 << 20), v(va)))
    a('v_add_u32 %s, %d, %s' % (v(va + 2), 64 * 3072 + (1 << 20), v(va)))
    a('s_mul_i32 s65, s64, 2560')
    a('v_lshrrev_b32 %s, 5, v0' % v(va + 3))
    a('v_mul_u32_u24 %s, 0x500, %s' % (v(va + 3), v(va + 3)))
    a('v_and_b32 %s, 31, v0' % v(va + 4))
    a('v_lshl_add_u32 %s, %s, 4, %s' % (v(va + 3), v(va + 4), v(va + 3)))
    a('v_lshrrev_b32 %s, 3, v0' % v(va + 4))
    a('v_mul_u32_u24 %s, 0x500, %s' % (v(va + 4), v(va + 4)))
    a('v_and_b32 %s, 7, v0' % v(va + 5))
    a('v_lshl_add_u32 %s, %s, 4, %s' % (v(va + 4), v(va + 5), v(va + 4)))
    a('v_mov_b32 %s, %s' % (v(va + 5), hex(BAD)))
    a('v_cmp_gt_u32 vcc, 16, v0')
    a('v_cndmask_b32 %s, %s, %s, vcc' % (v(va + 4), v(va + 5), v(va + 4)))
    a('s_mov_b32 s66, %d' % (64 * 3840))
    a('s_mov_b32 s67, %d' % (64 * 3072))
    a('s_mov_b32 s68, %d' % (64 * 3840 + (1 << 20)))
    L = lambda i, r, sr, so, off: 'buffer_load_dwordx4 %s, %s, %s, %s offen offset:%d' % (v(vd + 4 * i, 4), v(r), sr, so, off)
    ta = [L(0, va + 3, 's[20:23]', 's65', 128), L(1, va, 's[56:59]', 's66', 0), L(2, va, 's[60:63]', 's67', 0)]
    tb = [L(3, va + 3, 's[20:23]', 's65', 640), L(4, va, 's[56:59]', 's68', 0), L(5, va + 2, 's[60:63]', '0', 0),
          L(6, va + 4, 's[20:23]', 's65', 1152), L(7, va + 1, 's[56:59]', '0', 0)]
    return ta, tb

def gen_k1(a):
    a('.globl %s' % K1); a('.p2align 8'); a('.type %s,@function' % K1)
    a('%s:' % K1)
    a('s_cmp_ge_u32 s2, 256')
    a('s_cbranch_scc1 L1_end')
    stamp(a, 0); stamp(a, 1); stamp(a, 2)
    a('s_load_dwordx4 s[4:7], s[0:1], 0')
    a('s_load_dwordx2 s[8:9], s[0:1], 16')
    a('s_load_dwordx4 s[12:15], s[0:1], 32')
    a('s_load_dwordx2 s[10:11], s[0:1], 48')
    a('s_load_dwordx2 s[16:17], s[0:1], 72')
    a('v_lshrrev_b32 v1, 6, v0')
    a('v_and_b32 v0, 63, v0')
    a('v_readfirstlane_b32 s3, v1')
    if cfg.scr & 1:
        a('s_lshr_b32 s33, s2, 5'); a('s_and_b32 s34, s2, 31')
    else:
        a('s_and_b32 s33, s2, 7')
        a('s_lshr_b32 s34, s2, 3')
    a('s_lshr_b32 s35, s33, 2')
    a('s_and_b32 s36, s33, 3')
    a('s_cmp_ge_u32 s34, 30')
    a('s_cbranch_scc1 L1_prep')
    a('s_cmp_ge_u32 s34, 18')
    a('s_cbranch_scc1 L1_ffn_setup')
    a('s_and_b32 s38, s34, 1')
    a('s_lshl_b32 s46, s36, 1')
    a('s_add_u32 s38, s38, s46')
    a('s_mul_i32 s37, s35, 9')
    a('s_lshr_b32 s46, s34, 1')
    a('s_add_u32 s37, s37, s46')
    a('s_and_b32 s45, s46, %d' % cfg.rmask)
    a('s_mul_i32 s45, s45, %d' % cfg.ra)
    if cfg.rsh: a('s_lshr_b32 s45, s45, %d' % cfg.rsh)
    a('s_and_b32 s47, s38, 1')
    a('s_mul_i32 s47, s47, %d' % cfg.rb)
    a('s_add_u32 s45, s45, s47')
    a('s_mul_i32 s39, s37, 114')
    a('s_movk_i32 s40, 3840')
    a('s_movk_i32 s41, 29')
    a('s_movk_i32 s42, 1120')
    a('s_mul_i32 s43, s38, 160')
    a('s_mov_b32 s44, 0')
    a('s_waitcnt lgkmcnt(0)')
    srd(a, 24, 6, 640 * 3840)
    a('s_branch L1_common')
    a('L1_ffn_setup:')
    a('s_mul_i32 s46, s36, 12')
    a('s_add_u32 s46, s46, s34')
    a('s_sub_u32 s46, s46, 18')
    a('s_lshr_b32 s38, s46, 3')
    a('s_and_b32 s46, s46, 7')
    a('s_lshl_b32 s37, s35, 3')
    a('s_add_u32 s37, s37, s46')
    a('s_and_b32 s45, s46, %d' % cfg.rmask)
    a('s_mul_i32 s45, s45, %d' % cfg.ra)
    if cfg.rsh: a('s_lshr_b32 s45, s45, %d' % cfg.rsh)
    a('s_and_b32 s47, s38, 1')
    a('s_mul_i32 s47, s47, %d' % cfg.rd)
    a('s_add_u32 s45, s45, s47')
    a('s_add_u32 s45, s45, %d' % cfg.rc)
    a('s_lshl_b32 s39, s37, 7')
    a('s_movk_i32 s40, 3072')
    a('s_movk_i32 s41, 31')
    a('s_mov_b32 s42, 0')
    a('s_lshl_b32 s43, s38, 9')
    a('s_mov_b32 s44, 1')
    a('s_waitcnt lgkmcnt(0)')
    srd(a, 24, 12, 640 * 3072)
    a('L1_common:')
    srd(a, 20, 4, 2048 * 1280)
    a('s_cmp_lt_u32 s3, 4')
    a('s_cbranch_scc1 L1_consumer')
    a('s_setprio 3')
    a('s_sub_u32 s46, s3, 4')
    a('v_lshrrev_b32 v2, 3, v0')
    a('v_lshrrev_b32 v3, 4, v0')
    a('v_and_b32 v4, 7, v0')
    a('s_lshr_b32 s47, s46, 1')
    a('s_add_u32 s47, s47, s39')
    a('s_and_b32 s48, s46, 1')
    a('s_lshl_b32 s48, s48, 6')
    a('s_add_u32 s47, s47, s48')
    a('v_lshl_add_u32 v5, v2, 1, s47')
    a('v_mul_u32_u24 v5, 0x500, v5')
    a('v_xor_b32 v4, v4, v3')
    a('v_lshl_add_u32 v16, v4, 4, v5')
    a('v_xor_b32 v4, 4, v4')
    a('v_lshl_add_u32 v17, v4, 4, v5')
    a('v_add_u32 v17, %d, v17' % (16 * 1280))
    a('v_add_u32 v18, %d, v16' % (32 * 1280))
    a('v_add_u32 v19, %d, v17' % (32 * 1280))
    a('v_and_b32 v1, 31, v0')
    a('v_min_u32 v1, s41, v1')
    a('v_mul_u32_u24 v2, 13, v1')
    a('v_lshrrev_b32 v2, 7, v2')
    a('v_lshlrev_b32 v1, 4, v1')
    a('v_mad_u32_u24 v1, v2, s42, v1')
    a('v_add_u32 v1, s43, v1')
    a('v_lshrrev_b32 v2, 5, v0')
    a('v_lshlrev_b32 v2, 2, v2')
    a('s_lshl_b32 s47, s46, 4')
    a('v_add_u32 v2, s47, v2')
    a('v_mad_u32_u24 v8, v2, s40, v1')
    a('s_lshl_b32 s47, s40, 3')
    a('v_add_u32 v12, s47, v8')
    for e in range(1, 4):
        a('v_add_u32 %s, s40, %s' % (v(8 + e), v(7 + e)))
        a('v_add_u32 %s, s40, %s' % (v(12 + e), v(11 + e)))
    if cfg.rx:
        a('s_mul_i32 s47, s33, %d' % cfg.rx)
        a('s_lshr_b32 s47, s47, 2')
        a('s_add_u32 s45, s45, s47')
    a('s_mul_i32 s47, s45, 205')
    a('s_lshr_b32 s47, s47, 11')
    a('s_mul_i32 s47, s47, 10')
    a('s_sub_u32 s45, s45, s47')
    a('s_mov_b32 s48, 0')
    a('s_mov_b32 s49, 0')
    a('s_mul_i32 s50, s46, %d' % (8 * 1056))
    a('s_lshl_b32 s51, s46, 12')
    a('s_add_u32 s51, s51, %d' % XOFF)
    a('s_lshl_b32 s53, s40, 6')
    def ld_stage(first=False):
        a('s_mul_i32 s52, s45, s53')
        a('s_lshl_b32 s54, s45, 7')
        a('s_add_u32 m0, s49, s51')
        for e in range(4):
            if e: a('s_add_u32 m0, m0, 1024')
            a('buffer_load_dwordx4 %s, s[20:23], s54 offen lds' % v(16 + e))
        a('s_add_u32 m0, s49, s50')
        for e in range(8):
            if e: a('s_add_u32 m0, m0, 1056')
            a('buffer_load_dwordx4 %s, s[24:27], s52 offen lds' % v(8 + e))
        a('s_add_u32 s45, s45, 1')
        a('s_cmp_eq_u32 s45, 10')
        a('s_cselect_b32 s45, 0, s45')
        a('s_add_u32 s49, s49, %d' % SLOT)
        a('s_cmp_eq_u32 s49, %d' % (3 * SLOT))
        a('s_cselect_b32 s49, 0, s49')
    ld_stage()
    tl = []
    if cfg.touch:
        ta, tb = touch_setup(a, 's46', 32, 40)
        tl = list(zip([int(c) for c in str(cfg.tpos)[1:]], ta + tb))
    seq = []
    for j in range(10):
        if j >= 2: seq.append(('w', j - 2))
        seq.append(('d', j))
        seq += [('t', x) for p, x in tl if p == j]
    seq.append(('w', 8))
    last = max([p for p, x in tl] + [1]) + 3
    for i, x in enumerate(seq):
        if i == 0: continue
        if x[0] == 'd':
            ld_stage()
            if x[1] == last: break
        elif x[0] == 't': a(x[1])
        else:
            pos = seq.index(('d', x[1]))
            cnt = sum(12 if y[0] == 'd' else 1 if y[0] == 't' else 0 for y in seq[pos + 1:i])
            if x[1] + 2 == last:
                assert cnt == 12
                a('s_mov_b32 s48, %d' % last)
                a('s_waitcnt vmcnt(12)')
                a('L1_ld_loop:')
            else:
                a('s_waitcnt vmcnt(%d)' % cnt)
            if cfg.lp and x[1] == 0: stamp(a, 1)
            if cfg.lp and x[1] == 1: stamp(a, 2)
            a('s_barrier')
    a('s_add_u32 s48, s48, 1')
    a('s_cmp_lt_u32 s48, 10')
    a('s_waitcnt vmcnt(12)')
    a('s_cbranch_scc1 L1_ld_loop')
    if not cfg.lp: stamp(a, 1)
    a('s_cmp_eq_u32 s44, 1')
    a('s_cselect_b32 s47, s38, 4')
    a('s_cmp_lt_u32 s47, 4')
    a('s_barrier')
    a('s_cbranch_scc1 L1_ld_gate')
    a('s_waitcnt vmcnt(0)')
    a('s_barrier')
    stamp_flush(a, 0, 16)
    a('s_endpgm')
    gen_gate(a)
    a('L1_consumer:')
    srd(a, 28, 16, WS_SIZE)
    a('s_and_b32 s46, s3, 1')
    a('s_lshr_b32 s47, s3, 1')
    a('v_lshrrev_b32 v1, 4, v0')
    a('v_and_b32 v2, 15, v0')
    a('v_bfe_u32 v3, v2, 1, 3')
    a('v_xor_b32 v3, v3, v1')
    a('v_lshlrev_b32 v3, 4, v3')
    a('v_lshl_add_u32 v3, v2, 7, v3')
    a('s_lshl_b32 s48, s46, 13')
    a('s_add_u32 s48, s48, %d' % XOFF)
    a('v_add_u32 %s, s48, v3' % v(VXA0))
    a('v_xor_b32 %s, 64, %s' % (v(VXA1), v(VXA0)))
    a('v_lshrrev_b32 v3, 2, v0')
    a('v_mul_u32_u24 v3, 0x420, v3')
    a('v_and_b32 v15, 3, v0')
    a('v_lshl_add_u32 %s, v15, 3, v3' % v(VWM))
    a('s_mov_b32 s51, %d' % (-2 * SLOT & 0xffffffff))
    a('s_mov_b32 s52, %d' % SLOT)
    for i in range(128): a('v_mov_b32 %s, 0' % v(ACC + i))
    a('s_cmp_eq_u32 s44, 1')
    a('s_cbranch_scc1 L1_ffn')
    a('s_mul_i32 s48, s47, 80')
    a('v_add_u32 %s, s48, %s' % (v(VWM), v(VWM)))
    a('v_add_u32 v3, s48, v3')
    a('v_and_b32 v16, 1, v15')
    a('v_mad_u32_u24 v3, v16, 40, v3')
    a('v_add_u32 %s, 352, v3' % v(VWV))
    a('v_lshrrev_b32 v16, 1, v15')
    a('v_mul_u32_u24 v16, 160, v16')
    a('v_add3_u32 %s, v3, v16, 32' % v(VWQ))
    a('v_lshlrev_b32 v16, 2, v1')
    a('v_sub_u32 v16, v2, v16')
    a('v_mov_b32 v17, %s' % f32(-1e30))
    for r in range(4):
        a('v_subrev_u32 v18, %d, v16' % r)
        a('v_cmp_gt_u32 vcc, 8, v18')
        a('v_cndmask_b32 %s, v17, 0, vcc' % v(240 + r))
        a('v_cmp_gt_i32 vcc, -8, v18')
        a('v_cndmask_b32 %s, v17, 0, vcc' % v(244 + r))
        a('v_cmp_le_i32 vcc, 0, v18')
        a('v_cndmask_b32 %s, 0, -1, vcc' % v(20 + r))
        a('v_mov_b32 %s, 0x3f803f80' % v(250 + r))
    a('v_mov_b32 v17, 0xffff')
    a('v_bfi_b32 v248, v17, v20, v21')
    a('v_bfi_b32 v249, v17, v22, v23')
    a('s_mul_i32 s55, s37, 57')
    a('s_cmp_eq_u32 s37, 0')
    a('s_cselect_b32 s53, 0, 7')
    a('s_mov_b32 s54, %d' % RSTRIDE)
    a('s_lshl_b32 s58, s38, 1')
    a('s_add_u32 s58, s58, s47')
    a('s_lshl_b32 s58, s58, 12')
    a('s_lshl_b32 s59, s46, 10')
    a('s_add_u32 s58, s58, s59')
    a('v_lshlrev_b32 v19, 8, v1')
    for t in range(4):
        a('v_add_u32 v16, %d, v2' % (16 * t))
        a('v_add_u32 v17, s55, v16')
        tok_addr(a, 9 + t, 17, 18, 16)
        a('v_add_u32 %s, v19, %s' % (v(9 + t), v(9 + t)))
    a('s_lshr_b32 s60, s38, 1')
    a('s_add_u32 s60, s60, 16')
    a('s_lshl_b32 s60, s60, 12')
    a('s_add_u32 s59, s59, s60')
    a('s_and_b32 s60, s38, 1')
    a('s_lshl_b32 s60, s60, 1')
    a('s_add_u32 s60, s60, s47')
    a('s_lshl_b32 s60, s60, 8')
    a('s_add_u32 s59, s59, s60')
    a('v_and_b32 v19, 1, v1')
    a('v_lshlrev_b32 v19, 3, v19')
    a('v_lshrrev_b32 v20, 1, v1')
    a('v_lshl_add_u32 v20, v20, 4, v2')
    for u in range(2):
        a('v_add_u32 v16, %d, v20' % (32 * u))
        a('v_add_u32 v17, s55, v16')
        tok_addr(a, 13 + u, 17, 18, 16)
        a('v_add_u32 %s, v19, %s' % (v(13 + u), v(13 + u)))
    for g in range(4):
        m = 0xffff << (16 * g)
        a('s_mov_b32 %s, 0x%x' % (s(64 + 2 * g), m & 0xffffffff))
        a('s_mov_b32 %s, 0x%x' % (s(65 + 2 * g), m >> 32))
    cs = 20 ** -0.5 * math.log2(math.e)
    a('s_mov_b32 s62, %s' % f32(cs))
    a('s_mov_b32 s63, %s' % f32(-cs))
    k1_mainloop(a, True, 'att')
    gen_attention(a)
    if cfg.prof: a('s_waitcnt vmcnt(0)')
    stamp_flush(a, 0, 16, 0)
    a('s_endpgm')
    a('L1_ffn:')
    a('s_lshl_b32 s48, s47, 8')
    a('v_add_u32 %s, s48, %s' % (v(VWM), v(VWM)))
    a('v_lshlrev_b32 v9, 4, v0')
    a('s_mul_i32 s58, s37, %d' % (2 * RSTRIDE))
    a('s_lshl_b32 s59, s38, 3')
    a('s_lshl_b32 s60, s47, 2')
    a('s_add_u32 s59, s59, s60')
    a('s_add_u32 s59, s59, 20')
    a('s_lshl_b32 s59, s59, 12')
    a('s_add_u32 s58, s58, s59')
    a('s_lshl_b32 s59, s46, 10')
    a('s_add_u32 s58, s58, s59')
    k1_mainloop(a, False, 'ffn')
    k = 0
    for m in range(4):
        for t in range(4):
            d = 16 + 4 * (k % 16); k += 1
            for h in range(2):
                A = acc(t, 2 * m + h)
                a('v_cvt_pk_bf16_f32 %s, %s, %s' % (v(d + 2 * h), v(A), v(A + 1)))
                a('v_cvt_pk_bf16_f32 %s, %s, %s' % (v(d + 2 * h + 1), v(A + 2), v(A + 3)))
            for i in range(4):
                a('v_pk_max_i16 %s, %s, 0' % (v(d + i), v(d + i)))
            a('s_add_u32 s59, s58, %d' % ((t >> 1) * RSTRIDE + m * 4096))
            a('buffer_store_dwordx4 %s, v9, s[28:31], s59 offen offset:%d' % (v(d, 4), (t & 1) * 2048) + stp())
    if cfg.prof: a('s_waitcnt vmcnt(0)')
    stamp_flush(a, 0, 16, 1)
    a('s_endpgm')
    gen_prep(a)
    a('L1_end:')
    a('s_endpgm')

def gen_attention(a):
    KK = lambda t: 16 + 6 * t
    Q0 = lambda t: 40 + 8 * t
    Q1 = lambda t: 44 + 8 * t
    VP = lambda h, t: 72 + 8 * h + 2 * t
    M = lambda u: 96 + u
    SC = lambda u: 112 + 8 * u
    SP = lambda u: 116 + 8 * u
    P = lambda u: 176 + 4 * u
    SUM = lambda u: 208 + 4 * u
    def cvt(d, A):
        a('v_cvt_pk_bf16_f32 %s, %s, %s' % (v(d), v(A), v(A + 1)))
        a('v_cvt_pk_bf16_f32 %s, %s, %s' % (v(d + 1), v(A + 2), v(A + 3)))
    def conv_qk(t):
        cvt(Q1(t), acc(t, 4)); cvt(KK(t) + 2, acc(t, 4))
        cvt(Q0(t), acc(t, 0)); cvt(Q1(t) + 2, acc(t, 1))
        a('v_permlane32_swap_b32 %s, %s' % (v(Q1(t)), v(KK(t) + 2)))
        a('v_permlane32_swap_b32 %s, %s' % (v(Q1(t) + 1), v(KK(t) + 3)))
        cvt(KK(t), acc(t, 2)); cvt(KK(t) + 4, acc(t, 3))
        for i in range(2):
            a('v_cndmask_b32 %s, 0, %s, s[64:65]' % (v(Q0(t) + 2 + i), v(Q1(t) + i)))
            a('v_cndmask_b32 %s, 0, %s, s[66:67]' % (v(Q1(t) + i), v(Q1(t) + i)))
    def conv_v(t):
        for h in range(3): cvt(VP(h, t), acc(t, 5 + h))
    for t in range(4): conv_qk(t)
    conv_v(0); conv_v(1)
    Kop = lambda h, t: v(KK(t) + 2 * h, 4)
    Qop = lambda h, t: v(Q0(t) if h == 0 else Q1(t), 4)
    mf = []
    for h in range(2):
        for t in range(4):
            u = 4 * h + t
            mf.append('v_mfma_f32_16x16x32_bf16 %s, %s, %s, v[240:243]' % (v(SC(u), 4), Kop(h, t), Qop(h, t)))
            if t: mf.append('v_mfma_f32_16x16x32_bf16 %s, %s, %s, v[244:247]' % (v(SP(u), 4), Kop(h, t - 1), Qop(h, t)))
    cv = []
    for t in (2, 3):
        for h in range(3):
            A = acc(t, 5 + h); d = VP(h, t)
            cv.append('v_cvt_pk_bf16_f32 %s, %s, %s' % (v(d), v(A), v(A + 1)))
            cv.append('v_cvt_pk_bf16_f32 %s, %s, %s' % (v(d + 1), v(A + 2), v(A + 3)))
    interleave(a, mf, cv)
    for u in range(8):
        if u & 3:
            for r in range(4): a('v_max_f32 %s, %s, %s' % (v(SC(u) + r), v(SC(u) + r), v(SP(u) + r)))
        a('v_max3_f32 %s, %s, %s, %s' % (v(M(u)), v(SC(u)), v(SC(u) + 1), v(SC(u) + 2)))
        a('v_max_f32 %s, %s, %s' % (v(M(u)), v(M(u)), v(SC(u) + 3)))
    G = (0, 4)
    for b in G:
        a('v_permlane32_swap_b32 %s, %s' % (v(M(b)), v(M(b + 1))))
        a('v_permlane32_swap_b32 %s, %s' % (v(M(b + 2)), v(M(b + 3))))
    for b in G:
        a('v_max_f32 %s, %s, %s' % (v(M(b)), v(M(b)), v(M(b + 1))))
        a('v_max_f32 %s, %s, %s' % (v(M(b + 2)), v(M(b + 2)), v(M(b + 3))))
    for b in G: a('v_permlane16_swap_b32 %s, %s' % (v(M(b)), v(M(b + 2))))
    for b in G: a('v_max_f32 %s, %s, %s' % (v(M(b)), v(M(b)), v(M(b + 2))))
    for b in G: a('v_mul_f32 %s, s63, %s' % (v(M(b + 2)), v(M(b))))
    for b in G: a('v_mul_f32 %s, s63, %s' % (v(M(b)), v(M(b))))
    for b in G: a('v_permlane16_swap_b32 %s, %s' % (v(M(b)), v(M(b + 2))))
    for b in G:
        a('v_mov_b32 %s, %s' % (v(M(b + 1)), v(M(b))))
        a('v_mov_b32 %s, %s' % (v(M(b + 3)), v(M(b + 2))))
    for b in G:
        a('v_permlane32_swap_b32 %s, %s' % (v(M(b)), v(M(b + 1))))
        a('v_permlane32_swap_b32 %s, %s' % (v(M(b + 2)), v(M(b + 3))))
    pend = []
    for u in range(8):
        h, t = u >> 2, u & 3
        for r in range(4): a('v_fma_f32 %s, %s, s62, %s' % (v(SC(u) + r), v(SC(u) + r), v(M(u))))
        for r in range(4):
            a('v_exp_f32 %s, %s' % (v(SC(u) + r), v(SC(u) + r)))
            if pend: a(pend.pop(0))
        for x in pend: a(x)
        if t == 0:
            cvt(P(u) + 2, SC(u))
            op = 'v_mfma_f32_16x16x16_bf16'; B = v(P(u) + 2, 2); n = 2; o = 0
        else:
            cvt(P(u), SC(u))
            for i in range(2): a('v_and_b32 %s, %s, %s' % (v(P(u) + 2 + i), v(248 + i), v(P(u) + i)))
            for i in range(2): a('v_bfi_b32 %s, %s, 0, %s' % (v(P(u) + i), v(248 + i), v(P(u) + i)))
            op = 'v_mfma_f32_16x16x32_bf16'; B = v(P(u), 4); n = 4; o = -2
        pend = ['%s %s, %s, %s, 0' % (op, v(SUM(u), 4), v(250, n), B),
                '%s %s, %s, %s, 0' % (op, v(SC(u), 4), v(VP(h, t) + o, n), B),
                '%s %s, %s, %s, 0' % (op, v(SP(u), 4), v(VP(2, t) + o, n), B)]
    for x in pend: a(x)
    for u in range(8): a('v_rcp_f32 %s, %s' % (v(SUM(u)), v(SUM(u))))
    for t in range(4):
        for h in range(2):
            u = 4 * h + t
            for i in range(2):
                a('v_pk_mul_f32 %s, %s, %s op_sel_hi:[1,0]' % (v(SC(u) + 2 * i, 2), v(SC(u) + 2 * i, 2), v(SUM(u), 2)))
        for h in range(2): cvt(16 + 4 * t + 2 * h, SC(4 * h + t))
        a('buffer_store_dwordx4 %s, %s, s[28:31], s58 offen' % (v(16 + 4 * t, 4), v(9 + t)) + stp(cfg.stm))
    for g in range(4):
        a('s_mov_b64 exec, %s' % s(64 + 2 * g, 2))
        for u2 in range(2):
            u = 4 * (g & 1) + 2 * u2 + (g >> 1)
            for i in range(2):
                a('v_pk_mul_f32 %s, %s, %s op_sel_hi:[1,0]' % (v(40 + 4 * u2 + 2 * i, 2), v(SP(u) + 2 * i, 2), v(SUM(u), 2)))
    a('s_mov_b64 exec, -1')
    for u2 in range(2):
        cvt(48 + 2 * u2, 40 + 4 * u2)
        a('buffer_store_dwordx2 %s, %s, s[28:31], s59 offen' % (v(48 + 2 * u2, 2), v(13 + u2)) + stp(cfg.str))

def gen_gate(a):
    GW, GX = 24, 64
    a('L1_ld_gate:')
    srd(a, 56, 10, 1280)
    srd(a, 28, 16, WS_SIZE)
    a('v_and_b32 v1, 7, v0')
    a('v_lshlrev_b32 v1, 4, v1')
    a('s_lshl_b32 s47, s38, 5')
    a('s_add_u32 s47, s47, s39')
    a('s_lshl_b32 s48, s46, 3')
    a('s_add_u32 s47, s47, s48')
    a('v_lshrrev_b32 v2, 3, v0')
    a('v_add_u32 v2, s47, v2')
    a('v_mul_u32_u24 v3, 0x500, v2')
    a('v_add_u32 v3, v3, v1')
    a('s_waitcnt vmcnt(0)')
    a('s_barrier')
    for i in range(10):
        a('buffer_load_dwordx4 %s, v1, s[56:59], 0 offen offset:%d' % (v(GW + 4 * i, 4), 128 * i))
    for i in range(10):
        a('buffer_load_dwordx4 %s, v3, s[20:23], 0 offen offset:%d' % (v(GX + 4 * i, 4), 128 * i))
    a('v_mov_b32 v9, 0')
    a('v_mov_b32 v10, 0')
    a('s_waitcnt vmcnt(0)')
    for i in range(40):
        a('v_dot2_f32_bf16 %s, %s, %s, %s' % (v(9 + (i & 1)), v(GX + i), v(GW + i), v(9 + (i & 1))))
    a('v_add_f32 v9, v9, v10')
    for pat in ('quad_perm:[1,0,3,2]', 'quad_perm:[2,3,0,1]', 'row_half_mirror'):
        a('v_add_f32_dpp v11, v9, v9 %s row_mask:0xf bank_mask:0xf' % pat)
        a('v_mov_b32 v9, v11')
    a('v_mul_f32 v9, %s, v9' % f32(-math.log2(math.e)))
    a('v_exp_f32 v9, v9')
    a('v_add_f32 v9, 1.0, v9')
    a('v_rcp_f32 v9, v9')
    a('v_lshlrev_b32 v2, 2, v2')
    a('v_mov_b32 v3, %s' % hex(BAD))
    a('v_cmp_eq_u32 vcc, 0, v1')
    a('v_cndmask_b32 v2, v3, v2, vcc')
    a('s_mov_b32 s60, %d' % WS_G)
    a('buffer_store_dword v9, v2, s[28:31], s60 offen' + stp(cfg.stg))
    if cfg.prof: a('s_waitcnt vmcnt(0)')
    stamp_flush(a, 0, 16)
    a('s_endpgm')

def gen_prep(a):
    PITCH = 176
    LW = 32 * PITCH
    a('L1_prep:')
    a('s_sub_u32 s37, s34, 30')
    a('s_lshl_b32 s37, s37, 3')
    a('s_add_u32 s37, s37, s33')
    a('s_waitcnt lgkmcnt(0)')
    srd(a, 24, 8, 640 * 1280)
    srd(a, 40, 14, 1536 * 1280)
    srd(a, 28, 16, WS_SIZE)
    if cfg.touch:
        a('s_cmp_lt_u32 s3, 4')
        a('s_cbranch_scc0 L1_prep_not')
        srd(a, 20, 4, 2048 * 1280)
        ta, tb = touch_setup(a, 's3', 124, 132)
        for x in ta + tb: a(x)
        a('L1_prep_not:')
    U = lambda u: 24 + 20 * u
    GW = 124
    GX = 164
    a('s_mul_i32 s48, s3, 160')
    a('s_mul_i32 s49, s3, %d' % LW)
    a('s_movk_i32 s50, 205')
    a('s_movk_i32 s51, 1280')
    a('s_movk_i32 s52, %d' % PITCH)
    for e in range(5):
        a('v_add_u32 v1, %d, v0' % (64 * e))
        a('v_mul_u32_u24 v2, s50, v1')
        a('v_lshrrev_b32 v2, 11, v2')
        a('v_mul_u32_u24 v3, 10, v2')
        a('v_sub_u32 v1, v1, v3')
        a('v_lshlrev_b32 v1, 4, v1')
        a('v_mad_u32_u24 %s, v2, s52, v1' % v(19 + e))
        a('v_add_u32 %s, s49, %s' % (v(19 + e), v(19 + e)))
        a('v_and_b32 v3, 3, v2')
        a('v_mad_u32_u24 v1, v3, s51, v1')
        a('v_add_u32 %s, s48, v1' % v(4 + e))
        a('v_lshrrev_b32 %s, 3, v2' % v(9 + e))
        a('v_bfe_u32 %s, v2, 2, 1' % v(14 + e))
    def addrs(al, be):
        a('s_movk_i32 s53, %d' % (al * 1280) if al * 1280 < 32768 else 's_mov_b32 s53, %d' % (al * 1280))
        a('s_movk_i32 s54, %d' % (be * 1280))
        for e in range(5):
            a('v_mad_u32_u24 %s, %s, s53, %s' % (v(244 + e), v(9 + e), v(4 + e)))
            a('v_mad_u32_u24 %s, %s, s54, %s' % (v(244 + e), v(14 + e), v(244 + e)))
    addrs(4, 16)
    a('s_mul_i32 s55, s37, %d' % (3 * 32 * 1280))
    for u in range(3):
        for e in range(5):
            a('buffer_load_dwordx4 %s, %s, s[40:43], s55 offen' % (v(U(u) + 4 * e, 4), v(244 + e)))
        if u < 2: a('s_add_u32 s55, s55, %d' % (32 * 1280))
    addrs(4, 20)
    a('s_mul_i32 s55, s37, %d' % (40 * 1280))
    for e in range(5):
        a('buffer_load_dwordx4 %s, %s, s[24:27], s55 offen' % (v(U(3) + 4 * e, 4), v(244 + e)))
    a('s_and_b32 s56, s37, 3')
    a('s_lshr_b32 s61, s37, 2')
    a('s_lshr_b32 s62, s3, 1')
    a('s_cmp_lg_u32 s61, s62')
    a('s_cbranch_scc1 L1_prep_norem')
    addrs(40, 20)
    a('s_mul_i32 s55, s56, %d' % (160 * 1280))
    a('s_add_u32 s55, s55, %d' % (16 * 1280))
    for e in range(5):
        a('buffer_load_dwordx4 %s, %s, s[24:27], s55 offen' % (v(U(4) + 4 * e, 4), v(244 + e)))
    a('L1_prep_norem:')
    a('v_lshrrev_b32 v4, 4, v0')
    a('v_bfe_u32 v5, v0, 2, 2')
    a('v_lshl_add_u32 v4, v4, 3, v5')
    a('v_mul_u32_u24 v4, s52, v4')
    a('v_add_u32 v4, s49, v4')
    a('v_and_b32 v5, 3, v0')
    a('v_lshl_add_u32 v6, v5, 3, v4')
    a('v_lshl_add_u32 v5, v5, 4, v4')
    a('v_lshlrev_b32 v7, 4, v0')
    a('v_add_u32 v8, 4096, v7')
    a('s_mul_i32 s59, s3, %d' % NBSTRIDE)
    a('s_add_u32 s59, s59, %d' % WS_B)
    for u in range(5):
        if u == 4:
            a('s_cmp_lg_u32 s61, s62')
            a('s_cbranch_scc1 L1_prep_done')
        a('s_waitcnt vmcnt(%d)' % (15 if u < 4 else 20))
        for e in range(5):
            a('ds_write_b128 %s, %s' % (v(19 + e), v(U(u) + 4 * e, 4)))
        if u < 3:
            a('s_mul_i32 s60, s37, 3'); a('s_add_u32 s60, s60, %d' % (20 + u))
        elif u == 3:
            a('s_mov_b32 s60, s37')
        else:
            a('s_add_u32 s60, s56, 16')
        a('s_mul_i32 s60, s60, 5120')
        a('s_add_u32 s60, s60, s59')
        a('s_waitcnt lgkmcnt(0)')
        for nt in range(5):
            for h in range(2):
                if nt < 4: reg, off = 5, 64 * (nt >> 1) + 8 * (nt & 1)
                else: reg, off = 6, 128
                a('ds_read_b64_tr_b16 %s, %s offset:%d' % (v(U(u) + 4 * nt + 2 * h, 2), v(reg), off + h * 4 * PITCH))
        a('s_waitcnt lgkmcnt(0)')
        for nt in range(5):
            a('buffer_store_dwordx4 %s, %s, s[28:31], s60 offen offset:%d' % (v(U(u) + 4 * nt, 4), v(7 if nt < 4 else 8), (nt & 3) * 1024) + stp())
    a('L1_prep_done:')
    if cfg.prof: a('s_waitcnt vmcnt(0)')
    stamp_flush(a, 0, 16, 3)
    a('s_endpgm')

def gen_k2(a):
    D = cfg.k2depth
    RING = 16
    AC = RING + 36 * D
    accr = lambda m, nt: AC + (m * 5 + nt) * 4
    Bq = lambda q, nt: RING + 36 * q + 4 * nt
    Aq = lambda q, m: RING + 36 * q + 20 + 4 * m
    a('.globl %s' % K2); a('.p2align 8'); a('.type %s,@function' % K2)
    a('%s:' % K2)
    a('s_cmp_ge_u32 s2, 256')
    a('s_cbranch_scc1 L2_end')
    stamp(a, 0)
    a('s_load_dwordx2 s[4:5], s[0:1], 72')
    a('s_load_dwordx2 s[6:7], s[0:1], 56')
    a('v_lshrrev_b32 v1, 6, v0')
    a('v_and_b32 v0, 63, v0')
    a('v_readfirstlane_b32 s3, v1')
    if cfg.scr & 2:
        a('s_lshr_b32 s16, s2, 5'); a('s_and_b32 s17, s2, 31')
    else:
        a('s_and_b32 s16, s2, 7')
        a('s_lshr_b32 s17, s2, 3')
    a('s_and_b32 s18, s16, 1')
    a('s_lshl_b32 s18, s18, 2')
    a('s_and_b32 s19, s17, 3')
    a('s_add_u32 s18, s18, s19')
    a('s_lshr_b32 s19, s16, 1')
    a('s_lshl_b32 s19, s19, 3')
    a('s_lshr_b32 s20, s17, 2')
    a('s_add_u32 s19, s19, s20')
    a('s_lshl_b32 s20, s3, 4')
    a('s_add_u32 s20, s20, 4')
    a('s_cmp_eq_u32 s3, 0')
    a('s_cselect_b32 s20, 0, s20')
    if cfg.k2prio:
        a('s_cbranch_scc0 L2_noprio')
        a('s_setprio 3')
        a('L2_noprio:')
    a('s_cselect_b32 s21, %d, %d' % (20 // D - 1, 16 // D - 1))
    a('s_mul_i32 s22, s19, %d' % RSTRIDE)
    a('s_lshl_b32 s23, s20, 12')
    a('s_add_u32 s22, s22, s23')
    a('s_mul_i32 s23, s18, %d' % NBSTRIDE)
    a('s_mul_i32 s24, s20, 5120')
    a('s_add_u32 s23, s23, s24')
    a('s_add_u32 s23, s23, %d' % WS_B)
    a('v_lshlrev_b32 v2, 4, v0')
    a('v_add_u32 v3, 4096, v2')
    for m in range(4):
        a('s_add_u32 s24, s3, %d' % m)
        a('s_and_b32 s24, s24, 3')
        a('s_lshl_b32 s25, s24, 10')
        a('v_add_u32 %s, s25, v2' % v(4 + m))
        if m:
            a('s_mul_i32 s25, s24, 15360')
            a('s_add_u32 s25, s25, %d' % ((m - 1) * 5120))
            a('v_add_u32 %s, s25, v2' % v(8 + m))
    a('s_lshl_b32 s24, s19, 6')
    a('s_lshr_b32 s25, s3, 1')
    a('s_lshl_b32 s25, s25, 5')
    a('s_add_u32 s24, s24, s25')
    a('s_and_b32 s25, s3, 1')
    a('s_add_u32 s24, s24, s25')
    a('v_and_b32 v12, 15, v0')
    a('v_lshl_add_u32 v12, v12, 1, s24')
    a('v_lshlrev_b32 v13, 2, v12')
    a('s_mov_b32 s26, %d' % WS_G)
    a('s_waitcnt lgkmcnt(0)')
    srd(a, 8, 4, WS_SIZE)
    def ldB(q, nt): return 'buffer_load_dwordx4 %s, %s, s[8:11], s23 offen offset:%d' % (v(Bq(q, nt), 4), v(2 if nt < 4 else 3), (nt & 3) * 1024)
    def ldA(q, m): return 'buffer_load_dwordx4 %s, %s, s[8:11], s22 offen' % (v(Aq(q, m), 4), v(4 + m))
    adv = ['s_add_u32 s22, s22, 4096', 's_add_u32 s23, s23, 5120']
    a('buffer_load_dword v14, v13, s[8:11], s26 offen')
    for q in range(D):
        for nt in range(5): a(ldB(q, nt))
        for m in range(4): a(ldA(q, m))
        for x in adv: a(x)
    srd(a, 12, 6, 2048 * 1280)
    for i in range(80): a('v_mov_b32 %s, 0' % v(AC + i))
    def step(q, load, cnt):
        a('s_waitcnt vmcnt(%d)' % cnt)
        for nt in range(5):
            for m in range(4):
                A = v(accr(m, nt), 4)
                a('v_mfma_f32_16x16x32_bf16 %s, %s, %s, %s' % (A, v(Bq(q, nt), 4), v(Aq(q, m), 4), A))
                if load and nt == 4: a(ldA(q, m)) if False else None
            if load: a(ldB(q, nt))
        if load:
            for m in range(4): a(ldA(q, m))
            for x in adv: a(x)
    if cfg.prof: a('s_waitcnt vmcnt(%d)' % (9 * (D - 1)))
    stamp(a, 1)
    a('L2_loop:')
    for q in range(D): step(q, True, 9 * (D - 1))
    a('s_sub_u32 s21, s21, 1')
    a('s_cmp_lg_u32 s21, 0')
    a('s_cbranch_scc1 L2_loop')
    for q in range(D): step(q, False, 9 * (D - 1 - q))
    stamp(a, 2)
    for m in range(1, 4):
        for nt in range(5):
            a('ds_write_b128 %s, %s offset:%d' % (v(8 + m), v(accr(m, nt), 4), nt * 1024))
    a('v_sub_f32 v15, 1.0, v14')
    for m in range(4):
        a('s_cmp_eq_u32 s3, %d' % m)
        a('s_cselect_b64 vcc, -1, 0')
        a('v_cndmask_b32 %s, v15, v14, vcc' % v(16 + 2 * m))
    a('s_mul_i32 s25, s3, 15360')
    a('v_add_u32 v8, s25, v2')
    a('s_mul_i32 s25, s18, 160')
    a('v_mul_u32_u24 v12, 0x500, v12')
    a('v_lshrrev_b32 v13, 4, v0')
    a('v_lshl_add_u32 v9, v13, 3, v12')
    a('v_lshl_add_u32 v12, v13, 4, v12')
    for i in range(10):
        A = AC + 2 * i
        a('v_pk_mul_f32 %s, %s, v[16:17] op_sel_hi:[1,0]' % (v(A, 2), v(A, 2)))
    a('s_waitcnt lgkmcnt(0)')
    a('s_barrier')
    for m in range(1, 4):
        for nt in range(5):
            a('ds_read_b128 %s, v8 offset:%d' % (v(accr(m, nt), 4), ((m - 1) * 5 + nt) * 1024))
    for m in range(1, 4):
        a('s_waitcnt lgkmcnt(%d)' % (5 * (3 - m)))
        for i in range(10):
            A = AC + 2 * i
            a('v_pk_fma_f32 %s, %s, %s, %s op_sel_hi:[1,0,1]' % (v(A, 2), v(A + 20 * m, 2), v(16 + 2 * m, 2), v(A, 2)))
    for i in range(10):
        a('v_cvt_pk_bf16_f32 %s, %s, %s' % (v(24 + i), v(AC + 2 * i), v(AC + 2 * i + 1)))
    a('buffer_store_dwordx4 v[24:27], v12, s[12:15], s25 offen' + stp(cfg.k2st))
    a('buffer_store_dwordx4 v[28:31], v12, s[12:15], s25 offen offset:64' + stp(cfg.k2st))
    a('buffer_store_dwordx2 v[32:33], v9, s[12:15], s25 offen offset:128' + stp(cfg.k2st))
    if cfg.prof: a('s_waitcnt vmcnt(0)')
    stamp_flush(a, 1, 4)
    a('L2_end:')
    a('s_endpgm')
    return AC + 80

def desc(name, nv):
    nv = (nv + 7) // 8 * 8
    return '''.p2align 6
.amdhsa_kernel %s
  .amdhsa_next_free_vgpr %d
  .amdhsa_next_free_sgpr 102
  .amdhsa_accum_offset %d
  .amdhsa_group_segment_fixed_size 0
  .amdhsa_kernarg_size 80
  .amdhsa_user_sgpr_count 2
  .amdhsa_user_sgpr_kernarg_segment_ptr 1
  .amdhsa_system_sgpr_workgroup_id_x 1
.end_amdhsa_kernel
''' % (name, nv, nv)

def main():
    for arg in sys.argv[2:]:
        k, val = arg.split('='); setattr(cfg, k, int(val))
    a = Asm()
    gen_k1(a)
    nv2 = gen_k2(a)
    body = a.finish()
    hdr = '''; gated mix of sliding-window dilated attention and ReLU FFN, two launches.
; launch 1: qkv projection + attention, FFN up projection + relu, weight re-layout + gate
; launch 2: output projections (wo, w2) and gated mix
; @launch kernel=%s grid=(256,1,1) block=(512,1,1) lds=%d
; @launch kernel=%s grid=(256,1,1) block=(256,1,1) lds=%d
.amdgcn_target "amdgcn-amd-amdhsa--gfx950"
.text
''' % (K1, 3 * SLOT, K2, 61440)
    out = hdr + body + '.section .rodata,"a"\n' + desc(K1, 256) + desc(K2, nv2)
    open(sys.argv[1], 'w').write(out)
    print('nops inserted:', a.nops, 'bytes', len(out))

main()
```

```python
import sys, math, struct
from asmlib import Asm, v, s

NAME = 'gated_mix__sliding_local_dilated__dense_activation_relu__prompt'
K1 = NAME + '_kernel'
K2 = 'gm_stage2_kernel'

WS_A = 0
WS_B = 0x900000
WS_G = 0xC00000
WS_SIZE = 0xC02000
RSTRIDE = 68 * 4096
NBSTRIDE = 68 * 5120
SLOT = 50176
XOFF = 33792
BAD = 0x40000000

class Cfg:
    ra = 1
    rb = 5
    rc = 3
    rd = 5
    prof = 0
    k2depth = 4
    k2prio = 1
    pw = 35
    scr = 0
    pnt = 0
    pdel = 0
    ps = 0
    align = 1
    xcc = 0
    stm = 0
    str = 0
    stg = 0
    sel = -1
    sel0 = 0
    tpos = 100022222
    pf = 0
    pf0 = 1
    pf1 = 0
    pfo = 1
    pfx = 0
    rx = 0
    rmask = 15
    rsh = 0
    touch = 0
    lp = 0
    k2st = 0
    stpol = 1
cfg = Cfg()

def stp(p=None):
    return ['', ' sc1', ' sc0 sc1', ' nt', ' sc1 nt', ' sc0 sc1 nt'][cfg.stpol if p is None else p]

def f32(x):
    return '0x%08x' % struct.unpack('<I', struct.pack('<f', x))[0]

def srd(a, d, lo, size):
    a('s_mov_b32 %s, %s' % (s(d), s(lo)))
    a('s_mov_b32 %s, %s' % (s(d + 1), s(lo + 1)))
    a('s_mov_b32 %s, %d' % (s(d + 2), size))
    a('s_mov_b32 %s, 0x00020000' % s(d + 3))

PROF = 0xD00000
def stamp(a, i):
    if cfg.prof:
        a('s_memrealtime %s' % s(80 + 2 * i, 2))
        a('s_memtime %s' % s(72 + 2 * i, 2))
def stamp_flush(a, kern, wsreg, role=2):
    if not cfg.prof: return
    a('s_memrealtime s[86:87]')
    a('s_memtime s[78:79]')
    if cfg.prof == 3 and kern == 1:
        a('s_or_b32 s92, s2, s3')
        a('s_cmp_lg_u32 s92, 0')
        a('s_cbranch_scc1 L2_end')
        a('s_load_dwordx2 s[88:89], s[0:1], 64')
        a('s_mov_b32 s90, 256'); a('s_mov_b32 s91, 0x00020000')
        a('s_mov_b32 s92, s4'); a('s_mov_b32 s93, s5'); a('s_mov_b32 s94, 0x1000000'); a('s_mov_b32 s95, 0x00020000')
        a('s_mov_b32 s96, %d' % PROF)
        a('s_waitcnt lgkmcnt(0)')
        for j in range(4):
            a('v_add_u32 v1, %d, v0' % (64 * j))
            a('v_lshlrev_b32 v2, 9, v1')
            a('buffer_load_dwordx4 v[4:7], v2, s[92:95], s96 offen')
            a('buffer_load_dwordx4 v[8:11], v2, s[92:95], s96 offen offset:16')
            a('v_mov_b32 v3, 0')
            a('v_cmp_le_u32 vcc, 144, v1')
            a('v_cndmask_b32 v3, v3, 16, vcc')
            a('v_cmp_le_u32 vcc, 240, v1')
            a('v_cndmask_b32 v3, v3, 48, vcc')
            a('s_waitcnt vmcnt(0)')
            a('v_not_b32 v4, v4')
            for i in range(4):
                a('buffer_atomic_umax %s, v3, s[88:91], 0 offen offset:%d' % (v(4 + 2 * i), 4 * i))
            a('s_waitcnt vmcnt(0)')
        a('s_mov_b64 exec, 1')
        a('v_mov_b32 v0, 0')
        a('s_not_b32 s80, s80')
        for i in range(4):
            a('v_mov_b32 %s, %s' % (v(4 + i), s(80 + 2 * i)))
            a('buffer_atomic_umax %s, v0, s[88:91], 0 offen offset:%d' % (v(4 + i), role * 16 + 4 * i))
        if cfg.sel >= 0:
            a('s_waitcnt vmcnt(0)')
            a('v_mov_b32 v8, 0'); a('v_mov_b32 v9, 0')
            a('buffer_atomic_umax v8, v0, s[88:91], 0 offen offset:%d sc0' % (4 * cfg.sel0))
            a('buffer_atomic_umax v9, v0, s[88:91], 0 offen offset:%d sc0' % (4 * cfg.sel))
            a('s_waitcnt vmcnt(0)')
            a('v_readfirstlane_b32 s92, v8'); a('v_readfirstlane_b32 s93, v9')
            if cfg.sel0 % 4 == 0: a('s_not_b32 s92, s92')
            if cfg.sel % 4 == 0: a('s_not_b32 s93, s93')
            a('s_sub_u32 s92, s93, s92')
            a('s_min_u32 s92, s92, 5000')
            a('s_lshl_b32 s92, s92, 2')
            a('s_memrealtime s[94:95]')
            a('s_waitcnt lgkmcnt(0)')
            a('L2_spin:')
            a('s_memrealtime s[96:97]')
            a('s_waitcnt lgkmcnt(0)')
            a('s_sub_u32 s96, s96, s94')
            a('s_cmp_lt_u32 s96, s92')
            a('s_cbranch_scc1 L2_spin')
        return
    if cfg.prof == 2:
        a('s_load_dwordx2 s[88:89], s[0:1], 64')
        a('s_mov_b32 s90, 256'); a('s_mov_b32 s91, 0x00020000')
        a('s_waitcnt lgkmcnt(0)')
        a('s_mov_b64 exec, 1')
        a('v_mov_b32 v0, 0')
        a('s_not_b32 s80, s80')
        for i in range(4):
            a('v_mov_b32 %s, %s' % (v(4 + i), s(80 + 2 * i)))
            a('buffer_atomic_umax %s, v0, s[88:91], 0 offen offset:%d' % (v(4 + i), role * 16 + 4 * i))
        return
    if cfg.xcc:
        a('s_waitcnt lgkmcnt(0)')
        a('s_getreg_b32 s80, hwreg(HW_REG_XCC_ID, 0, 4)')
        a('s_sub_u32 s80, s80, s2'); a('s_and_b32 s80, s80, 7'); a('s_mul_i32 s80, s80, 100'); a('s_mov_b32 s82, s80')
    a('s_mov_b32 s88, %s' % s(wsreg)); a('s_mov_b32 s89, %s' % s(wsreg + 1))
    a('s_mov_b32 s90, 0x1000000'); a('s_mov_b32 s91, 0x00020000')
    a('s_lshl_b32 s92, s2, 3'); a('s_add_u32 s92, s92, s3'); a('s_lshl_b32 s92, s92, 6')
    a('s_add_u32 s92, s92, %d' % (PROF + kern * 256 * 8 * 64))
    a('s_waitcnt lgkmcnt(0)')
    if cfg.ps and role < 2 and kern == 0:
        a('v_writelane_b32 v254, s74, 0'); a('v_writelane_b32 v255, s72, 0')
        a('s_mov_b64 exec, 0xffff')
        a('v_mbcnt_lo_u32_b32 v0, -1, 0'); a('v_lshlrev_b32 v0, 3, v0')
        a('s_sub_u32 s93, s92, %d' % PROF); a('s_lshl_b32 s93, s93, 1'); a('s_add_u32 s93, s93, %d' % (PROF + 0x100000))
        a('buffer_store_dwordx2 v[254:255], v0, s[88:91], s93 offen')
    a('s_mov_b64 exec, 1')
    a('v_mov_b32 v0, 0')
    for i in range(8): a('v_mov_b32 %s, %s' % (v(4 + i), s(80 + i)))
    a('buffer_store_dwordx4 v[4:7], v0, s[88:91], s92 offen')
    a('buffer_store_dwordx4 v[8:11], v0, s[88:91], s92 offen offset:16')
    for i in range(8): a('v_mov_b32 %s, %s' % (v(12 + i), s(72 + i)))
    a('buffer_store_dwordx4 v[12:15], v0, s[88:91], s92 offen offset:32')
    a('buffer_store_dwordx4 v[16:19], v0, s[88:91], s92 offen offset:48')

def interleave(a, mf, rd, first=1, per=1):
    rd = list(rd)
    for i, m in enumerate(mf):
        a(m)
        for _ in range(per):
            if rd: a(rd.pop(0))
    for x in rd: a(x)

SETS = (16, 64)
ACC = 112
def acc(t, n): return ACC + (t * 8 + n) * 4
VXA0, VXA1, VWM, VWQ, VWV = 4, 5, 6, 7, 8

def k1_reads(att, st, ks):
    base = SETS[st]
    xa = VXA1 if ks else VXA0
    r = []
    xs = ['ds_read_b128 %s, %s offset:%d' % (v(base + 4 * t, 4), v(xa), t * 2048) for t in range(4)]
    ws = []
    for n in range(8):
        if att:
            reg, off = [(VWM, 0), (VWM, 40), (VWM, 160), (VWM, 200), (VWQ, 0), (VWM, 320), (VWM, 360), (VWV, 0)][n]
        else:
            reg, off = VWM, 32 * n
        for h in range(2):
            ws.append('ds_read_b64_tr_b16 %s, %s offset:%d' % (v(base + 16 + 4 * n + 2 * h, 2), v(reg), off + ks * 16896 + h * 512))
    r = ws[:2] + xs + ws[2:]
    return r

def k1_mfmas(att, st):
    base = SETS[st]
    m = []
    for n in range(8):
        for t in range(4):
            W = v(base + 16 + 4 * n, 4); X = v(base + 4 * t, 4); A = v(acc(t, n), 4)
            if att and n >= 5:
                m.append('v_mfma_f32_16x16x32_bf16 %s, %s, %s, %s' % (A, X, W, A))
            else:
                m.append('v_mfma_f32_16x16x32_bf16 %s, %s, %s, %s' % (A, W, X, A))
    return m

def k1_mainloop(a, att, tag):
    a('s_barrier')
    stamp(a, 1)
    for x in k1_reads(att, 0, 0): a(x)
    a('s_mov_b32 s48, 0')
    a('s_mov_b32 s49, 0')
    a('s_waitcnt lgkmcnt(0)')
    a('L_%s_loop:' % tag)
    pre = ['s_add_u32 s49, s49, 1\ns_cmp_eq_u32 s49, 3', 's_cselect_b32 s50, s51, s52\ns_cselect_b32 s49, 0, s49']
    adv = ['v_add_u32 %s, s50, %s' % (v(r), v(r)) for r in ([VXA0, VXA1, VWM, VWQ, VWV] if att else [VXA0, VXA1, VWM])]
    interleave(a, k1_mfmas(att, 0), k1_reads(att, 1, 1) + pre + adv)
    a('s_waitcnt lgkmcnt(0)')
    if cfg.ps: a('s_memtime s[96:97]')
    a('s_barrier')
    if cfg.ps: a('s_memtime s[94:95]')
    interleave(a, k1_mfmas(att, 1), k1_reads(att, 0, 0) + ['s_add_u32 s48, s48, 1\ns_cmp_lt_u32 s48, 10'])
    a('s_waitcnt lgkmcnt(0)')
    if cfg.ps:
        a('s_mov_b32 m0, s48'); a('s_nop 3'); a('v_writelane_b32 v254, s94, m0'); a('v_writelane_b32 v255, s96, m0')
    a('s_cbranch_scc1 L_%s_loop' % tag)
    stamp(a, 2)

def tok_addr(a, dst, vj, tmp, vloc):
    a('v_lshrrev_b32 %s, 5, %s' % (v(tmp), v(vj)))
    a('v_mul_u32_u24 %s, s54, %s' % (v(dst), v(tmp)))
    a('v_and_b32 %s, 16, %s' % (v(tmp), v(vj)))
    a('v_lshl_add_u32 %s, %s, 7, %s' % (v(dst), v(tmp), v(dst)))
    a('v_and_b32 %s, 15, %s' % (v(tmp), v(vj)))
    a('v_lshl_add_u32 %s, %s, 4, %s' % (v(dst), v(tmp), v(dst)))
    a('v_cmp_gt_u32 vcc, 0x400, %s' % v(vj))
    a('v_cmp_le_u32 s[56:57], s53, %s' % v(vloc))
    a('s_and_b64 vcc, vcc, s[56:57]')
    a('v_mov_b32 %s, %s' % (v(tmp), hex(BAD)))
    a('v_cndmask_b32 %s, %s, %s, vcc' % (v(dst), v(tmp), v(dst)))

def touch_setup(a, wreg, va, vd):
    srd(a, 56, 6, 640 * 3840)
    srd(a, 60, 12, 640 * 3072)
    a('s_lshl_b32 s64, s33, 7')
    a('s_lshl_b32 s65, s34, 2')
    a('s_add_u32 s64, s64, s65')
    a('s_add_u32 s64, s64, %s' % wreg)
    if cfg.touch >= 3:
        sh = 7 if cfg.touch in (3, 5) else 6
        per = 128 >> sh
        a('v_lshlrev_b32 %s, %d, v0' % (v(va), sh))
        a('v_mov_b32 %s, %s' % (v(va + 5), hex(BAD)))
        for i, (nl, base) in enumerate(((20, 0), (17, 64 * 3840), (14, 64 * 3072))):
            a('s_mul_i32 s65, s64, %d' % (nl * 128))
            a('s_add_u32 s65, s65, %d' % base)
            a('v_add_u32 %s, s65, %s' % (v(va + 1 + i), v(va)))
            a('v_cmp_gt_u32 vcc, %d, v0' % (nl * per))
            a('v_cndmask_b32 %s, %s, %s, vcc' % (v(va + 1 + i), v(va + 5), v(va + 1 + i)))
        L = lambda i, sr: 'buffer_load_dword %s, %s, %s, 0 offen' % (v(vd + i), v(va + 1 + i), sr)
        return [L(0, 's[20:23]'), L(1, 's[56:59]'), L(2, 's[60:63]')], []
    a('s_lshl_b32 s65, s64, 10')
    a('v_lshl_add_u32 %s, v0, 4, s65' % v(va))
    a('v_add_u32 %s, %d, %s' % (v(va + 1), 64 * 3840 + (2 << 20), v(va)))
    a('v_add_u32 %s, %d, %s' % (v(va + 2), 64 * 3072 + (1 << 20), v(va)))
    a('s_mul_i32 s65, s64, 2560')
    a('v_lshrrev_b32 %s, 5, v0' % v(va + 3))
    a('v_mul_u32_u24 %s, 0x500, %s' % (v(va + 3), v(va + 3)))
    a('v_and_b32 %s, 31, v0' % v(va + 4))
    a('v_lshl_add_u32 %s, %s, 4, %s' % (v(va + 3), v(va + 4), v(va + 3)))
    a('v_lshrrev_b32 %s, 3, v0' % v(va + 4))
    a('v_mul_u32_u24 %s, 0x500, %s' % (v(va + 4), v(va + 4)))
    a('v_and_b32 %s, 7, v0' % v(va + 5))
    a('v_lshl_add_u32 %s, %s, 4, %s' % (v(va + 4), v(va + 5), v(va + 4)))
    a('v_mov_b32 %s, %s' % (v(va + 5), hex(BAD)))
    a('v_cmp_gt_u32 vcc, 16, v0')
    a('v_cndmask_b32 %s, %s, %s, vcc' % (v(va + 4), v(va + 5), v(va + 4)))
    a('s_mov_b32 s66, %d' % (64 * 3840))
    a('s_mov_b32 s67, %d' % (64 * 3072))
    a('s_mov_b32 s68, %d' % (64 * 3840 + (1 << 20)))
    L = lambda i, r, sr, so, off: 'buffer_load_dwordx4 %s, %s, %s, %s offen offset:%d' % (v(vd + 4 * i, 4), v(r), sr, so, off)
    ta = [L(0, va + 3, 's[20:23]', 's65', 128), L(1, va, 's[56:59]', 's66', 0), L(2, va, 's[60:63]', 's67', 0)]
    tb = [L(3, va + 3, 's[20:23]', 's65', 640), L(4, va, 's[56:59]', 's68', 0), L(5, va + 2, 's[60:63]', '0', 0),
          L(6, va + 4, 's[20:23]', 's65', 1152), L(7, va + 1, 's[56:59]', '0', 0)]
    return ta, tb

def gen_k1(a):
    a('.globl %s' % K1); a('.p2align 8'); a('.type %s,@function' % K1)
    a('%s:' % K1)
    a('s_cmp_ge_u32 s2, 256')
    a('s_cbranch_scc1 L1_end')
    stamp(a, 0); stamp(a, 1); stamp(a, 2)
    a('s_load_dwordx4 s[4:7], s[0:1], 0')
    a('s_load_dwordx2 s[8:9], s[0:1], 16')
    a('s_load_dwordx4 s[12:15], s[0:1], 32')
    a('s_load_dwordx2 s[10:11], s[0:1], 48')
    a('s_load_dwordx2 s[16:17], s[0:1], 72')
    a('v_lshrrev_b32 v1, 6, v0')
    a('v_and_b32 v0, 63, v0')
    a('v_readfirstlane_b32 s3, v1')
    if cfg.scr & 1:
        a('s_lshr_b32 s33, s2, 5'); a('s_and_b32 s34, s2, 31')
    else:
        a('s_and_b32 s33, s2, 7')
        a('s_lshr_b32 s34, s2, 3')
    a('s_lshr_b32 s35, s33, 2')
    a('s_and_b32 s36, s33, 3')
    a('s_cmp_ge_u32 s34, 30')
    a('s_cbranch_scc1 L1_prep')
    a('s_cmp_ge_u32 s34, 18')
    a('s_cbranch_scc1 L1_ffn_setup')
    a('s_and_b32 s38, s34, 1')
    a('s_lshl_b32 s46, s36, 1')
    a('s_add_u32 s38, s38, s46')
    a('s_mul_i32 s37, s35, 9')
    a('s_lshr_b32 s46, s34, 1')
    a('s_add_u32 s37, s37, s46')
    a('s_and_b32 s45, s46, %d' % cfg.rmask)
    a('s_mul_i32 s45, s45, %d' % cfg.ra)
    if cfg.rsh: a('s_lshr_b32 s45, s45, %d' % cfg.rsh)
    a('s_and_b32 s47, s38, 1')
    a('s_mul_i32 s47, s47, %d' % cfg.rb)
    a('s_add_u32 s45, s45, s47')
    a('s_mul_i32 s39, s37, 114')
    a('s_movk_i32 s40, 3840')
    a('s_movk_i32 s41, 29')
    a('s_movk_i32 s42, 1120')
    a('s_mul_i32 s43, s38, 160')
    a('s_mov_b32 s44, 0')
    a('s_waitcnt lgkmcnt(0)')
    srd(a, 24, 6, 640 * 3840)
    a('s_branch L1_common')
    a('L1_ffn_setup:')
    a('s_mul_i32 s46, s36, 12')
    a('s_add_u32 s46, s46, s34')
    a('s_sub_u32 s46, s46, 18')
    a('s_lshr_b32 s38, s46, 3')
    a('s_and_b32 s46, s46, 7')
    a('s_lshl_b32 s37, s35, 3')
    a('s_add_u32 s37, s37, s46')
    a('s_and_b32 s45, s46, %d' % cfg.rmask)
    a('s_mul_i32 s45, s45, %d' % cfg.ra)
    if cfg.rsh: a('s_lshr_b32 s45, s45, %d' % cfg.rsh)
    a('s_and_b32 s47, s38, 1')
    a('s_mul_i32 s47, s47, %d' % cfg.rd)
    a('s_add_u32 s45, s45, s47')
    a('s_add_u32 s45, s45, %d' % cfg.rc)
    a('s_lshl_b32 s39, s37, 7')
    a('s_movk_i32 s40, 3072')
    a('s_movk_i32 s41, 31')
    a('s_mov_b32 s42, 0')
    a('s_lshl_b32 s43, s38, 9')
    a('s_mov_b32 s44, 1')
    a('s_waitcnt lgkmcnt(0)')
    srd(a, 24, 12, 640 * 3072)
    a('L1_common:')
    srd(a, 20, 4, 2048 * 1280)
    a('s_cmp_lt_u32 s3, 4')
    a('s_cbranch_scc1 L1_consumer')
    a('s_setprio 3')
    a('s_sub_u32 s46, s3, 4')
    a('v_lshrrev_b32 v2, 3, v0')
    a('v_lshrrev_b32 v3, 4, v0')
    a('v_and_b32 v4, 7, v0')
    a('s_lshr_b32 s47, s46, 1')
    a('s_add_u32 s47, s47, s39')
    a('s_and_b32 s48, s46, 1')
    a('s_lshl_b32 s48, s48, 6')
    a('s_add_u32 s47, s47, s48')
    a('v_lshl_add_u32 v5, v2, 1, s47')
    a('v_mul_u32_u24 v5, 0x500, v5')
    a('v_xor_b32 v4, v4, v3')
    a('v_lshl_add_u32 v16, v4, 4, v5')
    a('v_xor_b32 v4, 4, v4')
    a('v_lshl_add_u32 v17, v4, 4, v5')
    a('v_add_u32 v17, %d, v17' % (16 * 1280))
    a('v_add_u32 v18, %d, v16' % (32 * 1280))
    a('v_add_u32 v19, %d, v17' % (32 * 1280))
    a('v_and_b32 v1, 31, v0')
    a('v_min_u32 v1, s41, v1')
    a('v_mul_u32_u24 v2, 13, v1')
    a('v_lshrrev_b32 v2, 7, v2')
    a('v_lshlrev_b32 v1, 4, v1')
    a('v_mad_u32_u24 v1, v2, s42, v1')
    a('v_add_u32 v1, s43, v1')
    a('v_lshrrev_b32 v2, 5, v0')
    a('v_lshlrev_b32 v2, 2, v2')
    a('s_lshl_b32 s47, s46, 4')
    a('v_add_u32 v2, s47, v2')
    a('v_mad_u32_u24 v8, v2, s40, v1')
    a('s_lshl_b32 s47, s40, 3')
    a('v_add_u32 v12, s47, v8')
    for e in range(1, 4):
        a('v_add_u32 %s, s40, %s' % (v(8 + e), v(7 + e)))
        a('v_add_u32 %s, s40, %s' % (v(12 + e), v(11 + e)))
    if cfg.rx:
        a('s_mul_i32 s47, s33, %d' % cfg.rx)
        a('s_lshr_b32 s47, s47, 2')
        a('s_add_u32 s45, s45, s47')
    a('s_mul_i32 s47, s45, 205')
    a('s_lshr_b32 s47, s47, 11')
    a('s_mul_i32 s47, s47, 10')
    a('s_sub_u32 s45, s45, s47')
    a('s_mov_b32 s48, 0')
    a('s_mov_b32 s49, 0')
    a('s_mul_i32 s50, s46, %d' % (8 * 1056))
    a('s_lshl_b32 s51, s46, 12')
    a('s_add_u32 s51, s51, %d' % XOFF)
    a('s_lshl_b32 s53, s40, 6')
    a('s_movk_i32 s55, 1024')
    a('s_movk_i32 s47, 1056')
    def ld_stage(first=False):
        a('s_mul_i32 s52, s45, s53')
        a('s_lshl_b32 s54, s45, 7')
        a('s_add_u32 m0, s49, s51')
        for e in range(4):
            if e: a('s_add_u32 m0, m0, s55')
            a('buffer_load_dwordx4 %s, s[20:23], s54 offen lds' % v(16 + e))
        a('s_add_u32 m0, s49, s50')
        for e in range(8):
            if e: a('s_add_u32 m0, m0, s47')
            a('buffer_load_dwordx4 %s, s[24:27], s52 offen lds' % v(8 + e))
        a('s_add_u32 s45, s45, 1')
        a('s_cmp_eq_u32 s45, 10')
        a('s_cselect_b32 s45, 0, s45')
        a('s_add_u32 s49, s49, %d' % SLOT)
        a('s_cmp_eq_u32 s49, %d' % (3 * SLOT))
        a('s_cselect_b32 s49, 0, s49')
    if not cfg.touch:
        a('L1_ld_loop:')
        a('s_cmp_lt_u32 s48, 2')
        a('s_cbranch_scc1 L1_ld_nowait')
        a('s_waitcnt vmcnt(12)')
        a('s_barrier')
        a('L1_ld_nowait:')
        ld_stage()
        a('s_add_u32 s48, s48, 1')
        a('s_cmp_lt_u32 s48, 10')
        a('s_cbranch_scc1 L1_ld_loop')
        a('s_waitcnt vmcnt(12)')
    else:
        ld_stage()
        tl = []
        if cfg.touch:
            ta, tb = touch_setup(a, 's46', 32, 40)
            tl = list(zip([int(c) for c in str(cfg.tpos)[1:]], ta + tb))
        seq = []
        for j in range(10):
            if j >= 2: seq.append(('w', j - 2))
            seq.append(('d', j))
            seq += [('t', x) for p, x in tl if p == j]
        seq.append(('w', 8))
        last = max([p for p, x in tl] + [1]) + 3
        for i, x in enumerate(seq):
            if i == 0: continue
            if x[0] == 'd':
                ld_stage()
                if x[1] == last: break
            elif x[0] == 't': a(x[1])
            else:
                pos = seq.index(('d', x[1]))
                cnt = sum(12 if y[0] == 'd' else 1 if y[0] == 't' else 0 for y in seq[pos + 1:i])
                if x[1] + 2 == last:
                    assert cnt == 12
                    a('s_mov_b32 s48, %d' % last)
                    a('s_waitcnt vmcnt(12)')
                    a('L1_ld_loop:')
                else:
                    a('s_waitcnt vmcnt(%d)' % cnt)
                if cfg.lp and x[1] == 0: stamp(a, 1)
                if cfg.lp and x[1] == 1: stamp(a, 2)
                a('s_barrier')
        a('s_add_u32 s48, s48, 1')
        a('s_cmp_lt_u32 s48, 10')
        a('s_waitcnt vmcnt(12)')
        a('s_cbranch_scc1 L1_ld_loop')
    if not cfg.lp: stamp(a, 1)
    a('s_cmp_eq_u32 s44, 1')
    a('s_cselect_b32 s47, s38, 4')
    a('s_cmp_lt_u32 s47, 4')
    a('s_barrier')
    a('s_cbranch_scc1 L1_ld_gate')
    a('s_waitcnt vmcnt(0)')
    a('s_barrier')
    stamp_flush(a, 0, 16)
    a('s_endpgm')
    gen_gate(a)
    a('L1_consumer:')
    srd(a, 28, 16, WS_SIZE)
    a('s_and_b32 s46, s3, 1')
    a('s_lshr_b32 s47, s3, 1')
    a('v_lshrrev_b32 v1, 4, v0')
    a('v_and_b32 v2, 15, v0')
    a('v_bfe_u32 v3, v2, 1, 3')
    a('v_xor_b32 v3, v3, v1')
    a('v_lshlrev_b32 v3, 4, v3')
    a('v_lshl_add_u32 v3, v2, 7, v3')
    a('s_lshl_b32 s48, s46, 13')
    a('s_add_u32 s48, s48, %d' % XOFF)
    a('v_add_u32 %s, s48, v3' % v(VXA0))
    a('v_xor_b32 %s, 64, %s' % (v(VXA1), v(VXA0)))
    a('v_lshrrev_b32 v3, 2, v0')
    a('v_mul_u32_u24 v3, 0x420, v3')
    a('v_and_b32 v15, 3, v0')
    a('v_lshl_add_u32 %s, v15, 3, v3' % v(VWM))
    a('s_mov_b32 s51, %d' % (-2 * SLOT & 0xffffffff))
    a('s_mov_b32 s52, %d' % SLOT)
    for i in range(128): a('v_mov_b32 %s, 0' % v(ACC + i))
    a('s_cmp_eq_u32 s44, 1')
    a('s_cbranch_scc1 L1_ffn')
    a('s_mul_i32 s48, s47, 80')
    a('v_add_u32 %s, s48, %s' % (v(VWM), v(VWM)))
    a('v_add_u32 v3, s48, v3')
    a('v_and_b32 v16, 1, v15')
    a('v_mad_u32_u24 v3, v16, 40, v3')
    a('v_add_u32 %s, 352, v3' % v(VWV))
    a('v_lshrrev_b32 v16, 1, v15')
    a('v_mul_u32_u24 v16, 160, v16')
    a('v_add3_u32 %s, v3, v16, 32' % v(VWQ))
    a('v_lshlrev_b32 v16, 2, v1')
    a('v_sub_u32 v16, v2, v16')
    a('v_mov_b32 v17, %s' % f32(-1e30))
    for r in range(4):
        a('v_subrev_u32 v18, %d, v16' % r)
        a('v_cmp_gt_u32 vcc, 8, v18')
        a('v_cndmask_b32 %s, v17, 0, vcc' % v(240 + r))
        a('v_cmp_gt_i32 vcc, -8, v18')
        a('v_cndmask_b32 %s, v17, 0, vcc' % v(244 + r))
        a('v_cmp_le_i32 vcc, 0, v18')
        a('v_cndmask_b32 %s, 0, -1, vcc' % v(20 + r))
        a('v_mov_b32 %s, 0x3f803f80' % v(250 + r))
    a('v_mov_b32 v17, 0xffff')
    a('v_bfi_b32 v248, v17, v20, v21')
    a('v_bfi_b32 v249, v17, v22, v23')
    a('s_mul_i32 s55, s37, 57')
    a('s_cmp_eq_u32 s37, 0')
    a('s_cselect_b32 s53, 0, 7')
    a('s_mov_b32 s54, %d' % RSTRIDE)
    a('s_lshl_b32 s58, s38, 1')
    a('s_add_u32 s58, s58, s47')
    a('s_lshl_b32 s58, s58, 12')
    a('s_lshl_b32 s59, s46, 10')
    a('s_add_u32 s58, s58, s59')
    a('v_lshlrev_b32 v19, 8, v1')
    for t in range(4):
        a('v_add_u32 v16, %d, v2' % (16 * t))
        a('v_add_u32 v17, s55, v16')
        tok_addr(a, 9 + t, 17, 18, 16)
        a('v_add_u32 %s, v19, %s' % (v(9 + t), v(9 + t)))
    a('s_lshr_b32 s60, s38, 1')
    a('s_add_u32 s60, s60, 16')
    a('s_lshl_b32 s60, s60, 12')
    a('s_add_u32 s59, s59, s60')
    a('s_and_b32 s60, s38, 1')
    a('s_lshl_b32 s60, s60, 1')
    a('s_add_u32 s60, s60, s47')
    a('s_lshl_b32 s60, s60, 8')
    a('s_add_u32 s59, s59, s60')
    a('v_and_b32 v19, 1, v1')
    a('v_lshlrev_b32 v19, 3, v19')
    a('v_lshrrev_b32 v20, 1, v1')
    a('v_lshl_add_u32 v20, v20, 4, v2')
    for u in range(2):
        a('v_add_u32 v16, %d, v20' % (32 * u))
        a('v_add_u32 v17, s55, v16')
        tok_addr(a, 13 + u, 17, 18, 16)
        a('v_add_u32 %s, v19, %s' % (v(13 + u), v(13 + u)))
    for g in range(4):
        m = 0xffff << (16 * g)
        a('s_mov_b32 %s, 0x%x' % (s(64 + 2 * g), m & 0xffffffff))
        a('s_mov_b32 %s, 0x%x' % (s(65 + 2 * g), m >> 32))
    cs = 20 ** -0.5 * math.log2(math.e)
    a('s_mov_b32 s62, %s' % f32(cs))
    a('s_mov_b32 s63, %s' % f32(-cs))
    k1_mainloop(a, True, 'att')
    gen_attention(a)
    if cfg.prof: a('s_waitcnt vmcnt(0)')
    stamp_flush(a, 0, 16, 0)
    a('s_endpgm')
    a('L1_ffn:')
    a('s_lshl_b32 s48, s47, 8')
    a('v_add_u32 %s, s48, %s' % (v(VWM), v(VWM)))
    a('v_lshlrev_b32 v9, 4, v0')
    a('s_mul_i32 s58, s37, %d' % (2 * RSTRIDE))
    a('s_lshl_b32 s59, s38, 3')
    a('s_lshl_b32 s60, s47, 2')
    a('s_add_u32 s59, s59, s60')
    a('s_add_u32 s59, s59, 20')
    a('s_lshl_b32 s59, s59, 12')
    a('s_add_u32 s58, s58, s59')
    a('s_lshl_b32 s59, s46, 10')
    a('s_add_u32 s58, s58, s59')
    k1_mainloop(a, False, 'ffn')
    k = 0
    for m in range(4):
        for t in range(4):
            d = 16 + 4 * (k % 16); k += 1
            for h in range(2):
                A = acc(t, 2 * m + h)
                a('v_cvt_pk_bf16_f32 %s, %s, %s' % (v(d + 2 * h), v(A), v(A + 1)))
                a('v_cvt_pk_bf16_f32 %s, %s, %s' % (v(d + 2 * h + 1), v(A + 2), v(A + 3)))
            for i in range(4):
                a('v_pk_max_i16 %s, %s, 0' % (v(d + i), v(d + i)))
            a('s_add_u32 s59, s58, %d' % ((t >> 1) * RSTRIDE + m * 4096))
            a('buffer_store_dwordx4 %s, v9, s[28:31], s59 offen offset:%d' % (v(d, 4), (t & 1) * 2048) + stp())
    if cfg.prof: a('s_waitcnt vmcnt(0)')
    stamp_flush(a, 0, 16, 1)
    a('s_endpgm')
    gen_prep(a)
    a('L1_end:')
    a('s_endpgm')

def gen_attention(a):
    KK = lambda t: 16 + 6 * t
    Q0 = lambda t: 40 + 8 * t
    Q1 = lambda t: 44 + 8 * t
    VP = lambda h, t: 72 + 8 * h + 2 * t
    M = lambda u: 96 + u
    SC = lambda u: 112 + 8 * u
    SP = lambda u: 116 + 8 * u
    P = lambda u: 176 + 4 * u
    SUM = lambda u: 208 + 4 * u
    def cvt(d, A):
        a('v_cvt_pk_bf16_f32 %s, %s, %s' % (v(d), v(A), v(A + 1)))
        a('v_cvt_pk_bf16_f32 %s, %s, %s' % (v(d + 1), v(A + 2), v(A + 3)))
    def conv_qk(t):
        cvt(Q1(t), acc(t, 4)); cvt(KK(t) + 2, acc(t, 4))
        cvt(Q0(t), acc(t, 0)); cvt(Q1(t) + 2, acc(t, 1))
        a('v_permlane32_swap_b32 %s, %s' % (v(Q1(t)), v(KK(t) + 2)))
        a('v_permlane32_swap_b32 %s, %s' % (v(Q1(t) + 1), v(KK(t) + 3)))
        cvt(KK(t), acc(t, 2)); cvt(KK(t) + 4, acc(t, 3))
        for i in range(2):
            a('v_cndmask_b32 %s, 0, %s, s[64:65]' % (v(Q0(t) + 2 + i), v(Q1(t) + i)))
            a('v_cndmask_b32 %s, 0, %s, s[66:67]' % (v(Q1(t) + i), v(Q1(t) + i)))
    def conv_v(t):
        for h in range(3): cvt(VP(h, t), acc(t, 5 + h))
    for t in range(4): conv_qk(t)
    conv_v(0); conv_v(1)
    Kop = lambda h, t: v(KK(t) + 2 * h, 4)
    Qop = lambda h, t: v(Q0(t) if h == 0 else Q1(t), 4)
    mf = []
    for h in range(2):
        for t in range(4):
            u = 4 * h + t
            mf.append('v_mfma_f32_16x16x32_bf16 %s, %s, %s, v[240:243]' % (v(SC(u), 4), Kop(h, t), Qop(h, t)))
            if t: mf.append('v_mfma_f32_16x16x32_bf16 %s, %s, %s, v[244:247]' % (v(SP(u), 4), Kop(h, t - 1), Qop(h, t)))
    cv = []
    for t in (2, 3):
        for h in range(3):
            A = acc(t, 5 + h); d = VP(h, t)
            cv.append('v_cvt_pk_bf16_f32 %s, %s, %s' % (v(d), v(A), v(A + 1)))
            cv.append('v_cvt_pk_bf16_f32 %s, %s, %s' % (v(d + 1), v(A + 2), v(A + 3)))
    interleave(a, mf, cv)
    for u in range(8):
        if u & 3:
            for r in range(4): a('v_max_f32 %s, %s, %s' % (v(SC(u) + r), v(SC(u) + r), v(SP(u) + r)))
        a('v_max3_f32 %s, %s, %s, %s' % (v(M(u)), v(SC(u)), v(SC(u) + 1), v(SC(u) + 2)))
        a('v_max_f32 %s, %s, %s' % (v(M(u)), v(M(u)), v(SC(u) + 3)))
    G = (0, 4)
    for b in G:
        a('v_permlane32_swap_b32 %s, %s' % (v(M(b)), v(M(b + 1))))
        a('v_permlane32_swap_b32 %s, %s' % (v(M(b + 2)), v(M(b + 3))))
    for b in G:
        a('v_max_f32 %s, %s, %s' % (v(M(b)), v(M(b)), v(M(b + 1))))
        a('v_max_f32 %s, %s, %s' % (v(M(b + 2)), v(M(b + 2)), v(M(b + 3))))
    for b in G: a('v_permlane16_swap_b32 %s, %s' % (v(M(b)), v(M(b + 2))))
    for b in G: a('v_max_f32 %s, %s, %s' % (v(M(b)), v(M(b)), v(M(b + 2))))
    for b in G: a('v_mul_f32 %s, s63, %s' % (v(M(b + 2)), v(M(b))))
    for b in G: a('v_mul_f32 %s, s63, %s' % (v(M(b)), v(M(b))))
    for b in G: a('v_permlane16_swap_b32 %s, %s' % (v(M(b)), v(M(b + 2))))
    for b in G:
        a('v_mov_b32 %s, %s' % (v(M(b + 1)), v(M(b))))
        a('v_mov_b32 %s, %s' % (v(M(b + 3)), v(M(b + 2))))
    for b in G:
        a('v_permlane32_swap_b32 %s, %s' % (v(M(b)), v(M(b + 1))))
        a('v_permlane32_swap_b32 %s, %s' % (v(M(b + 2)), v(M(b + 3))))
    pend = []
    for u in range(8):
        h, t = u >> 2, u & 3
        for r in range(4): a('v_fma_f32 %s, %s, s62, %s' % (v(SC(u) + r), v(SC(u) + r), v(M(u))))
        for r in range(4):
            a('v_exp_f32 %s, %s' % (v(SC(u) + r), v(SC(u) + r)))
            if pend: a(pend.pop(0))
        for x in pend: a(x)
        if t == 0:
            cvt(P(u) + 2, SC(u))
            op = 'v_mfma_f32_16x16x16_bf16'; B = v(P(u) + 2, 2); n = 2; o = 0
        else:
            cvt(P(u), SC(u))
            for i in range(2): a('v_and_b32 %s, %s, %s' % (v(P(u) + 2 + i), v(248 + i), v(P(u) + i)))
            for i in range(2): a('v_bfi_b32 %s, %s, 0, %s' % (v(P(u) + i), v(248 + i), v(P(u) + i)))
            op = 'v_mfma_f32_16x16x32_bf16'; B = v(P(u), 4); n = 4; o = -2
        pend = ['%s %s, %s, %s, 0' % (op, v(SUM(u), 4), v(250, n), B),
                '%s %s, %s, %s, 0' % (op, v(SC(u), 4), v(VP(h, t) + o, n), B),
                '%s %s, %s, %s, 0' % (op, v(SP(u), 4), v(VP(2, t) + o, n), B)]
    for x in pend: a(x)
    for u in range(8): a('v_rcp_f32 %s, %s' % (v(SUM(u)), v(SUM(u))))
    for t in range(4):
        for h in range(2):
            u = 4 * h + t
            for i in range(2):
                a('v_pk_mul_f32 %s, %s, %s op_sel_hi:[1,0]' % (v(SC(u) + 2 * i, 2), v(SC(u) + 2 * i, 2), v(SUM(u), 2)))
        for h in range(2): cvt(16 + 4 * t + 2 * h, SC(4 * h + t))
        a('buffer_store_dwordx4 %s, %s, s[28:31], s58 offen' % (v(16 + 4 * t, 4), v(9 + t)) + stp(cfg.stm))
    for g in range(4):
        a('s_mov_b64 exec, %s' % s(64 + 2 * g, 2))
        for u2 in range(2):
            u = 4 * (g & 1) + 2 * u2 + (g >> 1)
            for i in range(2):
                a('v_pk_mul_f32 %s, %s, %s op_sel_hi:[1,0]' % (v(40 + 4 * u2 + 2 * i, 2), v(SP(u) + 2 * i, 2), v(SUM(u), 2)))
    a('s_mov_b64 exec, -1')
    for u2 in range(2):
        cvt(48 + 2 * u2, 40 + 4 * u2)
        a('buffer_store_dwordx2 %s, %s, s[28:31], s59 offen' % (v(48 + 2 * u2, 2), v(13 + u2)) + stp(cfg.str))

def gen_gate(a):
    GW, GX = 24, 64
    a('L1_ld_gate:')
    srd(a, 56, 10, 1280)
    srd(a, 28, 16, WS_SIZE)
    a('v_and_b32 v1, 7, v0')
    a('v_lshlrev_b32 v1, 4, v1')
    a('s_lshl_b32 s47, s38, 5')
    a('s_add_u32 s47, s47, s39')
    a('s_lshl_b32 s48, s46, 3')
    a('s_add_u32 s47, s47, s48')
    a('v_lshrrev_b32 v2, 3, v0')
    a('v_add_u32 v2, s47, v2')
    a('v_mul_u32_u24 v3, 0x500, v2')
    a('v_add_u32 v3, v3, v1')
    a('s_waitcnt vmcnt(0)')
    a('s_barrier')
    for i in range(10):
        a('buffer_load_dwordx4 %s, v1, s[56:59], 0 offen offset:%d' % (v(GW + 4 * i, 4), 128 * i))
    for i in range(10):
        a('buffer_load_dwordx4 %s, v3, s[20:23], 0 offen offset:%d' % (v(GX + 4 * i, 4), 128 * i))
    a('v_mov_b32 v9, 0')
    a('v_mov_b32 v10, 0')
    a('s_barrier')
    a('s_waitcnt vmcnt(0)')
    for i in range(40):
        a('v_dot2_f32_bf16 %s, %s, %s, %s' % (v(9 + (i & 1)), v(GX + i), v(GW + i), v(9 + (i & 1))))
    a('v_add_f32 v9, v9, v10')
    for pat in ('quad_perm:[1,0,3,2]', 'quad_perm:[2,3,0,1]', 'row_half_mirror'):
        a('v_add_f32_dpp v11, v9, v9 %s row_mask:0xf bank_mask:0xf' % pat)
        a('v_mov_b32 v9, v11')
    a('v_mul_f32 v9, %s, v9' % f32(-math.log2(math.e)))
    a('v_exp_f32 v9, v9')
    a('v_add_f32 v9, 1.0, v9')
    a('v_rcp_f32 v9, v9')
    a('v_lshlrev_b32 v2, 2, v2')
    a('v_mov_b32 v3, %s' % hex(BAD))
    a('v_cmp_eq_u32 vcc, 0, v1')
    a('v_cndmask_b32 v2, v3, v2, vcc')
    a('s_mov_b32 s60, %d' % WS_G)
    a('buffer_store_dword v9, v2, s[28:31], s60 offen' + stp(cfg.stg))
    if cfg.prof: a('s_waitcnt vmcnt(0)')
    stamp_flush(a, 0, 16)
    a('s_endpgm')

def gen_prep(a):
    PITCH = 176
    LW = 32 * PITCH
    a('L1_prep:')
    a('s_sub_u32 s37, s34, 30')
    a('s_lshl_b32 s37, s37, 3')
    a('s_add_u32 s37, s37, s33')
    a('s_waitcnt lgkmcnt(0)')
    srd(a, 24, 8, 640 * 1280)
    srd(a, 40, 14, 1536 * 1280)
    srd(a, 28, 16, WS_SIZE)
    if cfg.touch:
        a('s_cmp_lt_u32 s3, 4')
        a('s_cbranch_scc0 L1_prep_not')
        srd(a, 20, 4, 2048 * 1280)
        ta, tb = touch_setup(a, 's3', 124, 132)
        for x in ta + tb: a(x)
        a('L1_prep_not:')
    U = lambda u: 24 + 20 * u
    PITCH = 1280 + 176
    LB = 32 * PITCH
    pol = stp(cfg.pnt)
    a('v_lshlrev_b32 v7, 4, v0')
    a('v_add_u32 v8, 4096, v7')
    a('s_lshr_b32 s48, s3, 1')
    a('s_and_b32 s49, s3, 1')
    a('s_lshl_b32 s50, s48, 2')
    a('s_lshl_b32 s51, s49, 4')
    a('s_add_u32 s51, s51, s50')
    a('s_mul_i32 s55, s37, 96')
    a('s_add_u32 s55, s55, s51')
    a('s_mul_i32 s55, s55, 1280')
    def ld5(u, sr):
        for e in range(5):
            a('buffer_load_dwordx4 %s, %s, %s, s55 offen offset:%d' % (v(U(u) + 4 * e, 4), v(7 if e < 4 else 8), sr, (e & 3) * 1024) + pol)
    for u in range(3):
        ld5(u, 's[40:43]')
        if u < 2: a('s_add_u32 s55, s55, %d' % (32 * 1280))
    a('s_mul_i32 s51, s49, 20')
    a('s_mul_i32 s55, s37, 40')
    a('s_add_u32 s55, s55, s50')
    a('s_add_u32 s55, s55, s51')
    a('s_mul_i32 s55, s55, 1280')
    ld5(3, 's[24:27]')
    a('s_and_b32 s56, s37, 3')
    a('s_lshr_b32 s61, s37, 2')
    a('s_mul_i32 s55, s56, 160')
    a('s_mul_i32 s50, s48, 40')
    a('s_add_u32 s55, s55, s50')
    a('s_add_u32 s55, s55, s51')
    a('s_add_u32 s55, s55, 16')
    a('s_mul_i32 s55, s55, 1280')
    a('s_mul_i32 s50, s61, 320')
    a('s_add_u32 s55, s55, s50')
    a('s_movk_i32 s52, %d' % PITCH)
    a('s_mul_i32 s53, s3, %d' % (4 * PITCH))
    a('s_add_u32 s54, s53, s50')
    a('s_movk_i32 s57, 1280')
    a('v_mul_u32_u24 v2, 13, v0')
    a('v_lshrrev_b32 v2, 8, v2')
    a('v_mul_u32_u24 v3, 20, v2')
    a('v_sub_u32 v1, v0, v3')
    a('v_lshlrev_b32 v1, 4, v1')
    a('v_mad_u32_u24 v9, v2, s57, v1')
    a('v_mad_u32_u24 v11, v2, s52, v1')
    a('v_add_u32 v11, s54, v11')
    a('v_add_u32 v10, %d, v7' % (3 * 1280 + 64))
    a('v_mov_b32 v3, %s' % hex(BAD))
    a('v_cmp_gt_u32 vcc, 16, v0')
    a('v_cndmask_b32 v10, v3, v10, vcc')
    a('buffer_load_dwordx4 %s, v9, s[24:27], s55 offen' % v(U(4), 4) + pol)
    a('buffer_load_dwordx4 %s, v10, s[24:27], s55 offen' % v(U(4) + 4, 4) + pol)
    a('s_add_u32 s54, s54, %d' % (3 * PITCH + 64))
    a('v_add_u32 v12, s54, v7')
    a('s_movk_i32 s50, 205')
    for e in range(5):
        a('v_add_u32 v1, %d, v0' % (64 * e))
        a('v_mul_u32_u24 v2, s50, v1')
        a('v_lshrrev_b32 v2, 14, v2')
        a('v_mul_u32_u24 v2, %d, v2' % (PITCH - 1280))
        a('v_lshl_add_u32 v1, v1, 4, v2')
        a('v_add_u32 %s, s53, v1' % v(19 + e))
    a('s_mul_i32 s49, s3, 160')
    a('v_lshrrev_b32 v4, 4, v0')
    a('v_bfe_u32 v5, v0, 2, 2')
    a('v_lshl_add_u32 v4, v4, 3, v5')
    a('v_mul_u32_u24 v4, s52, v4')
    a('v_add_u32 v4, s49, v4')
    a('v_and_b32 v5, 3, v0')
    a('v_lshl_add_u32 v6, v5, 3, v4')
    a('v_lshl_add_u32 v5, v5, 4, v4')
    a('s_mul_i32 s59, s3, %d' % NBSTRIDE)
    a('s_add_u32 s59, s59, %d' % WS_B)
    for u in range(5):
        bo = (u & 1) * LB
        a('s_waitcnt vmcnt(%d)' % (17 if u < 4 else 20))
        if u < 4:
            for e in range(5):
                a('ds_write_b128 %s, %s offset:%d' % (v(19 + e), v(U(u) + 4 * e, 4), bo))
        else:
            a('ds_write_b128 v11, %s offset:%d' % (v(U(u), 4), bo))
            a('s_mov_b64 exec, 0xffff')
            a('ds_write_b128 v12, %s offset:%d' % (v(U(u) + 4, 4), bo))
            a('s_mov_b64 exec, -1')
        if u < 3:
            a('s_mul_i32 s60, s37, 3'); a('s_add_u32 s60, s60, %d' % (20 + u))
        elif u == 3:
            a('s_mov_b32 s60, s37')
        else:
            a('s_add_u32 s60, s56, 16')
        a('s_mul_i32 s60, s60, 5120')
        a('s_add_u32 s60, s60, s59')
        a('s_waitcnt lgkmcnt(0)')
        a('s_barrier')
        if u == 4:
            a('s_cmp_lg_u32 s61, s48')
            a('s_cbranch_scc1 L1_prep_done')
        for nt in range(5):
            for h in range(2):
                if nt < 4: reg, off = 5, 64 * (nt >> 1) + 8 * (nt & 1)
                else: reg, off = 6, 128
                a('ds_read_b64_tr_b16 %s, %s offset:%d' % (v(U(u) + 4 * nt + 2 * h, 2), v(reg), bo + off + h * 4 * PITCH))
        a('s_waitcnt lgkmcnt(0)')
        for nt in range(5):
            a('buffer_store_dwordx4 %s, %s, s[28:31], s60 offen offset:%d' % (v(U(u) + 4 * nt, 4), v(7 if nt < 4 else 8), (nt & 3) * 1024) + stp())
    a('L1_prep_done:')
    if cfg.prof: a('s_waitcnt vmcnt(0)')
    stamp_flush(a, 0, 16, 3)
    a('s_endpgm')

def gen_k2(a):
    D = cfg.k2depth
    RING = 16
    AC = RING + 36 * D
    accr = lambda m, nt: AC + (m * 5 + nt) * 4
    Bq = lambda q, nt: RING + 36 * q + 4 * nt
    Aq = lambda q, m: RING + 36 * q + 20 + 4 * m
    a('.globl %s' % K2); a('.p2align 8'); a('.type %s,@function' % K2)
    a('%s:' % K2)
    a('s_cmp_ge_u32 s2, 256')
    a('s_cbranch_scc1 L2_end')
    stamp(a, 0)
    a('s_load_dwordx2 s[4:5], s[0:1], 72')
    a('s_load_dwordx2 s[6:7], s[0:1], 56')
    a('v_lshrrev_b32 v1, 6, v0')
    a('v_and_b32 v0, 63, v0')
    a('v_readfirstlane_b32 s3, v1')
    if cfg.scr & 2:
        a('s_lshr_b32 s16, s2, 5'); a('s_and_b32 s17, s2, 31')
    else:
        a('s_and_b32 s16, s2, 7')
        a('s_lshr_b32 s17, s2, 3')
    a('s_and_b32 s18, s16, 1')
    a('s_lshl_b32 s18, s18, 2')
    a('s_and_b32 s19, s17, 3')
    a('s_add_u32 s18, s18, s19')
    a('s_lshr_b32 s19, s16, 1')
    a('s_lshl_b32 s19, s19, 3')
    a('s_lshr_b32 s20, s17, 2')
    a('s_add_u32 s19, s19, s20')
    a('s_lshl_b32 s20, s3, 4')
    a('s_add_u32 s20, s20, 4')
    a('s_cmp_eq_u32 s3, 0')
    a('s_cselect_b32 s20, 0, s20')
    if cfg.k2prio:
        a('s_cbranch_scc0 L2_noprio')
        a('s_setprio 3')
        a('L2_noprio:')
    a('s_cselect_b32 s21, %d, %d' % (20 // D - 1, 16 // D - 1))
    a('s_mul_i32 s22, s19, %d' % RSTRIDE)
    a('s_lshl_b32 s23, s20, 12')
    a('s_add_u32 s22, s22, s23')
    a('s_mul_i32 s23, s18, %d' % NBSTRIDE)
    a('s_mul_i32 s24, s20, 5120')
    a('s_add_u32 s23, s23, s24')
    a('s_add_u32 s23, s23, %d' % WS_B)
    a('v_lshlrev_b32 v2, 4, v0')
    a('v_add_u32 v3, 4096, v2')
    for m in range(4):
        a('s_add_u32 s24, s3, %d' % m)
        a('s_and_b32 s24, s24, 3')
        a('s_lshl_b32 s25, s24, 10')
        a('v_add_u32 %s, s25, v2' % v(4 + m))
        if m:
            a('s_mul_i32 s25, s24, 15360')
            a('s_add_u32 s25, s25, %d' % ((m - 1) * 5120))
            a('v_add_u32 %s, s25, v2' % v(8 + m))
    a('s_lshl_b32 s24, s19, 6')
    a('s_lshr_b32 s25, s3, 1')
    a('s_lshl_b32 s25, s25, 5')
    a('s_add_u32 s24, s24, s25')
    a('s_and_b32 s25, s3, 1')
    a('s_add_u32 s24, s24, s25')
    a('v_and_b32 v12, 15, v0')
    a('v_lshl_add_u32 v12, v12, 1, s24')
    a('v_lshlrev_b32 v13, 2, v12')
    a('s_mov_b32 s26, %d' % WS_G)
    a('s_movk_i32 s27, 4096')
    a('s_waitcnt lgkmcnt(0)')
    srd(a, 8, 4, WS_SIZE)
    def ldB(q, nt): return 'buffer_load_dwordx4 %s, %s, s[8:11], s23 offen offset:%d' % (v(Bq(q, nt), 4), v(2 if nt < 4 else 3), (nt & 3) * 1024)
    def ldA(q, m): return 'buffer_load_dwordx4 %s, %s, s[8:11], s22 offen' % (v(Aq(q, m), 4), v(4 + m))
    adv = ['s_add_u32 s23, s23, 5120', 's_add_u32 s22, s22, s27']
    a('buffer_load_dword v14, v13, s[8:11], s26 offen')
    for q in range(D):
        for nt in range(5): a(ldB(q, nt))
        for m in range(4): a(ldA(q, m))
        for x in adv: a(x)
    srd(a, 12, 6, 2048 * 1280)
    for i in range(80): a('v_mov_b32 %s, 0' % v(AC + i))
    def step(q, load, cnt):
        a('s_waitcnt vmcnt(%d)' % cnt)
        for nt in range(5):
            for m in range(4):
                A = v(accr(m, nt), 4)
                a('v_mfma_f32_16x16x32_bf16 %s, %s, %s, %s' % (A, v(Bq(q, nt), 4), v(Aq(q, m), 4), A))
                if load and nt == 4: a(ldA(q, m)) if False else None
            if load: a(ldB(q, nt))
        if load:
            for m in range(4): a(ldA(q, m))
            for x in adv: a(x)
    if cfg.prof: a('s_waitcnt vmcnt(%d)' % (9 * (D - 1)))
    stamp(a, 1)
    a('L2_loop:')
    for q in range(D): step(q, True, 9 * (D - 1))
    a('s_sub_u32 s21, s21, 1')
    a('s_cmp_lg_u32 s21, 0')
    a('s_cbranch_scc1 L2_loop')
    for q in range(D): step(q, False, 9 * (D - 1 - q))
    stamp(a, 2)
    for m in range(1, 4):
        for nt in range(5):
            a('ds_write_b128 %s, %s offset:%d' % (v(8 + m), v(accr(m, nt), 4), nt * 1024))
    a('v_sub_f32 v15, 1.0, v14')
    for m in range(4):
        a('s_cmp_eq_u32 s3, %d' % m)
        a('s_cselect_b64 vcc, -1, 0')
        a('v_cndmask_b32 %s, v15, v14, vcc' % v(16 + 2 * m))
    a('s_mul_i32 s25, s3, 15360')
    a('v_add_u32 v8, s25, v2')
    a('s_mul_i32 s25, s18, 160')
    a('v_mul_u32_u24 v12, 0x500, v12')
    a('v_lshrrev_b32 v13, 4, v0')
    a('v_lshl_add_u32 v9, v13, 3, v12')
    a('v_lshl_add_u32 v12, v13, 4, v12')
    for i in range(10):
        A = AC + 2 * i
        a('v_pk_mul_f32 %s, %s, v[16:17] op_sel_hi:[1,0]' % (v(A, 2), v(A, 2)))
    a('s_waitcnt lgkmcnt(0)')
    a('s_barrier')
    for m in range(1, 4):
        for nt in range(5):
            a('ds_read_b128 %s, v8 offset:%d' % (v(accr(m, nt), 4), ((m - 1) * 5 + nt) * 1024))
    for m in range(1, 4):
        a('s_waitcnt lgkmcnt(%d)' % (5 * (3 - m)))
        for i in range(10):
            A = AC + 2 * i
            a('v_pk_fma_f32 %s, %s, %s, %s op_sel_hi:[1,0,1]' % (v(A, 2), v(A + 20 * m, 2), v(16 + 2 * m, 2), v(A, 2)))
    for i in range(10):
        a('v_cvt_pk_bf16_f32 %s, %s, %s' % (v(24 + i), v(AC + 2 * i), v(AC + 2 * i + 1)))
    a('buffer_store_dwordx4 v[24:27], v12, s[12:15], s25 offen' + stp(cfg.k2st))
    a('buffer_store_dwordx4 v[28:31], v12, s[12:15], s25 offen offset:64' + stp(cfg.k2st))
    a('buffer_store_dwordx2 v[32:33], v9, s[12:15], s25 offen offset:128' + stp(cfg.k2st))
    if cfg.prof: a('s_waitcnt vmcnt(0)')
    stamp_flush(a, 1, 4)
    a('L2_end:')
    a('s_endpgm')
    return AC + 80

def desc(name, nv):
    nv = (nv + 7) // 8 * 8
    return '''.p2align 6
.amdhsa_kernel %s
  .amdhsa_next_free_vgpr %d
  .amdhsa_next_free_sgpr 102
  .amdhsa_accum_offset %d
  .amdhsa_group_segment_fixed_size 0
  .amdhsa_kernarg_size 80
  .amdhsa_user_sgpr_count 2
  .amdhsa_user_sgpr_kernarg_segment_ptr 1
  .amdhsa_system_sgpr_workgroup_id_x 1
.end_amdhsa_kernel
''' % (name, nv, nv)

def align8(body):
    import subprocess, re, tempfile, os
    d = tempfile.mkdtemp()
    open(d + '/a.s', 'w').write('.amdgcn_target "amdgcn-amd-amdhsa--gfx950"\n.text\n' + re.sub(r'^\.p2align.*$', '', body, flags=re.M))
    subprocess.check_call(['clang', '-x', 'assembler', '-target', 'amdgcn-amd-amdhsa', '-mcpu=gfx950', '-c', d + '/a.s', '-o', d + '/a.o'])
    dis = subprocess.check_output(['llvm-objdump', '-d', d + '/a.o'], text=True)
    sizes = [4 * len(m.group(1).split()) for m in re.finditer(r'// [0-9A-F]+: ([0-9A-F ]+)', dis)]
    lines = body.split('\n')
    idx = [i for i, l in enumerate(lines) if l.startswith('    ')]
    assert len(idx) == len(sizes), (len(idx), len(sizes))
    size = dict(zip(idx, sizes))
    off = 0; run = []; np_ = nn = 0
    for i, l in enumerate(lines):
        if l.startswith('.p2align'): off = 0; run = []; continue
        if i not in size:
            continue
        if size[i] == 4:
            run.append((i, off)); off += 4
            continue
        if off % 8 and run:
            cand = [j for j, o in run if o % 8 == 0 and lines[j].split()[0].startswith('v_') and not lines[j].split()[0].startswith(('v_readfirstlane', 'v_fmac', 'v_dot2c'))]
            dead = [j for j, o in run if lines[j].split()[0] in ('s_endpgm', 's_branch')]
            k = idx.index(i); n8 = 0
            par = 0
            while k < len(idx) and n8 < 3:
                if size[idx[k]] == 8:
                    if par: break
                    n8 += 1
                else: par ^= 1
                k += 1
            if dead:
                lines[dead[-1]] += '\n    s_nop 0'; off += 4
            elif cand:
                j = cand[-1]; op = lines[j].split()[0]
                lines[j] = lines[j].replace(op, op + '_e64', 1); np_ += 1; off += 4
            elif n8 >= 3:
                j = run[0][0]
                lines[j] = '    s_nop 0\n' + lines[j]; nn += 1; off += 4
        off += 8; run = []
    print('align: promoted', np_, 'nops', nn)
    return '\n'.join(lines)

def main():
    for arg in sys.argv[2:]:
        k, val = arg.split('='); setattr(cfg, k, int(val))
    a = Asm()
    gen_k1(a)
    nv2 = gen_k2(a)
    body = a.finish()
    hdr = '''; gated mix of sliding-window dilated attention and ReLU FFN, two launches.
; launch 1: qkv projection + attention, FFN up projection + relu, weight re-layout + gate
; launch 2: output projections (wo, w2) and gated mix
; @launch kernel=%s grid=(256,1,1) block=(512,1,1) lds=%d
; @launch kernel=%s grid=(256,1,1) block=(256,1,1) lds=%d
.amdgcn_target "amdgcn-amd-amdhsa--gfx950"
.text
''' % (K1, 3 * SLOT, K2, 61440)
    if cfg.align: body = align8(body)
    out = hdr + body + '.section .rodata,"a"\n' + desc(K1, 256) + desc(K2, nv2)
    open(sys.argv[1], 'w').write(out)
    print('nops inserted:', a.nops, 'bytes', len(out))

main()
```

```python
import sys, math, struct
from asmlib import Asm, v, s

NAME = 'gated_mix__sliding_local_dilated__dense_activation_relu__prompt'
K1 = NAME + '_kernel'
K2 = 'gm_stage2_kernel'

WS_A = 0
WS_B = 0x900000
WS_G = 0xC00000
WS_SIZE = 0xC02000
RSTRIDE = 68 * 4096
NBSTRIDE = 68 * 5120
SLOT = 50176
XOFF = 33792
BAD = 0x40000000

class Cfg:
    ra = 1
    rb = 5
    rc = 3
    rd = 5
    prof = 0
    k2depth = 4
    k2prio = 1
    bal = 0
    tst = 0
    la = 0
    lb = 0
    sst = 0
    e2 = 0
    ba = 2
    d0 = 4
    d1 = 4
    pw = 35
    scr = 0
    pnt = 0
    pdel = 0
    ps = 0
    align = 1
    xcc = 0
    stm = 0
    str = 0
    stg = 0
    sel = -1
    sel0 = 0
    tpos = 100022222
    pf = 0
    pf0 = 1
    pf1 = 0
    pfo = 1
    pfx = 0
    rx = 0
    rmask = 15
    rsh = 0
    touch = 0
    lp = 0
    k2st = 0
    stpol = 1
cfg = Cfg()

def stp(p=None):
    return ['', ' sc1', ' sc0 sc1', ' nt', ' sc1 nt', ' sc0 sc1 nt', ' sc0'][cfg.stpol if p is None else p]

def f32(x):
    return '0x%08x' % struct.unpack('<I', struct.pack('<f', x))[0]

def srd(a, d, lo, size):
    a('s_mov_b32 %s, %s' % (s(d), s(lo)))
    a('s_mov_b32 %s, %s' % (s(d + 1), s(lo + 1)))
    a('s_mov_b32 %s, %d' % (s(d + 2), size))
    a('s_mov_b32 %s, 0x00020000' % s(d + 3))

PROF = 0xD00000
def stamp(a, i, alt=None):
    if alt is not None and alt != cfg.sst: return
    if cfg.prof:
        a('s_memrealtime %s' % s(80 + 2 * i, 2))
        a('s_memtime %s' % s(72 + 2 * i, 2))
def stamp_flush(a, kern, wsreg, role=2):
    if not cfg.prof: return
    a('s_memrealtime s[86:87]')
    a('s_memtime s[78:79]')
    if cfg.prof == 3 and kern == 1:
        a('s_or_b32 s92, s2, s3')
        a('s_cmp_lg_u32 s92, 0')
        a('s_cbranch_scc1 L2_end')
        a('s_load_dwordx2 s[88:89], s[0:1], 64')
        a('s_mov_b32 s90, 256'); a('s_mov_b32 s91, 0x00020000')
        a('s_mov_b32 s92, s4'); a('s_mov_b32 s93, s5'); a('s_mov_b32 s94, 0x1000000'); a('s_mov_b32 s95, 0x00020000')
        a('s_mov_b32 s96, %d' % PROF)
        a('s_waitcnt lgkmcnt(0)')
        for j in range(4):
            a('v_add_u32 v1, %d, v0' % (64 * j))
            a('v_lshlrev_b32 v2, 9, v1')
            a('buffer_load_dwordx4 v[4:7], v2, s[92:95], s96 offen')
            a('buffer_load_dwordx4 v[8:11], v2, s[92:95], s96 offen offset:16')
            a('v_mov_b32 v3, 0')
            a('v_cmp_le_u32 vcc, 144, v1')
            a('v_cndmask_b32 v3, v3, 16, vcc')
            a('v_cmp_le_u32 vcc, 240, v1')
            a('v_cndmask_b32 v3, v3, 48, vcc')
            a('s_waitcnt vmcnt(0)')
            a('v_not_b32 v4, v4')
            for i in range(4):
                a('buffer_atomic_umax %s, v3, s[88:91], 0 offen offset:%d' % (v(4 + 2 * i), 4 * i))
            a('s_waitcnt vmcnt(0)')
        a('s_mov_b64 exec, 1')
        a('v_mov_b32 v0, 0')
        a('s_not_b32 s80, s80')
        for i in range(4):
            a('v_mov_b32 %s, %s' % (v(4 + i), s(80 + 2 * i)))
            a('buffer_atomic_umax %s, v0, s[88:91], 0 offen offset:%d' % (v(4 + i), role * 16 + 4 * i))
        if cfg.sel >= 0:
            a('s_waitcnt vmcnt(0)')
            a('v_mov_b32 v8, 0'); a('v_mov_b32 v9, 0')
            a('buffer_atomic_umax v8, v0, s[88:91], 0 offen offset:%d sc0' % (4 * cfg.sel0))
            a('buffer_atomic_umax v9, v0, s[88:91], 0 offen offset:%d sc0' % (4 * cfg.sel))
            a('s_waitcnt vmcnt(0)')
            a('v_readfirstlane_b32 s92, v8'); a('v_readfirstlane_b32 s93, v9')
            if cfg.sel0 % 4 == 0: a('s_not_b32 s92, s92')
            if cfg.sel % 4 == 0: a('s_not_b32 s93, s93')
            a('s_sub_u32 s92, s93, s92')
            a('s_min_u32 s92, s92, 5000')
            a('s_lshl_b32 s92, s92, 2')
            a('s_memrealtime s[94:95]')
            a('s_waitcnt lgkmcnt(0)')
            a('L2_spin:')
            a('s_memrealtime s[96:97]')
            a('s_waitcnt lgkmcnt(0)')
            a('s_sub_u32 s96, s96, s94')
            a('s_cmp_lt_u32 s96, s92')
            a('s_cbranch_scc1 L2_spin')
        return
    if cfg.prof == 2:
        a('s_load_dwordx2 s[88:89], s[0:1], 64')
        a('s_mov_b32 s90, 256'); a('s_mov_b32 s91, 0x00020000')
        a('s_waitcnt lgkmcnt(0)')
        a('s_mov_b64 exec, 1')
        a('v_mov_b32 v0, 0')
        a('s_not_b32 s80, s80')
        for i in range(4):
            a('v_mov_b32 %s, %s' % (v(4 + i), s(80 + 2 * i)))
            a('buffer_atomic_umax %s, v0, s[88:91], 0 offen offset:%d' % (v(4 + i), role * 16 + 4 * i))
        return
    if cfg.xcc:
        a('s_waitcnt lgkmcnt(0)')
        a('s_getreg_b32 s80, hwreg(HW_REG_XCC_ID, 0, 4)')
        a('s_sub_u32 s80, s80, s2'); a('s_and_b32 s80, s80, 7'); a('s_mul_i32 s80, s80, 100'); a('s_mov_b32 s82, s80')
    a('s_mov_b32 s88, %s' % s(wsreg)); a('s_mov_b32 s89, %s' % s(wsreg + 1))
    a('s_mov_b32 s90, 0x1000000'); a('s_mov_b32 s91, 0x00020000')
    a('s_lshl_b32 s92, s2, 3'); a('s_add_u32 s92, s92, s3'); a('s_lshl_b32 s92, s92, 6')
    a('s_add_u32 s92, s92, %d' % (PROF + kern * 256 * 8 * 64))
    a('s_waitcnt lgkmcnt(0)')
    if cfg.ps and role < 2 and kern == 0:
        a('v_writelane_b32 v254, s74, 0'); a('v_writelane_b32 v255, s72, 0')
        a('s_mov_b64 exec, 0xffff')
        a('v_mbcnt_lo_u32_b32 v0, -1, 0'); a('v_lshlrev_b32 v0, 3, v0')
        a('s_sub_u32 s93, s92, %d' % PROF); a('s_lshl_b32 s93, s93, 1'); a('s_add_u32 s93, s93, %d' % (PROF + 0x100000))
        a('buffer_store_dwordx2 v[254:255], v0, s[88:91], s93 offen')
    a('s_mov_b64 exec, 1')
    a('v_mov_b32 v0, 0')
    for i in range(8): a('v_mov_b32 %s, %s' % (v(4 + i), s(80 + i)))
    a('buffer_store_dwordx4 v[4:7], v0, s[88:91], s92 offen')
    a('buffer_store_dwordx4 v[8:11], v0, s[88:91], s92 offen offset:16')
    for i in range(8): a('v_mov_b32 %s, %s' % (v(12 + i), s(72 + i)))
    a('buffer_store_dwordx4 v[12:15], v0, s[88:91], s92 offen offset:32')
    a('buffer_store_dwordx4 v[16:19], v0, s[88:91], s92 offen offset:48')

def interleave(a, mf, rd, first=1, per=1):
    rd = list(rd)
    for i, m in enumerate(mf):
        a(m)
        for _ in range(per):
            if rd: a(rd.pop(0))
    for x in rd: a(x)

SETS = (16, 64)
ACC = 112
def acc(t, n): return ACC + (t * 8 + n) * 4
VXA0, VXA1, VWM, VWQ, VWV = 4, 5, 6, 7, 8

def k1_reads(att, st, ks):
    base = SETS[st]
    xa = VXA1 if ks else VXA0
    r = []
    xs = ['ds_read_b128 %s, %s offset:%d' % (v(base + 4 * t, 4), v(xa), t * 2048) for t in range(4)]
    ws = []
    for n in range(8):
        if att:
            reg, off = [(VWM, 0), (VWM, 40), (VWM, 160), (VWM, 200), (VWQ, 0), (VWM, 320), (VWM, 360), (VWV, 0)][n]
        else:
            reg, off = VWM, 32 * n
        for h in range(2):
            ws.append('ds_read_b64_tr_b16 %s, %s offset:%d' % (v(base + 16 + 4 * n + 2 * h, 2), v(reg), off + ks * 16896 + h * 512))
    r = ws[:2] + xs + ws[2:]
    return r

def k1_mfmas(att, st):
    base = SETS[st]
    m = []
    for n in range(8):
        for t in range(4):
            W = v(base + 16 + 4 * n, 4); X = v(base + 4 * t, 4); A = v(acc(t, n), 4)
            if att and n >= 5:
                m.append('v_mfma_f32_16x16x32_bf16 %s, %s, %s, %s' % (A, X, W, A))
            else:
                m.append('v_mfma_f32_16x16x32_bf16 %s, %s, %s, %s' % (A, W, X, A))
    return m

def k1_mainloop(a, att, tag):
    a('s_barrier')
    stamp(a, 1)
    for x in k1_reads(att, 0, 0): a(x)
    a('s_mov_b32 s48, 0')
    a('s_mov_b32 s49, 0')
    a('s_waitcnt lgkmcnt(0)')
    a('L_%s_loop:' % tag)
    pre = ['s_add_u32 s49, s49, 1\ns_cmp_eq_u32 s49, 3', 's_cselect_b32 s50, s51, s52\ns_cselect_b32 s49, 0, s49']
    adv = ['v_add_u32 %s, s50, %s' % (v(r), v(r)) for r in ([VXA0, VXA1, VWM, VWQ, VWV] if att else [VXA0, VXA1, VWM])]
    interleave(a, k1_mfmas(att, 0), k1_reads(att, 1, 1) + pre + adv)
    a('s_waitcnt lgkmcnt(0)')
    if cfg.ps: a('s_memtime s[96:97]')
    a('s_barrier')
    if cfg.ps: a('s_memtime s[94:95]')
    interleave(a, k1_mfmas(att, 1), k1_reads(att, 0, 0) + ['s_add_u32 s48, s48, 1\ns_cmp_lt_u32 s48, 10'])
    a('s_waitcnt lgkmcnt(0)')
    if cfg.ps:
        a('s_mov_b32 m0, s48'); a('s_nop 3'); a('v_writelane_b32 v254, s94, m0'); a('v_writelane_b32 v255, s96, m0')
    a('s_cbranch_scc1 L_%s_loop' % tag)
    stamp(a, 2)

def tok_addr(a, dst, vj, tmp, vloc):
    a('v_lshrrev_b32 %s, 5, %s' % (v(tmp), v(vj)))
    a('v_mul_u32_u24 %s, s54, %s' % (v(dst), v(tmp)))
    a('v_and_b32 %s, 16, %s' % (v(tmp), v(vj)))
    a('v_lshl_add_u32 %s, %s, 7, %s' % (v(dst), v(tmp), v(dst)))
    a('v_and_b32 %s, 15, %s' % (v(tmp), v(vj)))
    a('v_lshl_add_u32 %s, %s, 4, %s' % (v(dst), v(tmp), v(dst)))
    a('v_cmp_gt_u32 vcc, 0x400, %s' % v(vj))
    a('v_cmp_le_u32 s[56:57], s53, %s' % v(vloc))
    a('s_and_b64 vcc, vcc, s[56:57]')
    a('v_mov_b32 %s, %s' % (v(tmp), hex(BAD)))
    a('v_cndmask_b32 %s, %s, %s, vcc' % (v(dst), v(tmp), v(dst)))

def touch_setup(a, wreg, va, vd):
    srd(a, 56, 6, 640 * 3840)
    srd(a, 60, 12, 640 * 3072)
    a('s_lshl_b32 s64, s33, 7')
    a('s_lshl_b32 s65, s34, 2')
    a('s_add_u32 s64, s64, s65')
    a('s_add_u32 s64, s64, %s' % wreg)
    if cfg.touch >= 3:
        sh = 7 if cfg.touch in (3, 5) else 6
        per = 128 >> sh
        a('v_lshlrev_b32 %s, %d, v0' % (v(va), sh))
        a('v_mov_b32 %s, %s' % (v(va + 5), hex(BAD)))
        for i, (nl, base) in enumerate(((20, 0), (17, 64 * 3840), (14, 64 * 3072))):
            a('s_mul_i32 s65, s64, %d' % (nl * 128))
            a('s_add_u32 s65, s65, %d' % base)
            a('v_add_u32 %s, s65, %s' % (v(va + 1 + i), v(va)))
            a('v_cmp_gt_u32 vcc, %d, v0' % (nl * per))
            a('v_cndmask_b32 %s, %s, %s, vcc' % (v(va + 1 + i), v(va + 5), v(va + 1 + i)))
        L = lambda i, sr: 'buffer_load_dword %s, %s, %s, 0 offen' % (v(vd + i), v(va + 1 + i), sr)
        return [L(0, 's[20:23]'), L(1, 's[56:59]'), L(2, 's[60:63]')], []
    a('s_lshl_b32 s65, s64, 10')
    a('v_lshl_add_u32 %s, v0, 4, s65' % v(va))
    a('v_add_u32 %s, %d, %s' % (v(va + 1), 64 * 3840 + (2 << 20), v(va)))
    a('v_add_u32 %s, %d, %s' % (v(va + 2), 64 * 3072 + (1 << 20), v(va)))
    a('s_mul_i32 s65, s64, 2560')
    a('v_lshrrev_b32 %s, 5, v0' % v(va + 3))
    a('v_mul_u32_u24 %s, 0x500, %s' % (v(va + 3), v(va + 3)))
    a('v_and_b32 %s, 31, v0' % v(va + 4))
    a('v_lshl_add_u32 %s, %s, 4, %s' % (v(va + 3), v(va + 4), v(va + 3)))
    a('v_lshrrev_b32 %s, 3, v0' % v(va + 4))
    a('v_mul_u32_u24 %s, 0x500, %s' % (v(va + 4), v(va + 4)))
    a('v_and_b32 %s, 7, v0' % v(va + 5))
    a('v_lshl_add_u32 %s, %s, 4, %s' % (v(va + 4), v(va + 5), v(va + 4)))
    a('v_mov_b32 %s, %s' % (v(va + 5), hex(BAD)))
    a('v_cmp_gt_u32 vcc, 16, v0')
    a('v_cndmask_b32 %s, %s, %s, vcc' % (v(va + 4), v(va + 5), v(va + 4)))
    a('s_mov_b32 s66, %d' % (64 * 3840))
    a('s_mov_b32 s67, %d' % (64 * 3072))
    a('s_mov_b32 s68, %d' % (64 * 3840 + (1 << 20)))
    L = lambda i, r, sr, so, off: 'buffer_load_dwordx4 %s, %s, %s, %s offen offset:%d' % (v(vd + 4 * i, 4), v(r), sr, so, off)
    ta = [L(0, va + 3, 's[20:23]', 's65', 128), L(1, va, 's[56:59]', 's66', 0), L(2, va, 's[60:63]', 's67', 0)]
    tb = [L(3, va + 3, 's[20:23]', 's65', 640), L(4, va, 's[56:59]', 's68', 0), L(5, va + 2, 's[60:63]', '0', 0),
          L(6, va + 4, 's[20:23]', 's65', 1152), L(7, va + 1, 's[56:59]', '0', 0)]
    return ta, tb

def gen_k1(a):
    a('.globl %s' % K1); a('.p2align 8'); a('.type %s,@function' % K1)
    a('%s:' % K1)
    a('s_cmp_ge_u32 s2, 256')
    a('s_cbranch_scc1 L1_end')
    stamp(a, 0); stamp(a, 1); stamp(a, 2)
    a('s_load_dwordx4 s[4:7], s[0:1], 0')
    a('s_load_dwordx2 s[8:9], s[0:1], 16')
    a('s_load_dwordx4 s[12:15], s[0:1], 32')
    a('s_load_dwordx2 s[10:11], s[0:1], 48')
    a('s_load_dwordx2 s[16:17], s[0:1], 72')
    a('v_lshrrev_b32 v1, 6, v0')
    a('v_and_b32 v0, 63, v0')
    a('v_readfirstlane_b32 s3, v1')
    if cfg.scr & 1:
        a('s_lshr_b32 s33, s2, 5'); a('s_and_b32 s34, s2, 31')
    else:
        a('s_and_b32 s33, s2, 7')
        a('s_lshr_b32 s34, s2, 3')
    a('s_lshr_b32 s35, s33, 2')
    a('s_and_b32 s36, s33, 3')
    a('s_cmp_ge_u32 s34, 30')
    a('s_cbranch_scc1 L1_prep')
    a('s_cmp_ge_u32 s34, 18')
    a('s_cbranch_scc1 L1_ffn_setup')
    a('s_and_b32 s38, s34, 1')
    a('s_lshl_b32 s46, s36, 1')
    a('s_add_u32 s38, s38, s46')
    a('s_mul_i32 s37, s35, 9')
    a('s_lshr_b32 s46, s34, 1')
    a('s_add_u32 s37, s37, s46')
    a('s_and_b32 s45, s46, %d' % cfg.rmask)
    a('s_mul_i32 s45, s45, %d' % cfg.ra)
    if cfg.rsh: a('s_lshr_b32 s45, s45, %d' % cfg.rsh)
    a('s_and_b32 s47, s38, 1')
    a('s_mul_i32 s47, s47, %d' % cfg.rb)
    a('s_add_u32 s45, s45, s47')
    a('s_mul_i32 s39, s37, 114')
    a('s_movk_i32 s40, 3840')
    a('s_movk_i32 s41, 29')
    a('s_movk_i32 s42, 1120')
    a('s_mul_i32 s43, s38, 160')
    a('s_mov_b32 s44, 0')
    a('s_waitcnt lgkmcnt(0)')
    srd(a, 24, 6, 640 * 3840)
    a('s_branch L1_common')
    a('L1_ffn_setup:')
    a('s_mul_i32 s46, s36, 12')
    a('s_add_u32 s46, s46, s34')
    a('s_sub_u32 s46, s46, 18')
    a('s_lshr_b32 s38, s46, 3')
    a('s_and_b32 s46, s46, 7')
    a('s_lshl_b32 s37, s35, 3')
    a('s_add_u32 s37, s37, s46')
    a('s_and_b32 s45, s46, %d' % cfg.rmask)
    a('s_mul_i32 s45, s45, %d' % cfg.ra)
    if cfg.rsh: a('s_lshr_b32 s45, s45, %d' % cfg.rsh)
    a('s_and_b32 s47, s38, 1')
    a('s_mul_i32 s47, s47, %d' % cfg.rd)
    a('s_add_u32 s45, s45, s47')
    a('s_add_u32 s45, s45, %d' % cfg.rc)
    a('s_lshl_b32 s39, s37, 7')
    a('s_movk_i32 s40, 3072')
    a('s_movk_i32 s41, 31')
    a('s_mov_b32 s42, 0')
    a('s_lshl_b32 s43, s38, 9')
    a('s_mov_b32 s44, 1')
    a('s_waitcnt lgkmcnt(0)')
    srd(a, 24, 12, 640 * 3072)
    a('L1_common:')
    srd(a, 20, 4, 2048 * 1280)
    a('s_cmp_lt_u32 s3, 4')
    a('s_cbranch_scc1 L1_consumer')
    a('s_setprio 3')
    a('s_sub_u32 s46, s3, 4')
    a('v_lshrrev_b32 v2, 3, v0')
    a('v_lshrrev_b32 v3, 4, v0')
    a('v_and_b32 v4, 7, v0')
    a('s_lshr_b32 s47, s46, 1')
    a('s_add_u32 s47, s47, s39')
    a('s_and_b32 s48, s46, 1')
    a('s_lshl_b32 s48, s48, 6')
    a('s_add_u32 s47, s47, s48')
    a('v_lshl_add_u32 v5, v2, 1, s47')
    a('v_mul_u32_u24 v5, 0x500, v5')
    a('v_xor_b32 v4, v4, v3')
    a('v_lshl_add_u32 v16, v4, 4, v5')
    a('v_xor_b32 v4, 4, v4')
    a('v_lshl_add_u32 v17, v4, 4, v5')
    a('v_add_u32 v17, %d, v17' % (16 * 1280))
    a('v_add_u32 v18, %d, v16' % (32 * 1280))
    a('v_add_u32 v19, %d, v17' % (32 * 1280))
    a('v_and_b32 v1, 31, v0')
    a('v_min_u32 v1, s41, v1')
    a('v_mul_u32_u24 v2, 13, v1')
    a('v_lshrrev_b32 v2, 7, v2')
    a('v_lshlrev_b32 v1, 4, v1')
    a('v_mad_u32_u24 v1, v2, s42, v1')
    a('v_add_u32 v1, s43, v1')
    a('v_lshrrev_b32 v2, 5, v0')
    a('v_lshlrev_b32 v2, 2, v2')
    a('s_lshl_b32 s47, s46, 4')
    a('v_add_u32 v2, s47, v2')
    a('v_mad_u32_u24 v8, v2, s40, v1')
    a('s_lshl_b32 s47, s40, 3')
    a('v_add_u32 v12, s47, v8')
    for e in range(1, 4):
        a('v_add_u32 %s, s40, %s' % (v(8 + e), v(7 + e)))
        a('v_add_u32 %s, s40, %s' % (v(12 + e), v(11 + e)))
    if cfg.rx:
        a('s_mul_i32 s47, s33, %d' % cfg.rx)
        a('s_lshr_b32 s47, s47, 2')
        a('s_add_u32 s45, s45, s47')
    a('s_mul_i32 s47, s45, 205')
    a('s_lshr_b32 s47, s47, 11')
    a('s_mul_i32 s47, s47, 10')
    a('s_sub_u32 s45, s45, s47')
    a('s_mov_b32 s48, 0')
    a('s_mov_b32 s49, 0')
    a('s_mul_i32 s50, s46, %d' % (8 * 1056))
    a('s_lshl_b32 s51, s46, 12')
    a('s_add_u32 s51, s51, %d' % XOFF)
    a('s_lshl_b32 s53, s40, 6')
    a('s_movk_i32 s55, 1024')
    a('s_movk_i32 s47, 1056')
    def ld_stage(first=False):
        a('s_mul_i32 s52, s45, s53')
        a('s_lshl_b32 s54, s45, 7')
        a('s_add_u32 m0, s49, s51')
        for e in range(4):
            if e: a('s_add_u32 m0, m0, s55')
            a('buffer_load_dwordx4 %s, s[20:23], s54 offen lds' % v(16 + e))
        a('s_add_u32 m0, s49, s50')
        for e in range(8):
            if e: a('s_add_u32 m0, m0, s47')
            a('buffer_load_dwordx4 %s, s[24:27], s52 offen lds' % v(8 + e))
        a('s_add_u32 s45, s45, 1')
        a('s_cmp_eq_u32 s45, 10')
        a('s_cselect_b32 s45, 0, s45')
        a('s_add_u32 s49, s49, %d' % SLOT)
        a('s_cmp_eq_u32 s49, %d' % (3 * SLOT))
        a('s_cselect_b32 s49, 0, s49')
    if not cfg.touch:
        a('L1_ld_loop:')
        a('s_cmp_lt_u32 s48, 2')
        a('s_cbranch_scc1 L1_ld_nowait')
        a('s_waitcnt vmcnt(12)')
        a('s_barrier')
        a('L1_ld_nowait:')
        ld_stage()
        a('s_add_u32 s48, s48, 1')
        a('s_cmp_lt_u32 s48, 10')
        a('s_cbranch_scc1 L1_ld_loop')
        a('s_waitcnt vmcnt(12)')
    else:
        ld_stage()
        tl = []
        if cfg.touch:
            ta, tb = touch_setup(a, 's46', 32, 40)
            tl = list(zip([int(c) for c in str(cfg.tpos)[1:]], ta + tb))
        seq = []
        for j in range(10):
            if j >= 2: seq.append(('w', j - 2))
            seq.append(('d', j))
            seq += [('t', x) for p, x in tl if p == j]
        seq.append(('w', 8))
        last = max([p for p, x in tl] + [1]) + 3
        for i, x in enumerate(seq):
            if i == 0: continue
            if x[0] == 'd':
                ld_stage()
                if x[1] == last: break
            elif x[0] == 't': a(x[1])
            else:
                pos = seq.index(('d', x[1]))
                cnt = sum(12 if y[0] == 'd' else 1 if y[0] == 't' else 0 for y in seq[pos + 1:i])
                if x[1] + 2 == last:
                    assert cnt == 12
                    a('s_mov_b32 s48, %d' % last)
                    a('s_waitcnt vmcnt(12)')
                    a('L1_ld_loop:')
                else:
                    a('s_waitcnt vmcnt(%d)' % cnt)
                if cfg.lp and x[1] == 0: stamp(a, 1)
                if cfg.lp and x[1] == 1: stamp(a, 2)
                a('s_barrier')
        a('s_add_u32 s48, s48, 1')
        a('s_cmp_lt_u32 s48, 10')
        a('s_waitcnt vmcnt(12)')
        a('s_cbranch_scc1 L1_ld_loop')
    if not cfg.lp: stamp(a, 1)
    a('s_cmp_eq_u32 s44, 1')
    a('s_cselect_b32 s47, s38, 4')
    a('s_cmp_lt_u32 s47, 4')
    a('s_barrier')
    a('s_cbranch_scc1 L1_ld_gate')
    a('s_waitcnt vmcnt(0)')
    a('s_barrier')
    stamp_flush(a, 0, 16)
    a('s_endpgm')
    gen_gate(a)
    a('L1_consumer:')
    srd(a, 28, 16, WS_SIZE)
    a('s_and_b32 s46, s3, 1')
    a('s_lshr_b32 s47, s3, 1')
    a('v_lshrrev_b32 v1, 4, v0')
    a('v_and_b32 v2, 15, v0')
    a('v_bfe_u32 v3, v2, 1, 3')
    a('v_xor_b32 v3, v3, v1')
    a('v_lshlrev_b32 v3, 4, v3')
    a('v_lshl_add_u32 v3, v2, 7, v3')
    a('s_lshl_b32 s48, s46, 13')
    a('s_add_u32 s48, s48, %d' % XOFF)
    a('v_add_u32 %s, s48, v3' % v(VXA0))
    a('v_xor_b32 %s, 64, %s' % (v(VXA1), v(VXA0)))
    a('v_lshrrev_b32 v3, 2, v0')
    a('v_mul_u32_u24 v3, 0x420, v3')
    a('v_and_b32 v15, 3, v0')
    a('v_lshl_add_u32 %s, v15, 3, v3' % v(VWM))
    a('s_mov_b32 s51, %d' % (-2 * SLOT & 0xffffffff))
    a('s_mov_b32 s52, %d' % SLOT)
    for i in range(128): a('v_mov_b32 %s, 0' % v(ACC + i))
    a('s_cmp_eq_u32 s44, 1')
    a('s_cbranch_scc1 L1_ffn')
    a('s_mul_i32 s48, s47, 80')
    a('v_add_u32 %s, s48, %s' % (v(VWM), v(VWM)))
    a('v_add_u32 v3, s48, v3')
    a('v_and_b32 v16, 1, v15')
    a('v_mad_u32_u24 v3, v16, 40, v3')
    a('v_add_u32 %s, 352, v3' % v(VWV))
    a('v_lshrrev_b32 v16, 1, v15')
    a('v_mul_u32_u24 v16, 160, v16')
    a('v_add3_u32 %s, v3, v16, 32' % v(VWQ))
    a('v_lshlrev_b32 v16, 2, v1')
    a('v_sub_u32 v16, v2, v16')
    a('v_mov_b32 v17, %s' % f32(-1e30))
    for r in range(4):
        a('v_subrev_u32 v18, %d, v16' % r)
        a('v_cmp_gt_u32 vcc, 8, v18')
        a('v_cndmask_b32 %s, v17, 0, vcc' % v(240 + r))
        a('v_cmp_gt_i32 vcc, -8, v18')
        a('v_cndmask_b32 %s, v17, 0, vcc' % v(244 + r))
        a('v_cmp_le_i32 vcc, 0, v18')
        a('v_cndmask_b32 %s, 0, -1, vcc' % v(20 + r))
        a('v_mov_b32 %s, 0x3f803f80' % v(250 + r))
    a('v_mov_b32 v17, 0xffff')
    a('v_bfi_b32 v248, v17, v20, v21')
    a('v_bfi_b32 v249, v17, v22, v23')
    a('s_mul_i32 s55, s37, 57')
    a('s_cmp_eq_u32 s37, 0')
    a('s_cselect_b32 s53, 0, 7')
    a('s_mov_b32 s54, %d' % RSTRIDE)
    a('s_lshl_b32 s58, s38, 1')
    a('s_add_u32 s58, s58, s47')
    a('s_lshl_b32 s58, s58, 12')
    a('s_lshl_b32 s59, s46, 10')
    a('s_add_u32 s58, s58, s59')
    a('v_lshlrev_b32 v19, 8, v1')
    for t in range(4):
        a('v_add_u32 v16, %d, v2' % (16 * t))
        a('v_add_u32 v17, s55, v16')
        tok_addr(a, 9 + t, 17, 18, 16)
        a('v_add_u32 %s, v19, %s' % (v(9 + t), v(9 + t)))
    a('s_lshr_b32 s60, s38, 1')
    a('s_add_u32 s60, s60, 16')
    a('s_lshl_b32 s60, s60, 12')
    a('s_add_u32 s59, s59, s60')
    a('s_and_b32 s60, s38, 1')
    a('s_lshl_b32 s60, s60, 1')
    a('s_add_u32 s60, s60, s47')
    a('s_lshl_b32 s60, s60, 8')
    a('s_add_u32 s59, s59, s60')
    a('v_and_b32 v19, 1, v1')
    a('v_lshlrev_b32 v19, 3, v19')
    a('v_lshrrev_b32 v20, 1, v1')
    a('v_lshl_add_u32 v20, v20, 4, v2')
    for u in range(2):
        a('v_add_u32 v16, %d, v20' % (32 * u))
        a('v_add_u32 v17, s55, v16')
        tok_addr(a, 13 + u, 17, 18, 16)
        a('v_add_u32 %s, v19, %s' % (v(13 + u), v(13 + u)))
    for g in range(4):
        m = 0xffff << (16 * g)
        a('s_mov_b32 %s, 0x%x' % (s(64 + 2 * g), m & 0xffffffff))
        a('s_mov_b32 %s, 0x%x' % (s(65 + 2 * g), m >> 32))
    cs = 20 ** -0.5 * math.log2(math.e)
    a('s_mov_b32 s62, %s' % f32(cs))
    a('s_mov_b32 s63, %s' % f32(-cs))
    k1_mainloop(a, True, 'att')
    gen_attention(a)
    if cfg.prof: a('s_waitcnt vmcnt(0)')
    stamp_flush(a, 0, 16, 0)
    a('s_endpgm')
    a('L1_ffn:')
    a('s_lshl_b32 s48, s47, 8')
    a('v_add_u32 %s, s48, %s' % (v(VWM), v(VWM)))
    a('v_lshlrev_b32 v9, 4, v0')
    a('s_mul_i32 s58, s37, %d' % (2 * RSTRIDE))
    a('s_lshl_b32 s59, s38, 3')
    a('s_lshl_b32 s60, s47, 2')
    a('s_add_u32 s59, s59, s60')
    a('s_add_u32 s59, s59, 20')
    a('s_lshl_b32 s59, s59, 12')
    a('s_add_u32 s58, s58, s59')
    a('s_lshl_b32 s59, s46, 10')
    a('s_add_u32 s58, s58, s59')
    k1_mainloop(a, False, 'ffn')
    k = 0
    for m in range(4):
        for t in range(4):
            d = 16 + 4 * (k % 16); k += 1
            for h in range(2):
                A = acc(t, 2 * m + h)
                a('v_cvt_pk_bf16_f32 %s, %s, %s' % (v(d + 2 * h), v(A), v(A + 1)))
                a('v_cvt_pk_bf16_f32 %s, %s, %s' % (v(d + 2 * h + 1), v(A + 2), v(A + 3)))
            for i in range(4):
                a('v_pk_max_i16 %s, %s, 0' % (v(d + i), v(d + i)))
            a('s_add_u32 s59, s58, %d' % ((t >> 1) * RSTRIDE + m * 4096))
            a('buffer_store_dwordx4 %s, v9, s[28:31], s59 offen offset:%d' % (v(d, 4), (t & 1) * 2048) + stp())
    if cfg.prof: a('s_waitcnt vmcnt(0)')
    stamp_flush(a, 0, 16, 1)
    a('s_endpgm')
    gen_prep(a)
    a('L1_end:')
    a('s_endpgm')

def gen_attention(a):
    KK = lambda t: 16 + 6 * t
    Q0 = lambda t: 40 + 8 * t
    Q1 = lambda t: 44 + 8 * t
    VP = lambda h, t: 72 + 8 * h + 2 * t
    M = lambda u: 96 + u
    SC = lambda u: 112 + 8 * u
    SP = lambda u: 116 + 8 * u
    P = lambda u: 176 + 4 * u
    SUM = lambda u: 208 + 4 * u
    def cvt(d, A):
        a('v_cvt_pk_bf16_f32 %s, %s, %s' % (v(d), v(A), v(A + 1)))
        a('v_cvt_pk_bf16_f32 %s, %s, %s' % (v(d + 1), v(A + 2), v(A + 3)))
    def conv_qk(t):
        cvt(Q1(t), acc(t, 4)); cvt(KK(t) + 2, acc(t, 4))
        cvt(Q0(t), acc(t, 0)); cvt(Q1(t) + 2, acc(t, 1))
        a('v_permlane32_swap_b32 %s, %s' % (v(Q1(t)), v(KK(t) + 2)))
        a('v_permlane32_swap_b32 %s, %s' % (v(Q1(t) + 1), v(KK(t) + 3)))
        cvt(KK(t), acc(t, 2)); cvt(KK(t) + 4, acc(t, 3))
        for i in range(2):
            a('v_cndmask_b32 %s, 0, %s, s[64:65]' % (v(Q0(t) + 2 + i), v(Q1(t) + i)))
            a('v_cndmask_b32 %s, 0, %s, s[66:67]' % (v(Q1(t) + i), v(Q1(t) + i)))
    def conv_v(t):
        for h in range(3): cvt(VP(h, t), acc(t, 5 + h))
    for t in range(4): conv_qk(t)
    conv_v(0); conv_v(1)
    Kop = lambda h, t: v(KK(t) + 2 * h, 4)
    Qop = lambda h, t: v(Q0(t) if h == 0 else Q1(t), 4)
    mf = []
    for h in range(2):
        for t in range(4):
            u = 4 * h + t
            mf.append('v_mfma_f32_16x16x32_bf16 %s, %s, %s, v[240:243]' % (v(SC(u), 4), Kop(h, t), Qop(h, t)))
            if t: mf.append('v_mfma_f32_16x16x32_bf16 %s, %s, %s, v[244:247]' % (v(SP(u), 4), Kop(h, t - 1), Qop(h, t)))
    cv = []
    for t in (2, 3):
        for h in range(3):
            A = acc(t, 5 + h); d = VP(h, t)
            cv.append('v_cvt_pk_bf16_f32 %s, %s, %s' % (v(d), v(A), v(A + 1)))
            cv.append('v_cvt_pk_bf16_f32 %s, %s, %s' % (v(d + 1), v(A + 2), v(A + 3)))
    interleave(a, mf, cv)
    for u in range(8):
        if u & 3:
            for r in range(4): a('v_max_f32 %s, %s, %s' % (v(SC(u) + r), v(SC(u) + r), v(SP(u) + r)))
        a('v_max3_f32 %s, %s, %s, %s' % (v(M(u)), v(SC(u)), v(SC(u) + 1), v(SC(u) + 2)))
        a('v_max_f32 %s, %s, %s' % (v(M(u)), v(M(u)), v(SC(u) + 3)))
    G = (0, 4)
    for b in G:
        a('v_permlane32_swap_b32 %s, %s' % (v(M(b)), v(M(b + 1))))
        a('v_permlane32_swap_b32 %s, %s' % (v(M(b + 2)), v(M(b + 3))))
    for b in G:
        a('v_max_f32 %s, %s, %s' % (v(M(b)), v(M(b)), v(M(b + 1))))
        a('v_max_f32 %s, %s, %s' % (v(M(b + 2)), v(M(b + 2)), v(M(b + 3))))
    for b in G: a('v_permlane16_swap_b32 %s, %s' % (v(M(b)), v(M(b + 2))))
    for b in G: a('v_max_f32 %s, %s, %s' % (v(M(b)), v(M(b)), v(M(b + 2))))
    for b in G: a('v_mul_f32 %s, s63, %s' % (v(M(b + 2)), v(M(b))))
    for b in G: a('v_mul_f32 %s, s63, %s' % (v(M(b)), v(M(b))))
    for b in G: a('v_permlane16_swap_b32 %s, %s' % (v(M(b)), v(M(b + 2))))
    for b in G:
        a('v_mov_b32 %s, %s' % (v(M(b + 1)), v(M(b))))
        a('v_mov_b32 %s, %s' % (v(M(b + 3)), v(M(b + 2))))
    for b in G:
        a('v_permlane32_swap_b32 %s, %s' % (v(M(b)), v(M(b + 1))))
        a('v_permlane32_swap_b32 %s, %s' % (v(M(b + 2)), v(M(b + 3))))
    pend = []
    for u in range(8):
        h, t = u >> 2, u & 3
        for r in range(4): a('v_fma_f32 %s, %s, s62, %s' % (v(SC(u) + r), v(SC(u) + r), v(M(u))))
        for r in range(4):
            a('v_exp_f32 %s, %s' % (v(SC(u) + r), v(SC(u) + r)))
            if pend: a(pend.pop(0))
        for x in pend: a(x)
        if t == 0:
            cvt(P(u) + 2, SC(u))
            op = 'v_mfma_f32_16x16x16_bf16'; B = v(P(u) + 2, 2); n = 2; o = 0
        else:
            cvt(P(u), SC(u))
            for i in range(2): a('v_and_b32 %s, %s, %s' % (v(P(u) + 2 + i), v(248 + i), v(P(u) + i)))
            for i in range(2): a('v_bfi_b32 %s, %s, 0, %s' % (v(P(u) + i), v(248 + i), v(P(u) + i)))
            op = 'v_mfma_f32_16x16x32_bf16'; B = v(P(u), 4); n = 4; o = -2
        pend = ['%s %s, %s, %s, 0' % (op, v(SUM(u), 4), v(250, n), B),
                '%s %s, %s, %s, 0' % (op, v(SC(u), 4), v(VP(h, t) + o, n), B),
                '%s %s, %s, %s, 0' % (op, v(SP(u), 4), v(VP(2, t) + o, n), B)]
    for x in pend: a(x)
    for u in range(8): a('v_rcp_f32 %s, %s' % (v(SUM(u)), v(SUM(u))))
    for t in range(4):
        for h in range(2):
            u = 4 * h + t
            for i in range(2):
                a('v_pk_mul_f32 %s, %s, %s op_sel_hi:[1,0]' % (v(SC(u) + 2 * i, 2), v(SC(u) + 2 * i, 2), v(SUM(u), 2)))
        for h in range(2): cvt(16 + 4 * t + 2 * h, SC(4 * h + t))
        a('buffer_store_dwordx4 %s, %s, s[28:31], s58 offen' % (v(16 + 4 * t, 4), v(9 + t)) + stp(cfg.stm))
    for g in range(4):
        a('s_mov_b64 exec, %s' % s(64 + 2 * g, 2))
        for u2 in range(2):
            u = 4 * (g & 1) + 2 * u2 + (g >> 1)
            for i in range(2):
                a('v_pk_mul_f32 %s, %s, %s op_sel_hi:[1,0]' % (v(40 + 4 * u2 + 2 * i, 2), v(SP(u) + 2 * i, 2), v(SUM(u), 2)))
    a('s_mov_b64 exec, -1')
    for u2 in range(2):
        cvt(48 + 2 * u2, 40 + 4 * u2)
        a('buffer_store_dwordx2 %s, %s, s[28:31], s59 offen' % (v(48 + 2 * u2, 2), v(13 + u2)) + stp(cfg.str))

def gen_gate(a):
    GW, GX = 24, 64
    a('L1_ld_gate:')
    srd(a, 56, 10, 1280)
    srd(a, 28, 16, WS_SIZE)
    a('v_and_b32 v1, 7, v0')
    a('v_lshlrev_b32 v1, 4, v1')
    a('s_lshl_b32 s47, s38, 5')
    a('s_add_u32 s47, s47, s39')
    a('s_lshl_b32 s48, s46, 3')
    a('s_add_u32 s47, s47, s48')
    a('v_lshrrev_b32 v2, 3, v0')
    a('v_add_u32 v2, s47, v2')
    a('v_mul_u32_u24 v3, 0x500, v2')
    a('v_add_u32 v3, v3, v1')
    a('s_waitcnt vmcnt(0)')
    a('s_barrier')
    for i in range(10):
        a('buffer_load_dwordx4 %s, v1, s[56:59], 0 offen offset:%d' % (v(GW + 4 * i, 4), 128 * i))
    for i in range(10):
        a('buffer_load_dwordx4 %s, v3, s[20:23], 0 offen offset:%d' % (v(GX + 4 * i, 4), 128 * i))
    a('v_mov_b32 v9, 0')
    a('v_mov_b32 v10, 0')
    a('s_barrier')
    a('s_waitcnt vmcnt(0)')
    for i in range(40):
        a('v_dot2_f32_bf16 %s, %s, %s, %s' % (v(9 + (i & 1)), v(GX + i), v(GW + i), v(9 + (i & 1))))
    a('v_add_f32 v9, v9, v10')
    for pat in ('quad_perm:[1,0,3,2]', 'quad_perm:[2,3,0,1]', 'row_half_mirror'):
        a('v_add_f32_dpp v11, v9, v9 %s row_mask:0xf bank_mask:0xf' % pat)
        a('v_mov_b32 v9, v11')
    a('v_mul_f32 v9, %s, v9' % f32(-math.log2(math.e)))
    a('v_exp_f32 v9, v9')
    a('v_add_f32 v9, 1.0, v9')
    a('v_rcp_f32 v9, v9')
    a('v_lshlrev_b32 v2, 2, v2')
    a('v_mov_b32 v3, %s' % hex(BAD))
    a('v_cmp_eq_u32 vcc, 0, v1')
    a('v_cndmask_b32 v2, v3, v2, vcc')
    a('s_mov_b32 s60, %d' % WS_G)
    a('buffer_store_dword v9, v2, s[28:31], s60 offen' + stp(cfg.stg))
    if cfg.prof: a('s_waitcnt vmcnt(0)')
    stamp_flush(a, 0, 16)
    a('s_endpgm')

def gen_prep(a):
    PITCH = 176
    LW = 32 * PITCH
    a('L1_prep:')
    a('s_sub_u32 s37, s34, 30')
    a('s_lshl_b32 s37, s37, 3')
    a('s_add_u32 s37, s37, s33')
    a('s_waitcnt lgkmcnt(0)')
    srd(a, 24, 8, 640 * 1280)
    srd(a, 40, 14, 1536 * 1280)
    srd(a, 28, 16, WS_SIZE)
    if cfg.touch:
        a('s_cmp_lt_u32 s3, 4')
        a('s_cbranch_scc0 L1_prep_not')
        srd(a, 20, 4, 2048 * 1280)
        ta, tb = touch_setup(a, 's3', 124, 132)
        for x in ta + tb: a(x)
        a('L1_prep_not:')
    U = lambda u: 24 + 20 * u
    PITCH = 1280 + 176
    LB = 32 * PITCH
    pol = stp(cfg.pnt)
    a('v_lshlrev_b32 v7, 4, v0')
    a('v_add_u32 v8, 4096, v7')
    a('s_lshr_b32 s48, s3, 1')
    a('s_and_b32 s49, s3, 1')
    a('s_lshl_b32 s50, s48, 2')
    a('s_lshl_b32 s51, s49, 4')
    a('s_add_u32 s51, s51, s50')
    a('s_mul_i32 s55, s37, 96')
    a('s_add_u32 s55, s55, s51')
    a('s_mul_i32 s55, s55, 1280')
    def ld5(u, sr):
        for e in range(5):
            a('buffer_load_dwordx4 %s, %s, %s, s55 offen offset:%d' % (v(U(u) + 4 * e, 4), v(7 if e < 4 else 8), sr, (e & 3) * 1024) + pol)
    for u in range(3):
        ld5(u, 's[40:43]')
        if u < 2: a('s_add_u32 s55, s55, %d' % (32 * 1280))
    a('s_mul_i32 s51, s49, 20')
    a('s_mul_i32 s55, s37, 40')
    a('s_add_u32 s55, s55, s50')
    a('s_add_u32 s55, s55, s51')
    a('s_mul_i32 s55, s55, 1280')
    ld5(3, 's[24:27]')
    a('s_and_b32 s56, s37, 3')
    a('s_lshr_b32 s61, s37, 2')
    a('s_mul_i32 s55, s56, 160')
    a('s_mul_i32 s50, s48, 40')
    a('s_add_u32 s55, s55, s50')
    a('s_add_u32 s55, s55, s51')
    a('s_add_u32 s55, s55, 16')
    a('s_mul_i32 s55, s55, 1280')
    a('s_mul_i32 s50, s61, 320')
    a('s_add_u32 s55, s55, s50')
    a('s_movk_i32 s52, %d' % PITCH)
    a('s_mul_i32 s53, s3, %d' % (4 * PITCH))
    a('s_add_u32 s54, s53, s50')
    a('s_movk_i32 s57, 1280')
    a('v_mul_u32_u24 v2, 13, v0')
    a('v_lshrrev_b32 v2, 8, v2')
    a('v_mul_u32_u24 v3, 20, v2')
    a('v_sub_u32 v1, v0, v3')
    a('v_lshlrev_b32 v1, 4, v1')
    a('v_mad_u32_u24 v9, v2, s57, v1')
    a('v_mad_u32_u24 v11, v2, s52, v1')
    a('v_add_u32 v11, s54, v11')
    a('v_add_u32 v10, %d, v7' % (3 * 1280 + 64))
    a('v_mov_b32 v3, %s' % hex(BAD))
    a('v_cmp_gt_u32 vcc, 16, v0')
    a('v_cndmask_b32 v10, v3, v10, vcc')
    a('buffer_load_dwordx4 %s, v9, s[24:27], s55 offen' % v(U(4), 4) + pol)
    a('buffer_load_dwordx4 %s, v10, s[24:27], s55 offen' % v(U(4) + 4, 4) + pol)
    a('s_add_u32 s54, s54, %d' % (3 * PITCH + 64))
    a('v_add_u32 v12, s54, v7')
    a('s_movk_i32 s50, 205')
    for e in range(5):
        a('v_add_u32 v1, %d, v0' % (64 * e))
        a('v_mul_u32_u24 v2, s50, v1')
        a('v_lshrrev_b32 v2, 14, v2')
        a('v_mul_u32_u24 v2, %d, v2' % (PITCH - 1280))
        a('v_lshl_add_u32 v1, v1, 4, v2')
        a('v_add_u32 %s, s53, v1' % v(19 + e))
    a('s_mul_i32 s49, s3, 160')
    a('v_lshrrev_b32 v4, 4, v0')
    a('v_bfe_u32 v5, v0, 2, 2')
    a('v_lshl_add_u32 v4, v4, 3, v5')
    a('v_mul_u32_u24 v4, s52, v4')
    a('v_add_u32 v4, s49, v4')
    a('v_and_b32 v5, 3, v0')
    a('v_lshl_add_u32 v6, v5, 3, v4')
    a('v_lshl_add_u32 v5, v5, 4, v4')
    a('s_mul_i32 s59, s3, %d' % NBSTRIDE)
    a('s_add_u32 s59, s59, %d' % WS_B)
    for u in range(5):
        bo = (u & 1) * LB
        a('s_waitcnt vmcnt(%d)' % (17 if u < 4 else 20))
        if u < 4:
            for e in range(5):
                a('ds_write_b128 %s, %s offset:%d' % (v(19 + e), v(U(u) + 4 * e, 4), bo))
        else:
            a('ds_write_b128 v11, %s offset:%d' % (v(U(u), 4), bo))
            a('s_mov_b64 exec, 0xffff')
            a('ds_write_b128 v12, %s offset:%d' % (v(U(u) + 4, 4), bo))
            a('s_mov_b64 exec, -1')
        if u < 3:
            a('s_mul_i32 s60, s37, 3'); a('s_add_u32 s60, s60, %d' % (20 + u))
        elif u == 3:
            a('s_mov_b32 s60, s37')
        else:
            a('s_add_u32 s60, s56, 16')
        a('s_mul_i32 s60, s60, 5120')
        a('s_add_u32 s60, s60, s59')
        a('s_waitcnt lgkmcnt(0)')
        a('s_barrier')
        if u == 4:
            a('s_cmp_lg_u32 s61, s48')
            a('s_cbranch_scc1 L1_prep_done')
        for nt in range(5):
            for h in range(2):
                if nt < 4: reg, off = 5, 64 * (nt >> 1) + 8 * (nt & 1)
                else: reg, off = 6, 128
                a('ds_read_b64_tr_b16 %s, %s offset:%d' % (v(U(u) + 4 * nt + 2 * h, 2), v(reg), bo + off + h * 4 * PITCH))
        a('s_waitcnt lgkmcnt(0)')
        for nt in range(5):
            a('buffer_store_dwordx4 %s, %s, s[28:31], s60 offen offset:%d' % (v(U(u) + 4 * nt, 4), v(7 if nt < 4 else 8), (nt & 3) * 1024) + stp())
    a('L1_prep_done:')
    if cfg.prof: a('s_waitcnt vmcnt(0)')
    stamp_flush(a, 0, 16, 3)
    a('s_endpgm')

def gen_k2(a):
    D = cfg.k2depth
    RING = 16
    AC = RING + 36 * D
    accr = lambda m, nt: AC + (m * 5 + nt) * 4
    def rq(q, off):
        if q < D: return v(RING + 36 * q + off, 4)
        b = 36 * (q - D) + off
        return 'a[%d:%d]' % (b, b + 3)
    Bq = lambda q, nt: rq(q, 4 * nt)
    Aq = lambda q, m: rq(q, 20 + 4 * m)
    D0, D1 = cfg.d0, cfg.d1
    a('.globl %s' % K2); a('.p2align 8'); a('.type %s,@function' % K2)
    a('%s:' % K2)
    a('s_cmp_ge_u32 s2, 256')
    a('s_cbranch_scc1 L2_end')
    if cfg.tst & 4:
        a('s_bitcmp1_b32 s2, 3'); a('s_cbranch_scc1 L2_end')
    if cfg.tst & 8:
        a('s_bitcmp1_b32 s2, 4'); a('s_cbranch_scc1 L2_end')
    stamp(a, 0)
    a('s_load_dwordx2 s[4:5], s[0:1], 72')
    a('s_load_dwordx2 s[6:7], s[0:1], 56')
    a('v_lshrrev_b32 v1, 6, v0')
    a('v_and_b32 v0, 63, v0')
    a('v_readfirstlane_b32 s3, v1')
    if cfg.scr & 2:
        a('s_lshr_b32 s16, s2, 5'); a('s_and_b32 s17, s2, 31')
    else:
        a('s_and_b32 s16, s2, 7')
        a('s_lshr_b32 s17, s2, 3')
    a('s_and_b32 s18, s16, 1')
    a('s_lshl_b32 s18, s18, 2')
    a('s_and_b32 s19, s17, 3')
    a('s_add_u32 s18, s18, s19')
    a('s_lshr_b32 s19, s16, 1')
    a('s_lshl_b32 s19, s19, 3')
    a('s_lshr_b32 s20, s17, 2')
    a('s_add_u32 s19, s19, s20')
    a('s_lshl_b32 s20, s3, 4')
    a('s_add_u32 s20, s20, 4')
    a('s_cmp_eq_u32 s3, 0')
    a('s_cselect_b32 s20, 0, s20')
    if cfg.bal == 2:
        a('s_mul_i32 s20, s3, 17')
    elif cfg.bal:
        a('s_cselect_b32 s28, 1, s20')
        a('s_cselect_b32 s20, 0, 16')
        a('s_or_b32 s20, s20, s3')
        a('s_sub_u32 s28, s28, s20')
        a('s_mul_i32 s29, s28, 5120')
        a('s_lshl_b32 s28, s28, 12')
        a('s_cmp_eq_u32 s3, 0')
    if cfg.k2prio:
        a('s_cbranch_scc0 L2_noprio')
        a('s_setprio 3')
        a('L2_noprio:')
    if cfg.bal: a('s_mov_b32 s21, 3')
    else: a('s_cselect_b32 s21, %d, %d' % (20 // D0 - 1, 16 // D1 - 1))
    a('s_mul_i32 s22, s19, %d' % (0 if cfg.tst & 1 else RSTRIDE))
    a('s_lshl_b32 s23, s20, 12')
    a('s_add_u32 s22, s22, s23')
    a('s_mul_i32 s23, s18, %d' % (0 if cfg.tst & 2 else NBSTRIDE))
    a('s_mul_i32 s24, s20, 5120')
    a('s_add_u32 s23, s23, s24')
    a('s_add_u32 s23, s23, %d' % WS_B)
    a('v_lshlrev_b32 v2, 4, v0')
    a('v_add_u32 v3, 4096, v2')
    for m in range(4):
        a('s_add_u32 s24, s3, %d' % m)
        a('s_and_b32 s24, s24, 3')
        a('s_lshl_b32 s25, s24, 10')
        a('v_add_u32 %s, s25, v2' % v(4 + m))
        if m:
            a('s_mul_i32 s25, s24, 15360')
            a('s_add_u32 s25, s25, %d' % ((m - 1) * 5120))
            a('v_add_u32 %s, s25, v2' % v(8 + m))
    a('s_lshl_b32 s24, s19, 6')
    a('s_lshr_b32 s25, s3, 1')
    a('s_lshl_b32 s25, s25, 5')
    a('s_add_u32 s24, s24, s25')
    a('s_and_b32 s25, s3, 1')
    a('s_add_u32 s24, s24, s25')
    a('v_and_b32 v12, 15, v0')
    a('v_lshl_add_u32 v12, v12, 1, s24')
    a('v_lshlrev_b32 v13, 2, v12')
    a('s_mov_b32 s26, %d' % WS_G)
    a('s_movk_i32 s27, 4096')
    a('s_waitcnt lgkmcnt(0)')
    stamp(a, 1, 1)
    srd(a, 8, 4, WS_SIZE)
    def ldB(q, nt): return 'buffer_load_dwordx4 %s, %s, s[8:11], s23 offen offset:%d' % (Bq(q, nt), v(2 if nt < 4 else 3), (nt & 3) * 1024) + stp(cfg.lb)
    def ldA(q, m): return 'buffer_load_dwordx4 %s, %s, s[8:11], s22 offen' % (Aq(q, m), v(4 + m)) + stp(cfg.la)
    adv = ['s_add_u32 s23, s23, 5120', 's_add_u32 s22, s22, s27']
    def step(q, load, cnt):
        a('s_waitcnt vmcnt(%d)' % cnt)
        for nt in range(5):
            for m in range(4):
                A = v(accr(m, nt), 4)
                a('v_mfma_f32_16x16x32_bf16 %s, %s, %s, %s' % (A, Bq(q, nt), Aq(q, m), A))
            if load: a(ldB(q, nt))
        if load:
            for m in range(4): a(ldA(q, m))
            for x in adv: a(x)
    def fill(lo, hi):
        for q in range(lo, hi):
            for nt in range(5): a(ldB(q, nt))
            for m in range(4): a(ldA(q, m))
            for x in (['s_add_u32 s23, s23, s29', 's_add_u32 s22, s22, s28'] if cfg.bal == 1 and q == 0 else adv): a(x)
    def body(dd, tag, n):
        if cfg.prof: a('s_waitcnt vmcnt(%d)' % (9 * (dd - 1)))
        stamp(a, 1, 0)
        if n // dd > 1:
            a('L2_loop%s:' % tag)
            for q in range(dd): step(q, True, 9 * (dd - 1))
            a('s_sub_u32 s21, s21, 1')
            a('s_cmp_lg_u32 s21, 0')
            a('s_cbranch_scc1 L2_loop%s' % tag)
        r = n % dd
        for q in range(r): step(q, True, 9 * (dd - 1))
        for i in range(dd): step((r + i) % dd, False, 9 * (dd - 1 - i))
    a('buffer_load_dword v14, v13, s[8:11], s26 offen')
    Dm = min(D0, D1)
    if cfg.sst == 1:
        fill(0, 1); a('s_waitcnt vmcnt(9)'); stamp(a, 2, 1); fill(1, Dm)
    elif cfg.sst == 2:
        fill(0, 1); stamp(a, 1, 2); fill(1, Dm); stamp(a, 2, 2)
    else: fill(0, Dm)
    P = RING + 36
    if cfg.bal == 2:
        T = RING + 36
        srd(a, 12, 6, 2048 * 1280)
        for i in range(80): a('v_mov_b32 %s, 0' % v(AC + i))
        a('s_mul_i32 s25, s3, 15360')
        a('v_add_u32 v8, s25, v2')
        a('s_mul_i32 s25, s3, 5120')
        a('s_add_u32 s25, s25, 0xf000')
        a('v_add_u32 v15, s25, v2')
        a('s_mul_i32 s25, s18, 160')
        a('v_mul_u32_u24 v12, 0x500, v12')
        a('v_lshrrev_b32 v1, 4, v0')
        a('v_lshl_add_u32 v0, v1, 3, v12')
        a('v_lshl_add_u32 v12, v1, 4, v12')
        a('v_add_u32 v1, 0xf000, v2')
        a('s_cmp_eq_u32 s3, 1')
        a('s_cselect_b32 s28, 3, 0')
        if cfg.prof: a('s_waitcnt vmcnt(27)')
        stamp(a, 1, 0)
        step(0, True, 27)
        a('L2_loop:')
        step(1, True, 27); step(2, True, 27)
        a('s_cmp_eq_u32 s21, s28')
        a('s_cbranch_scc1 L2_dump')
        a('L2_back:')
        step(3, True, 27); step(0, True, 27)
        a('s_cmp_lg_u32 s21, %d' % cfg.ba)
        a('s_cbranch_scc1 L2_nobar')
        a('s_barrier')
        a('L2_nobar:')
        a('s_sub_u32 s21, s21, 1')
        a('s_cmp_lg_u32 s21, 0')
        a('s_cbranch_scc1 L2_loop')
        step(1, False, 27)
        for i in range(5): a('ds_read_b128 %s, v15 offset:%d' % (v(T + 4 * i, 4), i * 1024))
        step(2, False, 18)
        a('v_sub_f32 v15, 1.0, v14')
        W = T + 20
        for m in range(4):
            a('s_cmp_eq_u32 s3, %d' % m)
            a('s_cselect_b64 vcc, -1, 0')
            a('v_cndmask_b32 %s, v15, v14, vcc' % v(W + 2 * m))
        a('s_waitcnt lgkmcnt(0)')
        for i in range(10): a('v_pk_mul_f32 %s, %s, v[14:15] op_sel_hi:[1,0]' % (v(T + 2 * i, 2), v(T + 2 * i, 2)))
        step(3, False, 9)
        a('s_waitcnt vmcnt(0)')
        order = [(m, nt) for m in (1, 2, 3, 0) for nt in range(5)]
        for i, (m, nt) in enumerate(order):
            A = v(accr(m, nt), 4)
            a('v_mfma_f32_16x16x32_bf16 %s, %s, %s, %s' % (A, Bq(0, nt), Aq(0, m), A))
            if i >= 5:
                m2, n2 = order[i - 5]
                a('ds_write_b128 %s, %s offset:%d' % (v(8 + m2), v(accr(m2, n2), 4), n2 * 1024))
        stamp(a, 2, 0)
        for i in range(10):
            a('v_pk_fma_f32 %s, %s, %s, %s op_sel_hi:[1,0,1]' % (v(T + 2 * i, 2), v(AC + 2 * i, 2), v(W, 2), v(T + 2 * i, 2)))
        a('s_waitcnt lgkmcnt(0)')
        a('s_barrier')
        for nt in range(5):
            for m in range(1, 4):
                a('ds_read_b128 %s, v8 offset:%d' % (v(accr(m, nt), 4), ((m - 1) * 5 + nt) * 1024))
        O = W + 8
        for nt in range(5):
            a('s_waitcnt lgkmcnt(%d)' % (3 * (4 - nt)))
            for m in range(1, 4):
                for j in range(2):
                    d = v(T + 4 * nt + 2 * j, 2)
                    a('v_pk_fma_f32 %s, %s, %s, %s op_sel_hi:[1,0,1]' % (d, v(accr(m, nt) + 2 * j, 2), v(W + 2 * m, 2), d))
            for j in range(2):
                a('v_cvt_pk_bf16_f32 %s, %s, %s' % (v(O + 2 * nt + j), v(T + 4 * nt + 2 * j), v(T + 4 * nt + 2 * j + 1)))
            if nt == 1: a('buffer_store_dwordx4 %s, v12, s[12:15], s25 offen' % v(O, 4) + stp(cfg.k2st))
            if nt == 3: a('buffer_store_dwordx4 %s, v12, s[12:15], s25 offen offset:64' % v(O + 4, 4) + stp(cfg.k2st))
            if nt == 4: a('buffer_store_dwordx2 %s, v0, s[12:15], s25 offen offset:128' % v(O + 8, 2) + stp(cfg.k2st))
        if cfg.prof: a('s_waitcnt vmcnt(0)'); a('v_mbcnt_lo_u32_b32 v0, -1, 0'); a('v_mbcnt_hi_u32_b32 v0, -1, v0')
        stamp_flush(a, 1, 4)
        a('L2_end:')
        a('s_endpgm')
        a('L2_dump:')
        a('s_nop 7')
        for nt in range(5):
            for m in range(4):
                a('ds_write_b128 v1, %s offset:%d' % (v(accr(m, nt), 4), ((m + 1) & 3) * 5120 + nt * 1024))
        for i in range(80): a('v_mov_b32 %s, 0' % v(AC + i))
        a('s_waitcnt lgkmcnt(0)')
        a('s_branch L2_back')
        return AC + 80, 0
    if cfg.bal:
        ag = lambda m, nt: 'a[%d:%d]' % ((m * 5 + nt) * 4, (m * 5 + nt) * 4 + 3)
        srd(a, 12, 6, 2048 * 1280)
        for i in range(80): a('v_mov_b32 %s, 0' % v(AC + i))
        tmp = [None, 8, 15, 1]
        for m in range(1, 4): a('v_add_u32 %s, 0xf000, %s' % (v(tmp[m]), v(8 + m)))
        a('s_waitcnt vmcnt(27)')
        stamp(a, 1, 0)
        for nt in range(5):
            for m in range(4):
                a('v_mfma_f32_16x16x32_bf16 %s, %s, %s, 0' % (ag(m, nt), Bq(0, nt), Aq(0, m)))
            a(ldB(0, nt))
        for m in range(4): a(ldA(0, m))
        for x in adv: a(x)
        for nt in range(5):
            for m in range(1, 4):
                a('ds_write_b128 %s, %s offset:%d' % (v(tmp[m]), ag(m, nt), nt * 1024))
        a('s_mul_i32 s25, s3, 15360')
        a('s_add_u32 s25, s25, 0xf000')
        a('v_add_u32 v13, s25, v2')
        a('L2_loop:')
        for q in (1, 2, 3, 0): step(q, True, 27)
        a('s_sub_u32 s21, s21, 1')
        a('s_cmp_lg_u32 s21, 0')
        a('s_cbranch_scc1 L2_loop')
        a('s_waitcnt lgkmcnt(0)')
        a('s_barrier')
        step(1, False, 27)
        step(2, False, 18)
        for i in range(15): a('ds_read_b128 %s, v13 offset:%d' % (v(P + 4 * i, 4), i * 1024))
        step(3, False, 9)
        a('s_waitcnt lgkmcnt(0)')
        for j in (1, 2):
            for i in range(10): a('v_pk_add_f32 %s, %s, %s' % (v(P + 2 * i, 2), v(P + 2 * i, 2), v(P + 20 * j + 2 * i, 2)))
        for i in range(20): a('v_accvgpr_read_b32 %s, a%d' % (v(P + 20 + i), i))
        for i in range(10): a('v_pk_add_f32 %s, %s, %s' % (v(P + 2 * i, 2), v(P + 2 * i, 2), v(P + 20 + 2 * i, 2)))
        for i in range(10): a('v_pk_mul_f32 %s, %s, v[14:15] op_sel_hi:[1,0]' % (v(P + 2 * i, 2), v(P + 2 * i, 2)))
        step(0, False, 0)
    elif cfg.e2:
        T = 24
        srd(a, 12, 6, 2048 * 1280)
        for i in range(80): a('v_mov_b32 %s, 0' % v(AC + i))
        a('s_mul_i32 s25, s3, 15360')
        a('v_add_u32 v8, s25, v2')
        a('s_cmp_eq_u32 s3, 1')
        a('s_cselect_b32 s28, 5120, 0')
        a('s_cmp_eq_u32 s3, 3')
        a('s_cselect_b32 s29, 0, 5120')
        a('s_add_u32 s29, s29, 5120')
        a('s_mul_i32 s30, s3, 5120')
        a('s_sub_u32 s30, s30, 5120')
        a('s_mul_i32 s25, s18, 160')
        a('v_mul_u32_u24 v12, 0x500, v12')
        a('v_lshrrev_b32 v1, 4, v0')
        a('v_lshl_add_u32 v0, v1, 3, v12')
        a('v_lshl_add_u32 v12, v1, 4, v12')
        if cfg.prof: a('s_waitcnt vmcnt(27)')
        stamp(a, 1, 0)
        a('L2_loop:')
        for q in range(4): step(q, True, 27)
        a('s_sub_u32 s21, s21, 1')
        a('s_cmp_lg_u32 s21, 0')
        a('s_cbranch_scc1 L2_loop')
        a('v_sub_f32 v15, 1.0, v14')
        def last():
            a('s_waitcnt vmcnt(0)')
            order = [(m, nt) for m in (1, 2, 3, 0) for nt in range(5)]
            for i, (m, nt) in enumerate(order):
                A = v(accr(m, nt), 4)
                a('v_mfma_f32_16x16x32_bf16 %s, %s, %s, %s' % (A, Bq(3, nt), Aq(3, m), A))
                if i >= 5:
                    m2, n2 = order[i - 5]
                    a('ds_write_b128 %s, %s offset:%d' % (v(8 + m2), v(accr(m2, n2), 4), n2 * 1024))
        def fin():
            for i in range(10):
                a('v_cvt_pk_bf16_f32 %s, %s, %s' % (v(T + 20 + i), v(T + 2 * i), v(T + 2 * i + 1)))
            a('buffer_store_dwordx4 %s, v12, s[12:15], s25 offen' % v(T + 20, 4) + stp(cfg.k2st))
            a('buffer_store_dwordx4 %s, v12, s[12:15], s25 offen offset:64' % v(T + 24, 4) + stp(cfg.k2st))
            a('buffer_store_dwordx2 %s, v0, s[12:15], s25 offen offset:128' % v(T + 28, 2) + stp(cfg.k2st))
        padd = lambda d, x: [a('v_pk_add_f32 %s, %s, %s' % (v(d + 2 * i, 2), v(d + 2 * i, 2), v(x + 2 * i, 2))) for i in range(10)]
        pm1 = lambda: [a('v_pk_mul_f32 %s, %s, v[14:15] op_sel:[0,1] op_sel_hi:[1,1]' % (v(T + 2 * i, 2), v(T + 2 * i, 2))) for i in range(10)]
        pfg = lambda x: [a('v_pk_fma_f32 %s, %s, v[14:15], %s op_sel_hi:[1,0,1]' % (v(T + 2 * i, 2), v(x + 2 * i, 2), v(T + 2 * i, 2))) for i in range(10)]
        step(0, False, 27)
        step(1, False, 18)
        a('s_cmp_eq_u32 s3, 0')
        a('s_cbranch_scc0 L2_h')
        if cfg.ba == 3: step(2, False, 9)
        a('s_barrier')
        for i in range(15): a('ds_read_b128 %s, v8 offset:%d' % (v(T + 4 * i, 4), i * 1024))
        if cfg.ba == 2: step(2, False, 9)
        a('s_waitcnt lgkmcnt(0)')
        padd(T, T + 20); padd(T, T + 40); pm1()
        last()
        stamp(a, 2, 0)
        a('s_waitcnt lgkmcnt(0)')
        a('s_barrier')
        pfg(AC)
        fin()
        a('s_branch L2_done')
        a('L2_h:')
        step(2, False, 9)
        a('v_add_u32 v4, s28, v8')
        a('v_add_u32 v5, s29, v8')
        a('v_add_u32 v6, s30, v8')
        last()
        stamp(a, 2, 0)
        a('s_waitcnt lgkmcnt(0)')
        a('s_barrier')
        for i in range(10): a('ds_read_b128 %s, %s offset:%d' % (v(T + 4 * i, 4), v(4 + i // 5), (i % 5) * 1024))
        a('s_waitcnt lgkmcnt(0)')
        padd(T, T + 20); padd(T, AC); pm1()
        a('s_barrier')
        for i in range(5): a('ds_read_b128 %s, v6 offset:%d' % (v(T + 40 + 4 * i, 4), i * 1024))
        for i in range(5):
            a('s_waitcnt lgkmcnt(%d)' % (4 - i))
            for j in (2 * i, 2 * i + 1):
                a('v_pk_fma_f32 %s, %s, v[14:15], %s op_sel_hi:[1,0,1]' % (v(T + 2 * j, 2), v(T + 40 + 2 * j, 2), v(T + 2 * j, 2)))
        fin()
        a('L2_done:')
        if cfg.prof: a('s_waitcnt vmcnt(0)'); a('v_mbcnt_lo_u32_b32 v0, -1, 0'); a('v_mbcnt_hi_u32_b32 v0, -1, v0')
        stamp_flush(a, 1, 4)
        a('L2_end:')
        a('s_endpgm')
        return AC + 80, 0
    elif D0 == D1:
        srd(a, 12, 6, 2048 * 1280)
        for i in range(80): a('v_mov_b32 %s, 0' % v(AC + i))
        body(D0, '', 20 if 20 % D0 == 0 else 16)
    else:
        a('s_cmp_eq_u32 s3, 0')
        a('s_cbranch_scc0 L2_w')
        fill(Dm, D0)
        for i in range(80): a('v_mov_b32 %s, 0' % v(AC + i))
        body(D0, 'o', 20)
        a('s_branch L2_join')
        a('L2_w:')
        fill(Dm, D1)
        for i in range(80): a('v_mov_b32 %s, 0' % v(AC + i))
        body(D1, 'h', 16)
        a('L2_join:')
        srd(a, 12, 6, 2048 * 1280)
    stamp(a, 2, 0)
    for m in range(1, 4):
        for nt in range(5):
            a('ds_write_b128 %s, %s offset:%d' % (v(8 + m), v(accr(m, nt), 4), nt * 1024))
    a('v_sub_f32 v15, 1.0, v14')
    for m in range(4):
        a('s_cmp_eq_u32 s3, %d' % m)
        a('s_cselect_b64 vcc, -1, 0')
        a('v_cndmask_b32 %s, v15, v14, vcc' % v(16 + 2 * m))
    a('s_mul_i32 s25, s3, 15360')
    a('v_add_u32 v8, s25, v2')
    a('s_mul_i32 s25, s18, 160')
    a('v_mul_u32_u24 v12, 0x500, v12')
    a('v_lshrrev_b32 v13, 4, v0')
    a('v_lshl_add_u32 v9, v13, 3, v12')
    a('v_lshl_add_u32 v12, v13, 4, v12')
    for i in range(10):
        A = AC + 2 * i
        if cfg.bal: a('v_pk_fma_f32 %s, %s, v[16:17], %s op_sel_hi:[1,0,1]' % (v(A, 2), v(A, 2), v(P + 2 * i, 2)))
        else: a('v_pk_mul_f32 %s, %s, v[16:17] op_sel_hi:[1,0]' % (v(A, 2), v(A, 2)))
    a('s_waitcnt lgkmcnt(0)')
    a('s_barrier')
    for m in range(1, 4):
        for nt in range(5):
            a('ds_read_b128 %s, v8 offset:%d' % (v(accr(m, nt), 4), ((m - 1) * 5 + nt) * 1024))
    for m in range(1, 4):
        a('s_waitcnt lgkmcnt(%d)' % (5 * (3 - m)))
        for i in range(10):
            A = AC + 2 * i
            a('v_pk_fma_f32 %s, %s, %s, %s op_sel_hi:[1,0,1]' % (v(A, 2), v(A + 20 * m, 2), v(16 + 2 * m, 2), v(A, 2)))
    for i in range(10):
        a('v_cvt_pk_bf16_f32 %s, %s, %s' % (v(24 + i), v(AC + 2 * i), v(AC + 2 * i + 1)))
    a('buffer_store_dwordx4 v[24:27], v12, s[12:15], s25 offen' + stp(cfg.k2st))
    a('buffer_store_dwordx4 v[28:31], v12, s[12:15], s25 offen offset:64' + stp(cfg.k2st))
    a('buffer_store_dwordx2 v[32:33], v9, s[12:15], s25 offen offset:128' + stp(cfg.k2st))
    if cfg.prof: a('s_waitcnt vmcnt(0)')
    stamp_flush(a, 1, 4)
    a('L2_end:')
    a('s_endpgm')
    return AC + 80, 80 if cfg.bal else 36 * max(0, max(D0, D1) - D)

def desc(name, nv, na=0):
    nv = (nv + 7) // 8 * 8
    return '''.p2align 6
.amdhsa_kernel %s
  .amdhsa_next_free_vgpr %d
  .amdhsa_next_free_sgpr 102
  .amdhsa_accum_offset %d
  .amdhsa_group_segment_fixed_size 0
  .amdhsa_kernarg_size 80
  .amdhsa_user_sgpr_count 2
  .amdhsa_user_sgpr_kernarg_segment_ptr 1
  .amdhsa_system_sgpr_workgroup_id_x 1
.end_amdhsa_kernel
''' % (name, nv + na, nv)

def align8(body):
    import subprocess, re, tempfile, os
    d = tempfile.mkdtemp()
    open(d + '/a.s', 'w').write('.amdgcn_target "amdgcn-amd-amdhsa--gfx950"\n.text\n' + re.sub(r'^\.p2align.*$', '', body, flags=re.M))
    subprocess.check_call(['clang', '-x', 'assembler', '-target', 'amdgcn-amd-amdhsa', '-mcpu=gfx950', '-c', d + '/a.s', '-o', d + '/a.o'])
    dis = subprocess.check_output(['llvm-objdump', '-d', d + '/a.o'], text=True)
    sizes = [4 * len(m.group(1).split()) for m in re.finditer(r'// [0-9A-F]+: ([0-9A-F ]+)', dis)]
    lines = body.split('\n')
    idx = [i for i, l in enumerate(lines) if l.startswith('    ')]
    assert len(idx) == len(sizes), (len(idx), len(sizes))
    size = dict(zip(idx, sizes))
    off = 0; run = []; np_ = nn = 0
    for i, l in enumerate(lines):
        if l.startswith('.p2align'): off = 0; run = []; continue
        if i not in size:
            continue
        if size[i] == 4:
            run.append((i, off)); off += 4
            continue
        if off % 8 and run:
            cand = [j for j, o in run if o % 8 == 0 and lines[j].split()[0].startswith('v_') and not lines[j].split()[0].startswith(('v_readfirstlane', 'v_fmac', 'v_dot2c'))]
            dead = [j for j, o in run if lines[j].split()[0] in ('s_endpgm', 's_branch')]
            k = idx.index(i); n8 = 0
            par = 0
            while k < len(idx) and n8 < 3:
                if size[idx[k]] == 8:
                    if par: break
                    n8 += 1
                else: par ^= 1
                k += 1
            if dead:
                lines[dead[-1]] += '\n    s_nop 0'; off += 4
            elif cand:
                j = cand[-1]; op = lines[j].split()[0]
                lines[j] = lines[j].replace(op, op + '_e64', 1); np_ += 1; off += 4
            elif n8 >= 3:
                j = run[0][0]
                lines[j] = '    s_nop 0\n' + lines[j]; nn += 1; off += 4
        off += 8; run = []
    print('align: promoted', np_, 'nops', nn)
    return '\n'.join(lines)

def main():
    for arg in sys.argv[2:]:
        k, val = arg.split('='); setattr(cfg, k, int(val))
    a = Asm()
    gen_k1(a)
    nv2 = gen_k2(a)
    body = a.finish()
    hdr = '''; gated mix of sliding-window dilated attention and ReLU FFN, two launches.
; launch 1: qkv projection + attention, FFN up projection + relu, weight re-layout + gate
; launch 2: output projections (wo, w2) and gated mix
; @launch kernel=%s grid=(256,1,1) block=(512,1,1) lds=%d
; @launch kernel=%s grid=(256,1,1) block=(256,1,1) lds=%d
.amdgcn_target "amdgcn-amd-amdhsa--gfx950"
.text
''' % (K1, 3 * SLOT, K2, [61440, 122880, 81920][cfg.bal])
    if cfg.align: body = align8(body)
    out = hdr + body + '.section .rodata,"a"\n' + desc(K1, 256) + desc(K2, *nv2)
    open(sys.argv[1], 'w').write(out)
    print('nops inserted:', a.nops, 'bytes', len(out))

main()
```

```python
import sys, math, struct
from asmlib import Asm, v, s

NAME = 'gated_mix__sliding_local_dilated__dense_activation_relu__prompt'
K1 = NAME + '_kernel'
K2 = 'gm_stage2_kernel'

WS_A = 0
WS_B = 0x900000
WS_G = 0xC00000
WS_SIZE = 0xC02000
RSTRIDE = 68 * 4096
NBSTRIDE = 68 * 5120
SLOT = 50176
XOFF = 33792
BAD = 0x40000000

class Cfg:
    ra = 1
    rb = 5
    rc = 3
    rd = 5
    prof = 0
    k2depth = 4
    k2prio = 1
    bal = 0
    tst = 0
    la = 0
    lb = 0
    sst = 0
    e2 = 0
    ba = 2
    d0 = 4
    d1 = 4
    pw = 35
    scr = 0
    pnt = 0
    pdel = 0
    ps = 0
    align = 1
    xcc = 0
    stm = 0
    str = 0
    stg = 0
    sel = -1
    sel0 = 0
    tpos = 100022222
    pf = 0
    pf0 = 1
    pf1 = 0
    pfo = 1
    pfx = 0
    rx = 0
    rmask = 15
    rsh = 0
    touch = 0
    lp = 0
    k2st = 0
    stpol = 1
cfg = Cfg()

def stp(p=None):
    return ['', ' sc1', ' sc0 sc1', ' nt', ' sc1 nt', ' sc0 sc1 nt', ' sc0'][cfg.stpol if p is None else p]

def f32(x):
    return '0x%08x' % struct.unpack('<I', struct.pack('<f', x))[0]

def srd(a, d, lo, size):
    a('s_mov_b32 %s, %s' % (s(d), s(lo)))
    a('s_mov_b32 %s, %s' % (s(d + 1), s(lo + 1)))
    a('s_mov_b32 %s, %d' % (s(d + 2), size))
    a('s_mov_b32 %s, 0x00020000' % s(d + 3))

PROF = 0xD00000
def stamp(a, i, alt=None):
    if alt is not None and alt != cfg.sst: return
    if cfg.prof:
        a('s_memrealtime %s' % s(80 + 2 * i, 2))
        a('s_memtime %s' % s(72 + 2 * i, 2))
def stamp_flush(a, kern, wsreg, role=2):
    if not cfg.prof: return
    a('s_memrealtime s[86:87]')
    a('s_memtime s[78:79]')
    if cfg.prof == 3 and kern == 1:
        a('s_or_b32 s92, s2, s3')
        a('s_cmp_lg_u32 s92, 0')
        a('s_cbranch_scc1 L2_end')
        a('s_load_dwordx2 s[88:89], s[0:1], 64')
        a('s_mov_b32 s90, 256'); a('s_mov_b32 s91, 0x00020000')
        a('s_mov_b32 s92, s4'); a('s_mov_b32 s93, s5'); a('s_mov_b32 s94, 0x1000000'); a('s_mov_b32 s95, 0x00020000')
        a('s_mov_b32 s96, %d' % PROF)
        a('s_waitcnt lgkmcnt(0)')
        for j in range(4):
            a('v_add_u32 v1, %d, v0' % (64 * j))
            a('v_lshlrev_b32 v2, 9, v1')
            a('buffer_load_dwordx4 v[4:7], v2, s[92:95], s96 offen')
            a('buffer_load_dwordx4 v[8:11], v2, s[92:95], s96 offen offset:16')
            a('v_mov_b32 v3, 0')
            a('v_cmp_le_u32 vcc, 144, v1')
            a('v_cndmask_b32 v3, v3, 16, vcc')
            a('v_cmp_le_u32 vcc, 240, v1')
            a('v_cndmask_b32 v3, v3, 48, vcc')
            a('s_waitcnt vmcnt(0)')
            a('v_not_b32 v4, v4')
            for i in range(4):
                a('buffer_atomic_umax %s, v3, s[88:91], 0 offen offset:%d' % (v(4 + 2 * i), 4 * i))
            a('s_waitcnt vmcnt(0)')
        a('s_mov_b64 exec, 1')
        a('v_mov_b32 v0, 0')
        a('s_not_b32 s80, s80')
        for i in range(4):
            a('v_mov_b32 %s, %s' % (v(4 + i), s(80 + 2 * i)))
            a('buffer_atomic_umax %s, v0, s[88:91], 0 offen offset:%d' % (v(4 + i), role * 16 + 4 * i))
        if cfg.sel >= 0:
            a('s_waitcnt vmcnt(0)')
            a('v_mov_b32 v8, 0'); a('v_mov_b32 v9, 0')
            a('buffer_atomic_umax v8, v0, s[88:91], 0 offen offset:%d sc0' % (4 * cfg.sel0))
            a('buffer_atomic_umax v9, v0, s[88:91], 0 offen offset:%d sc0' % (4 * cfg.sel))
            a('s_waitcnt vmcnt(0)')
            a('v_readfirstlane_b32 s92, v8'); a('v_readfirstlane_b32 s93, v9')
            if cfg.sel0 % 4 == 0: a('s_not_b32 s92, s92')
            if cfg.sel % 4 == 0: a('s_not_b32 s93, s93')
            a('s_sub_u32 s92, s93, s92')
            a('s_min_u32 s92, s92, 5000')
            a('s_lshl_b32 s92, s92, 2')
            a('s_memrealtime s[94:95]')
            a('s_waitcnt lgkmcnt(0)')
            a('L2_spin:')
            a('s_memrealtime s[96:97]')
            a('s_waitcnt lgkmcnt(0)')
            a('s_sub_u32 s96, s96, s94')
            a('s_cmp_lt_u32 s96, s92')
            a('s_cbranch_scc1 L2_spin')
        return
    if cfg.prof == 2:
        a('s_load_dwordx2 s[88:89], s[0:1], 64')
        a('s_mov_b32 s90, 256'); a('s_mov_b32 s91, 0x00020000')
        a('s_waitcnt lgkmcnt(0)')
        a('s_mov_b64 exec, 1')
        a('v_mov_b32 v0, 0')
        a('s_not_b32 s80, s80')
        for i in range(4):
            a('v_mov_b32 %s, %s' % (v(4 + i), s(80 + 2 * i)))
            a('buffer_atomic_umax %s, v0, s[88:91], 0 offen offset:%d' % (v(4 + i), role * 16 + 4 * i))
        return
    if cfg.xcc:
        a('s_waitcnt lgkmcnt(0)')
        a('s_getreg_b32 s80, hwreg(HW_REG_XCC_ID, 0, 4)')
        a('s_sub_u32 s80, s80, s2'); a('s_and_b32 s80, s80, 7'); a('s_mul_i32 s80, s80, 100'); a('s_mov_b32 s82, s80')
    a('s_mov_b32 s88, %s' % s(wsreg)); a('s_mov_b32 s89, %s' % s(wsreg + 1))
    a('s_mov_b32 s90, 0x1000000'); a('s_mov_b32 s91, 0x00020000')
    a('s_lshl_b32 s92, s2, 3'); a('s_add_u32 s92, s92, s3'); a('s_lshl_b32 s92, s92, 6')
    a('s_add_u32 s92, s92, %d' % (PROF + kern * 256 * 8 * 64))
    a('s_waitcnt lgkmcnt(0)')
    if cfg.ps and role < 2 and kern == 0:
        a('v_writelane_b32 v254, s74, 0'); a('v_writelane_b32 v255, s72, 0')
        a('s_mov_b64 exec, 0xffff')
        a('v_mbcnt_lo_u32_b32 v0, -1, 0'); a('v_lshlrev_b32 v0, 3, v0')
        a('s_sub_u32 s93, s92, %d' % PROF); a('s_lshl_b32 s93, s93, 1'); a('s_add_u32 s93, s93, %d' % (PROF + 0x100000))
        a('buffer_store_dwordx2 v[254:255], v0, s[88:91], s93 offen')
    a('s_mov_b64 exec, 1')
    a('v_mov_b32 v0, 0')
    for i in range(8): a('v_mov_b32 %s, %s' % (v(4 + i), s(80 + i)))
    a('buffer_store_dwordx4 v[4:7], v0, s[88:91], s92 offen')
    a('buffer_store_dwordx4 v[8:11], v0, s[88:91], s92 offen offset:16')
    for i in range(8): a('v_mov_b32 %s, %s' % (v(12 + i), s(72 + i)))
    a('buffer_store_dwordx4 v[12:15], v0, s[88:91], s92 offen offset:32')
    a('buffer_store_dwordx4 v[16:19], v0, s[88:91], s92 offen offset:48')

def interleave(a, mf, rd, first=1, per=1):
    rd = list(rd)
    for i, m in enumerate(mf):
        a(m)
        for _ in range(per):
            if rd: a(rd.pop(0))
    for x in rd: a(x)

SETS = (16, 64)
ACC = 112
def acc(t, n): return ACC + (t * 8 + n) * 4
VXA0, VXA1, VWM, VWQ, VWV = 4, 5, 6, 7, 8

def k1_reads(att, st, ks):
    base = SETS[st]
    xa = VXA1 if ks else VXA0
    r = []
    xs = ['ds_read_b128 %s, %s offset:%d' % (v(base + 4 * t, 4), v(xa), t * 2048) for t in range(4)]
    ws = []
    for n in range(8):
        if att:
            reg, off = [(VWM, 0), (VWM, 40), (VWM, 160), (VWM, 200), (VWQ, 0), (VWM, 320), (VWM, 360), (VWV, 0)][n]
        else:
            reg, off = VWM, 32 * n
        for h in range(2):
            ws.append('ds_read_b64_tr_b16 %s, %s offset:%d' % (v(base + 16 + 4 * n + 2 * h, 2), v(reg), off + ks * 16896 + h * 512))
    r = ws[:2] + xs + ws[2:]
    return r

def k1_mfmas(att, st):
    base = SETS[st]
    m = []
    for n in range(8):
        for t in range(4):
            W = v(base + 16 + 4 * n, 4); X = v(base + 4 * t, 4); A = v(acc(t, n), 4)
            if att and n >= 5:
                m.append('v_mfma_f32_16x16x32_bf16 %s, %s, %s, %s' % (A, X, W, A))
            else:
                m.append('v_mfma_f32_16x16x32_bf16 %s, %s, %s, %s' % (A, W, X, A))
    return m

def k1_mainloop(a, att, tag):
    a('s_barrier')
    stamp(a, 1)
    for x in k1_reads(att, 0, 0): a(x)
    a('s_mov_b32 s48, 0')
    a('s_mov_b32 s49, 0')
    a('s_waitcnt lgkmcnt(0)')
    a('L_%s_loop:' % tag)
    pre = ['s_add_u32 s49, s49, 1\ns_cmp_eq_u32 s49, 3', 's_cselect_b32 s50, s51, s52\ns_cselect_b32 s49, 0, s49']
    adv = ['v_add_u32 %s, s50, %s' % (v(r), v(r)) for r in ([VXA0, VXA1, VWM, VWQ, VWV] if att else [VXA0, VXA1, VWM])]
    interleave(a, k1_mfmas(att, 0), k1_reads(att, 1, 1) + pre + adv)
    a('s_waitcnt lgkmcnt(0)')
    if cfg.ps: a('s_memtime s[96:97]')
    a('s_barrier')
    if cfg.ps: a('s_memtime s[94:95]')
    interleave(a, k1_mfmas(att, 1), k1_reads(att, 0, 0) + ['s_add_u32 s48, s48, 1\ns_cmp_lt_u32 s48, 10'])
    a('s_waitcnt lgkmcnt(0)')
    if cfg.ps:
        a('s_mov_b32 m0, s48'); a('s_nop 3'); a('v_writelane_b32 v254, s94, m0'); a('v_writelane_b32 v255, s96, m0')
    a('s_cbranch_scc1 L_%s_loop' % tag)
    stamp(a, 2)

def tok_addr(a, dst, vj, tmp, vloc):
    a('v_lshrrev_b32 %s, 5, %s' % (v(tmp), v(vj)))
    a('v_mul_u32_u24 %s, s54, %s' % (v(dst), v(tmp)))
    a('v_and_b32 %s, 16, %s' % (v(tmp), v(vj)))
    a('v_lshl_add_u32 %s, %s, 7, %s' % (v(dst), v(tmp), v(dst)))
    a('v_and_b32 %s, 15, %s' % (v(tmp), v(vj)))
    a('v_lshl_add_u32 %s, %s, 4, %s' % (v(dst), v(tmp), v(dst)))
    a('v_cmp_gt_u32 vcc, 0x400, %s' % v(vj))
    a('v_cmp_le_u32 s[56:57], s53, %s' % v(vloc))
    a('s_and_b64 vcc, vcc, s[56:57]')
    a('v_mov_b32 %s, %s' % (v(tmp), hex(BAD)))
    a('v_cndmask_b32 %s, %s, %s, vcc' % (v(dst), v(tmp), v(dst)))

def touch_setup(a, wreg, va, vd):
    srd(a, 56, 6, 640 * 3840)
    srd(a, 60, 12, 640 * 3072)
    a('s_lshl_b32 s64, s33, 7')
    a('s_lshl_b32 s65, s34, 2')
    a('s_add_u32 s64, s64, s65')
    a('s_add_u32 s64, s64, %s' % wreg)
    if cfg.touch >= 3:
        sh = 7 if cfg.touch in (3, 5) else 6
        per = 128 >> sh
        a('v_lshlrev_b32 %s, %d, v0' % (v(va), sh))
        a('v_mov_b32 %s, %s' % (v(va + 5), hex(BAD)))
        for i, (nl, base) in enumerate(((20, 0), (17, 64 * 3840), (14, 64 * 3072))):
            a('s_mul_i32 s65, s64, %d' % (nl * 128))
            a('s_add_u32 s65, s65, %d' % base)
            a('v_add_u32 %s, s65, %s' % (v(va + 1 + i), v(va)))
            a('v_cmp_gt_u32 vcc, %d, v0' % (nl * per))
            a('v_cndmask_b32 %s, %s, %s, vcc' % (v(va + 1 + i), v(va + 5), v(va + 1 + i)))
        L = lambda i, sr: 'buffer_load_dword %s, %s, %s, 0 offen' % (v(vd + i), v(va + 1 + i), sr)
        return [L(0, 's[20:23]'), L(1, 's[56:59]'), L(2, 's[60:63]')], []
    a('s_lshl_b32 s65, s64, 10')
    a('v_lshl_add_u32 %s, v0, 4, s65' % v(va))
    a('v_add_u32 %s, %d, %s' % (v(va + 1), 64 * 3840 + (2 << 20), v(va)))
    a('v_add_u32 %s, %d, %s' % (v(va + 2), 64 * 3072 + (1 << 20), v(va)))
    a('s_mul_i32 s65, s64, 2560')
    a('v_lshrrev_b32 %s, 5, v0' % v(va + 3))
    a('v_mul_u32_u24 %s, 0x500, %s' % (v(va + 3), v(va + 3)))
    a('v_and_b32 %s, 31, v0' % v(va + 4))
    a('v_lshl_add_u32 %s, %s, 4, %s' % (v(va + 3), v(va + 4), v(va + 3)))
    a('v_lshrrev_b32 %s, 3, v0' % v(va + 4))
    a('v_mul_u32_u24 %s, 0x500, %s' % (v(va + 4), v(va + 4)))
    a('v_and_b32 %s, 7, v0' % v(va + 5))
    a('v_lshl_add_u32 %s, %s, 4, %s' % (v(va + 4), v(va + 5), v(va + 4)))
    a('v_mov_b32 %s, %s' % (v(va + 5), hex(BAD)))
    a('v_cmp_gt_u32 vcc, 16, v0')
    a('v_cndmask_b32 %s, %s, %s, vcc' % (v(va + 4), v(va + 5), v(va + 4)))
    a('s_mov_b32 s66, %d' % (64 * 3840))
    a('s_mov_b32 s67, %d' % (64 * 3072))
    a('s_mov_b32 s68, %d' % (64 * 3840 + (1 << 20)))
    L = lambda i, r, sr, so, off: 'buffer_load_dwordx4 %s, %s, %s, %s offen offset:%d' % (v(vd + 4 * i, 4), v(r), sr, so, off)
    ta = [L(0, va + 3, 's[20:23]', 's65', 128), L(1, va, 's[56:59]', 's66', 0), L(2, va, 's[60:63]', 's67', 0)]
    tb = [L(3, va + 3, 's[20:23]', 's65', 640), L(4, va, 's[56:59]', 's68', 0), L(5, va + 2, 's[60:63]', '0', 0),
          L(6, va + 4, 's[20:23]', 's65', 1152), L(7, va + 1, 's[56:59]', '0', 0)]
    return ta, tb

def gen_k1(a):
    a('.globl %s' % K1); a('.p2align 8'); a('.type %s,@function' % K1)
    a('%s:' % K1)
    a('s_cmp_ge_u32 s2, 256')
    a('s_cbranch_scc1 L1_end')
    stamp(a, 0); stamp(a, 1); stamp(a, 2)
    a('s_load_dwordx4 s[4:7], s[0:1], 0')
    a('s_load_dwordx2 s[8:9], s[0:1], 16')
    a('s_load_dwordx4 s[12:15], s[0:1], 32')
    a('s_load_dwordx2 s[10:11], s[0:1], 48')
    a('s_load_dwordx2 s[16:17], s[0:1], 72')
    a('v_lshrrev_b32 v1, 6, v0')
    a('v_and_b32 v0, 63, v0')
    a('v_readfirstlane_b32 s3, v1')
    if cfg.scr & 1:
        a('s_lshr_b32 s33, s2, 5'); a('s_and_b32 s34, s2, 31')
    else:
        a('s_and_b32 s33, s2, 7')
        a('s_lshr_b32 s34, s2, 3')
    a('s_lshr_b32 s35, s33, 2')
    a('s_and_b32 s36, s33, 3')
    a('s_cmp_ge_u32 s34, 30')
    a('s_cbranch_scc1 L1_prep')
    a('s_cmp_ge_u32 s34, 18')
    a('s_cbranch_scc1 L1_ffn_setup')
    a('s_and_b32 s38, s34, 1')
    a('s_lshl_b32 s46, s36, 1')
    a('s_add_u32 s38, s38, s46')
    a('s_mul_i32 s37, s35, 9')
    a('s_lshr_b32 s46, s34, 1')
    a('s_add_u32 s37, s37, s46')
    a('s_and_b32 s45, s46, %d' % cfg.rmask)
    a('s_mul_i32 s45, s45, %d' % cfg.ra)
    if cfg.rsh: a('s_lshr_b32 s45, s45, %d' % cfg.rsh)
    a('s_and_b32 s47, s38, 1')
    a('s_mul_i32 s47, s47, %d' % cfg.rb)
    a('s_add_u32 s45, s45, s47')
    a('s_mul_i32 s39, s37, 114')
    a('s_movk_i32 s40, 3840')
    a('s_movk_i32 s41, 29')
    a('s_movk_i32 s42, %d' % (0 if cfg.tst & 16 else 1120))
    a('s_mul_i32 s43, s38, %d' % (512 if cfg.tst & 16 else 160))
    a('s_mov_b32 s44, 0')
    a('s_waitcnt lgkmcnt(0)')
    srd(a, 24, 6, 640 * 3840)
    a('s_branch L1_common')
    a('L1_ffn_setup:')
    a('s_mul_i32 s46, s36, 12')
    a('s_add_u32 s46, s46, s34')
    a('s_sub_u32 s46, s46, 18')
    a('s_lshr_b32 s38, s46, 3')
    a('s_and_b32 s46, s46, 7')
    a('s_lshl_b32 s37, s35, 3')
    a('s_add_u32 s37, s37, s46')
    a('s_and_b32 s45, s46, %d' % cfg.rmask)
    a('s_mul_i32 s45, s45, %d' % cfg.ra)
    if cfg.rsh: a('s_lshr_b32 s45, s45, %d' % cfg.rsh)
    a('s_and_b32 s47, s38, 1')
    a('s_mul_i32 s47, s47, %d' % cfg.rd)
    a('s_add_u32 s45, s45, s47')
    a('s_add_u32 s45, s45, %d' % cfg.rc)
    a('s_lshl_b32 s39, s37, 7')
    a('s_movk_i32 s40, 3072')
    a('s_movk_i32 s41, 31')
    a('s_mov_b32 s42, 0')
    a('s_lshl_b32 s43, s38, 9')
    a('s_mov_b32 s44, 1')
    a('s_waitcnt lgkmcnt(0)')
    srd(a, 24, 12, 640 * 3072)
    a('L1_common:')
    srd(a, 20, 4, 2048 * 1280)
    a('s_cmp_lt_u32 s3, 4')
    a('s_cbranch_scc1 L1_consumer')
    a('s_setprio 3')
    a('s_sub_u32 s46, s3, 4')
    a('v_lshrrev_b32 v2, 3, v0')
    a('v_lshrrev_b32 v3, 4, v0')
    a('v_and_b32 v4, 7, v0')
    a('s_lshr_b32 s47, s46, 1')
    a('s_add_u32 s47, s47, s39')
    a('s_and_b32 s48, s46, 1')
    a('s_lshl_b32 s48, s48, 6')
    a('s_add_u32 s47, s47, s48')
    a('v_lshl_add_u32 v5, v2, 1, s47')
    a('v_mul_u32_u24 v5, 0x500, v5')
    a('v_xor_b32 v4, v4, v3')
    a('v_lshl_add_u32 v16, v4, 4, v5')
    a('v_xor_b32 v4, 4, v4')
    a('v_lshl_add_u32 v17, v4, 4, v5')
    a('v_add_u32 v17, %d, v17' % (16 * 1280))
    a('v_add_u32 v18, %d, v16' % (32 * 1280))
    a('v_add_u32 v19, %d, v17' % (32 * 1280))
    a('v_and_b32 v1, 31, v0')
    a('v_min_u32 v1, s41, v1')
    a('v_mul_u32_u24 v2, 13, v1')
    a('v_lshrrev_b32 v2, 7, v2')
    a('v_lshlrev_b32 v1, 4, v1')
    a('v_mad_u32_u24 v1, v2, s42, v1')
    a('v_add_u32 v1, s43, v1')
    a('v_lshrrev_b32 v2, 5, v0')
    a('v_lshlrev_b32 v2, 2, v2')
    a('s_lshl_b32 s47, s46, 4')
    a('v_add_u32 v2, s47, v2')
    a('v_mad_u32_u24 v8, v2, s40, v1')
    a('s_lshl_b32 s47, s40, 3')
    a('v_add_u32 v12, s47, v8')
    for e in range(1, 4):
        a('v_add_u32 %s, s40, %s' % (v(8 + e), v(7 + e)))
        a('v_add_u32 %s, s40, %s' % (v(12 + e), v(11 + e)))
    if cfg.rx:
        a('s_mul_i32 s47, s33, %d' % cfg.rx)
        a('s_lshr_b32 s47, s47, 2')
        a('s_add_u32 s45, s45, s47')
    a('s_mul_i32 s47, s45, 205')
    a('s_lshr_b32 s47, s47, 11')
    a('s_mul_i32 s47, s47, 10')
    a('s_sub_u32 s45, s45, s47')
    a('s_mov_b32 s48, 0')
    a('s_mov_b32 s49, 0')
    a('s_mul_i32 s50, s46, %d' % (8 * 1056))
    a('s_lshl_b32 s51, s46, 12')
    a('s_add_u32 s51, s51, %d' % XOFF)
    a('s_lshl_b32 s53, s40, 6')
    a('s_movk_i32 s55, 1024')
    a('s_movk_i32 s47, 1056')
    def ld_stage(first=False):
        a('s_mul_i32 s52, s45, s53')
        a('s_lshl_b32 s54, s45, 7')
        a('s_add_u32 m0, s49, s51')
        for e in range(4):
            if e: a('s_add_u32 m0, m0, s55')
            a('buffer_load_dwordx4 %s, s[20:23], s54 offen lds' % v(16 + e))
        a('s_add_u32 m0, s49, s50')
        for e in range(8):
            if e: a('s_add_u32 m0, m0, s47')
            a('buffer_load_dwordx4 %s, s[24:27], s52 offen lds' % v(8 + e))
        a('s_add_u32 s45, s45, 1')
        a('s_cmp_eq_u32 s45, 10')
        a('s_cselect_b32 s45, 0, s45')
        a('s_add_u32 s49, s49, %d' % SLOT)
        a('s_cmp_eq_u32 s49, %d' % (3 * SLOT))
        a('s_cselect_b32 s49, 0, s49')
    if not cfg.touch:
        a('L1_ld_loop:')
        a('s_cmp_lt_u32 s48, 2')
        a('s_cbranch_scc1 L1_ld_nowait')
        a('s_waitcnt vmcnt(12)')
        a('s_barrier')
        a('L1_ld_nowait:')
        ld_stage()
        a('s_add_u32 s48, s48, 1')
        a('s_cmp_lt_u32 s48, 10')
        a('s_cbranch_scc1 L1_ld_loop')
        a('s_waitcnt vmcnt(12)')
    else:
        ld_stage()
        tl = []
        if cfg.touch:
            ta, tb = touch_setup(a, 's46', 32, 40)
            tl = list(zip([int(c) for c in str(cfg.tpos)[1:]], ta + tb))
        seq = []
        for j in range(10):
            if j >= 2: seq.append(('w', j - 2))
            seq.append(('d', j))
            seq += [('t', x) for p, x in tl if p == j]
        seq.append(('w', 8))
        last = max([p for p, x in tl] + [1]) + 3
        for i, x in enumerate(seq):
            if i == 0: continue
            if x[0] == 'd':
                ld_stage()
                if x[1] == last: break
            elif x[0] == 't': a(x[1])
            else:
                pos = seq.index(('d', x[1]))
                cnt = sum(12 if y[0] == 'd' else 1 if y[0] == 't' else 0 for y in seq[pos + 1:i])
                if x[1] + 2 == last:
                    assert cnt == 12
                    a('s_mov_b32 s48, %d' % last)
                    a('s_waitcnt vmcnt(12)')
                    a('L1_ld_loop:')
                else:
                    a('s_waitcnt vmcnt(%d)' % cnt)
                if cfg.lp and x[1] == 0: stamp(a, 1)
                if cfg.lp and x[1] == 1: stamp(a, 2)
                a('s_barrier')
        a('s_add_u32 s48, s48, 1')
        a('s_cmp_lt_u32 s48, 10')
        a('s_waitcnt vmcnt(12)')
        a('s_cbranch_scc1 L1_ld_loop')
    if not cfg.lp: stamp(a, 1)
    a('s_cmp_eq_u32 s44, 1')
    a('s_cselect_b32 s47, s38, 4')
    a('s_cmp_lt_u32 s47, 4')
    a('s_barrier')
    a('s_cbranch_scc1 L1_ld_gate')
    a('s_waitcnt vmcnt(0)')
    a('s_barrier')
    stamp_flush(a, 0, 16)
    a('s_endpgm')
    gen_gate(a)
    a('L1_consumer:')
    srd(a, 28, 16, WS_SIZE)
    a('s_and_b32 s46, s3, 1')
    a('s_lshr_b32 s47, s3, 1')
    a('v_lshrrev_b32 v1, 4, v0')
    a('v_and_b32 v2, 15, v0')
    a('v_bfe_u32 v3, v2, 1, 3')
    a('v_xor_b32 v3, v3, v1')
    a('v_lshlrev_b32 v3, 4, v3')
    a('v_lshl_add_u32 v3, v2, 7, v3')
    a('s_lshl_b32 s48, s46, 13')
    a('s_add_u32 s48, s48, %d' % XOFF)
    a('v_add_u32 %s, s48, v3' % v(VXA0))
    a('v_xor_b32 %s, 64, %s' % (v(VXA1), v(VXA0)))
    a('v_lshrrev_b32 v3, 2, v0')
    a('v_mul_u32_u24 v3, 0x420, v3')
    a('v_and_b32 v15, 3, v0')
    a('v_lshl_add_u32 %s, v15, 3, v3' % v(VWM))
    a('s_mov_b32 s51, %d' % (-2 * SLOT & 0xffffffff))
    a('s_mov_b32 s52, %d' % SLOT)
    for i in range(128): a('v_mov_b32 %s, 0' % v(ACC + i))
    a('s_cmp_eq_u32 s44, 1')
    a('s_cbranch_scc1 L1_ffn')
    a('s_mul_i32 s48, s47, 80')
    a('v_add_u32 %s, s48, %s' % (v(VWM), v(VWM)))
    a('v_add_u32 v3, s48, v3')
    a('v_and_b32 v16, 1, v15')
    a('v_mad_u32_u24 v3, v16, 40, v3')
    a('v_add_u32 %s, 352, v3' % v(VWV))
    a('v_lshrrev_b32 v16, 1, v15')
    a('v_mul_u32_u24 v16, 160, v16')
    a('v_add3_u32 %s, v3, v16, 32' % v(VWQ))
    a('v_lshlrev_b32 v16, 2, v1')
    a('v_sub_u32 v16, v2, v16')
    a('v_mov_b32 v17, %s' % f32(-1e30))
    for r in range(4):
        a('v_subrev_u32 v18, %d, v16' % r)
        a('v_cmp_gt_u32 vcc, 8, v18')
        a('v_cndmask_b32 %s, v17, 0, vcc' % v(240 + r))
        a('v_cmp_gt_i32 vcc, -8, v18')
        a('v_cndmask_b32 %s, v17, 0, vcc' % v(244 + r))
        a('v_cmp_le_i32 vcc, 0, v18')
        a('v_cndmask_b32 %s, 0, -1, vcc' % v(20 + r))
        a('v_mov_b32 %s, 0x3f803f80' % v(250 + r))
    a('v_mov_b32 v17, 0xffff')
    a('v_bfi_b32 v248, v17, v20, v21')
    a('v_bfi_b32 v249, v17, v22, v23')
    a('s_mul_i32 s55, s37, 57')
    a('s_cmp_eq_u32 s37, 0')
    a('s_cselect_b32 s53, 0, 7')
    a('s_mov_b32 s54, %d' % RSTRIDE)
    a('s_lshl_b32 s58, s38, 1')
    a('s_add_u32 s58, s58, s47')
    a('s_lshl_b32 s58, s58, 12')
    a('s_lshl_b32 s59, s46, 10')
    a('s_add_u32 s58, s58, s59')
    a('v_lshlrev_b32 v19, 8, v1')
    for t in range(4):
        a('v_add_u32 v16, %d, v2' % (16 * t))
        a('v_add_u32 v17, s55, v16')
        tok_addr(a, 9 + t, 17, 18, 16)
        a('v_add_u32 %s, v19, %s' % (v(9 + t), v(9 + t)))
    a('s_lshr_b32 s60, s38, 1')
    a('s_add_u32 s60, s60, 16')
    a('s_lshl_b32 s60, s60, 12')
    a('s_add_u32 s59, s59, s60')
    a('s_and_b32 s60, s38, 1')
    a('s_lshl_b32 s60, s60, 1')
    a('s_add_u32 s60, s60, s47')
    a('s_lshl_b32 s60, s60, 8')
    a('s_add_u32 s59, s59, s60')
    a('v_and_b32 v19, 1, v1')
    a('v_lshlrev_b32 v19, 3, v19')
    a('v_lshrrev_b32 v20, 1, v1')
    a('v_lshl_add_u32 v20, v20, 4, v2')
    for u in range(2):
        a('v_add_u32 v16, %d, v20' % (32 * u))
        a('v_add_u32 v17, s55, v16')
        tok_addr(a, 13 + u, 17, 18, 16)
        a('v_add_u32 %s, v19, %s' % (v(13 + u), v(13 + u)))
    for g in range(4):
        m = 0xffff << (16 * g)
        a('s_mov_b32 %s, 0x%x' % (s(64 + 2 * g), m & 0xffffffff))
        a('s_mov_b32 %s, 0x%x' % (s(65 + 2 * g), m >> 32))
    cs = 20 ** -0.5 * math.log2(math.e)
    a('s_mov_b32 s62, %s' % f32(cs))
    a('s_mov_b32 s63, %s' % f32(-cs))
    k1_mainloop(a, True, 'att')
    gen_attention(a)
    if cfg.prof: a('s_waitcnt vmcnt(0)')
    stamp_flush(a, 0, 16, 0)
    a('s_endpgm')
    a('L1_ffn:')
    a('s_lshl_b32 s48, s47, 8')
    a('v_add_u32 %s, s48, %s' % (v(VWM), v(VWM)))
    a('v_lshlrev_b32 v9, 4, v0')
    a('s_mul_i32 s58, s37, %d' % (2 * RSTRIDE))
    a('s_lshl_b32 s59, s38, 3')
    a('s_lshl_b32 s60, s47, 2')
    a('s_add_u32 s59, s59, s60')
    a('s_add_u32 s59, s59, 20')
    a('s_lshl_b32 s59, s59, 12')
    a('s_add_u32 s58, s58, s59')
    a('s_lshl_b32 s59, s46, 10')
    a('s_add_u32 s58, s58, s59')
    k1_mainloop(a, False, 'ffn')
    k = 0
    for m in range(4):
        for t in range(4):
            d = 16 + 4 * (k % 16); k += 1
            for h in range(2):
                A = acc(t, 2 * m + h)
                a('v_cvt_pk_bf16_f32 %s, %s, %s' % (v(d + 2 * h), v(A), v(A + 1)))
                a('v_cvt_pk_bf16_f32 %s, %s, %s' % (v(d + 2 * h + 1), v(A + 2), v(A + 3)))
            for i in range(4):
                a('v_pk_max_i16 %s, %s, 0' % (v(d + i), v(d + i)))
            a('s_add_u32 s59, s58, %d' % ((t >> 1) * RSTRIDE + m * 4096))
            a('buffer_store_dwordx4 %s, v9, s[28:31], s59 offen offset:%d' % (v(d, 4), (t & 1) * 2048) + stp())
    if cfg.prof: a('s_waitcnt vmcnt(0)')
    stamp_flush(a, 0, 16, 1)
    a('s_endpgm')
    gen_prep(a)
    a('L1_end:')
    a('s_endpgm')

def gen_attention(a):
    KK = lambda t: 16 + 6 * t
    Q0 = lambda t: 40 + 8 * t
    Q1 = lambda t: 44 + 8 * t
    VP = lambda h, t: 72 + 8 * h + 2 * t
    M = lambda u: 96 + u
    SC = lambda u: 112 + 8 * u
    SP = lambda u: 116 + 8 * u
    P = lambda u: 176 + 4 * u
    SUM = lambda u: 208 + 4 * u
    def cvt(d, A):
        a('v_cvt_pk_bf16_f32 %s, %s, %s' % (v(d), v(A), v(A + 1)))
        a('v_cvt_pk_bf16_f32 %s, %s, %s' % (v(d + 1), v(A + 2), v(A + 3)))
    def conv_qk(t):
        cvt(Q1(t), acc(t, 4)); cvt(KK(t) + 2, acc(t, 4))
        cvt(Q0(t), acc(t, 0)); cvt(Q1(t) + 2, acc(t, 1))
        a('v_permlane32_swap_b32 %s, %s' % (v(Q1(t)), v(KK(t) + 2)))
        a('v_permlane32_swap_b32 %s, %s' % (v(Q1(t) + 1), v(KK(t) + 3)))
        cvt(KK(t), acc(t, 2)); cvt(KK(t) + 4, acc(t, 3))
        for i in range(2):
            a('v_cndmask_b32 %s, 0, %s, s[64:65]' % (v(Q0(t) + 2 + i), v(Q1(t) + i)))
            a('v_cndmask_b32 %s, 0, %s, s[66:67]' % (v(Q1(t) + i), v(Q1(t) + i)))
    def conv_v(t):
        for h in range(3): cvt(VP(h, t), acc(t, 5 + h))
    for t in range(4): conv_qk(t)
    conv_v(0); conv_v(1)
    Kop = lambda h, t: v(KK(t) + 2 * h, 4)
    Qop = lambda h, t: v(Q0(t) if h == 0 else Q1(t), 4)
    mf = []
    for h in range(2):
        for t in range(4):
            u = 4 * h + t
            mf.append('v_mfma_f32_16x16x32_bf16 %s, %s, %s, v[240:243]' % (v(SC(u), 4), Kop(h, t), Qop(h, t)))
            if t: mf.append('v_mfma_f32_16x16x32_bf16 %s, %s, %s, v[244:247]' % (v(SP(u), 4), Kop(h, t - 1), Qop(h, t)))
    cv = []
    for t in (2, 3):
        for h in range(3):
            A = acc(t, 5 + h); d = VP(h, t)
            cv.append('v_cvt_pk_bf16_f32 %s, %s, %s' % (v(d), v(A), v(A + 1)))
            cv.append('v_cvt_pk_bf16_f32 %s, %s, %s' % (v(d + 1), v(A + 2), v(A + 3)))
    interleave(a, mf, cv)
    for u in range(8):
        if u & 3:
            for r in range(4): a('v_max_f32 %s, %s, %s' % (v(SC(u) + r), v(SC(u) + r), v(SP(u) + r)))
        a('v_max3_f32 %s, %s, %s, %s' % (v(M(u)), v(SC(u)), v(SC(u) + 1), v(SC(u) + 2)))
        a('v_max_f32 %s, %s, %s' % (v(M(u)), v(M(u)), v(SC(u) + 3)))
    G = (0, 4)
    for b in G:
        a('v_permlane32_swap_b32 %s, %s' % (v(M(b)), v(M(b + 1))))
        a('v_permlane32_swap_b32 %s, %s' % (v(M(b + 2)), v(M(b + 3))))
    for b in G:
        a('v_max_f32 %s, %s, %s' % (v(M(b)), v(M(b)), v(M(b + 1))))
        a('v_max_f32 %s, %s, %s' % (v(M(b + 2)), v(M(b + 2)), v(M(b + 3))))
    for b in G: a('v_permlane16_swap_b32 %s, %s' % (v(M(b)), v(M(b + 2))))
    for b in G: a('v_max_f32 %s, %s, %s' % (v(M(b)), v(M(b)), v(M(b + 2))))
    for b in G: a('v_mul_f32 %s, s63, %s' % (v(M(b + 2)), v(M(b))))
    for b in G: a('v_mul_f32 %s, s63, %s' % (v(M(b)), v(M(b))))
    for b in G: a('v_permlane16_swap_b32 %s, %s' % (v(M(b)), v(M(b + 2))))
    for b in G:
        a('v_mov_b32 %s, %s' % (v(M(b + 1)), v(M(b))))
        a('v_mov_b32 %s, %s' % (v(M(b + 3)), v(M(b + 2))))
    for b in G:
        a('v_permlane32_swap_b32 %s, %s' % (v(M(b)), v(M(b + 1))))
        a('v_permlane32_swap_b32 %s, %s' % (v(M(b + 2)), v(M(b + 3))))
    pend = []
    for u in range(8):
        h, t = u >> 2, u & 3
        for r in range(4): a('v_fma_f32 %s, %s, s62, %s' % (v(SC(u) + r), v(SC(u) + r), v(M(u))))
        for r in range(4):
            a('v_exp_f32 %s, %s' % (v(SC(u) + r), v(SC(u) + r)))
            if pend: a(pend.pop(0))
        for x in pend: a(x)
        if t == 0:
            cvt(P(u) + 2, SC(u))
            op = 'v_mfma_f32_16x16x16_bf16'; B = v(P(u) + 2, 2); n = 2; o = 0
        else:
            cvt(P(u), SC(u))
            for i in range(2): a('v_and_b32 %s, %s, %s' % (v(P(u) + 2 + i), v(248 + i), v(P(u) + i)))
            for i in range(2): a('v_bfi_b32 %s, %s, 0, %s' % (v(P(u) + i), v(248 + i), v(P(u) + i)))
            op = 'v_mfma_f32_16x16x32_bf16'; B = v(P(u), 4); n = 4; o = -2
        pend = ['%s %s, %s, %s, 0' % (op, v(SUM(u), 4), v(250, n), B),
                '%s %s, %s, %s, 0' % (op, v(SC(u), 4), v(VP(h, t) + o, n), B),
                '%s %s, %s, %s, 0' % (op, v(SP(u), 4), v(VP(2, t) + o, n), B)]
    for x in pend: a(x)
    for u in range(8): a('v_rcp_f32 %s, %s' % (v(SUM(u)), v(SUM(u))))
    for t in range(4):
        for h in range(2):
            u = 4 * h + t
            for i in range(2):
                a('v_pk_mul_f32 %s, %s, %s op_sel_hi:[1,0]' % (v(SC(u) + 2 * i, 2), v(SC(u) + 2 * i, 2), v(SUM(u), 2)))
        for h in range(2): cvt(16 + 4 * t + 2 * h, SC(4 * h + t))
        a('buffer_store_dwordx4 %s, %s, s[28:31], s58 offen' % (v(16 + 4 * t, 4), v(9 + t)) + stp(cfg.stm))
    for g in range(4):
        a('s_mov_b64 exec, %s' % s(64 + 2 * g, 2))
        for u2 in range(2):
            u = 4 * (g & 1) + 2 * u2 + (g >> 1)
            for i in range(2):
                a('v_pk_mul_f32 %s, %s, %s op_sel_hi:[1,0]' % (v(40 + 4 * u2 + 2 * i, 2), v(SP(u) + 2 * i, 2), v(SUM(u), 2)))
    a('s_mov_b64 exec, -1')
    for u2 in range(2):
        cvt(48 + 2 * u2, 40 + 4 * u2)
        a('buffer_store_dwordx2 %s, %s, s[28:31], s59 offen' % (v(48 + 2 * u2, 2), v(13 + u2)) + stp(cfg.str))

def gen_gate(a):
    GW, GX = 24, 64
    a('L1_ld_gate:')
    srd(a, 56, 10, 1280)
    srd(a, 28, 16, WS_SIZE)
    a('v_and_b32 v1, 7, v0')
    a('v_lshlrev_b32 v1, 4, v1')
    a('s_lshl_b32 s47, s38, 5')
    a('s_add_u32 s47, s47, s39')
    a('s_lshl_b32 s48, s46, 3')
    a('s_add_u32 s47, s47, s48')
    a('v_lshrrev_b32 v2, 3, v0')
    a('v_add_u32 v2, s47, v2')
    a('v_mul_u32_u24 v3, 0x500, v2')
    a('v_add_u32 v3, v3, v1')
    a('s_waitcnt vmcnt(0)')
    a('s_barrier')
    for i in range(10):
        a('buffer_load_dwordx4 %s, v1, s[56:59], 0 offen offset:%d' % (v(GW + 4 * i, 4), 128 * i))
    for i in range(10):
        a('buffer_load_dwordx4 %s, v3, s[20:23], 0 offen offset:%d' % (v(GX + 4 * i, 4), 128 * i))
    a('v_mov_b32 v9, 0')
    a('v_mov_b32 v10, 0')
    a('s_barrier')
    a('s_waitcnt vmcnt(0)')
    for i in range(40):
        a('v_dot2_f32_bf16 %s, %s, %s, %s' % (v(9 + (i & 1)), v(GX + i), v(GW + i), v(9 + (i & 1))))
    a('v_add_f32 v9, v9, v10')
    for pat in ('quad_perm:[1,0,3,2]', 'quad_perm:[2,3,0,1]', 'row_half_mirror'):
        a('v_add_f32_dpp v11, v9, v9 %s row_mask:0xf bank_mask:0xf' % pat)
        a('v_mov_b32 v9, v11')
    a('v_mul_f32 v9, %s, v9' % f32(-math.log2(math.e)))
    a('v_exp_f32 v9, v9')
    a('v_add_f32 v9, 1.0, v9')
    a('v_rcp_f32 v9, v9')
    a('v_lshlrev_b32 v2, 2, v2')
    a('v_mov_b32 v3, %s' % hex(BAD))
    a('v_cmp_eq_u32 vcc, 0, v1')
    a('v_cndmask_b32 v2, v3, v2, vcc')
    a('s_mov_b32 s60, %d' % WS_G)
    a('buffer_store_dword v9, v2, s[28:31], s60 offen' + stp(cfg.stg))
    if cfg.prof: a('s_waitcnt vmcnt(0)')
    stamp_flush(a, 0, 16)
    a('s_endpgm')

def gen_prep(a):
    PITCH = 176
    LW = 32 * PITCH
    a('L1_prep:')
    a('s_sub_u32 s37, s34, 30')
    a('s_lshl_b32 s37, s37, 3')
    a('s_add_u32 s37, s37, s33')
    a('s_waitcnt lgkmcnt(0)')
    srd(a, 24, 8, 640 * 1280)
    srd(a, 40, 14, 1536 * 1280)
    srd(a, 28, 16, WS_SIZE)
    if cfg.touch:
        a('s_cmp_lt_u32 s3, 4')
        a('s_cbranch_scc0 L1_prep_not')
        srd(a, 20, 4, 2048 * 1280)
        ta, tb = touch_setup(a, 's3', 124, 132)
        for x in ta + tb: a(x)
        a('L1_prep_not:')
    U = lambda u: 24 + 20 * u
    PITCH = 1280 + 176
    LB = 32 * PITCH
    pol = stp(cfg.pnt)
    a('v_lshlrev_b32 v7, 4, v0')
    a('v_add_u32 v8, 4096, v7')
    a('s_lshr_b32 s48, s3, 1')
    a('s_and_b32 s49, s3, 1')
    a('s_lshl_b32 s50, s48, 2')
    a('s_lshl_b32 s51, s49, 4')
    a('s_add_u32 s51, s51, s50')
    a('s_mul_i32 s55, s37, 96')
    a('s_add_u32 s55, s55, s51')
    a('s_mul_i32 s55, s55, 1280')
    def ld5(u, sr):
        for e in range(5):
            a('buffer_load_dwordx4 %s, %s, %s, s55 offen offset:%d' % (v(U(u) + 4 * e, 4), v(7 if e < 4 else 8), sr, (e & 3) * 1024) + pol)
    for u in range(3):
        ld5(u, 's[40:43]')
        if u < 2: a('s_add_u32 s55, s55, %d' % (32 * 1280))
    a('s_mul_i32 s51, s49, 20')
    a('s_mul_i32 s55, s37, 40')
    a('s_add_u32 s55, s55, s50')
    a('s_add_u32 s55, s55, s51')
    a('s_mul_i32 s55, s55, 1280')
    ld5(3, 's[24:27]')
    a('s_and_b32 s56, s37, 3')
    a('s_lshr_b32 s61, s37, 2')
    a('s_mul_i32 s55, s56, 160')
    a('s_mul_i32 s50, s48, 40')
    a('s_add_u32 s55, s55, s50')
    a('s_add_u32 s55, s55, s51')
    a('s_add_u32 s55, s55, 16')
    a('s_mul_i32 s55, s55, 1280')
    a('s_mul_i32 s50, s61, 320')
    a('s_add_u32 s55, s55, s50')
    a('s_movk_i32 s52, %d' % PITCH)
    a('s_mul_i32 s53, s3, %d' % (4 * PITCH))
    a('s_add_u32 s54, s53, s50')
    a('s_movk_i32 s57, 1280')
    a('v_mul_u32_u24 v2, 13, v0')
    a('v_lshrrev_b32 v2, 8, v2')
    a('v_mul_u32_u24 v3, 20, v2')
    a('v_sub_u32 v1, v0, v3')
    a('v_lshlrev_b32 v1, 4, v1')
    a('v_mad_u32_u24 v9, v2, s57, v1')
    a('v_mad_u32_u24 v11, v2, s52, v1')
    a('v_add_u32 v11, s54, v11')
    a('v_add_u32 v10, %d, v7' % (3 * 1280 + 64))
    a('v_mov_b32 v3, %s' % hex(BAD))
    a('v_cmp_gt_u32 vcc, 16, v0')
    a('v_cndmask_b32 v10, v3, v10, vcc')
    a('buffer_load_dwordx4 %s, v9, s[24:27], s55 offen' % v(U(4), 4) + pol)
    a('buffer_load_dwordx4 %s, v10, s[24:27], s55 offen' % v(U(4) + 4, 4) + pol)
    a('s_add_u32 s54, s54, %d' % (3 * PITCH + 64))
    a('v_add_u32 v12, s54, v7')
    a('s_movk_i32 s50, 205')
    for e in range(5):
        a('v_add_u32 v1, %d, v0' % (64 * e))
        a('v_mul_u32_u24 v2, s50, v1')
        a('v_lshrrev_b32 v2, 14, v2')
        a('v_mul_u32_u24 v2, %d, v2' % (PITCH - 1280))
        a('v_lshl_add_u32 v1, v1, 4, v2')
        a('v_add_u32 %s, s53, v1' % v(19 + e))
    a('s_mul_i32 s49, s3, 160')
    a('v_lshrrev_b32 v4, 4, v0')
    a('v_bfe_u32 v5, v0, 2, 2')
    a('v_lshl_add_u32 v4, v4, 3, v5')
    a('v_mul_u32_u24 v4, s52, v4')
    a('v_add_u32 v4, s49, v4')
    a('v_and_b32 v5, 3, v0')
    a('v_lshl_add_u32 v6, v5, 3, v4')
    a('v_lshl_add_u32 v5, v5, 4, v4')
    a('s_mul_i32 s59, s3, %d' % NBSTRIDE)
    a('s_add_u32 s59, s59, %d' % WS_B)
    for u in range(5):
        bo = (u & 1) * LB
        a('s_waitcnt vmcnt(%d)' % (17 if u < 4 else 20))
        if u < 4:
            for e in range(5):
                a('ds_write_b128 %s, %s offset:%d' % (v(19 + e), v(U(u) + 4 * e, 4), bo))
        else:
            a('ds_write_b128 v11, %s offset:%d' % (v(U(u), 4), bo))
            a('s_mov_b64 exec, 0xffff')
            a('ds_write_b128 v12, %s offset:%d' % (v(U(u) + 4, 4), bo))
            a('s_mov_b64 exec, -1')
        if u < 3:
            a('s_mul_i32 s60, s37, 3'); a('s_add_u32 s60, s60, %d' % (20 + u))
        elif u == 3:
            a('s_mov_b32 s60, s37')
        else:
            a('s_add_u32 s60, s56, 16')
        a('s_mul_i32 s60, s60, 5120')
        a('s_add_u32 s60, s60, s59')
        a('s_waitcnt lgkmcnt(0)')
        a('s_barrier')
        if u == 4:
            a('s_cmp_lg_u32 s61, s48')
            a('s_cbranch_scc1 L1_prep_done')
        for nt in range(5):
            for h in range(2):
                if nt < 4: reg, off = 5, 64 * (nt >> 1) + 8 * (nt & 1)
                else: reg, off = 6, 128
                a('ds_read_b64_tr_b16 %s, %s offset:%d' % (v(U(u) + 4 * nt + 2 * h, 2), v(reg), bo + off + h * 4 * PITCH))
        a('s_waitcnt lgkmcnt(0)')
        for nt in range(5):
            a('buffer_store_dwordx4 %s, %s, s[28:31], s60 offen offset:%d' % (v(U(u) + 4 * nt, 4), v(7 if nt < 4 else 8), (nt & 3) * 1024) + stp())
    a('L1_prep_done:')
    if cfg.prof: a('s_waitcnt vmcnt(0)')
    stamp_flush(a, 0, 16, 3)
    a('s_endpgm')

def gen_k2(a):
    D = cfg.k2depth
    RING = 16
    AC = RING + 36 * D
    accr = lambda m, nt: AC + (m * 5 + nt) * 4
    def rq(q, off):
        if q < D: return v(RING + 36 * q + off, 4)
        b = 36 * (q - D) + off
        return 'a[%d:%d]' % (b, b + 3)
    Bq = lambda q, nt: rq(q, 4 * nt)
    Aq = lambda q, m: rq(q, 20 + 4 * m)
    D0, D1 = cfg.d0, cfg.d1
    a('.globl %s' % K2); a('.p2align 8'); a('.type %s,@function' % K2)
    a('%s:' % K2)
    a('s_cmp_ge_u32 s2, 256')
    a('s_cbranch_scc1 L2_end')
    if cfg.tst & 4:
        a('s_bitcmp1_b32 s2, 3'); a('s_cbranch_scc1 L2_end')
    if cfg.tst & 8:
        a('s_bitcmp1_b32 s2, 4'); a('s_cbranch_scc1 L2_end')
    stamp(a, 0)
    a('s_load_dwordx2 s[4:5], s[0:1], 72')
    a('s_load_dwordx2 s[6:7], s[0:1], 56')
    a('v_lshrrev_b32 v1, 6, v0')
    a('v_and_b32 v0, 63, v0')
    a('v_readfirstlane_b32 s3, v1')
    if cfg.scr & 2:
        a('s_lshr_b32 s16, s2, 5'); a('s_and_b32 s17, s2, 31')
    else:
        a('s_and_b32 s16, s2, 7')
        a('s_lshr_b32 s17, s2, 3')
    a('s_and_b32 s18, s16, 1')
    a('s_lshl_b32 s18, s18, 2')
    a('s_and_b32 s19, s17, 3')
    a('s_add_u32 s18, s18, s19')
    a('s_lshr_b32 s19, s16, 1')
    a('s_lshl_b32 s19, s19, 3')
    a('s_lshr_b32 s20, s17, 2')
    a('s_add_u32 s19, s19, s20')
    a('s_lshl_b32 s20, s3, 4')
    a('s_add_u32 s20, s20, 4')
    a('s_cmp_eq_u32 s3, 0')
    a('s_cselect_b32 s20, 0, s20')
    if cfg.bal == 3:
        a('s_lshl_b32 s20, s3, 4')
    elif cfg.bal == 2:
        a('s_mul_i32 s20, s3, 17')
    elif cfg.bal:
        a('s_cselect_b32 s28, 1, s20')
        a('s_cselect_b32 s20, 0, 16')
        a('s_or_b32 s20, s20, s3')
        a('s_sub_u32 s28, s28, s20')
        a('s_mul_i32 s29, s28, 5120')
        a('s_lshl_b32 s28, s28, 12')
        a('s_cmp_eq_u32 s3, 0')
    if cfg.k2prio:
        a('s_cbranch_scc0 L2_noprio')
        a('s_setprio 3')
        a('L2_noprio:')
    if cfg.bal: a('s_mov_b32 s21, 3')
    else: a('s_cselect_b32 s21, %d, %d' % (20 // D0 - 1, 16 // D1 - 1))
    a('s_mul_i32 s22, s19, %d' % (0 if cfg.tst & 1 else RSTRIDE))
    a('s_lshl_b32 s23, s20, 12')
    a('s_add_u32 s22, s22, s23')
    a('s_mul_i32 s23, s18, %d' % (0 if cfg.tst & 2 else NBSTRIDE))
    a('s_mul_i32 s24, s20, 5120')
    a('s_add_u32 s23, s23, s24')
    a('s_add_u32 s23, s23, %d' % WS_B)
    a('v_lshlrev_b32 v2, 4, v0')
    a('v_add_u32 v3, 4096, v2')
    for m in range(4):
        a('s_add_u32 s24, s3, %d' % m)
        a('s_and_b32 s24, s24, 3')
        a('s_lshl_b32 s25, s24, 10')
        a('v_add_u32 %s, s25, v2' % v(4 + m))
        if m:
            a('s_mul_i32 s25, s24, 15360')
            a('s_add_u32 s25, s25, %d' % ((m - 1) * 5120))
            a('v_add_u32 %s, s25, v2' % v(8 + m))
    a('s_lshl_b32 s24, s19, 6')
    a('s_lshr_b32 s25, s3, 1')
    a('s_lshl_b32 s25, s25, 5')
    a('s_add_u32 s24, s24, s25')
    a('s_and_b32 s25, s3, 1')
    a('s_add_u32 s24, s24, s25')
    a('v_and_b32 v12, 15, v0')
    a('v_lshl_add_u32 v12, v12, 1, s24')
    a('v_lshlrev_b32 v13, 2, v12')
    a('s_mov_b32 s26, %d' % WS_G)
    a('s_movk_i32 s27, 4096')
    a('s_waitcnt lgkmcnt(0)')
    stamp(a, 1, 1)
    srd(a, 8, 4, WS_SIZE)
    def ldB(q, nt): return 'buffer_load_dwordx4 %s, %s, s[8:11], s23 offen offset:%d' % (Bq(q, nt), v(2 if nt < 4 else 3), (nt & 3) * 1024) + stp(cfg.lb)
    def ldA(q, m): return 'buffer_load_dwordx4 %s, %s, s[8:11], s22 offen' % (Aq(q, m), v(4 + m)) + stp(cfg.la)
    adv = ['s_add_u32 s23, s23, 5120', 's_add_u32 s22, s22, s27']
    def step(q, load, cnt):
        a('s_waitcnt vmcnt(%d)' % cnt)
        for nt in range(5):
            for m in range(4):
                A = v(accr(m, nt), 4)
                a('v_mfma_f32_16x16x32_bf16 %s, %s, %s, %s' % (A, Bq(q, nt), Aq(q, m), A))
            if load: a(ldB(q, nt))
        if load:
            for m in range(4): a(ldA(q, m))
            for x in adv: a(x)
    def fill(lo, hi):
        for q in range(lo, hi):
            for nt in range(5): a(ldB(q, nt))
            for m in range(4): a(ldA(q, m))
            for x in (['s_add_u32 s23, s23, s29', 's_add_u32 s22, s22, s28'] if cfg.bal == 1 and q == 0 else adv): a(x)
    def body(dd, tag, n):
        if cfg.prof: a('s_waitcnt vmcnt(%d)' % (9 * (dd - 1)))
        stamp(a, 1, 0)
        if n // dd > 1:
            a('L2_loop%s:' % tag)
            for q in range(dd): step(q, True, 9 * (dd - 1))
            a('s_sub_u32 s21, s21, 1')
            a('s_cmp_lg_u32 s21, 0')
            a('s_cbranch_scc1 L2_loop%s' % tag)
        r = n % dd
        for q in range(r): step(q, True, 9 * (dd - 1))
        for i in range(dd): step((r + i) % dd, False, 9 * (dd - 1 - i))
    a('buffer_load_dword v14, v13, s[8:11], s26 offen')
    Dm = min(D0, D1)
    if cfg.sst == 1:
        fill(0, 1); a('s_waitcnt vmcnt(9)'); stamp(a, 2, 1); fill(1, Dm)
    elif cfg.sst == 2:
        fill(0, 1); stamp(a, 1, 2); fill(1, Dm); stamp(a, 2, 2)
    else: fill(0, Dm)
    P = RING + 36
    if cfg.bal == 3:
        T = RING + 36; W = T + 20; O = 24
        Bt = lambda i: v(88 + 4 * i if i < 18 else 16 + 4 * (i - 18), 4)
        srd(a, 12, 6, 2048 * 1280)
        for i in range(80): a('v_mov_b32 %s, 0' % v(AC + i))
        a('s_mul_i32 s25, s3, 15360')
        a('v_add_u32 v8, s25, v2')
        a('s_mul_i32 s25, s3, 5120')
        a('s_add_u32 s29, s25, 81920')
        a('s_mul_i32 s31, s18, %d' % NBSTRIDE)
        a('s_add_u32 s31, s31, s25')
        a('s_add_u32 s31, s31, %d' % (WS_B + 64 * 5120))
        a('s_mul_i32 s30, s19, %d' % RSTRIDE)
        a('s_add_u32 s30, s30, %d' % (64 * 4096))
        a('s_add_u32 s25, s25, 0xf000')
        a('v_add_u32 v15, s25, v2')
        a('s_mul_i32 s25, s18, 160')
        a('v_mul_u32_u24 v12, 0x500, v12')
        a('v_lshrrev_b32 v1, 4, v0')
        a('v_lshl_add_u32 v0, v1, 3, v12')
        a('v_lshl_add_u32 v12, v1, 4, v12')
        a('v_add_u32 v1, 0xf000, v2')
        a('s_cmp_eq_u32 s3, 1')
        a('s_cselect_b32 s28, 3, 0')
        if cfg.prof: a('s_waitcnt vmcnt(27)')
        stamp(a, 1, 0)
        a('L2_loop:')
        for q in range(4): step(q, True, 27)
        a('s_cmp_eq_u32 s21, s28')
        a('s_cbranch_scc1 L2_dump')
        a('L2_back:')
        a('s_cmp_lg_u32 s21, %d' % cfg.ba)
        a('s_cbranch_scc1 L2_nobar')
        a('s_barrier')
        a('L2_nobar:')
        a('s_sub_u32 s21, s21, 1')
        a('s_cmp_lg_u32 s21, 0')
        a('s_cbranch_scc1 L2_loop')
        a('s_mov_b32 m0, s29')
        a('v_add_u32 v13, 81920, v2')
        a('s_waitcnt vmcnt(27)')
        for nt in range(5):
            for m in range(4):
                A = v(accr(m, nt), 4)
                a('v_mfma_f32_16x16x32_bf16 %s, %s, %s, %s' % (A, Bq(0, nt), Aq(0, m), A))
                if nt == 4 and m == 0: a('s_add_u32 m0, m0, s27')
            a('buffer_load_dwordx4 %s, s[8:11], s31 offen offset:%d lds' % (v(2 if nt < 4 else 3), (nt & 3) * 1024))
        for j in range(4):
            a('buffer_load_dwordx4 %s, v4, s[8:11], s30 offen' % Aq(0, j))
            if j < 3: a('s_add_u32 s30, s30, s27')
        step(1, False, 27)
        for i in range(5): a('ds_read_b128 %s, v15 offset:%d' % (v(T + 4 * i, 4), i * 1024))
        step(2, False, 18)
        a('v_sub_f32 v15, 1.0, v14')
        for m in range(4):
            a('s_cmp_eq_u32 s3, %d' % m)
            a('s_cselect_b64 vcc, -1, 0')
            a('v_cndmask_b32 %s, v15, v14, vcc' % v(W + 2 * m))
        a('s_waitcnt lgkmcnt(0)')
        for i in range(10): a('v_pk_mul_f32 %s, %s, v[14:15] op_sel_hi:[1,0]' % (v(T + 2 * i, 2), v(T + 2 * i, 2)))
        a('s_waitcnt vmcnt(9)')
        order = [(m, nt) for m in (1, 2, 3, 0) for nt in range(5)]
        for i, (m, nt) in enumerate(order):
            A = v(accr(m, nt), 4)
            a('v_mfma_f32_16x16x32_bf16 %s, %s, %s, %s' % (A, Bq(3, nt), Aq(3, m), A))
            if i >= 5:
                m2, n2 = order[i - 5]
                a('ds_write_b128 %s, %s offset:%d' % (v(8 + m2), v(accr(m2, n2), 4), n2 * 1024))
        for i in range(10):
            a('v_pk_fma_f32 %s, %s, %s, %s op_sel_hi:[1,0,1]' % (v(T + 2 * i, 2), v(AC + 2 * i, 2), v(W, 2), v(T + 2 * i, 2)))
        a('s_waitcnt vmcnt(0) lgkmcnt(0)')
        stamp(a, 2, 0)
        if cfg.prof: a('s_waitcnt lgkmcnt(0)')
        a('s_barrier')
        rb = lambda i: 'ds_read_b128 %s, v13 offset:%d' % (Bt(i), i * 1024)
        ri = lambda m, nt: 'ds_read_b128 %s, v8 offset:%d' % (v(accr(m, nt), 4), ((m - 1) * 5 + nt) * 1024)
        def fm(m, nt):
            for j in range(2):
                d = v(T + 4 * nt + 2 * j, 2)
                if m: a('v_pk_fma_f32 %s, %s, %s, %s op_sel_hi:[1,0,1]' % (d, v(accr(m, nt) + 2 * j, 2), v(W + 2 * m, 2), d))
                else: a('v_pk_fma_f32 %s, %s, v[14:15], %s op_sel:[0,1,0] op_sel_hi:[1,1,1]' % (d, v(accr(0, nt) + 2 * j, 2), d))
        def mm(j, nt):
            A = v(accr(0, nt), 4)
            a('v_mfma_f32_16x16x32_bf16 %s, %s, %s, %s' % (A, Bt(5 * j + nt), Aq(0, j), A if j else '0'))
        rds = []
        for j in range(4):
            rds += [rb(5 * j + nt) for nt in range(5)]
            if j < 3: rds += [ri(j + 1, nt) for nt in range(5)]
        for x in rds[:15]: a(x)
        rds = rds[15:]
        for k in range(7):
            a('s_waitcnt lgkmcnt(%d)' % min(10, 5 * (6 - k)))
            for nt in range(5):
                if k & 1: fm((k + 1) // 2, nt)
                else: mm(k // 2, nt)
                if rds: a(rds.pop(0))
        for nt in range(5):
            fm(0, nt)
            for j in range(2):
                a('v_cvt_pk_bf16_f32 %s, %s, %s' % (v(O + 2 * nt + j), v(T + 4 * nt + 2 * j), v(T + 4 * nt + 2 * j + 1)))
            if nt == 1: a('buffer_store_dwordx4 %s, v12, s[12:15], s25 offen' % v(O, 4) + stp(cfg.k2st))
            if nt == 3: a('buffer_store_dwordx4 %s, v12, s[12:15], s25 offen offset:64' % v(O + 4, 4) + stp(cfg.k2st))
            if nt == 4: a('buffer_store_dwordx2 %s, v0, s[12:15], s25 offen offset:128' % v(O + 8, 2) + stp(cfg.k2st))
        if cfg.prof: a('s_waitcnt vmcnt(0)'); a('v_mbcnt_lo_u32_b32 v0, -1, 0'); a('v_mbcnt_hi_u32_b32 v0, -1, v0')
        stamp_flush(a, 1, 4)
        a('L2_end:')
        a('s_endpgm')
        a('L2_dump:')
        a('s_nop 7')
        for nt in range(5):
            for m in range(4):
                a('ds_write_b128 v1, %s offset:%d' % (v(accr(m, nt), 4), ((m + 1) & 3) * 5120 + nt * 1024))
        for i in range(80): a('v_mov_b32 %s, 0' % v(AC + i))
        a('s_waitcnt lgkmcnt(0)')
        a('s_branch L2_back')
        return AC + 80, 0
    if cfg.bal == 2:
        T = RING + 36
        srd(a, 12, 6, 2048 * 1280)
        for i in range(80): a('v_mov_b32 %s, 0' % v(AC + i))
        a('s_mul_i32 s25, s3, 15360')
        a('v_add_u32 v8, s25, v2')
        a('s_mul_i32 s25, s3, 5120')
        a('s_add_u32 s25, s25, 0xf000')
        a('v_add_u32 v15, s25, v2')
        a('s_mul_i32 s25, s18, 160')
        a('v_mul_u32_u24 v12, 0x500, v12')
        a('v_lshrrev_b32 v1, 4, v0')
        a('v_lshl_add_u32 v0, v1, 3, v12')
        a('v_lshl_add_u32 v12, v1, 4, v12')
        a('v_add_u32 v1, 0xf000, v2')
        a('s_cmp_eq_u32 s3, 1')
        a('s_cselect_b32 s28, 3, 0')
        if cfg.prof: a('s_waitcnt vmcnt(27)')
        stamp(a, 1, 0)
        step(0, True, 27)
        a('L2_loop:')
        step(1, True, 27); step(2, True, 27)
        a('s_cmp_eq_u32 s21, s28')
        a('s_cbranch_scc1 L2_dump')
        a('L2_back:')
        step(3, True, 27); step(0, True, 27)
        a('s_cmp_lg_u32 s21, %d' % cfg.ba)
        a('s_cbranch_scc1 L2_nobar')
        a('s_barrier')
        a('L2_nobar:')
        a('s_sub_u32 s21, s21, 1')
        a('s_cmp_lg_u32 s21, 0')
        a('s_cbranch_scc1 L2_loop')
        step(1, False, 27)
        for i in range(5): a('ds_read_b128 %s, v15 offset:%d' % (v(T + 4 * i, 4), i * 1024))
        step(2, False, 18)
        a('v_sub_f32 v15, 1.0, v14')
        W = T + 20
        for m in range(4):
            a('s_cmp_eq_u32 s3, %d' % m)
            a('s_cselect_b64 vcc, -1, 0')
            a('v_cndmask_b32 %s, v15, v14, vcc' % v(W + 2 * m))
        a('s_waitcnt lgkmcnt(0)')
        for i in range(10): a('v_pk_mul_f32 %s, %s, v[14:15] op_sel_hi:[1,0]' % (v(T + 2 * i, 2), v(T + 2 * i, 2)))
        step(3, False, 9)
        a('s_waitcnt vmcnt(0)')
        order = [(m, nt) for m in (1, 2, 3, 0) for nt in range(5)]
        for i, (m, nt) in enumerate(order):
            A = v(accr(m, nt), 4)
            a('v_mfma_f32_16x16x32_bf16 %s, %s, %s, %s' % (A, Bq(0, nt), Aq(0, m), A))
            if i >= 5:
                m2, n2 = order[i - 5]
                a('ds_write_b128 %s, %s offset:%d' % (v(8 + m2), v(accr(m2, n2), 4), n2 * 1024))
        stamp(a, 2, 0)
        for i in range(10):
            a('v_pk_fma_f32 %s, %s, %s, %s op_sel_hi:[1,0,1]' % (v(T + 2 * i, 2), v(AC + 2 * i, 2), v(W, 2), v(T + 2 * i, 2)))
        a('s_waitcnt lgkmcnt(0)')
        a('s_barrier')
        for nt in range(5):
            for m in range(1, 4):
                a('ds_read_b128 %s, v8 offset:%d' % (v(accr(m, nt), 4), ((m - 1) * 5 + nt) * 1024))
        O = W + 8
        for nt in range(5):
            a('s_waitcnt lgkmcnt(%d)' % (3 * (4 - nt)))
            for m in range(1, 4):
                for j in range(2):
                    d = v(T + 4 * nt + 2 * j, 2)
                    a('v_pk_fma_f32 %s, %s, %s, %s op_sel_hi:[1,0,1]' % (d, v(accr(m, nt) + 2 * j, 2), v(W + 2 * m, 2), d))
            for j in range(2):
                a('v_cvt_pk_bf16_f32 %s, %s, %s' % (v(O + 2 * nt + j), v(T + 4 * nt + 2 * j), v(T + 4 * nt + 2 * j + 1)))
            if nt == 1: a('buffer_store_dwordx4 %s, v12, s[12:15], s25 offen' % v(O, 4) + stp(cfg.k2st))
            if nt == 3: a('buffer_store_dwordx4 %s, v12, s[12:15], s25 offen offset:64' % v(O + 4, 4) + stp(cfg.k2st))
            if nt == 4: a('buffer_store_dwordx2 %s, v0, s[12:15], s25 offen offset:128' % v(O + 8, 2) + stp(cfg.k2st))
        if cfg.prof: a('s_waitcnt vmcnt(0)'); a('v_mbcnt_lo_u32_b32 v0, -1, 0'); a('v_mbcnt_hi_u32_b32 v0, -1, v0')
        stamp_flush(a, 1, 4)
        a('L2_end:')
        a('s_endpgm')
        a('L2_dump:')
        a('s_nop 7')
        for nt in range(5):
            for m in range(4):
                a('ds_write_b128 v1, %s offset:%d' % (v(accr(m, nt), 4), ((m + 1) & 3) * 5120 + nt * 1024))
        for i in range(80): a('v_mov_b32 %s, 0' % v(AC + i))
        a('s_waitcnt lgkmcnt(0)')
        a('s_branch L2_back')
        return AC + 80, 0
    if cfg.bal:
        ag = lambda m, nt: 'a[%d:%d]' % ((m * 5 + nt) * 4, (m * 5 + nt) * 4 + 3)
        srd(a, 12, 6, 2048 * 1280)
        for i in range(80): a('v_mov_b32 %s, 0' % v(AC + i))
        tmp = [None, 8, 15, 1]
        for m in range(1, 4): a('v_add_u32 %s, 0xf000, %s' % (v(tmp[m]), v(8 + m)))
        a('s_waitcnt vmcnt(27)')
        stamp(a, 1, 0)
        for nt in range(5):
            for m in range(4):
                a('v_mfma_f32_16x16x32_bf16 %s, %s, %s, 0' % (ag(m, nt), Bq(0, nt), Aq(0, m)))
            a(ldB(0, nt))
        for m in range(4): a(ldA(0, m))
        for x in adv: a(x)
        for nt in range(5):
            for m in range(1, 4):
                a('ds_write_b128 %s, %s offset:%d' % (v(tmp[m]), ag(m, nt), nt * 1024))
        a('s_mul_i32 s25, s3, 15360')
        a('s_add_u32 s25, s25, 0xf000')
        a('v_add_u32 v13, s25, v2')
        a('L2_loop:')
        for q in (1, 2, 3, 0): step(q, True, 27)
        a('s_sub_u32 s21, s21, 1')
        a('s_cmp_lg_u32 s21, 0')
        a('s_cbranch_scc1 L2_loop')
        a('s_waitcnt lgkmcnt(0)')
        a('s_barrier')
        step(1, False, 27)
        step(2, False, 18)
        for i in range(15): a('ds_read_b128 %s, v13 offset:%d' % (v(P + 4 * i, 4), i * 1024))
        step(3, False, 9)
        a('s_waitcnt lgkmcnt(0)')
        for j in (1, 2):
            for i in range(10): a('v_pk_add_f32 %s, %s, %s' % (v(P + 2 * i, 2), v(P + 2 * i, 2), v(P + 20 * j + 2 * i, 2)))
        for i in range(20): a('v_accvgpr_read_b32 %s, a%d' % (v(P + 20 + i), i))
        for i in range(10): a('v_pk_add_f32 %s, %s, %s' % (v(P + 2 * i, 2), v(P + 2 * i, 2), v(P + 20 + 2 * i, 2)))
        for i in range(10): a('v_pk_mul_f32 %s, %s, v[14:15] op_sel_hi:[1,0]' % (v(P + 2 * i, 2), v(P + 2 * i, 2)))
        step(0, False, 0)
    elif cfg.e2:
        T = 24
        srd(a, 12, 6, 2048 * 1280)
        for i in range(80): a('v_mov_b32 %s, 0' % v(AC + i))
        a('s_mul_i32 s25, s3, 15360')
        a('v_add_u32 v8, s25, v2')
        a('s_cmp_eq_u32 s3, 1')
        a('s_cselect_b32 s28, 5120, 0')
        a('s_cmp_eq_u32 s3, 3')
        a('s_cselect_b32 s29, 0, 5120')
        a('s_add_u32 s29, s29, 5120')
        a('s_mul_i32 s30, s3, 5120')
        a('s_sub_u32 s30, s30, 5120')
        a('s_mul_i32 s25, s18, 160')
        a('v_mul_u32_u24 v12, 0x500, v12')
        a('v_lshrrev_b32 v1, 4, v0')
        a('v_lshl_add_u32 v0, v1, 3, v12')
        a('v_lshl_add_u32 v12, v1, 4, v12')
        if cfg.prof: a('s_waitcnt vmcnt(27)')
        stamp(a, 1, 0)
        a('L2_loop:')
        for q in range(4): step(q, True, 27)
        a('s_sub_u32 s21, s21, 1')
        a('s_cmp_lg_u32 s21, 0')
        a('s_cbranch_scc1 L2_loop')
        a('v_sub_f32 v15, 1.0, v14')
        def last():
            a('s_waitcnt vmcnt(0)')
            order = [(m, nt) for m in (1, 2, 3, 0) for nt in range(5)]
            for i, (m, nt) in enumerate(order):
                A = v(accr(m, nt), 4)
                a('v_mfma_f32_16x16x32_bf16 %s, %s, %s, %s' % (A, Bq(3, nt), Aq(3, m), A))
                if i >= 5:
                    m2, n2 = order[i - 5]
                    a('ds_write_b128 %s, %s offset:%d' % (v(8 + m2), v(accr(m2, n2), 4), n2 * 1024))
        def fin():
            for i in range(10):
                a('v_cvt_pk_bf16_f32 %s, %s, %s' % (v(T + 20 + i), v(T + 2 * i), v(T + 2 * i + 1)))
            a('buffer_store_dwordx4 %s, v12, s[12:15], s25 offen' % v(T + 20, 4) + stp(cfg.k2st))
            a('buffer_store_dwordx4 %s, v12, s[12:15], s25 offen offset:64' % v(T + 24, 4) + stp(cfg.k2st))
            a('buffer_store_dwordx2 %s, v0, s[12:15], s25 offen offset:128' % v(T + 28, 2) + stp(cfg.k2st))
        padd = lambda d, x: [a('v_pk_add_f32 %s, %s, %s' % (v(d + 2 * i, 2), v(d + 2 * i, 2), v(x + 2 * i, 2))) for i in range(10)]
        pm1 = lambda: [a('v_pk_mul_f32 %s, %s, v[14:15] op_sel:[0,1] op_sel_hi:[1,1]' % (v(T + 2 * i, 2), v(T + 2 * i, 2))) for i in range(10)]
        pfg = lambda x: [a('v_pk_fma_f32 %s, %s, v[14:15], %s op_sel_hi:[1,0,1]' % (v(T + 2 * i, 2), v(x + 2 * i, 2), v(T + 2 * i, 2))) for i in range(10)]
        step(0, False, 27)
        step(1, False, 18)
        a('s_cmp_eq_u32 s3, 0')
        a('s_cbranch_scc0 L2_h')
        if cfg.ba == 3: step(2, False, 9)
        a('s_barrier')
        for i in range(15): a('ds_read_b128 %s, v8 offset:%d' % (v(T + 4 * i, 4), i * 1024))
        if cfg.ba == 2: step(2, False, 9)
        a('s_waitcnt lgkmcnt(0)')
        padd(T, T + 20); padd(T, T + 40); pm1()
        last()
        stamp(a, 2, 0)
        a('s_waitcnt lgkmcnt(0)')
        a('s_barrier')
        pfg(AC)
        fin()
        a('s_branch L2_done')
        a('L2_h:')
        step(2, False, 9)
        a('v_add_u32 v4, s28, v8')
        a('v_add_u32 v5, s29, v8')
        a('v_add_u32 v6, s30, v8')
        last()
        stamp(a, 2, 0)
        a('s_waitcnt lgkmcnt(0)')
        a('s_barrier')
        for i in range(10): a('ds_read_b128 %s, %s offset:%d' % (v(T + 4 * i, 4), v(4 + i // 5), (i % 5) * 1024))
        a('s_waitcnt lgkmcnt(0)')
        padd(T, T + 20); padd(T, AC); pm1()
        a('s_barrier')
        for i in range(5): a('ds_read_b128 %s, v6 offset:%d' % (v(T + 40 + 4 * i, 4), i * 1024))
        for i in range(5):
            a('s_waitcnt lgkmcnt(%d)' % (4 - i))
            for j in (2 * i, 2 * i + 1):
                a('v_pk_fma_f32 %s, %s, v[14:15], %s op_sel_hi:[1,0,1]' % (v(T + 2 * j, 2), v(T + 40 + 2 * j, 2), v(T + 2 * j, 2)))
        fin()
        a('L2_done:')
        if cfg.prof: a('s_waitcnt vmcnt(0)'); a('v_mbcnt_lo_u32_b32 v0, -1, 0'); a('v_mbcnt_hi_u32_b32 v0, -1, v0')
        stamp_flush(a, 1, 4)
        a('L2_end:')
        a('s_endpgm')
        return AC + 80, 0
    elif D0 == D1:
        srd(a, 12, 6, 2048 * 1280)
        for i in range(80): a('v_mov_b32 %s, 0' % v(AC + i))
        body(D0, '', 20 if 20 % D0 == 0 else 16)
    else:
        a('s_cmp_eq_u32 s3, 0')
        a('s_cbranch_scc0 L2_w')
        fill(Dm, D0)
        for i in range(80): a('v_mov_b32 %s, 0' % v(AC + i))
        body(D0, 'o', 20)
        a('s_branch L2_join')
        a('L2_w:')
        fill(Dm, D1)
        for i in range(80): a('v_mov_b32 %s, 0' % v(AC + i))
        body(D1, 'h', 16)
        a('L2_join:')
        srd(a, 12, 6, 2048 * 1280)
    stamp(a, 2, 0)
    for m in range(1, 4):
        for nt in range(5):
            a('ds_write_b128 %s, %s offset:%d' % (v(8 + m), v(accr(m, nt), 4), nt * 1024))
    a('v_sub_f32 v15, 1.0, v14')
    for m in range(4):
        a('s_cmp_eq_u32 s3, %d' % m)
        a('s_cselect_b64 vcc, -1, 0')
        a('v_cndmask_b32 %s, v15, v14, vcc' % v(16 + 2 * m))
    a('s_mul_i32 s25, s3, 15360')
    a('v_add_u32 v8, s25, v2')
    a('s_mul_i32 s25, s18, 160')
    a('v_mul_u32_u24 v12, 0x500, v12')
    a('v_lshrrev_b32 v13, 4, v0')
    a('v_lshl_add_u32 v9, v13, 3, v12')
    a('v_lshl_add_u32 v12, v13, 4, v12')
    for i in range(10):
        A = AC + 2 * i
        if cfg.bal: a('v_pk_fma_f32 %s, %s, v[16:17], %s op_sel_hi:[1,0,1]' % (v(A, 2), v(A, 2), v(P + 2 * i, 2)))
        else: a('v_pk_mul_f32 %s, %s, v[16:17] op_sel_hi:[1,0]' % (v(A, 2), v(A, 2)))
    a('s_waitcnt lgkmcnt(0)')
    a('s_barrier')
    for m in range(1, 4):
        for nt in range(5):
            a('ds_read_b128 %s, v8 offset:%d' % (v(accr(m, nt), 4), ((m - 1) * 5 + nt) * 1024))
    for m in range(1, 4):
        a('s_waitcnt lgkmcnt(%d)' % (5 * (3 - m)))
        for i in range(10):
            A = AC + 2 * i
            a('v_pk_fma_f32 %s, %s, %s, %s op_sel_hi:[1,0,1]' % (v(A, 2), v(A + 20 * m, 2), v(16 + 2 * m, 2), v(A, 2)))
    for i in range(10):
        a('v_cvt_pk_bf16_f32 %s, %s, %s' % (v(24 + i), v(AC + 2 * i), v(AC + 2 * i + 1)))
    a('buffer_store_dwordx4 v[24:27], v12, s[12:15], s25 offen' + stp(cfg.k2st))
    a('buffer_store_dwordx4 v[28:31], v12, s[12:15], s25 offen offset:64' + stp(cfg.k2st))
    a('buffer_store_dwordx2 v[32:33], v9, s[12:15], s25 offen offset:128' + stp(cfg.k2st))
    if cfg.prof: a('s_waitcnt vmcnt(0)')
    stamp_flush(a, 1, 4)
    a('L2_end:')
    a('s_endpgm')
    return AC + 80, 80 if cfg.bal else 36 * max(0, max(D0, D1) - D)

def desc(name, nv, na=0):
    nv = (nv + 7) // 8 * 8
    return '''.p2align 6
.amdhsa_kernel %s
  .amdhsa_next_free_vgpr %d
  .amdhsa_next_free_sgpr 102
  .amdhsa_accum_offset %d
  .amdhsa_group_segment_fixed_size 0
  .amdhsa_kernarg_size 80
  .amdhsa_user_sgpr_count 2
  .amdhsa_user_sgpr_kernarg_segment_ptr 1
  .amdhsa_system_sgpr_workgroup_id_x 1
.end_amdhsa_kernel
''' % (name, nv + na, nv)

def align8(body):
    import subprocess, re, tempfile, os
    d = tempfile.mkdtemp()
    open(d + '/a.s', 'w').write('.amdgcn_target "amdgcn-amd-amdhsa--gfx950"\n.text\n' + re.sub(r'^\.p2align.*$', '', body, flags=re.M))
    subprocess.check_call(['clang', '-x', 'assembler', '-target', 'amdgcn-amd-amdhsa', '-mcpu=gfx950', '-c', d + '/a.s', '-o', d + '/a.o'])
    dis = subprocess.check_output(['llvm-objdump', '-d', d + '/a.o'], text=True)
    sizes = [4 * len(m.group(1).split()) for m in re.finditer(r'// [0-9A-F]+: ([0-9A-F ]+)', dis)]
    lines = body.split('\n')
    idx = [i for i, l in enumerate(lines) if l.startswith('    ')]
    assert len(idx) == len(sizes), (len(idx), len(sizes))
    size = dict(zip(idx, sizes))
    off = 0; run = []; np_ = nn = 0
    for i, l in enumerate(lines):
        if l.startswith('.p2align'): off = 0; run = []; continue
        if i not in size:
            continue
        if size[i] == 4:
            run.append((i, off)); off += 4
            continue
        if off % 8 and run:
            cand = [j for j, o in run if o % 8 == 0 and lines[j].split()[0].startswith('v_') and not lines[j].split()[0].startswith(('v_readfirstlane', 'v_fmac', 'v_dot2c'))]
            dead = [j for j, o in run if lines[j].split()[0] in ('s_endpgm', 's_branch')]
            k = idx.index(i); n8 = 0
            par = 0
            while k < len(idx) and n8 < 3:
                if size[idx[k]] == 8:
                    if par: break
                    n8 += 1
                else: par ^= 1
                k += 1
            if dead:
                lines[dead[-1]] += '\n    s_nop 0'; off += 4
            elif cand:
                j = cand[-1]; op = lines[j].split()[0]
                lines[j] = lines[j].replace(op, op + '_e64', 1); np_ += 1; off += 4
            elif n8 >= 3:
                j = run[0][0]
                lines[j] = '    s_nop 0\n' + lines[j]; nn += 1; off += 4
        off += 8; run = []
    print('align: promoted', np_, 'nops', nn)
    return '\n'.join(lines)

def main():
    for arg in sys.argv[2:]:
        k, val = arg.split('='); setattr(cfg, k, int(val))
    a = Asm()
    gen_k1(a)
    nv2 = gen_k2(a)
    body = a.finish()
    hdr = '''; gated mix of sliding-window dilated attention and ReLU FFN, two launches.
; launch 1: qkv projection + attention, FFN up projection + relu, weight re-layout + gate
; launch 2: output projections (wo, w2) and gated mix
; @launch kernel=%s grid=(256,1,1) block=(512,1,1) lds=%d
; @launch kernel=%s grid=(256,1,1) block=(256,1,1) lds=%d
.amdgcn_target "amdgcn-amd-amdhsa--gfx950"
.text
''' % (K1, 3 * SLOT, K2, [61440, 122880, 81920, 102400][cfg.bal])
    if cfg.align: body = align8(body)
    out = hdr + body + '.section .rodata,"a"\n' + desc(K1, 256) + desc(K2, *nv2)
    open(sys.argv[1], 'w').write(out)
    print('nops inserted:', a.nops, 'bytes', len(out))

main()
```

```python
import sys, math, struct
from asmlib import Asm, v, s

NAME = 'gated_mix__sliding_local_dilated__dense_activation_relu__prompt'
K1 = NAME + '_kernel'
K2 = 'gm_stage2_kernel'

WS_A = 0
WS_B = 0x900000
WS_G = 0xC00000
WS_SIZE = 0xC02000
RSTRIDE = 68 * 4096
NBSTRIDE = 68 * 5120
SLOT = 50176
XOFF = 33792
BAD = 0x40000000

class Cfg:
    ra = 1
    rb = 5
    rc = 3
    rd = 5
    prof = 0
    k2depth = 4
    k2prio = 1
    bal = 0
    tb = 0
    w1p = 0
    pt = 0
    cw = 0
    tst = 0
    la = 0
    lb = 0
    sst = 0
    e2 = 0
    ba = 2
    d0 = 4
    d1 = 4
    pw = 35
    scr = 0
    pnt = 0
    pdel = 0
    ps = 0
    align = 1
    xcc = 0
    stm = 0
    str = 0
    stg = 0
    sel = -1
    sel0 = 0
    tpos = 100022222
    pf = 0
    pf0 = 1
    pf1 = 0
    pfo = 1
    pfx = 0
    rx = 0
    rmask = 15
    rsh = 0
    touch = 0
    lp = 0
    k2st = 0
    stpol = 1
cfg = Cfg()

def stp(p=None):
    return ['', ' sc1', ' sc0 sc1', ' nt', ' sc1 nt', ' sc0 sc1 nt', ' sc0'][cfg.stpol if p is None else p]

def f32(x):
    return '0x%08x' % struct.unpack('<I', struct.pack('<f', x))[0]

def srd(a, d, lo, size):
    a('s_mov_b32 %s, %s' % (s(d), s(lo)))
    a('s_mov_b32 %s, %s' % (s(d + 1), s(lo + 1)))
    a('s_mov_b32 %s, %d' % (s(d + 2), size))
    a('s_mov_b32 %s, 0x00020000' % s(d + 3))

PROF = 0xD00000
def stamp(a, i, alt=None):
    if alt is not None and alt != cfg.sst and not (cfg.sst == 3 and alt == 0 and i == 2): return
    if cfg.prof:
        a('s_memrealtime %s' % s(80 + 2 * i, 2))
        a('s_memtime %s' % s(72 + 2 * i, 2))
def stamp_flush(a, kern, wsreg, role=2):
    if not cfg.prof: return
    a('s_memrealtime s[86:87]')
    a('s_memtime s[78:79]')
    if cfg.prof == 3 and kern == 1:
        a('s_or_b32 s92, s2, s3')
        a('s_cmp_lg_u32 s92, 0')
        a('s_cbranch_scc1 L2_end')
        a('s_load_dwordx2 s[88:89], s[0:1], 64')
        a('s_mov_b32 s90, 256'); a('s_mov_b32 s91, 0x00020000')
        a('s_mov_b32 s92, s4'); a('s_mov_b32 s93, s5'); a('s_mov_b32 s94, 0x1000000'); a('s_mov_b32 s95, 0x00020000')
        a('s_mov_b32 s96, %d' % PROF)
        a('s_waitcnt lgkmcnt(0)')
        for j in range(4):
            a('v_add_u32 v1, %d, v0' % (64 * j))
            a('v_lshlrev_b32 v2, 9, v1')
            a('buffer_load_dwordx4 v[4:7], v2, s[92:95], s96 offen')
            a('buffer_load_dwordx4 v[8:11], v2, s[92:95], s96 offen offset:16')
            a('v_mov_b32 v3, 0')
            a('v_cmp_le_u32 vcc, 144, v1')
            a('v_cndmask_b32 v3, v3, 16, vcc')
            a('v_cmp_le_u32 vcc, 240, v1')
            a('v_cndmask_b32 v3, v3, 48, vcc')
            a('s_waitcnt vmcnt(0)')
            a('v_not_b32 v4, v4')
            for i in range(4):
                a('buffer_atomic_umax %s, v3, s[88:91], 0 offen offset:%d' % (v(4 + 2 * i), 4 * i))
            a('s_waitcnt vmcnt(0)')
        a('s_mov_b64 exec, 1')
        a('v_mov_b32 v0, 0')
        a('s_not_b32 s80, s80')
        for i in range(4):
            a('v_mov_b32 %s, %s' % (v(4 + i), s(80 + 2 * i)))
            a('buffer_atomic_umax %s, v0, s[88:91], 0 offen offset:%d' % (v(4 + i), role * 16 + 4 * i))
        if cfg.sel >= 0:
            a('s_waitcnt vmcnt(0)')
            a('v_mov_b32 v8, 0'); a('v_mov_b32 v9, 0')
            a('buffer_atomic_umax v8, v0, s[88:91], 0 offen offset:%d sc0' % (4 * cfg.sel0))
            a('buffer_atomic_umax v9, v0, s[88:91], 0 offen offset:%d sc0' % (4 * cfg.sel))
            a('s_waitcnt vmcnt(0)')
            a('v_readfirstlane_b32 s92, v8'); a('v_readfirstlane_b32 s93, v9')
            if cfg.sel0 % 4 == 0: a('s_not_b32 s92, s92')
            if cfg.sel % 4 == 0: a('s_not_b32 s93, s93')
            a('s_sub_u32 s92, s93, s92')
            a('s_min_u32 s92, s92, 5000')
            a('s_lshl_b32 s92, s92, 2')
            a('s_memrealtime s[94:95]')
            a('s_waitcnt lgkmcnt(0)')
            a('L2_spin:')
            a('s_memrealtime s[96:97]')
            a('s_waitcnt lgkmcnt(0)')
            a('s_sub_u32 s96, s96, s94')
            a('s_cmp_lt_u32 s96, s92')
            a('s_cbranch_scc1 L2_spin')
        return
    if cfg.prof == 2:
        a('s_load_dwordx2 s[88:89], s[0:1], 64')
        a('s_mov_b32 s90, 256'); a('s_mov_b32 s91, 0x00020000')
        a('s_waitcnt lgkmcnt(0)')
        a('s_mov_b64 exec, 1')
        a('v_mov_b32 v0, 0')
        a('s_not_b32 s80, s80')
        for i in range(4):
            a('v_mov_b32 %s, %s' % (v(4 + i), s(80 + 2 * i)))
            a('buffer_atomic_umax %s, v0, s[88:91], 0 offen offset:%d' % (v(4 + i), role * 16 + 4 * i))
        return
    if cfg.xcc:
        a('s_waitcnt lgkmcnt(0)')
        a('s_getreg_b32 s80, hwreg(HW_REG_XCC_ID, 0, 4)')
        a('s_sub_u32 s80, s80, s2'); a('s_and_b32 s80, s80, 7'); a('s_mul_i32 s80, s80, 100'); a('s_mov_b32 s82, s80')
    a('s_mov_b32 s88, %s' % s(wsreg)); a('s_mov_b32 s89, %s' % s(wsreg + 1))
    a('s_mov_b32 s90, 0x1000000'); a('s_mov_b32 s91, 0x00020000')
    a('s_lshl_b32 s92, s2, 3'); a('s_add_u32 s92, s92, s3'); a('s_lshl_b32 s92, s92, 6')
    a('s_add_u32 s92, s92, %d' % (PROF + kern * 256 * 8 * 64))
    a('s_waitcnt lgkmcnt(0)')
    if cfg.ps and role < 2 and kern == 0:
        a('v_writelane_b32 v254, s74, 0'); a('v_writelane_b32 v255, s72, 0')
        a('s_mov_b64 exec, 0xffff')
        a('v_mbcnt_lo_u32_b32 v0, -1, 0'); a('v_lshlrev_b32 v0, 3, v0')
        a('s_sub_u32 s93, s92, %d' % PROF); a('s_lshl_b32 s93, s93, 1'); a('s_add_u32 s93, s93, %d' % (PROF + 0x100000))
        a('buffer_store_dwordx2 v[254:255], v0, s[88:91], s93 offen')
    a('s_mov_b64 exec, 1')
    a('v_mov_b32 v0, 0')
    for i in range(8): a('v_mov_b32 %s, %s' % (v(4 + i), s(80 + i)))
    a('buffer_store_dwordx4 v[4:7], v0, s[88:91], s92 offen')
    a('buffer_store_dwordx4 v[8:11], v0, s[88:91], s92 offen offset:16')
    for i in range(8): a('v_mov_b32 %s, %s' % (v(12 + i), s(72 + i)))
    a('buffer_store_dwordx4 v[12:15], v0, s[88:91], s92 offen offset:32')
    a('buffer_store_dwordx4 v[16:19], v0, s[88:91], s92 offen offset:48')

def warm(a, tag, nl, end, sb=94):
    a('s_getpc_b64 %s' % s(sb, 2))
    a('Lw_%s:' % tag)
    a('s_mul_i32 %s, s3, %d' % (s(sb + 2), nl * 128))
    a('s_min_u32 %s, %s, %s-Lw_%s-%d' % (s(sb + 2), s(sb + 2), end, tag, nl * 128))
    a('s_add_u32 %s, %s, %s' % (s(sb), s(sb), s(sb + 2)))
    a('s_addc_u32 %s, %s, 0' % (s(sb + 1), s(sb + 1)))
    for i in range(nl): a('s_load_dword %s, %s, %d' % (s(sb + 3), s(sb, 2), i * 128))

def interleave(a, mf, rd, first=1, per=1):
    rd = list(rd)
    for i, m in enumerate(mf):
        a(m)
        for _ in range(per):
            if rd: a(rd.pop(0))
    for x in rd: a(x)

SETS = (16, 64)
ACC = 112
def acc(t, n): return ACC + (t * 8 + n) * 4
VXA0, VXA1, VWM, VWQ, VWV = 4, 5, 6, 7, 8

def k1_reads(att, st, ks):
    base = SETS[st]
    xa = VXA1 if ks else VXA0
    r = []
    xs = ['ds_read_b128 %s, %s offset:%d' % (v(base + 4 * t, 4), v(xa), t * 2048) for t in range(4)]
    ws = []
    for n in range(8):
        if att:
            reg, off = [(VWM, 0), (VWM, 40), (VWM, 160), (VWM, 200), (VWQ, 0), (VWM, 320), (VWM, 360), (VWV, 0)][n]
        else:
            reg, off = VWM, 32 * n
        for h in range(2):
            ws.append('ds_read_b64_tr_b16 %s, %s offset:%d' % (v(base + 16 + 4 * n + 2 * h, 2), v(reg), off + ks * 16896 + h * 512))
    r = ws[:2] + xs + ws[2:]
    return r

def k1_mfmas(att, st):
    base = SETS[st]
    m = []
    for n in range(8):
        for t in range(4):
            W = v(base + 16 + 4 * n, 4); X = v(base + 4 * t, 4); A = v(acc(t, n), 4)
            if att and n >= 5:
                m.append('v_mfma_f32_16x16x32_bf16 %s, %s, %s, %s' % (A, X, W, A))
            else:
                m.append('v_mfma_f32_16x16x32_bf16 %s, %s, %s, %s' % (A, W, X, A))
    return m

def k1_mainloop(a, att, tag):
    a('s_barrier')
    stamp(a, 1)
    for x in k1_reads(att, 0, 0): a(x)
    a('s_mov_b32 s48, 0')
    a('s_mov_b32 s49, 0')
    a('s_waitcnt lgkmcnt(0)')
    a('L_%s_loop:' % tag)
    pre = ['s_add_u32 s49, s49, 1\ns_cmp_eq_u32 s49, 3', 's_cselect_b32 s50, s51, s52\ns_cselect_b32 s49, 0, s49']
    adv = ['v_add_u32 %s, s50, %s' % (v(r), v(r)) for r in ([VXA0, VXA1, VWM, VWQ, VWV] if att else [VXA0, VXA1, VWM])]
    interleave(a, k1_mfmas(att, 0), k1_reads(att, 1, 1) + pre + adv)
    a('s_waitcnt lgkmcnt(0)')
    if cfg.ps: a('s_memtime s[96:97]')
    a('s_barrier')
    if cfg.ps: a('s_memtime s[94:95]')
    interleave(a, k1_mfmas(att, 1), k1_reads(att, 0, 0) + ['s_add_u32 s48, s48, 1\ns_cmp_lt_u32 s48, 10'])
    a('s_waitcnt lgkmcnt(0)')
    if cfg.ps:
        a('s_mov_b32 m0, s48'); a('s_nop 3'); a('v_writelane_b32 v254, s94, m0'); a('v_writelane_b32 v255, s96, m0')
    a('s_cbranch_scc1 L_%s_loop' % tag)
    stamp(a, 2)

def tok_addr(a, dst, vj, tmp, vloc):
    a('v_lshrrev_b32 %s, 5, %s' % (v(tmp), v(vj)))
    a('v_mul_u32_u24 %s, s54, %s' % (v(dst), v(tmp)))
    a('v_and_b32 %s, 16, %s' % (v(tmp), v(vj)))
    a('v_lshl_add_u32 %s, %s, 7, %s' % (v(dst), v(tmp), v(dst)))
    a('v_and_b32 %s, 15, %s' % (v(tmp), v(vj)))
    a('v_lshl_add_u32 %s, %s, 4, %s' % (v(dst), v(tmp), v(dst)))
    a('v_cmp_gt_u32 vcc, 0x400, %s' % v(vj))
    a('v_cmp_le_u32 s[56:57], s53, %s' % v(vloc))
    a('s_and_b64 vcc, vcc, s[56:57]')
    a('v_mov_b32 %s, %s' % (v(tmp), hex(BAD)))
    a('v_cndmask_b32 %s, %s, %s, vcc' % (v(dst), v(tmp), v(dst)))

def touch_setup(a, wreg, va, vd):
    srd(a, 56, 6, 640 * 3840)
    srd(a, 60, 12, 640 * 3072)
    a('s_lshl_b32 s64, s33, 7')
    a('s_lshl_b32 s65, s34, 2')
    a('s_add_u32 s64, s64, s65')
    a('s_add_u32 s64, s64, %s' % wreg)
    if cfg.touch >= 3:
        sh = 7 if cfg.touch in (3, 5) else 6
        per = 128 >> sh
        a('v_lshlrev_b32 %s, %d, v0' % (v(va), sh))
        a('v_mov_b32 %s, %s' % (v(va + 5), hex(BAD)))
        for i, (nl, base) in enumerate(((20, 0), (17, 64 * 3840), (14, 64 * 3072))):
            a('s_mul_i32 s65, s64, %d' % (nl * 128))
            a('s_add_u32 s65, s65, %d' % base)
            a('v_add_u32 %s, s65, %s' % (v(va + 1 + i), v(va)))
            a('v_cmp_gt_u32 vcc, %d, v0' % (nl * per))
            a('v_cndmask_b32 %s, %s, %s, vcc' % (v(va + 1 + i), v(va + 5), v(va + 1 + i)))
        L = lambda i, sr: 'buffer_load_dword %s, %s, %s, 0 offen' % (v(vd + i), v(va + 1 + i), sr)
        return [L(0, 's[20:23]'), L(1, 's[56:59]'), L(2, 's[60:63]')], []
    a('s_lshl_b32 s65, s64, 10')
    a('v_lshl_add_u32 %s, v0, 4, s65' % v(va))
    a('v_add_u32 %s, %d, %s' % (v(va + 1), 64 * 3840 + (2 << 20), v(va)))
    a('v_add_u32 %s, %d, %s' % (v(va + 2), 64 * 3072 + (1 << 20), v(va)))
    a('s_mul_i32 s65, s64, 2560')
    a('v_lshrrev_b32 %s, 5, v0' % v(va + 3))
    a('v_mul_u32_u24 %s, 0x500, %s' % (v(va + 3), v(va + 3)))
    a('v_and_b32 %s, 31, v0' % v(va + 4))
    a('v_lshl_add_u32 %s, %s, 4, %s' % (v(va + 3), v(va + 4), v(va + 3)))
    a('v_lshrrev_b32 %s, 3, v0' % v(va + 4))
    a('v_mul_u32_u24 %s, 0x500, %s' % (v(va + 4), v(va + 4)))
    a('v_and_b32 %s, 7, v0' % v(va + 5))
    a('v_lshl_add_u32 %s, %s, 4, %s' % (v(va + 4), v(va + 5), v(va + 4)))
    a('v_mov_b32 %s, %s' % (v(va + 5), hex(BAD)))
    a('v_cmp_gt_u32 vcc, 16, v0')
    a('v_cndmask_b32 %s, %s, %s, vcc' % (v(va + 4), v(va + 5), v(va + 4)))
    a('s_mov_b32 s66, %d' % (64 * 3840))
    a('s_mov_b32 s67, %d' % (64 * 3072))
    a('s_mov_b32 s68, %d' % (64 * 3840 + (1 << 20)))
    L = lambda i, r, sr, so, off: 'buffer_load_dwordx4 %s, %s, %s, %s offen offset:%d' % (v(vd + 4 * i, 4), v(r), sr, so, off)
    ta = [L(0, va + 3, 's[20:23]', 's65', 128), L(1, va, 's[56:59]', 's66', 0), L(2, va, 's[60:63]', 's67', 0)]
    tb = [L(3, va + 3, 's[20:23]', 's65', 640), L(4, va, 's[56:59]', 's68', 0), L(5, va + 2, 's[60:63]', '0', 0),
          L(6, va + 4, 's[20:23]', 's65', 1152), L(7, va + 1, 's[56:59]', '0', 0)]
    return ta, tb

def gen_k1(a):
    a('.globl %s' % K1); a('.p2align 8'); a('.type %s,@function' % K1)
    a('%s:' % K1)
    a('s_cmp_ge_u32 s2, 256')
    a('s_cbranch_scc1 L1_end')
    stamp(a, 0); stamp(a, 1); stamp(a, 2)
    a('s_load_dwordx4 s[4:7], s[0:1], 0')
    a('s_load_dwordx2 s[8:9], s[0:1], 16')
    a('s_load_dwordx4 s[12:15], s[0:1], 32')
    a('s_load_dwordx2 s[10:11], s[0:1], 48')
    a('s_load_dwordx2 s[16:17], s[0:1], 72')
    a('v_lshrrev_b32 v1, 6, v0')
    a('v_and_b32 v0, 63, v0')
    a('v_readfirstlane_b32 s3, v1')
    if cfg.scr & 1:
        a('s_lshr_b32 s33, s2, 5'); a('s_and_b32 s34, s2, 31')
    else:
        a('s_and_b32 s33, s2, 7')
        a('s_lshr_b32 s34, s2, 3')
    a('s_lshr_b32 s35, s33, 2')
    a('s_and_b32 s36, s33, 3')
    a('s_cmp_ge_u32 s34, 30')
    a('s_cbranch_scc1 L1_prep')
    a('s_cmp_ge_u32 s34, 18')
    a('s_cbranch_scc1 L1_ffn_setup')
    a('s_and_b32 s38, s34, 1')
    a('s_lshl_b32 s46, s36, 1')
    a('s_add_u32 s38, s38, s46')
    a('s_mul_i32 s37, s35, 9')
    a('s_lshr_b32 s46, s34, 1')
    a('s_add_u32 s37, s37, s46')
    a('s_and_b32 s45, s46, %d' % cfg.rmask)
    a('s_mul_i32 s45, s45, %d' % cfg.ra)
    if cfg.rsh: a('s_lshr_b32 s45, s45, %d' % cfg.rsh)
    a('s_and_b32 s47, s38, 1')
    a('s_mul_i32 s47, s47, %d' % cfg.rb)
    a('s_add_u32 s45, s45, s47')
    a('s_mul_i32 s39, s37, 114')
    a('s_movk_i32 s40, 3840')
    a('s_movk_i32 s41, 29')
    a('s_movk_i32 s42, %d' % (0 if cfg.tst & 16 else 1120))
    a('s_mul_i32 s43, s38, %d' % (512 if cfg.tst & 16 else 160))
    a('s_mov_b32 s44, 0')
    a('s_waitcnt lgkmcnt(0)')
    srd(a, 24, 6, 640 * 3840)
    a('s_branch L1_common')
    a('L1_ffn_setup:')
    a('s_mul_i32 s46, s36, 12')
    a('s_add_u32 s46, s46, s34')
    a('s_sub_u32 s46, s46, 18')
    a('s_lshr_b32 s38, s46, 3')
    a('s_and_b32 s46, s46, 7')
    a('s_lshl_b32 s37, s35, 3')
    a('s_add_u32 s37, s37, s46')
    a('s_and_b32 s45, s46, %d' % cfg.rmask)
    a('s_mul_i32 s45, s45, %d' % cfg.ra)
    if cfg.rsh: a('s_lshr_b32 s45, s45, %d' % cfg.rsh)
    a('s_and_b32 s47, s38, 1')
    a('s_mul_i32 s47, s47, %d' % cfg.rd)
    a('s_add_u32 s45, s45, s47')
    a('s_add_u32 s45, s45, %d' % cfg.rc)
    a('s_lshl_b32 s39, s37, 7')
    a('s_movk_i32 s40, 3072')
    a('s_movk_i32 s41, 31')
    a('s_mov_b32 s42, 0')
    a('s_lshl_b32 s43, s38, 9')
    a('s_mov_b32 s44, 1')
    a('s_waitcnt lgkmcnt(0)')
    srd(a, 24, 12, 640 * 3072)
    a('L1_common:')
    srd(a, 20, 4, 2048 * 1280)
    a('s_cmp_lt_u32 s3, 4')
    a('s_cbranch_scc1 L1_consumer')
    a('s_setprio 3')
    a('s_sub_u32 s46, s3, 4')
    a('v_lshrrev_b32 v2, 3, v0')
    a('v_lshrrev_b32 v3, 4, v0')
    a('v_and_b32 v4, 7, v0')
    a('s_lshr_b32 s47, s46, 1')
    a('s_add_u32 s47, s47, s39')
    a('s_and_b32 s48, s46, 1')
    a('s_lshl_b32 s48, s48, 6')
    a('s_add_u32 s47, s47, s48')
    a('v_lshl_add_u32 v5, v2, 1, s47')
    a('v_mul_u32_u24 v5, 0x500, v5')
    a('v_xor_b32 v4, v4, v3')
    a('v_lshl_add_u32 v16, v4, 4, v5')
    a('v_xor_b32 v4, 4, v4')
    a('v_lshl_add_u32 v17, v4, 4, v5')
    a('v_add_u32 v17, %d, v17' % (16 * 1280))
    a('v_add_u32 v18, %d, v16' % (32 * 1280))
    a('v_add_u32 v19, %d, v17' % (32 * 1280))
    a('v_and_b32 v1, 31, v0')
    a('v_min_u32 v1, s41, v1')
    a('v_mul_u32_u24 v2, 13, v1')
    a('v_lshrrev_b32 v2, 7, v2')
    a('v_lshlrev_b32 v1, 4, v1')
    a('v_mad_u32_u24 v1, v2, s42, v1')
    a('v_add_u32 v1, s43, v1')
    a('v_lshrrev_b32 v2, 5, v0')
    a('v_lshlrev_b32 v2, 2, v2')
    a('s_lshl_b32 s47, s46, 4')
    a('v_add_u32 v2, s47, v2')
    a('v_mad_u32_u24 v8, v2, s40, v1')
    a('s_lshl_b32 s47, s40, 3')
    a('v_add_u32 v12, s47, v8')
    for e in range(1, 4):
        a('v_add_u32 %s, s40, %s' % (v(8 + e), v(7 + e)))
        a('v_add_u32 %s, s40, %s' % (v(12 + e), v(11 + e)))
    if cfg.rx:
        a('s_mul_i32 s47, s33, %d' % cfg.rx)
        a('s_lshr_b32 s47, s47, 2')
        a('s_add_u32 s45, s45, s47')
    a('s_mul_i32 s47, s45, 205')
    a('s_lshr_b32 s47, s47, 11')
    a('s_mul_i32 s47, s47, 10')
    a('s_sub_u32 s45, s45, s47')
    a('s_mov_b32 s48, 0')
    a('s_mov_b32 s49, 0')
    a('s_mul_i32 s50, s46, %d' % (8 * 1056))
    a('s_lshl_b32 s51, s46, 12')
    a('s_add_u32 s51, s51, %d' % XOFF)
    a('s_lshl_b32 s53, s40, 6')
    a('s_movk_i32 s55, 1024')
    a('s_movk_i32 s47, 1056')
    def ld_stage(first=False):
        a('s_mul_i32 s52, s45, s53')
        a('s_lshl_b32 s54, s45, 7')
        a('s_add_u32 m0, s49, s51')
        for e in range(4):
            if e: a('s_add_u32 m0, m0, s55')
            a('buffer_load_dwordx4 %s, s[20:23], s54 offen lds' % v(16 + e))
        a('s_add_u32 m0, s49, s50')
        for e in range(8):
            if e: a('s_add_u32 m0, m0, s47')
            a('buffer_load_dwordx4 %s, s[24:27], s52 offen lds' % v(8 + e))
        a('s_add_u32 s45, s45, 1')
        a('s_cmp_eq_u32 s45, 10')
        a('s_cselect_b32 s45, 0, s45')
        a('s_add_u32 s49, s49, %d' % SLOT)
        a('s_cmp_eq_u32 s49, %d' % (3 * SLOT))
        a('s_cselect_b32 s49, 0, s49')
    if not cfg.touch:
        a('L1_ld_loop:')
        a('s_cmp_lt_u32 s48, 2')
        a('s_cbranch_scc1 L1_ld_nowait')
        a('s_waitcnt vmcnt(12)')
        a('s_barrier')
        a('L1_ld_nowait:')
        ld_stage()
        a('s_add_u32 s48, s48, 1')
        a('s_cmp_lt_u32 s48, 10')
        a('s_cbranch_scc1 L1_ld_loop')
        a('s_waitcnt vmcnt(12)')
    else:
        ld_stage()
        tl = []
        if cfg.touch:
            ta, tb = touch_setup(a, 's46', 32, 40)
            tl = list(zip([int(c) for c in str(cfg.tpos)[1:]], ta + tb))
        seq = []
        for j in range(10):
            if j >= 2: seq.append(('w', j - 2))
            seq.append(('d', j))
            seq += [('t', x) for p, x in tl if p == j]
        seq.append(('w', 8))
        last = max([p for p, x in tl] + [1]) + 3
        for i, x in enumerate(seq):
            if i == 0: continue
            if x[0] == 'd':
                ld_stage()
                if x[1] == last: break
            elif x[0] == 't': a(x[1])
            else:
                pos = seq.index(('d', x[1]))
                cnt = sum(12 if y[0] == 'd' else 1 if y[0] == 't' else 0 for y in seq[pos + 1:i])
                if x[1] + 2 == last:
                    assert cnt == 12
                    a('s_mov_b32 s48, %d' % last)
                    a('s_waitcnt vmcnt(12)')
                    a('L1_ld_loop:')
                else:
                    a('s_waitcnt vmcnt(%d)' % cnt)
                if cfg.lp and x[1] == 0: stamp(a, 1)
                if cfg.lp and x[1] == 1: stamp(a, 2)
                a('s_barrier')
        a('s_add_u32 s48, s48, 1')
        a('s_cmp_lt_u32 s48, 10')
        a('s_waitcnt vmcnt(12)')
        a('s_cbranch_scc1 L1_ld_loop')
    if not cfg.lp: stamp(a, 1)
    a('s_cmp_eq_u32 s44, 1')
    a('s_cselect_b32 s47, s38, 4')
    a('s_cmp_lt_u32 s47, 4')
    a('s_barrier')
    a('s_cbranch_scc1 L1_ld_gate')
    a('s_waitcnt vmcnt(0)')
    a('s_barrier')
    stamp_flush(a, 0, 16)
    a('s_endpgm')
    gen_gate(a)
    a('L1_consumer:')
    srd(a, 28, 16, WS_SIZE)
    a('s_and_b32 s46, s3, 1')
    a('s_lshr_b32 s47, s3, 1')
    a('v_lshrrev_b32 v1, 4, v0')
    a('v_and_b32 v2, 15, v0')
    a('v_bfe_u32 v3, v2, 1, 3')
    a('v_xor_b32 v3, v3, v1')
    a('v_lshlrev_b32 v3, 4, v3')
    a('v_lshl_add_u32 v3, v2, 7, v3')
    a('s_lshl_b32 s48, s46, 13')
    a('s_add_u32 s48, s48, %d' % XOFF)
    a('v_add_u32 %s, s48, v3' % v(VXA0))
    a('v_xor_b32 %s, 64, %s' % (v(VXA1), v(VXA0)))
    a('v_lshrrev_b32 v3, 2, v0')
    a('v_mul_u32_u24 v3, 0x420, v3')
    a('v_and_b32 v15, 3, v0')
    a('v_lshl_add_u32 %s, v15, 3, v3' % v(VWM))
    a('s_mov_b32 s51, %d' % (-2 * SLOT & 0xffffffff))
    a('s_mov_b32 s52, %d' % SLOT)
    for i in range(128): a('v_mov_b32 %s, 0' % v(ACC + i))
    a('s_cmp_eq_u32 s44, 1')
    a('s_cbranch_scc1 L1_ffn')
    if cfg.cw & 2: warm(a, 'att', 13, 'L1_ffn')
    a('s_mul_i32 s48, s47, 80')
    a('v_add_u32 %s, s48, %s' % (v(VWM), v(VWM)))
    a('v_add_u32 v3, s48, v3')
    a('v_and_b32 v16, 1, v15')
    a('v_mad_u32_u24 v3, v16, 40, v3')
    a('v_add_u32 %s, 352, v3' % v(VWV))
    a('v_lshrrev_b32 v16, 1, v15')
    a('v_mul_u32_u24 v16, 160, v16')
    a('v_add3_u32 %s, v3, v16, 32' % v(VWQ))
    a('v_lshlrev_b32 v16, 2, v1')
    a('v_sub_u32 v16, v2, v16')
    a('v_mov_b32 v17, %s' % f32(-1e30))
    for r in range(4):
        a('v_subrev_u32 v18, %d, v16' % r)
        a('v_cmp_gt_u32 vcc, 8, v18')
        a('v_cndmask_b32 %s, v17, 0, vcc' % v(240 + r))
        a('v_cmp_gt_i32 vcc, -8, v18')
        a('v_cndmask_b32 %s, v17, 0, vcc' % v(244 + r))
        a('v_cmp_le_i32 vcc, 0, v18')
        a('v_cndmask_b32 %s, 0, -1, vcc' % v(20 + r))
        a('v_mov_b32 %s, 0x3f803f80' % v(250 + r))
    a('v_mov_b32 v17, 0xffff')
    a('v_bfi_b32 v248, v17, v20, v21')
    a('v_bfi_b32 v249, v17, v22, v23')
    a('s_mul_i32 s55, s37, 57')
    a('s_cmp_eq_u32 s37, 0')
    a('s_cselect_b32 s53, 0, 7')
    a('s_mov_b32 s54, %d' % RSTRIDE)
    a('s_lshl_b32 s58, s38, 1')
    a('s_add_u32 s58, s58, s47')
    a('s_lshl_b32 s58, s58, 12')
    a('s_lshl_b32 s59, s46, 10')
    a('s_add_u32 s58, s58, s59')
    a('v_lshlrev_b32 v19, 8, v1')
    for t in range(4):
        a('v_add_u32 v16, %d, v2' % (16 * t))
        a('v_add_u32 v17, s55, v16')
        tok_addr(a, 9 + t, 17, 18, 16)
        a('v_add_u32 %s, v19, %s' % (v(9 + t), v(9 + t)))
    a('s_lshr_b32 s60, s38, 1')
    a('s_add_u32 s60, s60, 16')
    a('s_lshl_b32 s60, s60, 12')
    a('s_add_u32 s59, s59, s60')
    a('s_and_b32 s60, s38, 1')
    a('s_lshl_b32 s60, s60, 1')
    a('s_add_u32 s60, s60, s47')
    a('s_lshl_b32 s60, s60, 8')
    a('s_add_u32 s59, s59, s60')
    a('v_and_b32 v19, 1, v1')
    a('v_lshlrev_b32 v19, 3, v19')
    a('v_lshrrev_b32 v20, 1, v1')
    a('v_lshl_add_u32 v20, v20, 4, v2')
    for u in range(2):
        a('v_add_u32 v16, %d, v20' % (32 * u))
        a('v_add_u32 v17, s55, v16')
        tok_addr(a, 13 + u, 17, 18, 16)
        a('v_add_u32 %s, v19, %s' % (v(13 + u), v(13 + u)))
    for g in range(4):
        m = 0xffff << (16 * g)
        a('s_mov_b32 %s, 0x%x' % (s(64 + 2 * g), m & 0xffffffff))
        a('s_mov_b32 %s, 0x%x' % (s(65 + 2 * g), m >> 32))
    cs = 20 ** -0.5 * math.log2(math.e)
    a('s_mov_b32 s62, %s' % f32(cs))
    a('s_mov_b32 s63, %s' % f32(-cs))
    if cfg.pt & 2:
        a('buffer_load_dword v254, v9, s[28:31], s58 offen')
        a('buffer_load_dword v255, v12, s[28:31], s58 offen')
    k1_mainloop(a, True, 'att')
    gen_attention(a)
    if cfg.prof: a('s_waitcnt vmcnt(0)')
    stamp_flush(a, 0, 16, 0)
    a('s_endpgm')
    a('L1_ffn:')
    if cfg.cw & 4: warm(a, 'ffn', 6, 'L1_prep')
    a('s_lshl_b32 s48, s47, 8')
    a('v_add_u32 %s, s48, %s' % (v(VWM), v(VWM)))
    a('v_lshlrev_b32 v9, 4, v0')
    a('s_mul_i32 s58, s37, %d' % (2 * RSTRIDE))
    a('s_lshl_b32 s59, s38, 3')
    a('s_lshl_b32 s60, s47, 2')
    a('s_add_u32 s59, s59, s60')
    a('s_add_u32 s59, s59, 20')
    a('s_lshl_b32 s59, s59, 12')
    a('s_add_u32 s58, s58, s59')
    a('s_lshl_b32 s59, s46, 10')
    a('s_add_u32 s58, s58, s59')
    if cfg.pt & 4:
        a('s_add_u32 s59, s58, %d' % RSTRIDE)
        a('s_mov_b64 exec, 1')
        a('buffer_load_dword v254, v9, s[28:31], s58 offen')
        a('buffer_load_dword v255, v9, s[28:31], s59 offen')
        a('s_mov_b64 exec, -1')
    k1_mainloop(a, False, 'ffn')
    k = 0
    for m in range(4):
        for t in range(4):
            d = 16 + 4 * (k % 16); k += 1
            for h in range(2):
                A = acc(t, 2 * m + h)
                a('v_cvt_pk_bf16_f32 %s, %s, %s' % (v(d + 2 * h), v(A), v(A + 1)))
                a('v_cvt_pk_bf16_f32 %s, %s, %s' % (v(d + 2 * h + 1), v(A + 2), v(A + 3)))
            for i in range(4):
                a('v_pk_max_i16 %s, %s, 0' % (v(d + i), v(d + i)))
            a('s_add_u32 s59, s58, %d' % ((t >> 1) * RSTRIDE + m * 4096))
            a('buffer_store_dwordx4 %s, v9, s[28:31], s59 offen offset:%d' % (v(d, 4), (t & 1) * 2048) + stp())
    if cfg.prof: a('s_waitcnt vmcnt(0)')
    stamp_flush(a, 0, 16, 1)
    a('s_endpgm')
    gen_prep(a)
    a('L1_end:')
    a('s_endpgm')

def gen_attention(a):
    KK = lambda t: 16 + 6 * t
    Q0 = lambda t: 40 + 8 * t
    Q1 = lambda t: 44 + 8 * t
    VP = lambda h, t: 72 + 8 * h + 2 * t
    M = lambda u: 96 + u
    SC = lambda u: 112 + 8 * u
    SP = lambda u: 116 + 8 * u
    P = lambda u: 176 + 4 * u
    SUM = lambda u: 208 + 4 * u
    def cvt(d, A):
        a('v_cvt_pk_bf16_f32 %s, %s, %s' % (v(d), v(A), v(A + 1)))
        a('v_cvt_pk_bf16_f32 %s, %s, %s' % (v(d + 1), v(A + 2), v(A + 3)))
    def conv_qk(t):
        cvt(Q1(t), acc(t, 4)); cvt(KK(t) + 2, acc(t, 4))
        cvt(Q0(t), acc(t, 0)); cvt(Q1(t) + 2, acc(t, 1))
        a('v_permlane32_swap_b32 %s, %s' % (v(Q1(t)), v(KK(t) + 2)))
        a('v_permlane32_swap_b32 %s, %s' % (v(Q1(t) + 1), v(KK(t) + 3)))
        cvt(KK(t), acc(t, 2)); cvt(KK(t) + 4, acc(t, 3))
        for i in range(2):
            a('v_cndmask_b32 %s, 0, %s, s[64:65]' % (v(Q0(t) + 2 + i), v(Q1(t) + i)))
            a('v_cndmask_b32 %s, 0, %s, s[66:67]' % (v(Q1(t) + i), v(Q1(t) + i)))
    def conv_v(t):
        for h in range(3): cvt(VP(h, t), acc(t, 5 + h))
    for t in range(4): conv_qk(t)
    conv_v(0); conv_v(1)
    Kop = lambda h, t: v(KK(t) + 2 * h, 4)
    Qop = lambda h, t: v(Q0(t) if h == 0 else Q1(t), 4)
    mf = []
    for h in range(2):
        for t in range(4):
            u = 4 * h + t
            mf.append('v_mfma_f32_16x16x32_bf16 %s, %s, %s, v[240:243]' % (v(SC(u), 4), Kop(h, t), Qop(h, t)))
            if t: mf.append('v_mfma_f32_16x16x32_bf16 %s, %s, %s, v[244:247]' % (v(SP(u), 4), Kop(h, t - 1), Qop(h, t)))
    cv = []
    for t in (2, 3):
        for h in range(3):
            A = acc(t, 5 + h); d = VP(h, t)
            cv.append('v_cvt_pk_bf16_f32 %s, %s, %s' % (v(d), v(A), v(A + 1)))
            cv.append('v_cvt_pk_bf16_f32 %s, %s, %s' % (v(d + 1), v(A + 2), v(A + 3)))
    interleave(a, mf, cv)
    for u in range(8):
        if u & 3:
            for r in range(4): a('v_max_f32 %s, %s, %s' % (v(SC(u) + r), v(SC(u) + r), v(SP(u) + r)))
        a('v_max3_f32 %s, %s, %s, %s' % (v(M(u)), v(SC(u)), v(SC(u) + 1), v(SC(u) + 2)))
        a('v_max_f32 %s, %s, %s' % (v(M(u)), v(M(u)), v(SC(u) + 3)))
    G = (0, 4)
    for b in G:
        a('v_permlane32_swap_b32 %s, %s' % (v(M(b)), v(M(b + 1))))
        a('v_permlane32_swap_b32 %s, %s' % (v(M(b + 2)), v(M(b + 3))))
    for b in G:
        a('v_max_f32 %s, %s, %s' % (v(M(b)), v(M(b)), v(M(b + 1))))
        a('v_max_f32 %s, %s, %s' % (v(M(b + 2)), v(M(b + 2)), v(M(b + 3))))
    for b in G: a('v_permlane16_swap_b32 %s, %s' % (v(M(b)), v(M(b + 2))))
    for b in G: a('v_max_f32 %s, %s, %s' % (v(M(b)), v(M(b)), v(M(b + 2))))
    for b in G: a('v_mul_f32 %s, s63, %s' % (v(M(b + 2)), v(M(b))))
    for b in G: a('v_mul_f32 %s, s63, %s' % (v(M(b)), v(M(b))))
    for b in G: a('v_permlane16_swap_b32 %s, %s' % (v(M(b)), v(M(b + 2))))
    for b in G:
        a('v_mov_b32 %s, %s' % (v(M(b + 1)), v(M(b))))
        a('v_mov_b32 %s, %s' % (v(M(b + 3)), v(M(b + 2))))
    for b in G:
        a('v_permlane32_swap_b32 %s, %s' % (v(M(b)), v(M(b + 1))))
        a('v_permlane32_swap_b32 %s, %s' % (v(M(b + 2)), v(M(b + 3))))
    pend = []
    for u in range(8):
        h, t = u >> 2, u & 3
        for r in range(4): a('v_fma_f32 %s, %s, s62, %s' % (v(SC(u) + r), v(SC(u) + r), v(M(u))))
        for r in range(4):
            a('v_exp_f32 %s, %s' % (v(SC(u) + r), v(SC(u) + r)))
            if pend: a(pend.pop(0))
        for x in pend: a(x)
        if t == 0:
            cvt(P(u) + 2, SC(u))
            op = 'v_mfma_f32_16x16x16_bf16'; B = v(P(u) + 2, 2); n = 2; o = 0
        else:
            cvt(P(u), SC(u))
            for i in range(2): a('v_and_b32 %s, %s, %s' % (v(P(u) + 2 + i), v(248 + i), v(P(u) + i)))
            for i in range(2): a('v_bfi_b32 %s, %s, 0, %s' % (v(P(u) + i), v(248 + i), v(P(u) + i)))
            op = 'v_mfma_f32_16x16x32_bf16'; B = v(P(u), 4); n = 4; o = -2
        pend = ['%s %s, %s, %s, 0' % (op, v(SUM(u), 4), v(250, n), B),
                '%s %s, %s, %s, 0' % (op, v(SC(u), 4), v(VP(h, t) + o, n), B),
                '%s %s, %s, %s, 0' % (op, v(SP(u), 4), v(VP(2, t) + o, n), B)]
    for x in pend: a(x)
    for u in range(8): a('v_rcp_f32 %s, %s' % (v(SUM(u)), v(SUM(u))))
    for t in range(4):
        for h in range(2):
            u = 4 * h + t
            for i in range(2):
                a('v_pk_mul_f32 %s, %s, %s op_sel_hi:[1,0]' % (v(SC(u) + 2 * i, 2), v(SC(u) + 2 * i, 2), v(SUM(u), 2)))
        for h in range(2): cvt(16 + 4 * t + 2 * h, SC(4 * h + t))
        a('buffer_store_dwordx4 %s, %s, s[28:31], s58 offen' % (v(16 + 4 * t, 4), v(9 + t)) + stp(cfg.stm))
    for g in range(4):
        a('s_mov_b64 exec, %s' % s(64 + 2 * g, 2))
        for u2 in range(2):
            u = 4 * (g & 1) + 2 * u2 + (g >> 1)
            for i in range(2):
                a('v_pk_mul_f32 %s, %s, %s op_sel_hi:[1,0]' % (v(40 + 4 * u2 + 2 * i, 2), v(SP(u) + 2 * i, 2), v(SUM(u), 2)))
    a('s_mov_b64 exec, -1')
    for u2 in range(2):
        cvt(48 + 2 * u2, 40 + 4 * u2)
        a('buffer_store_dwordx2 %s, %s, s[28:31], s59 offen' % (v(48 + 2 * u2, 2), v(13 + u2)) + stp(cfg.str))

def gen_gate(a):
    GW, GX = 24, 64
    a('L1_ld_gate:')
    srd(a, 56, 10, 1280)
    srd(a, 28, 16, WS_SIZE)
    a('v_and_b32 v1, 7, v0')
    a('v_lshlrev_b32 v1, 4, v1')
    a('s_lshl_b32 s47, s38, 5')
    a('s_add_u32 s47, s47, s39')
    a('s_lshl_b32 s48, s46, 3')
    a('s_add_u32 s47, s47, s48')
    a('v_lshrrev_b32 v2, 3, v0')
    a('v_add_u32 v2, s47, v2')
    a('v_mul_u32_u24 v3, 0x500, v2')
    a('v_add_u32 v3, v3, v1')
    a('s_waitcnt vmcnt(0)')
    a('s_barrier')
    for i in range(10):
        a('buffer_load_dwordx4 %s, v1, s[56:59], 0 offen offset:%d' % (v(GW + 4 * i, 4), 128 * i))
    for i in range(10):
        a('buffer_load_dwordx4 %s, v3, s[20:23], 0 offen offset:%d' % (v(GX + 4 * i, 4), 128 * i))
    a('v_mov_b32 v9, 0')
    a('v_mov_b32 v10, 0')
    a('s_barrier')
    a('s_waitcnt vmcnt(0)')
    for i in range(40):
        a('v_dot2_f32_bf16 %s, %s, %s, %s' % (v(9 + (i & 1)), v(GX + i), v(GW + i), v(9 + (i & 1))))
    a('v_add_f32 v9, v9, v10')
    for pat in ('quad_perm:[1,0,3,2]', 'quad_perm:[2,3,0,1]', 'row_half_mirror'):
        a('v_add_f32_dpp v11, v9, v9 %s row_mask:0xf bank_mask:0xf' % pat)
        a('v_mov_b32 v9, v11')
    a('v_mul_f32 v9, %s, v9' % f32(-math.log2(math.e)))
    a('v_exp_f32 v9, v9')
    a('v_add_f32 v9, 1.0, v9')
    a('v_rcp_f32 v9, v9')
    a('v_lshlrev_b32 v2, 2, v2')
    a('v_mov_b32 v3, %s' % hex(BAD))
    a('v_cmp_eq_u32 vcc, 0, v1')
    a('v_cndmask_b32 v2, v3, v2, vcc')
    a('s_mov_b32 s60, %d' % WS_G)
    a('buffer_store_dword v9, v2, s[28:31], s60 offen' + stp(cfg.stg))
    if cfg.prof: a('s_waitcnt vmcnt(0)')
    stamp_flush(a, 0, 16)
    a('s_endpgm')

def gen_prep(a):
    PITCH = 176
    LW = 32 * PITCH
    a('L1_prep:')
    a('s_sub_u32 s37, s34, 30')
    a('s_lshl_b32 s37, s37, 3')
    a('s_add_u32 s37, s37, s33')
    a('s_waitcnt lgkmcnt(0)')
    srd(a, 24, 8, 640 * 1280)
    srd(a, 40, 14, 1536 * 1280)
    srd(a, 28, 16, WS_SIZE)
    if cfg.touch:
        a('s_cmp_lt_u32 s3, 4')
        a('s_cbranch_scc0 L1_prep_not')
        srd(a, 20, 4, 2048 * 1280)
        ta, tb = touch_setup(a, 's3', 124, 132)
        for x in ta + tb: a(x)
        a('L1_prep_not:')
    U = lambda u: 24 + 20 * u
    PITCH = 1280 + 176
    LB = 32 * PITCH
    pol = stp(cfg.pnt)
    a('v_lshlrev_b32 v7, 4, v0')
    a('v_add_u32 v8, 4096, v7')
    a('s_lshr_b32 s48, s3, 1')
    a('s_and_b32 s49, s3, 1')
    a('s_lshl_b32 s50, s48, 2')
    a('s_lshl_b32 s51, s49, 4')
    a('s_add_u32 s51, s51, s50')
    a('s_mul_i32 s55, s37, 96')
    a('s_add_u32 s55, s55, s51')
    a('s_mul_i32 s55, s55, 1280')
    def ld5(u, sr):
        for e in range(5):
            a('buffer_load_dwordx4 %s, %s, %s, s55 offen offset:%d' % (v(U(u) + 4 * e, 4), v(7 if e < 4 else 8), sr, (e & 3) * 1024) + pol)
    for u in range(3):
        ld5(u, 's[40:43]')
        if u < 2: a('s_add_u32 s55, s55, %d' % (32 * 1280))
    a('s_mul_i32 s51, s49, 20')
    a('s_mul_i32 s55, s37, 40')
    a('s_add_u32 s55, s55, s50')
    a('s_add_u32 s55, s55, s51')
    a('s_mul_i32 s55, s55, 1280')
    ld5(3, 's[24:27]')
    a('s_and_b32 s56, s37, 3')
    a('s_lshr_b32 s61, s37, 2')
    a('s_mul_i32 s55, s56, 160')
    a('s_mul_i32 s50, s48, 40')
    a('s_add_u32 s55, s55, s50')
    a('s_add_u32 s55, s55, s51')
    a('s_add_u32 s55, s55, 16')
    a('s_mul_i32 s55, s55, 1280')
    a('s_mul_i32 s50, s61, 320')
    a('s_add_u32 s55, s55, s50')
    a('s_movk_i32 s52, %d' % PITCH)
    a('s_mul_i32 s53, s3, %d' % (4 * PITCH))
    a('s_add_u32 s54, s53, s50')
    a('s_movk_i32 s57, 1280')
    a('v_mul_u32_u24 v2, 13, v0')
    a('v_lshrrev_b32 v2, 8, v2')
    a('v_mul_u32_u24 v3, 20, v2')
    a('v_sub_u32 v1, v0, v3')
    a('v_lshlrev_b32 v1, 4, v1')
    a('v_mad_u32_u24 v9, v2, s57, v1')
    a('v_mad_u32_u24 v11, v2, s52, v1')
    a('v_add_u32 v11, s54, v11')
    a('v_add_u32 v10, %d, v7' % (3 * 1280 + 64))
    a('v_mov_b32 v3, %s' % hex(BAD))
    a('v_cmp_gt_u32 vcc, 16, v0')
    a('v_cndmask_b32 v10, v3, v10, vcc')
    a('buffer_load_dwordx4 %s, v9, s[24:27], s55 offen' % v(U(4), 4) + pol)
    a('buffer_load_dwordx4 %s, v10, s[24:27], s55 offen' % v(U(4) + 4, 4) + pol)
    a('s_add_u32 s54, s54, %d' % (3 * PITCH + 64))
    a('v_add_u32 v12, s54, v7')
    a('s_movk_i32 s50, 205')
    for e in range(5):
        a('v_add_u32 v1, %d, v0' % (64 * e))
        a('v_mul_u32_u24 v2, s50, v1')
        a('v_lshrrev_b32 v2, 14, v2')
        a('v_mul_u32_u24 v2, %d, v2' % (PITCH - 1280))
        a('v_lshl_add_u32 v1, v1, 4, v2')
        a('v_add_u32 %s, s53, v1' % v(19 + e))
    a('s_mul_i32 s49, s3, 160')
    a('v_lshrrev_b32 v4, 4, v0')
    a('v_bfe_u32 v5, v0, 2, 2')
    a('v_lshl_add_u32 v4, v4, 3, v5')
    a('v_mul_u32_u24 v4, s52, v4')
    a('v_add_u32 v4, s49, v4')
    a('v_and_b32 v5, 3, v0')
    a('v_lshl_add_u32 v6, v5, 3, v4')
    a('v_lshl_add_u32 v5, v5, 4, v4')
    a('s_mul_i32 s59, s3, %d' % NBSTRIDE)
    a('s_add_u32 s59, s59, %d' % WS_B)
    for u in range(5):
        bo = (u & 1) * LB
        a('s_waitcnt vmcnt(%d)' % (17 if u < 4 else 20))
        if u < 4:
            for e in range(5):
                a('ds_write_b128 %s, %s offset:%d' % (v(19 + e), v(U(u) + 4 * e, 4), bo))
        else:
            a('ds_write_b128 v11, %s offset:%d' % (v(U(u), 4), bo))
            a('s_mov_b64 exec, 0xffff')
            a('ds_write_b128 v12, %s offset:%d' % (v(U(u) + 4, 4), bo))
            a('s_mov_b64 exec, -1')
        if u < 3:
            a('s_mul_i32 s60, s37, 3'); a('s_add_u32 s60, s60, %d' % (20 + u))
        elif u == 3:
            a('s_mov_b32 s60, s37')
        else:
            a('s_add_u32 s60, s56, 16')
        a('s_mul_i32 s60, s60, 5120')
        a('s_add_u32 s60, s60, s59')
        a('s_waitcnt lgkmcnt(0)')
        a('s_barrier')
        if u == 4:
            a('s_cmp_lg_u32 s61, s48')
            a('s_cbranch_scc1 L1_prep_done')
        for nt in range(5):
            for h in range(2):
                if nt < 4: reg, off = 5, 64 * (nt >> 1) + 8 * (nt & 1)
                else: reg, off = 6, 128
                a('ds_read_b64_tr_b16 %s, %s offset:%d' % (v(U(u) + 4 * nt + 2 * h, 2), v(reg), bo + off + h * 4 * PITCH))
        a('s_waitcnt lgkmcnt(0)')
        for nt in range(5):
            a('buffer_store_dwordx4 %s, %s, s[28:31], s60 offen offset:%d' % (v(U(u) + 4 * nt, 4), v(7 if nt < 4 else 8), (nt & 3) * 1024) + stp())
    a('L1_prep_done:')
    if cfg.prof: a('s_waitcnt vmcnt(0)')
    stamp_flush(a, 0, 16, 3)
    a('s_endpgm')

def gen_k2(a):
    D = cfg.k2depth
    RING = 16
    AC = RING + 36 * D
    accr = lambda m, nt: AC + (m * 5 + nt) * 4
    def rq(q, off):
        if q < D: return v(RING + 36 * q + off, 4)
        b = 36 * (q - D) + off
        return 'a[%d:%d]' % (b, b + 3)
    Bq = lambda q, nt: rq(q, 4 * nt)
    Aq = lambda q, m: rq(q, 20 + 4 * m)
    D0, D1 = cfg.d0, cfg.d1
    a('.globl %s' % K2); a('.p2align 8'); a('.type %s,@function' % K2)
    a('%s:' % K2)
    a('s_cmp_ge_u32 s2, 256')
    a('s_cbranch_scc1 L2_end')
    if cfg.tst & 4:
        a('s_bitcmp1_b32 s2, 3'); a('s_cbranch_scc1 L2_end')
    if cfg.tst & 8:
        a('s_bitcmp1_b32 s2, 4'); a('s_cbranch_scc1 L2_end')
    stamp(a, 0)
    a('s_load_dwordx2 s[4:5], s[0:1], 72')
    a('s_load_dwordx2 s[6:7], s[0:1], 56')
    a('v_lshrrev_b32 v1, 6, v0')
    a('v_and_b32 v0, 63, v0')
    a('v_readfirstlane_b32 s3, v1')
    if cfg.scr & 2:
        a('s_lshr_b32 s16, s2, 5'); a('s_and_b32 s17, s2, 31')
    else:
        a('s_and_b32 s16, s2, 7')
        a('s_lshr_b32 s17, s2, 3')
    a('s_and_b32 s18, s16, 1')
    a('s_lshl_b32 s18, s18, 2')
    a('s_and_b32 s19, s17, 3')
    a('s_add_u32 s18, s18, s19')
    a('s_lshr_b32 s19, s16, 1')
    a('s_lshl_b32 s19, s19, 3')
    a('s_lshr_b32 s20, s17, 2')
    a('s_add_u32 s19, s19, s20')
    a('s_lshl_b32 s20, s3, 4')
    a('s_add_u32 s20, s20, 4')
    a('s_cmp_eq_u32 s3, 0')
    a('s_cselect_b32 s20, 0, s20')
    if cfg.bal == 4:
        a('s_mul_i32 s20, s3, 15')
    elif cfg.bal in (3, 5, 6):
        a('s_lshl_b32 s20, s3, 4')
    elif cfg.bal == 2:
        a('s_mul_i32 s20, s3, 17')
    elif cfg.bal:
        a('s_cselect_b32 s28, 1, s20')
        a('s_cselect_b32 s20, 0, 16')
        a('s_or_b32 s20, s20, s3')
        a('s_sub_u32 s28, s28, s20')
        a('s_mul_i32 s29, s28, 5120')
        a('s_lshl_b32 s28, s28, 12')
        a('s_cmp_eq_u32 s3, 0')
    if cfg.k2prio:
        a('s_cbranch_scc0 L2_noprio')
        a('s_setprio 3')
        a('L2_noprio:')
    if cfg.bal: a('s_mov_b32 s21, %d' % (2 if cfg.bal == 4 else 4 if cfg.bal == 5 else 7 if cfg.bal == 6 else 3))
    else: a('s_cselect_b32 s21, %d, %d' % (20 // D0 - 1, 16 // D1 - 1))
    a('s_mul_i32 s22, s19, %d' % (0 if cfg.tst & 1 else RSTRIDE))
    a('s_lshl_b32 s23, s20, 12')
    a('s_add_u32 s22, s22, s23')
    a('s_mul_i32 s23, s18, %d' % (0 if cfg.tst & 2 else NBSTRIDE))
    a('s_mul_i32 s24, s20, 5120')
    a('s_add_u32 s23, s23, s24')
    a('s_add_u32 s23, s23, %d' % WS_B)
    a('v_lshlrev_b32 v2, 4, v0')
    a('v_add_u32 v3, 4096, v2')
    for m in range(4):
        a('s_add_u32 s24, s3, %d' % m)
        a('s_and_b32 s24, s24, 3')
        a('s_lshl_b32 s25, s24, 10')
        a('v_add_u32 %s, s25, v2' % v(4 + m))
        if m:
            a('s_mul_i32 s25, s24, 15360')
            a('s_add_u32 s25, s25, %d' % ((m - 1) * 5120))
            a('v_add_u32 %s, s25, v2' % v(8 + m))
    a('s_lshl_b32 s24, s19, 6')
    a('s_lshr_b32 s25, s3, 1')
    a('s_lshl_b32 s25, s25, 5')
    a('s_add_u32 s24, s24, s25')
    a('s_and_b32 s25, s3, 1')
    a('s_add_u32 s24, s24, s25')
    a('v_and_b32 v12, 15, v0')
    a('v_lshl_add_u32 v12, v12, 1, s24')
    a('v_lshlrev_b32 v13, 2, v12')
    a('s_mov_b32 s26, %d' % WS_G)
    a('s_movk_i32 s27, 4096')
    a('s_waitcnt lgkmcnt(0)')
    stamp(a, 1, 1)
    srd(a, 8, 4, WS_SIZE)
    if cfg.cw & 8: warm(a, 'k2', 14, 'L2_last')
    def ldB(q, nt): return 'buffer_load_dwordx4 %s, %s, s[8:11], s23 offen offset:%d' % (Bq(q, nt), v(2 if nt < 4 else 3), (nt & 3) * 1024) + stp(cfg.lb)
    def ldA(q, m): return 'buffer_load_dwordx4 %s, %s, s[8:11], s22 offen' % (Aq(q, m), v(4 + m)) + stp(cfg.la)
    adv = ['s_add_u32 s23, s23, 5120', 's_add_u32 s22, s22, s27']
    def step(q, load, cnt):
        a('s_waitcnt vmcnt(%d)' % cnt)
        for nt in range(5):
            for m in range(4):
                A = v(accr(m, nt), 4)
                a('v_mfma_f32_16x16x32_bf16 %s, %s, %s, %s' % (A, Bq(q, nt), Aq(q, m), A))
            if load: a(ldB(q, nt))
        if load:
            for m in range(4): a(ldA(q, m))
            for x in adv: a(x)
    def fill(lo, hi):
        for q in range(lo, hi):
            for nt in range(5): a(ldB(q, nt))
            for m in range(4): a(ldA(q, m))
            for x in (['s_add_u32 s23, s23, s29', 's_add_u32 s22, s22, s28'] if cfg.bal == 1 and q == 0 else adv): a(x)
    def body(dd, tag, n):
        if cfg.prof: a('s_waitcnt vmcnt(%d)' % (9 * (dd - 1)))
        stamp(a, 1, 0)
        if n // dd > 1:
            a('L2_loop%s:' % tag)
            for q in range(dd): step(q, True, 9 * (dd - 1))
            a('s_sub_u32 s21, s21, 1')
            a('s_cmp_lg_u32 s21, 0')
            a('s_cbranch_scc1 L2_loop%s' % tag)
        r = n % dd
        for q in range(r): step(q, True, 9 * (dd - 1))
        for i in range(dd): step((r + i) % dd, False, 9 * (dd - 1 - i))
    a('buffer_load_dword v14, v13, s[8:11], s26 offen')
    Dm = 2 if cfg.bal == 6 else 3 if cfg.bal == 5 else min(D0, D1)
    if cfg.sst == 1:
        fill(0, 1); a('s_waitcnt vmcnt(9)'); stamp(a, 2, 1); fill(1, Dm)
    elif cfg.sst == 2:
        fill(0, 1); stamp(a, 1, 2); fill(1, Dm); stamp(a, 2, 2)
    elif cfg.cw & 1:
        fill(0, 1); warm(a, 'k2', 13, 'L2_last'); fill(1, Dm)
    else: fill(0, Dm)
    P = RING + 36
    if cfg.bal == 4:
        T = RING + 36; W = T + 20; O = 240
        Bt = lambda i: v(88 + 4 * i if i < 14 else 16 + 4 * (i - 14) if i < 19 else 80, 4)
        srd(a, 12, 6, 2048 * 1280)
        for i in range(80): a('v_mov_b32 %s, 0' % v(AC + i))
        a('s_mul_i32 s25, s3, 15360')
        a('v_add_u32 v8, s25, v2')
        a('s_mul_i32 s25, s3, 5120')
        a('s_add_u32 s29, s25, 81920')
        a('s_mul_i32 s31, s18, %d' % NBSTRIDE)
        a('s_add_u32 s31, s31, s25')
        a('s_add_u32 s31, s31, %d' % (WS_B + 60 * 5120))
        a('s_mul_i32 s30, s19, %d' % RSTRIDE)
        a('s_add_u32 s30, s30, %d' % (60 * 4096))
        a('s_add_u32 s25, s25, 0xf000')
        a('v_add_u32 v15, s25, v2')
        a('s_mul_i32 s25, s18, 160')
        a('v_mul_u32_u24 v12, 0x500, v12')
        a('v_lshrrev_b32 v1, 4, v0')
        a('v_lshl_add_u32 v0, v1, 3, v12')
        a('v_lshl_add_u32 v12, v1, 4, v12')
        a('v_add_u32 v1, 0xf000, v2')
        a('s_cmp_eq_u32 s3, 1')
        a('s_cselect_b32 s28, 2, 0')
        if cfg.prof: a('s_waitcnt vmcnt(27)')
        stamp(a, 1, 0)
        for q in range(3): step(q, True, 27)
        a('L2_loop:')
        step(3, True, 27); step(0, True, 27)
        a('s_cmp_eq_u32 s21, s28')
        a('s_cbranch_scc1 L2_dump')
        a('L2_back:')
        step(1, True, 27); step(2, True, 27)
        a('s_cmp_lg_u32 s21, %d' % cfg.ba)
        a('s_cbranch_scc1 L2_nobar')
        a('s_barrier')
        a('L2_nobar:')
        a('s_sub_u32 s21, s21, 1')
        a('s_cmp_lg_u32 s21, 0')
        a('s_cbranch_scc1 L2_loop')
        a('v_add_u32 v13, 81920, v2')
        for r, q in enumerate((3, 0)):
            a('s_add_u32 m0, s29, %d' % (20480 * r))
            a('s_waitcnt vmcnt(27)')
            for nt in range(5):
                for m in range(4):
                    A = v(accr(m, nt), 4)
                    a('v_mfma_f32_16x16x32_bf16 %s, %s, %s, %s' % (A, Bq(q, nt), Aq(q, m), A))
                    if nt == 4 and m == 0: a('s_add_u32 m0, m0, s27')
                a('buffer_load_dwordx4 %s, s[8:11], s31 offen offset:%d lds' % (v(2 if nt < 4 else 3), (nt & 3) * 1024))
            for j in range(4):
                a('buffer_load_dwordx4 %s, v4, s[8:11], s30 offen' % Aq(q, j))
                a('s_add_u32 s30, s30, s27')
            a('s_add_u32 s31, s31, 20480')
        step(1, False, 27)
        for i in range(5): a('ds_read_b128 %s, v15 offset:%d' % (v(T + 4 * i, 4), i * 1024))
        a('v_sub_f32 v15, 1.0, v14')
        for m in range(4):
            a('s_cmp_eq_u32 s3, %d' % m)
            a('s_cselect_b64 vcc, -1, 0')
            a('v_cndmask_b32 %s, v15, v14, vcc' % v(W + 2 * m))
        a('s_waitcnt lgkmcnt(0)')
        for i in range(10): a('v_pk_mul_f32 %s, %s, v[14:15] op_sel_hi:[1,0]' % (v(T + 2 * i, 2), v(T + 2 * i, 2)))
        a('s_waitcnt vmcnt(18)')
        order = [(m, nt) for m in (1, 2, 3, 0) for nt in range(5)]
        for i, (m, nt) in enumerate(order):
            A = v(accr(m, nt), 4)
            a('v_mfma_f32_16x16x32_bf16 %s, %s, %s, %s' % (A, Bq(2, nt), Aq(2, m), A))
            if i >= 5:
                m2, n2 = order[i - 5]
                a('ds_write_b128 %s, %s offset:%d' % (v(8 + m2), v(accr(m2, n2), 4), n2 * 1024))
        for i in range(10):
            a('v_pk_fma_f32 %s, %s, %s, %s op_sel_hi:[1,0,1]' % (v(T + 2 * i, 2), v(AC + 2 * i, 2), v(W, 2), v(T + 2 * i, 2)))
        a('s_waitcnt vmcnt(9) lgkmcnt(0)')
        a('s_barrier')
        rb = lambda i, r=0: 'ds_read_b128 %s, v13 offset:%d' % (Bt(i), i * 1024 + r * 20480)
        ri = lambda m, nt: 'ds_read_b128 %s, v8 offset:%d' % (v(accr(m, nt), 4), ((m - 1) * 5 + nt) * 1024)
        def fm(m, nt):
            for j in range(2):
                d = v(T + 4 * nt + 2 * j, 2)
                if m: a('v_pk_fma_f32 %s, %s, %s, %s op_sel_hi:[1,0,1]' % (d, v(accr(m, nt) + 2 * j, 2), v(W + 2 * m, 2), d))
                else: a('v_pk_fma_f32 %s, %s, v[14:15], %s op_sel:[0,1,0] op_sel_hi:[1,1,1]' % (d, v(accr(0, nt) + 2 * j, 2), d))
        def mm(j, nt, r=0):
            A = v(accr(0, nt), 4)
            a('v_mfma_f32_16x16x32_bf16 %s, %s, %s, %s' % (A, Bt(5 * j + nt), Aq(0 if r else 3, j), A if j or r else '0'))
        rds = []
        for j in range(4):
            rds += [rb(5 * j + nt) for nt in range(5)]
            if j < 3: rds += [ri(j + 1, nt) for nt in range(5)]
        for x in rds[:15]: a(x)
        rds = rds[15:]
        for k in range(7):
            a('s_waitcnt lgkmcnt(%d)' % min(10, 5 * (6 - k)))
            for nt in range(5):
                if k & 1: fm((k + 1) // 2, nt)
                else: mm(k // 2, nt)
                if rds: a(rds.pop(0))
        a('s_waitcnt vmcnt(0)')
        stamp(a, 2, 0)
        if cfg.prof: a('s_waitcnt lgkmcnt(0)')
        a('s_barrier')
        for i in range(15): a(rb(i, 1))
        for j in range(4):
            a('s_waitcnt lgkmcnt(%d)' % min(10, 5 * (3 - j)))
            for nt in range(5):
                mm(j, nt, 1)
                if j == 0: a(rb(15 + nt, 1))
        for nt in range(5):
            fm(0, nt)
            for j in range(2):
                a('v_cvt_pk_bf16_f32 %s, %s, %s' % (v(O + 2 * nt + j), v(T + 4 * nt + 2 * j), v(T + 4 * nt + 2 * j + 1)))
            if nt == 1: a('buffer_store_dwordx4 %s, v12, s[12:15], s25 offen' % v(O, 4) + stp(cfg.k2st))
            if nt == 3: a('buffer_store_dwordx4 %s, v12, s[12:15], s25 offen offset:64' % v(O + 4, 4) + stp(cfg.k2st))
            if nt == 4: a('buffer_store_dwordx2 %s, v0, s[12:15], s25 offen offset:128' % v(O + 8, 2) + stp(cfg.k2st))
        stamp(a, 1, 3)
        if cfg.prof: a('s_waitcnt vmcnt(0)'); a('v_mbcnt_lo_u32_b32 v0, -1, 0'); a('v_mbcnt_hi_u32_b32 v0, -1, v0')
        stamp_flush(a, 1, 4)
        a('L2_end:')
        a('s_endpgm')
        a('L2_dump:')
        a('s_nop 7')
        for nt in range(5):
            for m in range(4):
                a('ds_write_b128 v1, %s offset:%d' % (v(accr(m, nt), 4), ((m + 1) & 3) * 5120 + nt * 1024))
        for i in range(80): a('v_mov_b32 %s, 0' % v(AC + i))
        a('s_waitcnt lgkmcnt(0)')
        a('s_branch L2_back')
        a('L2_last:')
        return 256, 0
    if cfg.bal == 6:
        T = 124; W = T + 20; O = 24
        Bt = lambda i: v(52 + 4 * i if i < 18 else 16 + 4 * (i - 18), 4)
        srd(a, 12, 6, 2048 * 1280)
        for i in range(40): a('v_mov_b64 %s, 0' % v(AC + 2 * i, 2))
        a('s_mul_i32 s25, s3, 15360')
        a('v_add_u32 v8, s25, v2')
        a('s_mul_i32 s25, s3, 5120')
        a('s_add_u32 s29, s25, 81920')
        a('s_mul_i32 s31, s18, %d' % NBSTRIDE)
        a('s_add_u32 s31, s31, s25')
        a('s_add_u32 s31, s31, %d' % (WS_B + 64 * 5120))
        a('s_mul_i32 s30, s19, %d' % RSTRIDE)
        a('s_add_u32 s30, s30, %d' % (64 * 4096))
        a('s_add_u32 s25, s25, 0xf000')
        a('v_add_u32 v15, s25, v2')
        a('s_mul_i32 s25, s18, 160')
        a('v_mul_u32_u24 v12, 0x500, v12')
        a('v_lshrrev_b32 v1, 4, v0')
        a('v_lshl_add_u32 v0, v1, 3, v12')
        a('v_lshl_add_u32 v12, v1, 4, v12')
        a('v_add_u32 v1, 0xf000, v2')
        a('s_cmp_eq_u32 s3, 1')
        a('s_cselect_b32 s28, 6, 0')
        if cfg.w1p:
            a('s_cbranch_scc0 L2_np'); a('s_setprio 3'); a('L2_np:')
        if cfg.pt & 1: a('buffer_load_dword v13, v12, s[12:15], s25 offen')
        if cfg.pt & 8: a('buffer_load_dword v13, v12, s[12:15], s25 offen offset:96')
        if cfg.prof: a('s_waitcnt vmcnt(9)')
        stamp(a, 1, 0)
        a('L2_loop:')
        for q in (0, 1): step(q, True, 9)
        a('s_cmp_eq_u32 s21, s28')
        a('s_cbranch_scc1 L2_dump')
        a('L2_back:')
        a('s_cmp_lg_u32 s21, %d' % cfg.ba)
        a('s_cbranch_scc1 L2_nobar')
        a('s_waitcnt lgkmcnt(0)')
        a('s_barrier')
        a('L2_nobar:')
        a('s_sub_u32 s21, s21, 1')
        a('s_cmp_lg_u32 s21, 0')
        a('s_cbranch_scc1 L2_loop')
        a('s_mov_b32 m0, s29')
        a('v_add_u32 v13, 81920, v2')
        for i in range(5): a('ds_read_b128 %s, v15 offset:%d' % (v(T + 4 * i, 4), i * 1024))
        a('s_waitcnt vmcnt(9)')
        for nt in range(5):
            for m in range(4):
                A = v(accr(m, nt), 4)
                a('v_mfma_f32_16x16x32_bf16 %s, %s, %s, %s' % (A, Bq(0, nt), Aq(0, m), A))
                if nt == 4 and m == 0: a('s_add_u32 m0, m0, s27')
            a('buffer_load_dwordx4 %s, s[8:11], s31 offen offset:%d lds' % (v(2 if nt < 4 else 3), (nt & 3) * 1024))
        for j in range(4):
            a('buffer_load_dwordx4 %s, v4, s[8:11], s30 offen' % Aq(0, j))
            if j < 3: a('s_add_u32 s30, s30, s27')
        a('v_sub_f32 v15, 1.0, v14')
        for m in range(4):
            a('s_cmp_eq_u32 s3, %d' % m)
            a('s_cselect_b64 vcc, -1, 0')
            a('v_cndmask_b32 %s, v15, v14, vcc' % v(W + 2 * m))
        a('s_waitcnt lgkmcnt(0)')
        for i in range(10): a('v_pk_mul_f32 %s, %s, v[14:15] op_sel_hi:[1,0]' % (v(T + 2 * i, 2), v(T + 2 * i, 2)))
        a('s_waitcnt vmcnt(9)')
        order = [(m, nt) for m in (1, 2, 3, 0) for nt in range(5)]
        for i, (m, nt) in enumerate(order):
            A = v(accr(m, nt), 4)
            a('v_mfma_f32_16x16x32_bf16 %s, %s, %s, %s' % (A, Bq(1, nt), Aq(1, m), A))
            if i >= 5:
                m2, n2 = order[i - 5]
                a('ds_write_b128 %s, %s offset:%d' % (v(8 + m2), v(accr(m2, n2), 4), n2 * 1024))
        for i in range(10):
            a('v_pk_fma_f32 %s, %s, %s, %s op_sel_hi:[1,0,1]' % (v(T + 2 * i, 2), v(AC + 2 * i, 2), v(W, 2), v(T + 2 * i, 2)))
        a('s_waitcnt lgkmcnt(0)' if cfg.tb else 's_waitcnt vmcnt(0) lgkmcnt(0)')
        stamp(a, 2, 0)
        if cfg.prof: a('s_waitcnt lgkmcnt(0)')
        a('s_barrier')
        rb = lambda i: 'ds_read_b128 %s, v13 offset:%d' % (Bt(i), i * 1024)
        ri = lambda m, nt: 'ds_read_b128 %s, v8 offset:%d' % (v(accr(m, nt), 4), ((m - 1) * 5 + nt) * 1024)
        def fm(m, nt):
            for j in range(2):
                d = v(T + 4 * nt + 2 * j, 2)
                if m: a('v_pk_fma_f32 %s, %s, %s, %s op_sel_hi:[1,0,1]' % (d, v(accr(m, nt) + 2 * j, 2), v(W + 2 * m, 2), d))
                else: a('v_pk_fma_f32 %s, %s, v[14:15], %s op_sel:[0,1,0] op_sel_hi:[1,1,1]' % (d, v(accr(0, nt) + 2 * j, 2), d))
        def mm(j, nt):
            A = v(accr(0, nt), 4)
            a('v_mfma_f32_16x16x32_bf16 %s, %s, %s, %s' % (A, Bt(5 * j + nt), Aq(0, j), A if j else '0'))
        if cfg.tb:
            for m in range(1, 4):
                for nt in range(5): a(ri(m, nt))
            for m in range(1, 4):
                a('s_waitcnt lgkmcnt(%d)' % (15 - 5 * m))
                for nt in range(5): fm(m, nt)
            a('s_waitcnt vmcnt(0)')
            a('s_barrier')
            for i in range(15): a(rb(i))
            for j in range(4):
                a('s_waitcnt lgkmcnt(%d)' % min(10, 5 * (3 - j)))
                for nt in range(5):
                    mm(j, nt)
                    if j == 0: a(rb(15 + nt))
        else:
            rds = []
            for j in range(4):
                rds += [rb(5 * j + nt) for nt in range(5)]
                if j < 3: rds += [ri(j + 1, nt) for nt in range(5)]
            for x in rds[:15]: a(x)
            rds = rds[15:]
            for k in range(7):
                a('s_waitcnt lgkmcnt(%d)' % min(10, 5 * (6 - k)))
                for nt in range(5):
                    if k & 1: fm((k + 1) // 2, nt)
                    else: mm(k // 2, nt)
                    if rds: a(rds.pop(0))
        for nt in range(5):
            fm(0, nt)
            for j in range(2):
                a('v_cvt_pk_bf16_f32 %s, %s, %s' % (v(O + 2 * nt + j), v(T + 4 * nt + 2 * j), v(T + 4 * nt + 2 * j + 1)))
            if nt == 1: a('buffer_store_dwordx4 %s, v12, s[12:15], s25 offen' % v(O, 4) + stp(cfg.k2st))
            if nt == 3: a('buffer_store_dwordx4 %s, v12, s[12:15], s25 offen offset:64' % v(O + 4, 4) + stp(cfg.k2st))
            if nt == 4: a('buffer_store_dwordx2 %s, v0, s[12:15], s25 offen offset:128' % v(O + 8, 2) + stp(cfg.k2st))
        stamp(a, 1, 3)
        if cfg.prof: a('s_waitcnt vmcnt(0)'); a('v_mbcnt_lo_u32_b32 v0, -1, 0'); a('v_mbcnt_hi_u32_b32 v0, -1, v0')
        stamp_flush(a, 1, 4)
        a('L2_end:')
        a('s_endpgm')
        a('L2_dump:')
        a('s_nop 7')
        tl = [(m, nt) for nt in range(5) for m in range(4)]
        for i in range(22):
            if i < 20:
                m, nt = tl[i]
                a('ds_write_b128 v1, %s offset:%d' % (v(accr(m, nt), 4), ((m + 1) & 3) * 5120 + nt * 1024))
            if i >= 2:
                for j in (0, 2): a('v_mov_b64 %s, 0' % v(accr(*tl[i - 2]) + j, 2))
        a('s_branch L2_back')
        a('L2_last:')
        return AC + 80, 0
    if cfg.bal == 5:
        T = 124; W = T + 20; O = 112
        Bt = lambda i: v(16 + 4 * i if i < 14 else 88 + 4 * (i - 14), 4)
        srd(a, 12, 6, 2048 * 1280)
        for i in range(80): a('v_mov_b32 %s, 0' % v(AC + i))
        a('s_mul_i32 s25, s3, 15360')
        a('v_add_u32 v8, s25, v2')
        a('s_mul_i32 s25, s3, 5120')
        a('s_add_u32 s29, s25, 81920')
        a('s_mul_i32 s31, s18, %d' % NBSTRIDE)
        a('s_add_u32 s31, s31, s25')
        a('s_add_u32 s31, s31, %d' % (WS_B + 64 * 5120))
        a('s_mul_i32 s30, s19, %d' % RSTRIDE)
        a('s_add_u32 s30, s30, %d' % (64 * 4096))
        a('s_add_u32 s25, s25, 0xf000')
        a('v_add_u32 v15, s25, v2')
        a('s_mul_i32 s25, s18, 160')
        a('v_mul_u32_u24 v12, 0x500, v12')
        a('v_lshrrev_b32 v1, 4, v0')
        a('v_lshl_add_u32 v0, v1, 3, v12')
        a('v_lshl_add_u32 v12, v1, 4, v12')
        a('v_add_u32 v1, 0xf000, v2')
        a('s_cmp_eq_u32 s3, 1')
        a('s_cselect_b32 s28, 4, 0')
        if cfg.pt & 1: a('buffer_load_dword v13, v12, s[12:15], s25 offen')
        if cfg.pt & 8: a('buffer_load_dword v13, v12, s[12:15], s25 offen offset:96')
        if cfg.prof: a('s_waitcnt vmcnt(18)')
        stamp(a, 1, 0)
        step(0, True, 18)
        a('L2_loop:')
        for q in (1, 2, 0): step(q, True, 18)
        a('s_cmp_eq_u32 s21, s28')
        a('s_cbranch_scc1 L2_dump')
        a('L2_back:')
        a('s_cmp_lg_u32 s21, %d' % cfg.ba)
        a('s_cbranch_scc1 L2_nobar')
        a('s_barrier')
        a('L2_nobar:')
        a('s_sub_u32 s21, s21, 1')
        a('s_cmp_lg_u32 s21, 0')
        a('s_cbranch_scc1 L2_loop')
        a('s_mov_b32 m0, s29')
        a('v_add_u32 v13, 81920, v2')
        for i in range(5): a('ds_read_b128 %s, v15 offset:%d' % (v(T + 4 * i, 4), i * 1024))
        a('s_waitcnt vmcnt(18)')
        for nt in range(5):
            for m in range(4):
                A = v(accr(m, nt), 4)
                a('v_mfma_f32_16x16x32_bf16 %s, %s, %s, %s' % (A, Bq(1, nt), Aq(1, m), A))
                if nt == 4 and m == 0: a('s_add_u32 m0, m0, s27')
            a('buffer_load_dwordx4 %s, s[8:11], s31 offen offset:%d lds' % (v(2 if nt < 4 else 3), (nt & 3) * 1024))
        for j in range(4):
            a('buffer_load_dwordx4 %s, v4, s[8:11], s30 offen' % Aq(1, j))
            if j < 3: a('s_add_u32 s30, s30, s27')
        a('v_sub_f32 v15, 1.0, v14')
        for m in range(4):
            a('s_cmp_eq_u32 s3, %d' % m)
            a('s_cselect_b64 vcc, -1, 0')
            a('v_cndmask_b32 %s, v15, v14, vcc' % v(W + 2 * m))
        a('s_waitcnt lgkmcnt(0)')
        for i in range(10): a('v_pk_mul_f32 %s, %s, v[14:15] op_sel_hi:[1,0]' % (v(T + 2 * i, 2), v(T + 2 * i, 2)))
        step(2, False, 18)
        a('s_waitcnt vmcnt(9)')
        order = [(m, nt) for m in (1, 2, 3, 0) for nt in range(5)]
        for i, (m, nt) in enumerate(order):
            A = v(accr(m, nt), 4)
            a('v_mfma_f32_16x16x32_bf16 %s, %s, %s, %s' % (A, Bq(0, nt), Aq(0, m), A))
            if i >= 5:
                m2, n2 = order[i - 5]
                a('ds_write_b128 %s, %s offset:%d' % (v(8 + m2), v(accr(m2, n2), 4), n2 * 1024))
        for i in range(10):
            a('v_pk_fma_f32 %s, %s, %s, %s op_sel_hi:[1,0,1]' % (v(T + 2 * i, 2), v(AC + 2 * i, 2), v(W, 2), v(T + 2 * i, 2)))
        a('s_waitcnt vmcnt(0) lgkmcnt(0)')
        stamp(a, 2, 0)
        if cfg.prof: a('s_waitcnt lgkmcnt(0)')
        a('s_barrier')
        rb = lambda i: 'ds_read_b128 %s, v13 offset:%d' % (Bt(i), i * 1024)
        ri = lambda m, nt: 'ds_read_b128 %s, v8 offset:%d' % (v(accr(m, nt), 4), ((m - 1) * 5 + nt) * 1024)
        def fm(m, nt):
            for j in range(2):
                d = v(T + 4 * nt + 2 * j, 2)
                if m: a('v_pk_fma_f32 %s, %s, %s, %s op_sel_hi:[1,0,1]' % (d, v(accr(m, nt) + 2 * j, 2), v(W + 2 * m, 2), d))
                else: a('v_pk_fma_f32 %s, %s, v[14:15], %s op_sel:[0,1,0] op_sel_hi:[1,1,1]' % (d, v(accr(0, nt) + 2 * j, 2), d))
        def mm(j, nt):
            A = v(accr(0, nt), 4)
            a('v_mfma_f32_16x16x32_bf16 %s, %s, %s, %s' % (A, Bt(5 * j + nt), Aq(1, j), A if j else '0'))
        rds = []
        for j in range(4):
            rds += [rb(5 * j + nt) for nt in range(5)]
            if j < 3: rds += [ri(j + 1, nt) for nt in range(5)]
        for x in rds[:15]: a(x)
        rds = rds[15:]
        for k in range(7):
            a('s_waitcnt lgkmcnt(%d)' % min(10, 5 * (6 - k)))
            for nt in range(5):
                if k & 1: fm((k + 1) // 2, nt)
                else: mm(k // 2, nt)
                if rds: a(rds.pop(0))
        for nt in range(5):
            fm(0, nt)
            for j in range(2):
                a('v_cvt_pk_bf16_f32 %s, %s, %s' % (v(O + 2 * nt + j), v(T + 4 * nt + 2 * j), v(T + 4 * nt + 2 * j + 1)))
            if nt == 1: a('buffer_store_dwordx4 %s, v12, s[12:15], s25 offen' % v(O, 4) + stp(cfg.k2st))
            if nt == 3: a('buffer_store_dwordx4 %s, v12, s[12:15], s25 offen offset:64' % v(O + 4, 4) + stp(cfg.k2st))
            if nt == 4: a('buffer_store_dwordx2 %s, v0, s[12:15], s25 offen offset:128' % v(O + 8, 2) + stp(cfg.k2st))
        stamp(a, 1, 3)
        if cfg.prof: a('s_waitcnt vmcnt(0)'); a('v_mbcnt_lo_u32_b32 v0, -1, 0'); a('v_mbcnt_hi_u32_b32 v0, -1, v0')
        stamp_flush(a, 1, 4)
        a('L2_end:')
        a('s_endpgm')
        a('L2_dump:')
        a('s_nop 7')
        for nt in range(5):
            for m in range(4):
                a('ds_write_b128 v1, %s offset:%d' % (v(accr(m, nt), 4), ((m + 1) & 3) * 5120 + nt * 1024))
        for i in range(80): a('v_mov_b32 %s, 0' % v(AC + i))
        a('s_waitcnt lgkmcnt(0)')
        a('s_branch L2_back')
        a('L2_last:')
        return AC + 80, 0
    if cfg.bal == 3:
        T = RING + 36; W = T + 20; O = 24
        Bt = lambda i: v(88 + 4 * i if i < 18 else 16 + 4 * (i - 18), 4)
        srd(a, 12, 6, 2048 * 1280)
        for i in range(80): a('v_mov_b32 %s, 0' % v(AC + i))
        a('s_mul_i32 s25, s3, 15360')
        a('v_add_u32 v8, s25, v2')
        a('s_mul_i32 s25, s3, 5120')
        a('s_add_u32 s29, s25, 81920')
        a('s_mul_i32 s31, s18, %d' % NBSTRIDE)
        a('s_add_u32 s31, s31, s25')
        a('s_add_u32 s31, s31, %d' % (WS_B + 64 * 5120))
        a('s_mul_i32 s30, s19, %d' % RSTRIDE)
        a('s_add_u32 s30, s30, %d' % (64 * 4096))
        a('s_add_u32 s25, s25, 0xf000')
        a('v_add_u32 v15, s25, v2')
        a('s_mul_i32 s25, s18, 160')
        a('v_mul_u32_u24 v12, 0x500, v12')
        a('v_lshrrev_b32 v1, 4, v0')
        a('v_lshl_add_u32 v0, v1, 3, v12')
        a('v_lshl_add_u32 v12, v1, 4, v12')
        a('v_add_u32 v1, 0xf000, v2')
        a('s_cmp_eq_u32 s3, 1')
        a('s_cselect_b32 s28, 3, 0')
        if cfg.pt & 1: a('buffer_load_dword v13, v12, s[12:15], s25 offen')
        if cfg.pt & 8: a('buffer_load_dword v13, v12, s[12:15], s25 offen offset:96')
        if cfg.prof: a('s_waitcnt vmcnt(27)')
        stamp(a, 1, 0)
        a('L2_loop:')
        for q in range(4): step(q, True, 27)
        a('s_cmp_eq_u32 s21, s28')
        a('s_cbranch_scc1 L2_dump')
        a('L2_back:')
        a('s_cmp_lg_u32 s21, %d' % cfg.ba)
        a('s_cbranch_scc1 L2_nobar')
        a('s_barrier')
        a('L2_nobar:')
        a('s_sub_u32 s21, s21, 1')
        a('s_cmp_lg_u32 s21, 0')
        a('s_cbranch_scc1 L2_loop')
        a('s_mov_b32 m0, s29')
        a('v_add_u32 v13, 81920, v2')
        a('s_waitcnt vmcnt(27)')
        for nt in range(5):
            for m in range(4):
                A = v(accr(m, nt), 4)
                a('v_mfma_f32_16x16x32_bf16 %s, %s, %s, %s' % (A, Bq(0, nt), Aq(0, m), A))
                if nt == 4 and m == 0: a('s_add_u32 m0, m0, s27')
            a('buffer_load_dwordx4 %s, s[8:11], s31 offen offset:%d lds' % (v(2 if nt < 4 else 3), (nt & 3) * 1024))
        for j in range(4):
            a('buffer_load_dwordx4 %s, v4, s[8:11], s30 offen' % Aq(0, j))
            if j < 3: a('s_add_u32 s30, s30, s27')
        step(1, False, 27)
        for i in range(5): a('ds_read_b128 %s, v15 offset:%d' % (v(T + 4 * i, 4), i * 1024))
        step(2, False, 18)
        a('v_sub_f32 v15, 1.0, v14')
        for m in range(4):
            a('s_cmp_eq_u32 s3, %d' % m)
            a('s_cselect_b64 vcc, -1, 0')
            a('v_cndmask_b32 %s, v15, v14, vcc' % v(W + 2 * m))
        a('s_waitcnt lgkmcnt(0)')
        for i in range(10): a('v_pk_mul_f32 %s, %s, v[14:15] op_sel_hi:[1,0]' % (v(T + 2 * i, 2), v(T + 2 * i, 2)))
        a('s_waitcnt vmcnt(9)')
        order = [(m, nt) for m in (1, 2, 3, 0) for nt in range(5)]
        for i, (m, nt) in enumerate(order):
            A = v(accr(m, nt), 4)
            a('v_mfma_f32_16x16x32_bf16 %s, %s, %s, %s' % (A, Bq(3, nt), Aq(3, m), A))
            if i >= 5:
                m2, n2 = order[i - 5]
                a('ds_write_b128 %s, %s offset:%d' % (v(8 + m2), v(accr(m2, n2), 4), n2 * 1024))
        for i in range(10):
            a('v_pk_fma_f32 %s, %s, %s, %s op_sel_hi:[1,0,1]' % (v(T + 2 * i, 2), v(AC + 2 * i, 2), v(W, 2), v(T + 2 * i, 2)))
        a('s_waitcnt vmcnt(0) lgkmcnt(0)')
        stamp(a, 2, 0)
        if cfg.prof: a('s_waitcnt lgkmcnt(0)')
        a('s_barrier')
        rb = lambda i: 'ds_read_b128 %s, v13 offset:%d' % (Bt(i), i * 1024)
        ri = lambda m, nt: 'ds_read_b128 %s, v8 offset:%d' % (v(accr(m, nt), 4), ((m - 1) * 5 + nt) * 1024)
        def fm(m, nt):
            for j in range(2):
                d = v(T + 4 * nt + 2 * j, 2)
                if m: a('v_pk_fma_f32 %s, %s, %s, %s op_sel_hi:[1,0,1]' % (d, v(accr(m, nt) + 2 * j, 2), v(W + 2 * m, 2), d))
                else: a('v_pk_fma_f32 %s, %s, v[14:15], %s op_sel:[0,1,0] op_sel_hi:[1,1,1]' % (d, v(accr(0, nt) + 2 * j, 2), d))
        def mm(j, nt):
            A = v(accr(0, nt), 4)
            a('v_mfma_f32_16x16x32_bf16 %s, %s, %s, %s' % (A, Bt(5 * j + nt), Aq(0, j), A if j else '0'))
        rds = []
        for j in range(4):
            rds += [rb(5 * j + nt) for nt in range(5)]
            if j < 3: rds += [ri(j + 1, nt) for nt in range(5)]
        for x in rds[:15]: a(x)
        rds = rds[15:]
        for k in range(7):
            a('s_waitcnt lgkmcnt(%d)' % min(10, 5 * (6 - k)))
            for nt in range(5):
                if k & 1: fm((k + 1) // 2, nt)
                else: mm(k // 2, nt)
                if rds: a(rds.pop(0))
        for nt in range(5):
            fm(0, nt)
            for j in range(2):
                a('v_cvt_pk_bf16_f32 %s, %s, %s' % (v(O + 2 * nt + j), v(T + 4 * nt + 2 * j), v(T + 4 * nt + 2 * j + 1)))
            if nt == 1: a('buffer_store_dwordx4 %s, v12, s[12:15], s25 offen' % v(O, 4) + stp(cfg.k2st))
            if nt == 3: a('buffer_store_dwordx4 %s, v12, s[12:15], s25 offen offset:64' % v(O + 4, 4) + stp(cfg.k2st))
            if nt == 4: a('buffer_store_dwordx2 %s, v0, s[12:15], s25 offen offset:128' % v(O + 8, 2) + stp(cfg.k2st))
        stamp(a, 1, 3)
        if cfg.prof: a('s_waitcnt vmcnt(0)'); a('v_mbcnt_lo_u32_b32 v0, -1, 0'); a('v_mbcnt_hi_u32_b32 v0, -1, v0')
        stamp_flush(a, 1, 4)
        a('L2_end:')
        a('s_endpgm')
        a('L2_dump:')
        a('s_nop 7')
        for nt in range(5):
            for m in range(4):
                a('ds_write_b128 v1, %s offset:%d' % (v(accr(m, nt), 4), ((m + 1) & 3) * 5120 + nt * 1024))
        for i in range(80): a('v_mov_b32 %s, 0' % v(AC + i))
        a('s_waitcnt lgkmcnt(0)')
        a('s_branch L2_back')
        a('L2_last:')
        return AC + 80, 0
    if cfg.bal == 2:
        T = RING + 36
        srd(a, 12, 6, 2048 * 1280)
        for i in range(80): a('v_mov_b32 %s, 0' % v(AC + i))
        a('s_mul_i32 s25, s3, 15360')
        a('v_add_u32 v8, s25, v2')
        a('s_mul_i32 s25, s3, 5120')
        a('s_add_u32 s25, s25, 0xf000')
        a('v_add_u32 v15, s25, v2')
        a('s_mul_i32 s25, s18, 160')
        a('v_mul_u32_u24 v12, 0x500, v12')
        a('v_lshrrev_b32 v1, 4, v0')
        a('v_lshl_add_u32 v0, v1, 3, v12')
        a('v_lshl_add_u32 v12, v1, 4, v12')
        a('v_add_u32 v1, 0xf000, v2')
        a('s_cmp_eq_u32 s3, 1')
        a('s_cselect_b32 s28, 3, 0')
        if cfg.prof: a('s_waitcnt vmcnt(27)')
        stamp(a, 1, 0)
        step(0, True, 27)
        a('L2_loop:')
        step(1, True, 27); step(2, True, 27)
        a('s_cmp_eq_u32 s21, s28')
        a('s_cbranch_scc1 L2_dump')
        a('L2_back:')
        step(3, True, 27); step(0, True, 27)
        a('s_cmp_lg_u32 s21, %d' % cfg.ba)
        a('s_cbranch_scc1 L2_nobar')
        a('s_barrier')
        a('L2_nobar:')
        a('s_sub_u32 s21, s21, 1')
        a('s_cmp_lg_u32 s21, 0')
        a('s_cbranch_scc1 L2_loop')
        step(1, False, 27)
        for i in range(5): a('ds_read_b128 %s, v15 offset:%d' % (v(T + 4 * i, 4), i * 1024))
        step(2, False, 18)
        a('v_sub_f32 v15, 1.0, v14')
        W = T + 20
        for m in range(4):
            a('s_cmp_eq_u32 s3, %d' % m)
            a('s_cselect_b64 vcc, -1, 0')
            a('v_cndmask_b32 %s, v15, v14, vcc' % v(W + 2 * m))
        a('s_waitcnt lgkmcnt(0)')
        for i in range(10): a('v_pk_mul_f32 %s, %s, v[14:15] op_sel_hi:[1,0]' % (v(T + 2 * i, 2), v(T + 2 * i, 2)))
        step(3, False, 9)
        a('s_waitcnt vmcnt(0)')
        order = [(m, nt) for m in (1, 2, 3, 0) for nt in range(5)]
        for i, (m, nt) in enumerate(order):
            A = v(accr(m, nt), 4)
            a('v_mfma_f32_16x16x32_bf16 %s, %s, %s, %s' % (A, Bq(0, nt), Aq(0, m), A))
            if i >= 5:
                m2, n2 = order[i - 5]
                a('ds_write_b128 %s, %s offset:%d' % (v(8 + m2), v(accr(m2, n2), 4), n2 * 1024))
        stamp(a, 2, 0)
        for i in range(10):
            a('v_pk_fma_f32 %s, %s, %s, %s op_sel_hi:[1,0,1]' % (v(T + 2 * i, 2), v(AC + 2 * i, 2), v(W, 2), v(T + 2 * i, 2)))
        a('s_waitcnt lgkmcnt(0)')
        a('s_barrier')
        for nt in range(5):
            for m in range(1, 4):
                a('ds_read_b128 %s, v8 offset:%d' % (v(accr(m, nt), 4), ((m - 1) * 5 + nt) * 1024))
        O = W + 8
        for nt in range(5):
            a('s_waitcnt lgkmcnt(%d)' % (3 * (4 - nt)))
            for m in range(1, 4):
                for j in range(2):
                    d = v(T + 4 * nt + 2 * j, 2)
                    a('v_pk_fma_f32 %s, %s, %s, %s op_sel_hi:[1,0,1]' % (d, v(accr(m, nt) + 2 * j, 2), v(W + 2 * m, 2), d))
            for j in range(2):
                a('v_cvt_pk_bf16_f32 %s, %s, %s' % (v(O + 2 * nt + j), v(T + 4 * nt + 2 * j), v(T + 4 * nt + 2 * j + 1)))
            if nt == 1: a('buffer_store_dwordx4 %s, v12, s[12:15], s25 offen' % v(O, 4) + stp(cfg.k2st))
            if nt == 3: a('buffer_store_dwordx4 %s, v12, s[12:15], s25 offen offset:64' % v(O + 4, 4) + stp(cfg.k2st))
            if nt == 4: a('buffer_store_dwordx2 %s, v0, s[12:15], s25 offen offset:128' % v(O + 8, 2) + stp(cfg.k2st))
        stamp(a, 1, 3)
        if cfg.prof: a('s_waitcnt vmcnt(0)'); a('v_mbcnt_lo_u32_b32 v0, -1, 0'); a('v_mbcnt_hi_u32_b32 v0, -1, v0')
        stamp_flush(a, 1, 4)
        a('L2_end:')
        a('s_endpgm')
        a('L2_dump:')
        a('s_nop 7')
        for nt in range(5):
            for m in range(4):
                a('ds_write_b128 v1, %s offset:%d' % (v(accr(m, nt), 4), ((m + 1) & 3) * 5120 + nt * 1024))
        for i in range(80): a('v_mov_b32 %s, 0' % v(AC + i))
        a('s_waitcnt lgkmcnt(0)')
        a('s_branch L2_back')
        a('L2_last:')
        return AC + 80, 0
    if cfg.bal:
        ag = lambda m, nt: 'a[%d:%d]' % ((m * 5 + nt) * 4, (m * 5 + nt) * 4 + 3)
        srd(a, 12, 6, 2048 * 1280)
        for i in range(80): a('v_mov_b32 %s, 0' % v(AC + i))
        tmp = [None, 8, 15, 1]
        for m in range(1, 4): a('v_add_u32 %s, 0xf000, %s' % (v(tmp[m]), v(8 + m)))
        a('s_waitcnt vmcnt(27)')
        stamp(a, 1, 0)
        for nt in range(5):
            for m in range(4):
                a('v_mfma_f32_16x16x32_bf16 %s, %s, %s, 0' % (ag(m, nt), Bq(0, nt), Aq(0, m)))
            a(ldB(0, nt))
        for m in range(4): a(ldA(0, m))
        for x in adv: a(x)
        for nt in range(5):
            for m in range(1, 4):
                a('ds_write_b128 %s, %s offset:%d' % (v(tmp[m]), ag(m, nt), nt * 1024))
        a('s_mul_i32 s25, s3, 15360')
        a('s_add_u32 s25, s25, 0xf000')
        a('v_add_u32 v13, s25, v2')
        a('L2_loop:')
        for q in (1, 2, 3, 0): step(q, True, 27)
        a('s_sub_u32 s21, s21, 1')
        a('s_cmp_lg_u32 s21, 0')
        a('s_cbranch_scc1 L2_loop')
        a('s_waitcnt lgkmcnt(0)')
        a('s_barrier')
        step(1, False, 27)
        step(2, False, 18)
        for i in range(15): a('ds_read_b128 %s, v13 offset:%d' % (v(P + 4 * i, 4), i * 1024))
        step(3, False, 9)
        a('s_waitcnt lgkmcnt(0)')
        for j in (1, 2):
            for i in range(10): a('v_pk_add_f32 %s, %s, %s' % (v(P + 2 * i, 2), v(P + 2 * i, 2), v(P + 20 * j + 2 * i, 2)))
        for i in range(20): a('v_accvgpr_read_b32 %s, a%d' % (v(P + 20 + i), i))
        for i in range(10): a('v_pk_add_f32 %s, %s, %s' % (v(P + 2 * i, 2), v(P + 2 * i, 2), v(P + 20 + 2 * i, 2)))
        for i in range(10): a('v_pk_mul_f32 %s, %s, v[14:15] op_sel_hi:[1,0]' % (v(P + 2 * i, 2), v(P + 2 * i, 2)))
        step(0, False, 0)
    elif cfg.e2:
        T = 24
        srd(a, 12, 6, 2048 * 1280)
        for i in range(80): a('v_mov_b32 %s, 0' % v(AC + i))
        a('s_mul_i32 s25, s3, 15360')
        a('v_add_u32 v8, s25, v2')
        a('s_cmp_eq_u32 s3, 1')
        a('s_cselect_b32 s28, 5120, 0')
        a('s_cmp_eq_u32 s3, 3')
        a('s_cselect_b32 s29, 0, 5120')
        a('s_add_u32 s29, s29, 5120')
        a('s_mul_i32 s30, s3, 5120')
        a('s_sub_u32 s30, s30, 5120')
        a('s_mul_i32 s25, s18, 160')
        a('v_mul_u32_u24 v12, 0x500, v12')
        a('v_lshrrev_b32 v1, 4, v0')
        a('v_lshl_add_u32 v0, v1, 3, v12')
        a('v_lshl_add_u32 v12, v1, 4, v12')
        if cfg.prof: a('s_waitcnt vmcnt(27)')
        stamp(a, 1, 0)
        a('L2_loop:')
        for q in range(4): step(q, True, 27)
        a('s_sub_u32 s21, s21, 1')
        a('s_cmp_lg_u32 s21, 0')
        a('s_cbranch_scc1 L2_loop')
        a('v_sub_f32 v15, 1.0, v14')
        def last():
            a('s_waitcnt vmcnt(0)')
            order = [(m, nt) for m in (1, 2, 3, 0) for nt in range(5)]
            for i, (m, nt) in enumerate(order):
                A = v(accr(m, nt), 4)
                a('v_mfma_f32_16x16x32_bf16 %s, %s, %s, %s' % (A, Bq(3, nt), Aq(3, m), A))
                if i >= 5:
                    m2, n2 = order[i - 5]
                    a('ds_write_b128 %s, %s offset:%d' % (v(8 + m2), v(accr(m2, n2), 4), n2 * 1024))
        def fin():
            for i in range(10):
                a('v_cvt_pk_bf16_f32 %s, %s, %s' % (v(T + 20 + i), v(T + 2 * i), v(T + 2 * i + 1)))
            a('buffer_store_dwordx4 %s, v12, s[12:15], s25 offen' % v(T + 20, 4) + stp(cfg.k2st))
            a('buffer_store_dwordx4 %s, v12, s[12:15], s25 offen offset:64' % v(T + 24, 4) + stp(cfg.k2st))
            a('buffer_store_dwordx2 %s, v0, s[12:15], s25 offen offset:128' % v(T + 28, 2) + stp(cfg.k2st))
        padd = lambda d, x: [a('v_pk_add_f32 %s, %s, %s' % (v(d + 2 * i, 2), v(d + 2 * i, 2), v(x + 2 * i, 2))) for i in range(10)]
        pm1 = lambda: [a('v_pk_mul_f32 %s, %s, v[14:15] op_sel:[0,1] op_sel_hi:[1,1]' % (v(T + 2 * i, 2), v(T + 2 * i, 2))) for i in range(10)]
        pfg = lambda x: [a('v_pk_fma_f32 %s, %s, v[14:15], %s op_sel_hi:[1,0,1]' % (v(T + 2 * i, 2), v(x + 2 * i, 2), v(T + 2 * i, 2))) for i in range(10)]
        step(0, False, 27)
        step(1, False, 18)
        a('s_cmp_eq_u32 s3, 0')
        a('s_cbranch_scc0 L2_h')
        if cfg.ba == 3: step(2, False, 9)
        a('s_barrier')
        for i in range(15): a('ds_read_b128 %s, v8 offset:%d' % (v(T + 4 * i, 4), i * 1024))
        if cfg.ba == 2: step(2, False, 9)
        a('s_waitcnt lgkmcnt(0)')
        padd(T, T + 20); padd(T, T + 40); pm1()
        last()
        stamp(a, 2, 0)
        a('s_waitcnt lgkmcnt(0)')
        a('s_barrier')
        pfg(AC)
        fin()
        a('s_branch L2_done')
        a('L2_h:')
        step(2, False, 9)
        a('v_add_u32 v4, s28, v8')
        a('v_add_u32 v5, s29, v8')
        a('v_add_u32 v6, s30, v8')
        last()
        stamp(a, 2, 0)
        a('s_waitcnt lgkmcnt(0)')
        a('s_barrier')
        for i in range(10): a('ds_read_b128 %s, %s offset:%d' % (v(T + 4 * i, 4), v(4 + i // 5), (i % 5) * 1024))
        a('s_waitcnt lgkmcnt(0)')
        padd(T, T + 20); padd(T, AC); pm1()
        a('s_barrier')
        for i in range(5): a('ds_read_b128 %s, v6 offset:%d' % (v(T + 40 + 4 * i, 4), i * 1024))
        for i in range(5):
            a('s_waitcnt lgkmcnt(%d)' % (4 - i))
            for j in (2 * i, 2 * i + 1):
                a('v_pk_fma_f32 %s, %s, v[14:15], %s op_sel_hi:[1,0,1]' % (v(T + 2 * j, 2), v(T + 40 + 2 * j, 2), v(T + 2 * j, 2)))
        fin()
        a('L2_done:')
        stamp(a, 1, 3)
        if cfg.prof: a('s_waitcnt vmcnt(0)'); a('v_mbcnt_lo_u32_b32 v0, -1, 0'); a('v_mbcnt_hi_u32_b32 v0, -1, v0')
        stamp_flush(a, 1, 4)
        a('L2_end:')
        a('s_endpgm')
        return AC + 80, 0
    elif D0 == D1:
        srd(a, 12, 6, 2048 * 1280)
        for i in range(80): a('v_mov_b32 %s, 0' % v(AC + i))
        body(D0, '', 20 if 20 % D0 == 0 else 16)
    else:
        a('s_cmp_eq_u32 s3, 0')
        a('s_cbranch_scc0 L2_w')
        fill(Dm, D0)
        for i in range(80): a('v_mov_b32 %s, 0' % v(AC + i))
        body(D0, 'o', 20)
        a('s_branch L2_join')
        a('L2_w:')
        fill(Dm, D1)
        for i in range(80): a('v_mov_b32 %s, 0' % v(AC + i))
        body(D1, 'h', 16)
        a('L2_join:')
        srd(a, 12, 6, 2048 * 1280)
    stamp(a, 2, 0)
    for m in range(1, 4):
        for nt in range(5):
            a('ds_write_b128 %s, %s offset:%d' % (v(8 + m), v(accr(m, nt), 4), nt * 1024))
    a('v_sub_f32 v15, 1.0, v14')
    for m in range(4):
        a('s_cmp_eq_u32 s3, %d' % m)
        a('s_cselect_b64 vcc, -1, 0')
        a('v_cndmask_b32 %s, v15, v14, vcc' % v(16 + 2 * m))
    a('s_mul_i32 s25, s3, 15360')
    a('v_add_u32 v8, s25, v2')
    a('s_mul_i32 s25, s18, 160')
    a('v_mul_u32_u24 v12, 0x500, v12')
    a('v_lshrrev_b32 v13, 4, v0')
    a('v_lshl_add_u32 v9, v13, 3, v12')
    a('v_lshl_add_u32 v12, v13, 4, v12')
    for i in range(10):
        A = AC + 2 * i
        if cfg.bal: a('v_pk_fma_f32 %s, %s, v[16:17], %s op_sel_hi:[1,0,1]' % (v(A, 2), v(A, 2), v(P + 2 * i, 2)))
        else: a('v_pk_mul_f32 %s, %s, v[16:17] op_sel_hi:[1,0]' % (v(A, 2), v(A, 2)))
    a('s_waitcnt lgkmcnt(0)')
    a('s_barrier')
    for m in range(1, 4):
        for nt in range(5):
            a('ds_read_b128 %s, v8 offset:%d' % (v(accr(m, nt), 4), ((m - 1) * 5 + nt) * 1024))
    for m in range(1, 4):
        a('s_waitcnt lgkmcnt(%d)' % (5 * (3 - m)))
        for i in range(10):
            A = AC + 2 * i
            a('v_pk_fma_f32 %s, %s, %s, %s op_sel_hi:[1,0,1]' % (v(A, 2), v(A + 20 * m, 2), v(16 + 2 * m, 2), v(A, 2)))
    for i in range(10):
        a('v_cvt_pk_bf16_f32 %s, %s, %s' % (v(24 + i), v(AC + 2 * i), v(AC + 2 * i + 1)))
    a('buffer_store_dwordx4 v[24:27], v12, s[12:15], s25 offen' + stp(cfg.k2st))
    a('buffer_store_dwordx4 v[28:31], v12, s[12:15], s25 offen offset:64' + stp(cfg.k2st))
    a('buffer_store_dwordx2 v[32:33], v9, s[12:15], s25 offen offset:128' + stp(cfg.k2st))
    if cfg.prof: a('s_waitcnt vmcnt(0)')
    stamp_flush(a, 1, 4)
    a('L2_end:')
    a('s_endpgm')
    return AC + 80, 80 if cfg.bal else 36 * max(0, max(D0, D1) - D)

def desc(name, nv, na=0):
    nv = (nv + 7) // 8 * 8
    return '''.p2align 6
.amdhsa_kernel %s
  .amdhsa_next_free_vgpr %d
  .amdhsa_next_free_sgpr 102
  .amdhsa_accum_offset %d
  .amdhsa_group_segment_fixed_size 0
  .amdhsa_kernarg_size 80
  .amdhsa_user_sgpr_count 2
  .amdhsa_user_sgpr_kernarg_segment_ptr 1
  .amdhsa_system_sgpr_workgroup_id_x 1
.end_amdhsa_kernel
''' % (name, nv + na, nv)

def align8(body):
    import subprocess, re, tempfile, os
    d = tempfile.mkdtemp()
    open(d + '/a.s', 'w').write('.amdgcn_target "amdgcn-amd-amdhsa--gfx950"\n.text\n' + re.sub(r'^\.p2align.*$', '', body, flags=re.M))
    subprocess.check_call(['clang', '-x', 'assembler', '-target', 'amdgcn-amd-amdhsa', '-mcpu=gfx950', '-c', d + '/a.s', '-o', d + '/a.o'])
    dis = subprocess.check_output(['llvm-objdump', '-d', d + '/a.o'], text=True)
    sizes = [4 * len(m.group(1).split()) for m in re.finditer(r'// [0-9A-F]+: ([0-9A-F ]+)', dis)]
    lines = body.split('\n')
    idx = [i for i, l in enumerate(lines) if l.startswith('    ')]
    assert len(idx) == len(sizes), (len(idx), len(sizes))
    size = dict(zip(idx, sizes))
    off = 0; run = []; np_ = nn = 0
    for i, l in enumerate(lines):
        if l.startswith('.p2align'): off = 0; run = []; continue
        if i not in size:
            continue
        if size[i] == 4:
            run.append((i, off)); off += 4
            continue
        if off % 8 and run:
            cand = [j for j, o in run if o % 8 == 0 and lines[j].split()[0].startswith('v_') and not lines[j].split()[0].startswith(('v_readfirstlane', 'v_fmac', 'v_dot2c'))]
            dead = [j for j, o in run if lines[j].split()[0] in ('s_endpgm', 's_branch')]
            k = idx.index(i); n8 = 0
            par = 0
            while k < len(idx) and n8 < 3:
                if size[idx[k]] == 8:
                    if par: break
                    n8 += 1
                else: par ^= 1
                k += 1
            if dead:
                lines[dead[-1]] += '\n    s_nop 0'; off += 4
            elif cand:
                j = cand[-1]; op = lines[j].split()[0]
                lines[j] = lines[j].replace(op, op + '_e64', 1); np_ += 1; off += 4
            elif n8 >= 3:
                j = run[0][0]
                lines[j] = '    s_nop 0\n' + lines[j]; nn += 1; off += 4
        off += 8; run = []
    print('align: promoted', np_, 'nops', nn)
    return '\n'.join(lines)

def main():
    for arg in sys.argv[2:]:
        k, val = arg.split('='); setattr(cfg, k, int(val))
    a = Asm()
    gen_k1(a)
    nv2 = gen_k2(a)
    body = a.finish()
    hdr = '''; gated mix of sliding-window dilated attention and ReLU FFN, two launches.
; launch 1: qkv projection + attention, FFN up projection + relu, weight re-layout + gate
; launch 2: output projections (wo, w2) and gated mix
; @launch kernel=%s grid=(256,1,1) block=(512,1,1) lds=%d
; @launch kernel=%s grid=(256,1,1) block=(256,1,1) lds=%d
.amdgcn_target "amdgcn-amd-amdhsa--gfx950"
.text
''' % (K1, 3 * SLOT, K2, [61440, 122880, 81920, 102400, 122880, 102400, 102400][cfg.bal])
    if cfg.align: body = align8(body)
    out = hdr + body + '.section .rodata,"a"\n' + desc(K1, 256) + desc(K2, *nv2)
    open(sys.argv[1], 'w').write(out)
    print('nops inserted:', a.nops, 'bytes', len(out))

main()
```

```python
import sys, math, struct
from asmlib import Asm, v, s

NAME = 'gated_mix__sliding_local_dilated__dense_activation_relu__prompt'
K1 = NAME + '_kernel'
K2 = 'gm_stage2_kernel'

WS_A = 0
WS_B = 0x900000
WS_G = 0xC00000
WS_SIZE = 0xC02000
RSTRIDE = 68 * 4096
NBSTRIDE = 68 * 5120
SLOT = 50176
XOFF = 33792
BAD = 0x40000000

class Cfg:
    ra = 1
    rb = 5
    rc = 3
    rd = 5
    prof = 0
    k2depth = 4
    k2prio = 1
    bal = 0
    gw = 0
    tb = 0
    w1p = 0
    pt = 0
    cw = 0
    tst = 0
    la = 0
    lb = 0
    sst = 0
    e2 = 0
    ba = 2
    d0 = 4
    d1 = 4
    pw = 35
    scr = 0
    pnt = 0
    pdel = 0
    ps = 0
    align = 1
    xcc = 0
    stm = 0
    str = 0
    stg = 0
    sel = -1
    sel0 = 0
    tpos = 100022222
    pf = 0
    pf0 = 1
    pf1 = 0
    pfo = 1
    pfx = 0
    rx = 0
    rmask = 15
    rsh = 0
    touch = 0
    lp = 0
    k2st = 0
    stpol = 1
cfg = Cfg()

def stp(p=None):
    return ['', ' sc1', ' sc0 sc1', ' nt', ' sc1 nt', ' sc0 sc1 nt', ' sc0'][cfg.stpol if p is None else p]

def f32(x):
    return '0x%08x' % struct.unpack('<I', struct.pack('<f', x))[0]

def srd(a, d, lo, size):
    a('s_mov_b32 %s, %s' % (s(d), s(lo)))
    a('s_mov_b32 %s, %s' % (s(d + 1), s(lo + 1)))
    a('s_mov_b32 %s, %d' % (s(d + 2), size))
    a('s_mov_b32 %s, 0x00020000' % s(d + 3))

PROF = 0xD00000
def stamp(a, i, alt=None):
    if alt is not None and alt != cfg.sst and not (cfg.sst == 3 and alt == 0 and i == 2): return
    if cfg.prof:
        a('s_memrealtime %s' % s(80 + 2 * i, 2))
        a('s_memtime %s' % s(72 + 2 * i, 2))
def stamp_flush(a, kern, wsreg, role=2):
    if not cfg.prof: return
    a('s_memrealtime s[86:87]')
    a('s_memtime s[78:79]')
    if cfg.prof == 3 and kern == 1:
        a('s_or_b32 s92, s2, s3')
        a('s_cmp_lg_u32 s92, 0')
        a('s_cbranch_scc1 L2_end')
        a('s_load_dwordx2 s[88:89], s[0:1], 64')
        a('s_mov_b32 s90, 256'); a('s_mov_b32 s91, 0x00020000')
        a('s_mov_b32 s92, s4'); a('s_mov_b32 s93, s5'); a('s_mov_b32 s94, 0x1000000'); a('s_mov_b32 s95, 0x00020000')
        a('s_mov_b32 s96, %d' % PROF)
        a('s_waitcnt lgkmcnt(0)')
        for j in range(4):
            a('v_add_u32 v1, %d, v0' % (64 * j))
            a('v_lshlrev_b32 v2, 9, v1')
            a('buffer_load_dwordx4 v[4:7], v2, s[92:95], s96 offen')
            a('buffer_load_dwordx4 v[8:11], v2, s[92:95], s96 offen offset:16')
            a('v_mov_b32 v3, 0')
            a('v_cmp_le_u32 vcc, 144, v1')
            a('v_cndmask_b32 v3, v3, 16, vcc')
            a('v_cmp_le_u32 vcc, 240, v1')
            a('v_cndmask_b32 v3, v3, 48, vcc')
            a('s_waitcnt vmcnt(0)')
            a('v_not_b32 v4, v4')
            for i in range(4):
                a('buffer_atomic_umax %s, v3, s[88:91], 0 offen offset:%d' % (v(4 + 2 * i), 4 * i))
            a('s_waitcnt vmcnt(0)')
        a('s_mov_b64 exec, 1')
        a('v_mov_b32 v0, 0')
        a('s_not_b32 s80, s80')
        for i in range(4):
            a('v_mov_b32 %s, %s' % (v(4 + i), s(80 + 2 * i)))
            a('buffer_atomic_umax %s, v0, s[88:91], 0 offen offset:%d' % (v(4 + i), role * 16 + 4 * i))
        if cfg.sel >= 0:
            a('s_waitcnt vmcnt(0)')
            a('v_mov_b32 v8, 0'); a('v_mov_b32 v9, 0')
            a('buffer_atomic_umax v8, v0, s[88:91], 0 offen offset:%d sc0' % (4 * cfg.sel0))
            a('buffer_atomic_umax v9, v0, s[88:91], 0 offen offset:%d sc0' % (4 * cfg.sel))
            a('s_waitcnt vmcnt(0)')
            a('v_readfirstlane_b32 s92, v8'); a('v_readfirstlane_b32 s93, v9')
            if cfg.sel0 % 4 == 0: a('s_not_b32 s92, s92')
            if cfg.sel % 4 == 0: a('s_not_b32 s93, s93')
            a('s_sub_u32 s92, s93, s92')
            a('s_min_u32 s92, s92, 5000')
            a('s_lshl_b32 s92, s92, 2')
            a('s_memrealtime s[94:95]')
            a('s_waitcnt lgkmcnt(0)')
            a('L2_spin:')
            a('s_memrealtime s[96:97]')
            a('s_waitcnt lgkmcnt(0)')
            a('s_sub_u32 s96, s96, s94')
            a('s_cmp_lt_u32 s96, s92')
            a('s_cbranch_scc1 L2_spin')
        return
    if cfg.prof == 2:
        a('s_load_dwordx2 s[88:89], s[0:1], 64')
        a('s_mov_b32 s90, 256'); a('s_mov_b32 s91, 0x00020000')
        a('s_waitcnt lgkmcnt(0)')
        a('s_mov_b64 exec, 1')
        a('v_mov_b32 v0, 0')
        a('s_not_b32 s80, s80')
        for i in range(4):
            a('v_mov_b32 %s, %s' % (v(4 + i), s(80 + 2 * i)))
            a('buffer_atomic_umax %s, v0, s[88:91], 0 offen offset:%d' % (v(4 + i), role * 16 + 4 * i))
        return
    if cfg.xcc:
        a('s_waitcnt lgkmcnt(0)')
        a('s_getreg_b32 s80, hwreg(HW_REG_XCC_ID, 0, 4)')
        a('s_sub_u32 s80, s80, s2'); a('s_and_b32 s80, s80, 7'); a('s_mul_i32 s80, s80, 100'); a('s_mov_b32 s82, s80')
    a('s_mov_b32 s88, %s' % s(wsreg)); a('s_mov_b32 s89, %s' % s(wsreg + 1))
    a('s_mov_b32 s90, 0x1000000'); a('s_mov_b32 s91, 0x00020000')
    a('s_lshl_b32 s92, s2, 3'); a('s_add_u32 s92, s92, s3'); a('s_lshl_b32 s92, s92, 6')
    a('s_add_u32 s92, s92, %d' % (PROF + kern * 256 * 8 * 64))
    a('s_waitcnt lgkmcnt(0)')
    if cfg.ps and role < 2 and kern == 0:
        a('v_writelane_b32 v254, s74, 0'); a('v_writelane_b32 v255, s72, 0')
        a('s_mov_b64 exec, 0xffff')
        a('v_mbcnt_lo_u32_b32 v0, -1, 0'); a('v_lshlrev_b32 v0, 3, v0')
        a('s_sub_u32 s93, s92, %d' % PROF); a('s_lshl_b32 s93, s93, 1'); a('s_add_u32 s93, s93, %d' % (PROF + 0x100000))
        a('buffer_store_dwordx2 v[254:255], v0, s[88:91], s93 offen')
    a('s_mov_b64 exec, 1')
    a('v_mov_b32 v0, 0')
    for i in range(8): a('v_mov_b32 %s, %s' % (v(4 + i), s(80 + i)))
    a('buffer_store_dwordx4 v[4:7], v0, s[88:91], s92 offen')
    a('buffer_store_dwordx4 v[8:11], v0, s[88:91], s92 offen offset:16')
    for i in range(8): a('v_mov_b32 %s, %s' % (v(12 + i), s(72 + i)))
    a('buffer_store_dwordx4 v[12:15], v0, s[88:91], s92 offen offset:32')
    a('buffer_store_dwordx4 v[16:19], v0, s[88:91], s92 offen offset:48')

def warm(a, tag, nl, end, sb=94):
    a('s_getpc_b64 %s' % s(sb, 2))
    a('Lw_%s:' % tag)
    a('s_mul_i32 %s, s3, %d' % (s(sb + 2), nl * 128))
    a('s_min_u32 %s, %s, %s-Lw_%s-%d' % (s(sb + 2), s(sb + 2), end, tag, nl * 128))
    a('s_add_u32 %s, %s, %s' % (s(sb), s(sb), s(sb + 2)))
    a('s_addc_u32 %s, %s, 0' % (s(sb + 1), s(sb + 1)))
    for i in range(nl): a('s_load_dword %s, %s, %d' % (s(sb + 3), s(sb, 2), i * 128))

def interleave(a, mf, rd, first=1, per=1):
    rd = list(rd)
    for i, m in enumerate(mf):
        a(m)
        for _ in range(per):
            if rd: a(rd.pop(0))
    for x in rd: a(x)

SETS = (16, 64)
ACC = 112
def acc(t, n): return ACC + (t * 8 + n) * 4
VXA0, VXA1, VWM, VWQ, VWV = 4, 5, 6, 7, 8

def k1_reads(att, st, ks):
    base = SETS[st]
    xa = VXA1 if ks else VXA0
    r = []
    xs = ['ds_read_b128 %s, %s offset:%d' % (v(base + 4 * t, 4), v(xa), t * 2048) for t in range(4)]
    ws = []
    for n in range(8):
        if att:
            reg, off = [(VWM, 0), (VWM, 40), (VWM, 160), (VWM, 200), (VWQ, 0), (VWM, 320), (VWM, 360), (VWV, 0)][n]
        else:
            reg, off = VWM, 32 * n
        for h in range(2):
            ws.append('ds_read_b64_tr_b16 %s, %s offset:%d' % (v(base + 16 + 4 * n + 2 * h, 2), v(reg), off + ks * 16896 + h * 512))
    r = ws[:2] + xs + ws[2:]
    return r

def k1_mfmas(att, st):
    base = SETS[st]
    m = []
    for n in range(8):
        for t in range(4):
            W = v(base + 16 + 4 * n, 4); X = v(base + 4 * t, 4); A = v(acc(t, n), 4)
            if att and n >= 5:
                m.append('v_mfma_f32_16x16x32_bf16 %s, %s, %s, %s' % (A, X, W, A))
            else:
                m.append('v_mfma_f32_16x16x32_bf16 %s, %s, %s, %s' % (A, W, X, A))
    return m

def k1_mainloop(a, att, tag):
    a('s_barrier')
    stamp(a, 1)
    for x in k1_reads(att, 0, 0): a(x)
    a('s_mov_b32 s48, 0')
    a('s_mov_b32 s49, 0')
    a('s_waitcnt lgkmcnt(0)')
    a('L_%s_loop:' % tag)
    pre = ['s_add_u32 s49, s49, 1\ns_cmp_eq_u32 s49, 3', 's_cselect_b32 s50, s51, s52\ns_cselect_b32 s49, 0, s49']
    adv = ['v_add_u32 %s, s50, %s' % (v(r), v(r)) for r in ([VXA0, VXA1, VWM, VWQ, VWV] if att else [VXA0, VXA1, VWM])]
    interleave(a, k1_mfmas(att, 0), k1_reads(att, 1, 1) + pre + adv)
    a('s_waitcnt lgkmcnt(0)')
    if cfg.ps: a('s_memtime s[96:97]')
    a('s_barrier')
    if cfg.ps: a('s_memtime s[94:95]')
    interleave(a, k1_mfmas(att, 1), k1_reads(att, 0, 0) + ['s_add_u32 s48, s48, 1\ns_cmp_lt_u32 s48, 10'])
    a('s_waitcnt lgkmcnt(0)')
    if cfg.ps:
        a('s_mov_b32 m0, s48'); a('s_nop 3'); a('v_writelane_b32 v254, s94, m0'); a('v_writelane_b32 v255, s96, m0')
    a('s_cbranch_scc1 L_%s_loop' % tag)
    stamp(a, 2)

def tok_addr(a, dst, vj, tmp, vloc):
    a('v_lshrrev_b32 %s, 5, %s' % (v(tmp), v(vj)))
    a('v_mul_u32_u24 %s, s54, %s' % (v(dst), v(tmp)))
    a('v_and_b32 %s, 16, %s' % (v(tmp), v(vj)))
    a('v_lshl_add_u32 %s, %s, 7, %s' % (v(dst), v(tmp), v(dst)))
    a('v_and_b32 %s, 15, %s' % (v(tmp), v(vj)))
    a('v_lshl_add_u32 %s, %s, 4, %s' % (v(dst), v(tmp), v(dst)))
    a('v_cmp_gt_u32 vcc, 0x400, %s' % v(vj))
    a('v_cmp_le_u32 s[56:57], s53, %s' % v(vloc))
    a('s_and_b64 vcc, vcc, s[56:57]')
    a('v_mov_b32 %s, %s' % (v(tmp), hex(BAD)))
    a('v_cndmask_b32 %s, %s, %s, vcc' % (v(dst), v(tmp), v(dst)))

def touch_setup(a, wreg, va, vd):
    srd(a, 56, 6, 640 * 3840)
    srd(a, 60, 12, 640 * 3072)
    a('s_lshl_b32 s64, s33, 7')
    a('s_lshl_b32 s65, s34, 2')
    a('s_add_u32 s64, s64, s65')
    a('s_add_u32 s64, s64, %s' % wreg)
    if cfg.touch >= 3:
        sh = 7 if cfg.touch in (3, 5) else 6
        per = 128 >> sh
        a('v_lshlrev_b32 %s, %d, v0' % (v(va), sh))
        a('v_mov_b32 %s, %s' % (v(va + 5), hex(BAD)))
        for i, (nl, base) in enumerate(((20, 0), (17, 64 * 3840), (14, 64 * 3072))):
            a('s_mul_i32 s65, s64, %d' % (nl * 128))
            a('s_add_u32 s65, s65, %d' % base)
            a('v_add_u32 %s, s65, %s' % (v(va + 1 + i), v(va)))
            a('v_cmp_gt_u32 vcc, %d, v0' % (nl * per))
            a('v_cndmask_b32 %s, %s, %s, vcc' % (v(va + 1 + i), v(va + 5), v(va + 1 + i)))
        L = lambda i, sr: 'buffer_load_dword %s, %s, %s, 0 offen' % (v(vd + i), v(va + 1 + i), sr)
        return [L(0, 's[20:23]'), L(1, 's[56:59]'), L(2, 's[60:63]')], []
    a('s_lshl_b32 s65, s64, 10')
    a('v_lshl_add_u32 %s, v0, 4, s65' % v(va))
    a('v_add_u32 %s, %d, %s' % (v(va + 1), 64 * 3840 + (2 << 20), v(va)))
    a('v_add_u32 %s, %d, %s' % (v(va + 2), 64 * 3072 + (1 << 20), v(va)))
    a('s_mul_i32 s65, s64, 2560')
    a('v_lshrrev_b32 %s, 5, v0' % v(va + 3))
    a('v_mul_u32_u24 %s, 0x500, %s' % (v(va + 3), v(va + 3)))
    a('v_and_b32 %s, 31, v0' % v(va + 4))
    a('v_lshl_add_u32 %s, %s, 4, %s' % (v(va + 3), v(va + 4), v(va + 3)))
    a('v_lshrrev_b32 %s, 3, v0' % v(va + 4))
    a('v_mul_u32_u24 %s, 0x500, %s' % (v(va + 4), v(va + 4)))
    a('v_and_b32 %s, 7, v0' % v(va + 5))
    a('v_lshl_add_u32 %s, %s, 4, %s' % (v(va + 4), v(va + 5), v(va + 4)))
    a('v_mov_b32 %s, %s' % (v(va + 5), hex(BAD)))
    a('v_cmp_gt_u32 vcc, 16, v0')
    a('v_cndmask_b32 %s, %s, %s, vcc' % (v(va + 4), v(va + 5), v(va + 4)))
    a('s_mov_b32 s66, %d' % (64 * 3840))
    a('s_mov_b32 s67, %d' % (64 * 3072))
    a('s_mov_b32 s68, %d' % (64 * 3840 + (1 << 20)))
    L = lambda i, r, sr, so, off: 'buffer_load_dwordx4 %s, %s, %s, %s offen offset:%d' % (v(vd + 4 * i, 4), v(r), sr, so, off)
    ta = [L(0, va + 3, 's[20:23]', 's65', 128), L(1, va, 's[56:59]', 's66', 0), L(2, va, 's[60:63]', 's67', 0)]
    tb = [L(3, va + 3, 's[20:23]', 's65', 640), L(4, va, 's[56:59]', 's68', 0), L(5, va + 2, 's[60:63]', '0', 0),
          L(6, va + 4, 's[20:23]', 's65', 1152), L(7, va + 1, 's[56:59]', '0', 0)]
    return ta, tb

def gen_k1(a):
    a('.globl %s' % K1); a('.p2align 8'); a('.type %s,@function' % K1)
    a('%s:' % K1)
    a('s_cmp_ge_u32 s2, 256')
    a('s_cbranch_scc1 L1_end')
    stamp(a, 0); stamp(a, 1); stamp(a, 2)
    a('s_load_dwordx4 s[4:7], s[0:1], 0')
    a('s_load_dwordx2 s[8:9], s[0:1], 16')
    a('s_load_dwordx4 s[12:15], s[0:1], 32')
    a('s_load_dwordx2 s[10:11], s[0:1], 48')
    a('s_load_dwordx2 s[16:17], s[0:1], 72')
    a('v_lshrrev_b32 v1, 6, v0')
    a('v_and_b32 v0, 63, v0')
    a('v_readfirstlane_b32 s3, v1')
    if cfg.scr & 1:
        a('s_lshr_b32 s33, s2, 5'); a('s_and_b32 s34, s2, 31')
    else:
        a('s_and_b32 s33, s2, 7')
        a('s_lshr_b32 s34, s2, 3')
    a('s_lshr_b32 s35, s33, 2')
    a('s_and_b32 s36, s33, 3')
    a('s_cmp_ge_u32 s34, 30')
    a('s_cbranch_scc1 L1_prep')
    a('s_cmp_ge_u32 s34, 18')
    a('s_cbranch_scc1 L1_ffn_setup')
    a('s_and_b32 s38, s34, 1')
    a('s_lshl_b32 s46, s36, 1')
    a('s_add_u32 s38, s38, s46')
    a('s_mul_i32 s37, s35, 9')
    a('s_lshr_b32 s46, s34, 1')
    a('s_add_u32 s37, s37, s46')
    a('s_and_b32 s45, s46, %d' % cfg.rmask)
    a('s_mul_i32 s45, s45, %d' % cfg.ra)
    if cfg.rsh: a('s_lshr_b32 s45, s45, %d' % cfg.rsh)
    a('s_and_b32 s47, s38, 1')
    a('s_mul_i32 s47, s47, %d' % cfg.rb)
    a('s_add_u32 s45, s45, s47')
    a('s_mul_i32 s39, s37, 114')
    a('s_movk_i32 s40, 3840')
    a('s_movk_i32 s41, 29')
    a('s_movk_i32 s42, %d' % (0 if cfg.tst & 16 else 1120))
    a('s_mul_i32 s43, s38, %d' % (512 if cfg.tst & 16 else 160))
    a('s_mov_b32 s44, 0')
    a('s_waitcnt lgkmcnt(0)')
    srd(a, 24, 6, 640 * 3840)
    a('s_branch L1_common')
    a('L1_ffn_setup:')
    a('s_mul_i32 s46, s36, 12')
    a('s_add_u32 s46, s46, s34')
    a('s_sub_u32 s46, s46, 18')
    a('s_lshr_b32 s38, s46, 3')
    a('s_and_b32 s46, s46, 7')
    a('s_lshl_b32 s37, s35, 3')
    a('s_add_u32 s37, s37, s46')
    a('s_and_b32 s45, s46, %d' % cfg.rmask)
    a('s_mul_i32 s45, s45, %d' % cfg.ra)
    if cfg.rsh: a('s_lshr_b32 s45, s45, %d' % cfg.rsh)
    a('s_and_b32 s47, s38, 1')
    a('s_mul_i32 s47, s47, %d' % cfg.rd)
    a('s_add_u32 s45, s45, s47')
    a('s_add_u32 s45, s45, %d' % cfg.rc)
    a('s_lshl_b32 s39, s37, 7')
    a('s_movk_i32 s40, 3072')
    a('s_movk_i32 s41, 31')
    a('s_mov_b32 s42, 0')
    a('s_lshl_b32 s43, s38, 9')
    a('s_mov_b32 s44, 1')
    a('s_waitcnt lgkmcnt(0)')
    srd(a, 24, 12, 640 * 3072)
    a('L1_common:')
    srd(a, 20, 4, 2048 * 1280)
    a('s_cmp_lt_u32 s3, 4')
    a('s_cbranch_scc1 L1_consumer')
    a('s_setprio 3')
    a('s_sub_u32 s46, s3, 4')
    a('v_lshrrev_b32 v2, 3, v0')
    a('v_lshrrev_b32 v3, 4, v0')
    a('v_and_b32 v4, 7, v0')
    a('s_lshr_b32 s47, s46, 1')
    a('s_add_u32 s47, s47, s39')
    a('s_and_b32 s48, s46, 1')
    a('s_lshl_b32 s48, s48, 6')
    a('s_add_u32 s47, s47, s48')
    a('v_lshl_add_u32 v5, v2, 1, s47')
    a('v_mul_u32_u24 v5, 0x500, v5')
    a('v_xor_b32 v4, v4, v3')
    a('v_lshl_add_u32 v16, v4, 4, v5')
    a('v_xor_b32 v4, 4, v4')
    a('v_lshl_add_u32 v17, v4, 4, v5')
    a('v_add_u32 v17, %d, v17' % (16 * 1280))
    a('v_add_u32 v18, %d, v16' % (32 * 1280))
    a('v_add_u32 v19, %d, v17' % (32 * 1280))
    a('v_and_b32 v1, 31, v0')
    a('v_min_u32 v1, s41, v1')
    a('v_mul_u32_u24 v2, 13, v1')
    a('v_lshrrev_b32 v2, 7, v2')
    a('v_lshlrev_b32 v1, 4, v1')
    a('v_mad_u32_u24 v1, v2, s42, v1')
    a('v_add_u32 v1, s43, v1')
    a('v_lshrrev_b32 v2, 5, v0')
    a('v_lshlrev_b32 v2, 2, v2')
    a('s_lshl_b32 s47, s46, 4')
    a('v_add_u32 v2, s47, v2')
    a('v_mad_u32_u24 v8, v2, s40, v1')
    a('s_lshl_b32 s47, s40, 3')
    a('v_add_u32 v12, s47, v8')
    for e in range(1, 4):
        a('v_add_u32 %s, s40, %s' % (v(8 + e), v(7 + e)))
        a('v_add_u32 %s, s40, %s' % (v(12 + e), v(11 + e)))
    if cfg.rx:
        a('s_mul_i32 s47, s33, %d' % cfg.rx)
        a('s_lshr_b32 s47, s47, 2')
        a('s_add_u32 s45, s45, s47')
    a('s_mul_i32 s47, s45, 205')
    a('s_lshr_b32 s47, s47, 11')
    a('s_mul_i32 s47, s47, 10')
    a('s_sub_u32 s45, s45, s47')
    a('s_mov_b32 s48, 0')
    a('s_mov_b32 s49, 0')
    a('s_mul_i32 s50, s46, %d' % (8 * 1056))
    a('s_lshl_b32 s51, s46, 12')
    a('s_add_u32 s51, s51, %d' % XOFF)
    a('s_lshl_b32 s53, s40, 6')
    a('s_movk_i32 s55, 1024')
    a('s_movk_i32 s47, 1056')
    def ld_stage(first=False):
        a('s_mul_i32 s52, s45, s53')
        a('s_lshl_b32 s54, s45, 7')
        a('s_add_u32 m0, s49, s51')
        for e in range(4):
            if e: a('s_add_u32 m0, m0, s55')
            a('buffer_load_dwordx4 %s, s[20:23], s54 offen lds' % v(16 + e))
        a('s_add_u32 m0, s49, s50')
        for e in range(8):
            if e: a('s_add_u32 m0, m0, s47')
            a('buffer_load_dwordx4 %s, s[24:27], s52 offen lds' % v(8 + e))
        a('s_add_u32 s45, s45, 1')
        a('s_cmp_eq_u32 s45, 10')
        a('s_cselect_b32 s45, 0, s45')
        a('s_add_u32 s49, s49, %d' % SLOT)
        a('s_cmp_eq_u32 s49, %d' % (3 * SLOT))
        a('s_cselect_b32 s49, 0, s49')
    if not cfg.touch:
        a('L1_ld_loop:')
        a('s_cmp_lt_u32 s48, 2')
        a('s_cbranch_scc1 L1_ld_nowait')
        a('s_waitcnt vmcnt(12)')
        a('s_barrier')
        a('L1_ld_nowait:')
        ld_stage()
        a('s_add_u32 s48, s48, 1')
        a('s_cmp_lt_u32 s48, 10')
        a('s_cbranch_scc1 L1_ld_loop')
        a('s_waitcnt vmcnt(12)')
    else:
        ld_stage()
        tl = []
        if cfg.touch:
            ta, tb = touch_setup(a, 's46', 32, 40)
            tl = list(zip([int(c) for c in str(cfg.tpos)[1:]], ta + tb))
        seq = []
        for j in range(10):
            if j >= 2: seq.append(('w', j - 2))
            seq.append(('d', j))
            seq += [('t', x) for p, x in tl if p == j]
        seq.append(('w', 8))
        last = max([p for p, x in tl] + [1]) + 3
        for i, x in enumerate(seq):
            if i == 0: continue
            if x[0] == 'd':
                ld_stage()
                if x[1] == last: break
            elif x[0] == 't': a(x[1])
            else:
                pos = seq.index(('d', x[1]))
                cnt = sum(12 if y[0] == 'd' else 1 if y[0] == 't' else 0 for y in seq[pos + 1:i])
                if x[1] + 2 == last:
                    assert cnt == 12
                    a('s_mov_b32 s48, %d' % last)
                    a('s_waitcnt vmcnt(12)')
                    a('L1_ld_loop:')
                else:
                    a('s_waitcnt vmcnt(%d)' % cnt)
                if cfg.lp and x[1] == 0: stamp(a, 1)
                if cfg.lp and x[1] == 1: stamp(a, 2)
                a('s_barrier')
        a('s_add_u32 s48, s48, 1')
        a('s_cmp_lt_u32 s48, 10')
        a('s_waitcnt vmcnt(12)')
        a('s_cbranch_scc1 L1_ld_loop')
    if not cfg.lp: stamp(a, 1)
    a('s_cmp_eq_u32 s44, 1')
    a('s_cselect_b32 s47, s38, 4')
    a('s_cmp_lt_u32 s47, 4')
    a('s_barrier')
    a('s_cbranch_scc1 L1_ld_gate')
    a('s_waitcnt vmcnt(0)')
    a('s_barrier')
    stamp_flush(a, 0, 16)
    a('s_endpgm')
    gen_gate(a)
    a('L1_consumer:')
    srd(a, 28, 16, WS_SIZE)
    a('s_and_b32 s46, s3, 1')
    a('s_lshr_b32 s47, s3, 1')
    a('v_lshrrev_b32 v1, 4, v0')
    a('v_and_b32 v2, 15, v0')
    a('v_bfe_u32 v3, v2, 1, 3')
    a('v_xor_b32 v3, v3, v1')
    a('v_lshlrev_b32 v3, 4, v3')
    a('v_lshl_add_u32 v3, v2, 7, v3')
    a('s_lshl_b32 s48, s46, 13')
    a('s_add_u32 s48, s48, %d' % XOFF)
    a('v_add_u32 %s, s48, v3' % v(VXA0))
    a('v_xor_b32 %s, 64, %s' % (v(VXA1), v(VXA0)))
    a('v_lshrrev_b32 v3, 2, v0')
    a('v_mul_u32_u24 v3, 0x420, v3')
    a('v_and_b32 v15, 3, v0')
    a('v_lshl_add_u32 %s, v15, 3, v3' % v(VWM))
    a('s_mov_b32 s51, %d' % (-2 * SLOT & 0xffffffff))
    a('s_mov_b32 s52, %d' % SLOT)
    for i in range(128): a('v_mov_b32 %s, 0' % v(ACC + i))
    a('s_cmp_eq_u32 s44, 1')
    a('s_cbranch_scc1 L1_ffn')
    if cfg.cw & 2: warm(a, 'att', 10, 'L1_ffn')
    a('s_mul_i32 s48, s47, 80')
    a('v_add_u32 %s, s48, %s' % (v(VWM), v(VWM)))
    a('v_add_u32 v3, s48, v3')
    a('v_and_b32 v16, 1, v15')
    a('v_mad_u32_u24 v3, v16, 40, v3')
    a('v_add_u32 %s, 352, v3' % v(VWV))
    a('v_lshrrev_b32 v16, 1, v15')
    a('v_mul_u32_u24 v16, 160, v16')
    a('v_add3_u32 %s, v3, v16, 32' % v(VWQ))
    a('v_lshlrev_b32 v16, 2, v1')
    a('v_sub_u32 v16, v2, v16')
    a('v_mov_b32 v17, %s' % f32(-1e30))
    for r in range(4):
        a('v_subrev_u32 v18, %d, v16' % r)
        a('v_cmp_gt_u32 vcc, 8, v18')
        a('v_cndmask_b32 %s, v17, 0, vcc' % v(240 + r))
        a('v_cmp_gt_i32 vcc, -8, v18')
        a('v_cndmask_b32 %s, v17, 0, vcc' % v(244 + r))
        a('v_cmp_le_i32 vcc, 0, v18')
        a('v_cndmask_b32 %s, 0, -1, vcc' % v(20 + r))
        a('v_mov_b32 %s, 0x3f803f80' % v(250 + r))
    a('v_mov_b32 v17, 0xffff')
    a('v_bfi_b32 v248, v17, v20, v21')
    a('v_bfi_b32 v249, v17, v22, v23')
    a('s_mul_i32 s55, s37, 57')
    a('s_cmp_eq_u32 s37, 0')
    a('s_cselect_b32 s53, 0, 7')
    a('s_mov_b32 s54, %d' % RSTRIDE)
    a('s_lshl_b32 s58, s38, 1')
    a('s_add_u32 s58, s58, s47')
    a('s_lshl_b32 s58, s58, 12')
    a('s_lshl_b32 s59, s46, 10')
    a('s_add_u32 s58, s58, s59')
    a('v_lshlrev_b32 v19, 8, v1')
    for t in range(4):
        a('v_add_u32 v16, %d, v2' % (16 * t))
        a('v_add_u32 v17, s55, v16')
        tok_addr(a, 9 + t, 17, 18, 16)
        a('v_add_u32 %s, v19, %s' % (v(9 + t), v(9 + t)))
    a('s_lshr_b32 s60, s38, 1')
    a('s_add_u32 s60, s60, 16')
    a('s_lshl_b32 s60, s60, 12')
    a('s_add_u32 s59, s59, s60')
    a('s_and_b32 s60, s38, 1')
    a('s_lshl_b32 s60, s60, 1')
    a('s_add_u32 s60, s60, s47')
    a('s_lshl_b32 s60, s60, 8')
    a('s_add_u32 s59, s59, s60')
    a('v_and_b32 v19, 1, v1')
    a('v_lshlrev_b32 v19, 3, v19')
    a('v_lshrrev_b32 v20, 1, v1')
    a('v_lshl_add_u32 v20, v20, 4, v2')
    for u in range(2):
        a('v_add_u32 v16, %d, v20' % (32 * u))
        a('v_add_u32 v17, s55, v16')
        tok_addr(a, 13 + u, 17, 18, 16)
        a('v_add_u32 %s, v19, %s' % (v(13 + u), v(13 + u)))
    for g in range(4):
        m = 0xffff << (16 * g)
        a('s_mov_b32 %s, 0x%x' % (s(64 + 2 * g), m & 0xffffffff))
        a('s_mov_b32 %s, 0x%x' % (s(65 + 2 * g), m >> 32))
    cs = 20 ** -0.5 * math.log2(math.e)
    a('s_mov_b32 s62, %s' % f32(cs))
    a('s_mov_b32 s63, %s' % f32(-cs))
    if cfg.pt & 2:
        a('buffer_load_dword v254, v9, s[28:31], s58 offen')
        a('buffer_load_dword v255, v12, s[28:31], s58 offen')
    k1_mainloop(a, True, 'att')
    gen_attention(a)
    if cfg.prof: a('s_waitcnt vmcnt(0)')
    stamp_flush(a, 0, 16, 0)
    a('s_endpgm')
    a('L1_ffn:')
    if cfg.cw & 4: warm(a, 'ffn', 5, 'L1_prep')
    a('s_lshl_b32 s48, s47, 8')
    a('v_add_u32 %s, s48, %s' % (v(VWM), v(VWM)))
    a('v_lshlrev_b32 v9, 4, v0')
    a('s_mul_i32 s58, s37, %d' % (2 * RSTRIDE))
    a('s_lshl_b32 s59, s38, 3')
    a('s_lshl_b32 s60, s47, 2')
    a('s_add_u32 s59, s59, s60')
    a('s_add_u32 s59, s59, 20')
    a('s_lshl_b32 s59, s59, 12')
    a('s_add_u32 s58, s58, s59')
    a('s_lshl_b32 s59, s46, 10')
    a('s_add_u32 s58, s58, s59')
    if cfg.pt & 4:
        a('s_add_u32 s59, s58, %d' % RSTRIDE)
        a('s_mov_b64 exec, 1')
        a('buffer_load_dword v254, v9, s[28:31], s58 offen')
        a('buffer_load_dword v255, v9, s[28:31], s59 offen')
        a('s_mov_b64 exec, -1')
    k1_mainloop(a, False, 'ffn')
    k = 0
    for m in range(4):
        for t in range(4):
            d = 16 + 4 * (k % 16); k += 1
            for h in range(2):
                A = acc(t, 2 * m + h)
                a('v_cvt_pk_bf16_f32 %s, %s, %s' % (v(d + 2 * h), v(A), v(A + 1)))
                a('v_cvt_pk_bf16_f32 %s, %s, %s' % (v(d + 2 * h + 1), v(A + 2), v(A + 3)))
            for i in range(4):
                a('v_pk_max_i16 %s, %s, 0' % (v(d + i), v(d + i)))
            a('s_add_u32 s59, s58, %d' % ((t >> 1) * RSTRIDE + m * 4096))
            a('buffer_store_dwordx4 %s, v9, s[28:31], s59 offen offset:%d' % (v(d, 4), (t & 1) * 2048) + stp())
    if cfg.prof: a('s_waitcnt vmcnt(0)')
    stamp_flush(a, 0, 16, 1)
    a('s_endpgm')
    gen_prep(a)
    a('L1_end:')
    a('s_endpgm')

def gen_attention(a):
    KK = lambda t: 16 + 6 * t
    Q0 = lambda t: 40 + 8 * t
    Q1 = lambda t: 44 + 8 * t
    VP = lambda h, t: 72 + 8 * h + 2 * t
    M = lambda u: 96 + u
    SC = lambda u: 112 + 8 * u
    SP = lambda u: 116 + 8 * u
    P = lambda u: 176 + 4 * u
    SUM = lambda u: 208 + 4 * u
    def cvt(d, A):
        a('v_cvt_pk_bf16_f32 %s, %s, %s' % (v(d), v(A), v(A + 1)))
        a('v_cvt_pk_bf16_f32 %s, %s, %s' % (v(d + 1), v(A + 2), v(A + 3)))
    def conv_qk(t):
        cvt(Q1(t), acc(t, 4)); cvt(KK(t) + 2, acc(t, 4))
        cvt(Q0(t), acc(t, 0)); cvt(Q1(t) + 2, acc(t, 1))
        a('v_permlane32_swap_b32 %s, %s' % (v(Q1(t)), v(KK(t) + 2)))
        a('v_permlane32_swap_b32 %s, %s' % (v(Q1(t) + 1), v(KK(t) + 3)))
        cvt(KK(t), acc(t, 2)); cvt(KK(t) + 4, acc(t, 3))
        for i in range(2):
            a('v_cndmask_b32 %s, 0, %s, s[64:65]' % (v(Q0(t) + 2 + i), v(Q1(t) + i)))
            a('v_cndmask_b32 %s, 0, %s, s[66:67]' % (v(Q1(t) + i), v(Q1(t) + i)))
    def conv_v(t):
        for h in range(3): cvt(VP(h, t), acc(t, 5 + h))
    for t in range(4): conv_qk(t)
    conv_v(0); conv_v(1)
    Kop = lambda h, t: v(KK(t) + 2 * h, 4)
    Qop = lambda h, t: v(Q0(t) if h == 0 else Q1(t), 4)
    mf = []
    for h in range(2):
        for t in range(4):
            u = 4 * h + t
            mf.append('v_mfma_f32_16x16x32_bf16 %s, %s, %s, v[240:243]' % (v(SC(u), 4), Kop(h, t), Qop(h, t)))
            if t: mf.append('v_mfma_f32_16x16x32_bf16 %s, %s, %s, v[244:247]' % (v(SP(u), 4), Kop(h, t - 1), Qop(h, t)))
    cv = []
    for t in (2, 3):
        for h in range(3):
            A = acc(t, 5 + h); d = VP(h, t)
            cv.append('v_cvt_pk_bf16_f32 %s, %s, %s' % (v(d), v(A), v(A + 1)))
            cv.append('v_cvt_pk_bf16_f32 %s, %s, %s' % (v(d + 1), v(A + 2), v(A + 3)))
    interleave(a, mf, cv)
    for u in range(8):
        if u & 3:
            for r in range(4): a('v_max_f32 %s, %s, %s' % (v(SC(u) + r), v(SC(u) + r), v(SP(u) + r)))
        a('v_max3_f32 %s, %s, %s, %s' % (v(M(u)), v(SC(u)), v(SC(u) + 1), v(SC(u) + 2)))
        a('v_max_f32 %s, %s, %s' % (v(M(u)), v(M(u)), v(SC(u) + 3)))
    G = (0, 4)
    for b in G:
        a('v_permlane32_swap_b32 %s, %s' % (v(M(b)), v(M(b + 1))))
        a('v_permlane32_swap_b32 %s, %s' % (v(M(b + 2)), v(M(b + 3))))
    for b in G:
        a('v_max_f32 %s, %s, %s' % (v(M(b)), v(M(b)), v(M(b + 1))))
        a('v_max_f32 %s, %s, %s' % (v(M(b + 2)), v(M(b + 2)), v(M(b + 3))))
    for b in G: a('v_permlane16_swap_b32 %s, %s' % (v(M(b)), v(M(b + 2))))
    for b in G: a('v_max_f32 %s, %s, %s' % (v(M(b)), v(M(b)), v(M(b + 2))))
    for b in G: a('v_mul_f32 %s, s63, %s' % (v(M(b + 2)), v(M(b))))
    for b in G: a('v_mul_f32 %s, s63, %s' % (v(M(b)), v(M(b))))
    for b in G: a('v_permlane16_swap_b32 %s, %s' % (v(M(b)), v(M(b + 2))))
    for b in G:
        a('v_mov_b32 %s, %s' % (v(M(b + 1)), v(M(b))))
        a('v_mov_b32 %s, %s' % (v(M(b + 3)), v(M(b + 2))))
    for b in G:
        a('v_permlane32_swap_b32 %s, %s' % (v(M(b)), v(M(b + 1))))
        a('v_permlane32_swap_b32 %s, %s' % (v(M(b + 2)), v(M(b + 3))))
    pend = []
    for u in range(8):
        h, t = u >> 2, u & 3
        for r in range(4): a('v_fma_f32 %s, %s, s62, %s' % (v(SC(u) + r), v(SC(u) + r), v(M(u))))
        for r in range(4):
            a('v_exp_f32 %s, %s' % (v(SC(u) + r), v(SC(u) + r)))
            if pend: a(pend.pop(0))
        for x in pend: a(x)
        if t == 0:
            cvt(P(u) + 2, SC(u))
            op = 'v_mfma_f32_16x16x16_bf16'; B = v(P(u) + 2, 2); n = 2; o = 0
        else:
            cvt(P(u), SC(u))
            for i in range(2): a('v_and_b32 %s, %s, %s' % (v(P(u) + 2 + i), v(248 + i), v(P(u) + i)))
            for i in range(2): a('v_bfi_b32 %s, %s, 0, %s' % (v(P(u) + i), v(248 + i), v(P(u) + i)))
            op = 'v_mfma_f32_16x16x32_bf16'; B = v(P(u), 4); n = 4; o = -2
        pend = ['%s %s, %s, %s, 0' % (op, v(SUM(u), 4), v(250, n), B),
                '%s %s, %s, %s, 0' % (op, v(SC(u), 4), v(VP(h, t) + o, n), B),
                '%s %s, %s, %s, 0' % (op, v(SP(u), 4), v(VP(2, t) + o, n), B)]
    for x in pend: a(x)
    for u in range(8): a('v_rcp_f32 %s, %s' % (v(SUM(u)), v(SUM(u))))
    for t in range(4):
        for h in range(2):
            u = 4 * h + t
            for i in range(2):
                a('v_pk_mul_f32 %s, %s, %s op_sel_hi:[1,0]' % (v(SC(u) + 2 * i, 2), v(SC(u) + 2 * i, 2), v(SUM(u), 2)))
        for h in range(2): cvt(16 + 4 * t + 2 * h, SC(4 * h + t))
        a('buffer_store_dwordx4 %s, %s, s[28:31], s58 offen' % (v(16 + 4 * t, 4), v(9 + t)) + stp(cfg.stm))
    for g in range(4):
        a('s_mov_b64 exec, %s' % s(64 + 2 * g, 2))
        for u2 in range(2):
            u = 4 * (g & 1) + 2 * u2 + (g >> 1)
            for i in range(2):
                a('v_pk_mul_f32 %s, %s, %s op_sel_hi:[1,0]' % (v(40 + 4 * u2 + 2 * i, 2), v(SP(u) + 2 * i, 2), v(SUM(u), 2)))
    a('s_mov_b64 exec, -1')
    for u2 in range(2):
        cvt(48 + 2 * u2, 40 + 4 * u2)
        a('buffer_store_dwordx2 %s, %s, s[28:31], s59 offen' % (v(48 + 2 * u2, 2), v(13 + u2)) + stp(cfg.str))

def gen_gate(a):
    GW, GX = 24, 64
    a('L1_ld_gate:')
    srd(a, 56, 10, 1280)
    srd(a, 28, 16, WS_SIZE)
    a('v_and_b32 v1, 7, v0')
    a('v_lshlrev_b32 v1, 4, v1')
    a('s_lshl_b32 s47, s38, 5')
    a('s_add_u32 s47, s47, s39')
    a('s_lshl_b32 s48, s46, 3')
    a('s_add_u32 s47, s47, s48')
    a('v_lshrrev_b32 v2, 3, v0')
    a('v_add_u32 v2, s47, v2')
    a('v_mul_u32_u24 v3, 0x500, v2')
    a('v_add_u32 v3, v3, v1')
    a('s_waitcnt vmcnt(0)')
    a('s_barrier')
    for i in range(10):
        a('buffer_load_dwordx4 %s, v1, s[56:59], 0 offen offset:%d' % (v(GW + 4 * i, 4), 128 * i))
    for i in range(10):
        a('buffer_load_dwordx4 %s, v3, s[20:23], 0 offen offset:%d' % (v(GX + 4 * i, 4), 128 * i))
    a('v_mov_b32 v9, 0')
    a('v_mov_b32 v10, 0')
    a('s_barrier')
    a('s_waitcnt vmcnt(0)')
    for i in range(40):
        a('v_dot2_f32_bf16 %s, %s, %s, %s' % (v(9 + (i & 1)), v(GX + i), v(GW + i), v(9 + (i & 1))))
    a('v_add_f32 v9, v9, v10')
    for pat in ('quad_perm:[1,0,3,2]', 'quad_perm:[2,3,0,1]', 'row_half_mirror'):
        a('v_add_f32_dpp v11, v9, v9 %s row_mask:0xf bank_mask:0xf' % pat)
        a('v_mov_b32 v9, v11')
    a('v_mul_f32 v9, %s, v9' % f32(-math.log2(math.e)))
    a('v_exp_f32 v9, v9')
    a('v_add_f32 v9, 1.0, v9')
    a('v_rcp_f32 v9, v9')
    a('v_lshlrev_b32 v2, 2, v2')
    a('v_mov_b32 v3, %s' % hex(BAD))
    a('v_cmp_eq_u32 vcc, 0, v1')
    a('v_cndmask_b32 v2, v3, v2, vcc')
    a('s_mov_b32 s60, %d' % WS_G)
    a('buffer_store_dword v9, v2, s[28:31], s60 offen' + stp(cfg.stg))
    if cfg.prof: a('s_waitcnt vmcnt(0)')
    stamp_flush(a, 0, 16)
    a('s_endpgm')

def gen_prep(a):
    PITCH = 176
    LW = 32 * PITCH
    a('L1_prep:')
    a('s_sub_u32 s37, s34, 30')
    a('s_lshl_b32 s37, s37, 3')
    a('s_add_u32 s37, s37, s33')
    a('s_waitcnt lgkmcnt(0)')
    srd(a, 24, 8, 640 * 1280)
    srd(a, 40, 14, 1536 * 1280)
    srd(a, 28, 16, WS_SIZE)
    if cfg.touch:
        a('s_cmp_lt_u32 s3, 4')
        a('s_cbranch_scc0 L1_prep_not')
        srd(a, 20, 4, 2048 * 1280)
        ta, tb = touch_setup(a, 's3', 124, 132)
        for x in ta + tb: a(x)
        a('L1_prep_not:')
    U = lambda u: 24 + 20 * u
    PITCH = 1280 + 176
    LB = 32 * PITCH
    pol = stp(cfg.pnt)
    a('v_lshlrev_b32 v7, 4, v0')
    a('v_add_u32 v8, 4096, v7')
    a('s_lshr_b32 s48, s3, 1')
    a('s_and_b32 s49, s3, 1')
    a('s_lshl_b32 s50, s48, 2')
    a('s_lshl_b32 s51, s49, 4')
    a('s_add_u32 s51, s51, s50')
    a('s_mul_i32 s55, s37, 96')
    a('s_add_u32 s55, s55, s51')
    a('s_mul_i32 s55, s55, 1280')
    def ld5(u, sr):
        for e in range(5):
            a('buffer_load_dwordx4 %s, %s, %s, s55 offen offset:%d' % (v(U(u) + 4 * e, 4), v(7 if e < 4 else 8), sr, (e & 3) * 1024) + pol)
    for u in range(3):
        ld5(u, 's[40:43]')
        if u < 2: a('s_add_u32 s55, s55, %d' % (32 * 1280))
    a('s_mul_i32 s51, s49, 20')
    a('s_mul_i32 s55, s37, 40')
    a('s_add_u32 s55, s55, s50')
    a('s_add_u32 s55, s55, s51')
    a('s_mul_i32 s55, s55, 1280')
    ld5(3, 's[24:27]')
    a('s_and_b32 s56, s37, 3')
    a('s_lshr_b32 s61, s37, 2')
    a('s_mul_i32 s55, s56, 160')
    a('s_mul_i32 s50, s48, 40')
    a('s_add_u32 s55, s55, s50')
    a('s_add_u32 s55, s55, s51')
    a('s_add_u32 s55, s55, 16')
    a('s_mul_i32 s55, s55, 1280')
    a('s_mul_i32 s50, s61, 320')
    a('s_add_u32 s55, s55, s50')
    a('s_movk_i32 s52, %d' % PITCH)
    a('s_mul_i32 s53, s3, %d' % (4 * PITCH))
    a('s_add_u32 s54, s53, s50')
    a('s_movk_i32 s57, 1280')
    a('v_mul_u32_u24 v2, 13, v0')
    a('v_lshrrev_b32 v2, 8, v2')
    a('v_mul_u32_u24 v3, 20, v2')
    a('v_sub_u32 v1, v0, v3')
    a('v_lshlrev_b32 v1, 4, v1')
    a('v_mad_u32_u24 v9, v2, s57, v1')
    a('v_mad_u32_u24 v11, v2, s52, v1')
    a('v_add_u32 v11, s54, v11')
    a('v_add_u32 v10, %d, v7' % (3 * 1280 + 64))
    a('v_mov_b32 v3, %s' % hex(BAD))
    a('v_cmp_gt_u32 vcc, 16, v0')
    a('v_cndmask_b32 v10, v3, v10, vcc')
    a('buffer_load_dwordx4 %s, v9, s[24:27], s55 offen' % v(U(4), 4) + pol)
    a('buffer_load_dwordx4 %s, v10, s[24:27], s55 offen' % v(U(4) + 4, 4) + pol)
    a('s_add_u32 s54, s54, %d' % (3 * PITCH + 64))
    a('v_add_u32 v12, s54, v7')
    a('s_movk_i32 s50, 205')
    for e in range(5):
        a('v_add_u32 v1, %d, v0' % (64 * e))
        a('v_mul_u32_u24 v2, s50, v1')
        a('v_lshrrev_b32 v2, 14, v2')
        a('v_mul_u32_u24 v2, %d, v2' % (PITCH - 1280))
        a('v_lshl_add_u32 v1, v1, 4, v2')
        a('v_add_u32 %s, s53, v1' % v(19 + e))
    a('s_mul_i32 s49, s3, 160')
    a('v_lshrrev_b32 v4, 4, v0')
    a('v_bfe_u32 v5, v0, 2, 2')
    a('v_lshl_add_u32 v4, v4, 3, v5')
    a('v_mul_u32_u24 v4, s52, v4')
    a('v_add_u32 v4, s49, v4')
    a('v_and_b32 v5, 3, v0')
    a('v_lshl_add_u32 v6, v5, 3, v4')
    a('v_lshl_add_u32 v5, v5, 4, v4')
    a('s_mul_i32 s59, s3, %d' % NBSTRIDE)
    a('s_add_u32 s59, s59, %d' % WS_B)
    for u in range(5):
        bo = (u & 1) * LB
        a('s_waitcnt vmcnt(%d)' % (17 if u < 4 else 20))
        if u < 4:
            for e in range(5):
                a('ds_write_b128 %s, %s offset:%d' % (v(19 + e), v(U(u) + 4 * e, 4), bo))
        else:
            a('ds_write_b128 v11, %s offset:%d' % (v(U(u), 4), bo))
            a('s_mov_b64 exec, 0xffff')
            a('ds_write_b128 v12, %s offset:%d' % (v(U(u) + 4, 4), bo))
            a('s_mov_b64 exec, -1')
        if u < 3:
            a('s_mul_i32 s60, s37, 3'); a('s_add_u32 s60, s60, %d' % (20 + u))
        elif u == 3:
            a('s_mov_b32 s60, s37')
        else:
            a('s_add_u32 s60, s56, 16')
        a('s_mul_i32 s60, s60, 5120')
        a('s_add_u32 s60, s60, s59')
        a('s_waitcnt lgkmcnt(0)')
        a('s_barrier')
        if u == 4:
            a('s_cmp_lg_u32 s61, s48')
            a('s_cbranch_scc1 L1_prep_done')
        for nt in range(5):
            for h in range(2):
                if nt < 4: reg, off = 5, 64 * (nt >> 1) + 8 * (nt & 1)
                else: reg, off = 6, 128
                a('ds_read_b64_tr_b16 %s, %s offset:%d' % (v(U(u) + 4 * nt + 2 * h, 2), v(reg), bo + off + h * 4 * PITCH))
        a('s_waitcnt lgkmcnt(0)')
        for nt in range(5):
            a('buffer_store_dwordx4 %s, %s, s[28:31], s60 offen offset:%d' % (v(U(u) + 4 * nt, 4), v(7 if nt < 4 else 8), (nt & 3) * 1024) + stp())
    a('L1_prep_done:')
    if cfg.prof: a('s_waitcnt vmcnt(0)')
    stamp_flush(a, 0, 16, 3)
    a('s_endpgm')

def gen_k2(a):
    D = cfg.k2depth
    RING = 16
    AC = RING + 36 * D
    accr = lambda m, nt: AC + (m * 5 + nt) * 4
    def rq(q, off):
        if q < D: return v(RING + 36 * q + off, 4)
        b = 36 * (q - D) + off
        return 'a[%d:%d]' % (b, b + 3)
    Bq = lambda q, nt: rq(q, 4 * nt)
    Aq = lambda q, m: rq(q, 20 + 4 * m)
    D0, D1 = cfg.d0, cfg.d1
    a('.globl %s' % K2); a('.p2align 8'); a('.type %s,@function' % K2)
    a('%s:' % K2)
    a('s_cmp_ge_u32 s2, 256')
    a('s_cbranch_scc1 L2_end')
    if cfg.tst & 4:
        a('s_bitcmp1_b32 s2, 3'); a('s_cbranch_scc1 L2_end')
    if cfg.tst & 8:
        a('s_bitcmp1_b32 s2, 4'); a('s_cbranch_scc1 L2_end')
    stamp(a, 0)
    a('s_load_dwordx2 s[4:5], s[0:1], 72')
    a('s_load_dwordx2 s[6:7], s[0:1], 56')
    a('v_lshrrev_b32 v1, 6, v0')
    a('v_and_b32 v0, 63, v0')
    a('v_readfirstlane_b32 s3, v1')
    if cfg.scr & 2:
        a('s_lshr_b32 s16, s2, 5'); a('s_and_b32 s17, s2, 31')
    else:
        a('s_and_b32 s16, s2, 7')
        a('s_lshr_b32 s17, s2, 3')
    a('s_and_b32 s18, s16, 1')
    a('s_lshl_b32 s18, s18, 2')
    a('s_and_b32 s19, s17, 3')
    a('s_add_u32 s18, s18, s19')
    a('s_lshr_b32 s19, s16, 1')
    a('s_lshl_b32 s19, s19, 3')
    a('s_lshr_b32 s20, s17, 2')
    a('s_add_u32 s19, s19, s20')
    a('s_lshl_b32 s20, s3, 4')
    a('s_add_u32 s20, s20, 4')
    a('s_cmp_eq_u32 s3, 0')
    a('s_cselect_b32 s20, 0, s20')
    if cfg.bal == 4:
        a('s_mul_i32 s20, s3, 15')
    elif cfg.bal in (3, 5, 6):
        a('s_lshl_b32 s20, s3, 4')
    elif cfg.bal == 2:
        a('s_mul_i32 s20, s3, 17')
    elif cfg.bal:
        a('s_cselect_b32 s28, 1, s20')
        a('s_cselect_b32 s20, 0, 16')
        a('s_or_b32 s20, s20, s3')
        a('s_sub_u32 s28, s28, s20')
        a('s_mul_i32 s29, s28, 5120')
        a('s_lshl_b32 s28, s28, 12')
        a('s_cmp_eq_u32 s3, 0')
    if cfg.k2prio:
        a('s_cbranch_scc0 L2_noprio')
        a('s_setprio 3')
        a('L2_noprio:')
    if cfg.bal: a('s_mov_b32 s21, %d' % (2 if cfg.bal == 4 else 4 if cfg.bal == 5 else 7 if cfg.bal == 6 else 3))
    else: a('s_cselect_b32 s21, %d, %d' % (20 // D0 - 1, 16 // D1 - 1))
    a('s_mul_i32 s22, s19, %d' % (0 if cfg.tst & 1 else RSTRIDE))
    a('s_lshl_b32 s23, s20, 12')
    a('s_add_u32 s22, s22, s23')
    a('s_mul_i32 s23, s18, %d' % (0 if cfg.tst & 2 else NBSTRIDE))
    a('s_mul_i32 s24, s20, 5120')
    a('s_add_u32 s23, s23, s24')
    a('s_add_u32 s23, s23, %d' % WS_B)
    a('v_lshlrev_b32 v2, 4, v0')
    a('v_add_u32 v3, 4096, v2')
    for m in range(4):
        a('s_add_u32 s24, s3, %d' % m)
        a('s_and_b32 s24, s24, 3')
        a('s_lshl_b32 s25, s24, 10')
        a('v_add_u32 %s, s25, v2' % v(4 + m))
        if m:
            a('s_mul_i32 s25, s24, 15360')
            a('s_add_u32 s25, s25, %d' % ((m - 1) * 5120))
            a('v_add_u32 %s, s25, v2' % v(8 + m))
    a('s_lshl_b32 s24, s19, 6')
    a('s_lshr_b32 s25, s3, 1')
    a('s_lshl_b32 s25, s25, 5')
    a('s_add_u32 s24, s24, s25')
    a('s_and_b32 s25, s3, 1')
    a('s_add_u32 s24, s24, s25')
    a('v_and_b32 v12, 15, v0')
    a('v_lshl_add_u32 v12, v12, 1, s24')
    a('v_lshlrev_b32 v13, 2, v12')
    a('s_mov_b32 s26, %d' % WS_G)
    a('s_movk_i32 s27, 4096')
    a('s_waitcnt lgkmcnt(0)')
    stamp(a, 1, 1)
    srd(a, 8, 4, WS_SIZE)
    if cfg.cw & 8: warm(a, 'k2', 14, 'L2_last')
    def ldB(q, nt): return 'buffer_load_dwordx4 %s, %s, s[8:11], s23 offen offset:%d' % (Bq(q, nt), v(2 if nt < 4 else 3), (nt & 3) * 1024) + stp(cfg.lb)
    def ldA(q, m): return 'buffer_load_dwordx4 %s, %s, s[8:11], s22 offen' % (Aq(q, m), v(4 + m)) + stp(cfg.la)
    adv = ['s_add_u32 s23, s23, 5120', 's_add_u32 s22, s22, s27']
    def step(q, load, cnt):
        a('s_waitcnt vmcnt(%d)' % cnt)
        for nt in range(5):
            for m in range(4):
                A = v(accr(m, nt), 4)
                a('v_mfma_f32_16x16x32_bf16 %s, %s, %s, %s' % (A, Bq(q, nt), Aq(q, m), A))
            if load: a(ldB(q, nt))
        if load:
            for m in range(4): a(ldA(q, m))
            for x in adv: a(x)
    def fill(lo, hi):
        for q in range(lo, hi):
            for nt in range(5): a(ldB(q, nt))
            for m in range(4): a(ldA(q, m))
            for x in (['s_add_u32 s23, s23, s29', 's_add_u32 s22, s22, s28'] if cfg.bal == 1 and q == 0 else adv): a(x)
    def body(dd, tag, n):
        if cfg.prof: a('s_waitcnt vmcnt(%d)' % (9 * (dd - 1)))
        stamp(a, 1, 0)
        if n // dd > 1:
            a('L2_loop%s:' % tag)
            for q in range(dd): step(q, True, 9 * (dd - 1))
            a('s_sub_u32 s21, s21, 1')
            a('s_cmp_lg_u32 s21, 0')
            a('s_cbranch_scc1 L2_loop%s' % tag)
        r = n % dd
        for q in range(r): step(q, True, 9 * (dd - 1))
        for i in range(dd): step((r + i) % dd, False, 9 * (dd - 1 - i))
    a('buffer_load_dword v14, v13, s[8:11], s26 offen')
    Dm = 2 if cfg.bal == 6 else 3 if cfg.bal == 5 else min(D0, D1)
    if cfg.sst == 1:
        fill(0, 1); a('s_waitcnt vmcnt(9)'); stamp(a, 2, 1); fill(1, Dm)
    elif cfg.sst == 2:
        fill(0, 1); stamp(a, 1, 2); fill(1, Dm); stamp(a, 2, 2)
    elif cfg.cw & 1:
        fill(0, 1); warm(a, 'k2', 7, 'L2_last'); fill(1, Dm)
    else: fill(0, Dm)
    P = RING + 36
    if cfg.bal == 4:
        T = RING + 36; W = T + 20; O = 240
        Bt = lambda i: v(88 + 4 * i if i < 14 else 16 + 4 * (i - 14) if i < 19 else 80, 4)
        srd(a, 12, 6, 2048 * 1280)
        for i in range(80): a('v_mov_b32 %s, 0' % v(AC + i))
        a('s_mul_i32 s25, s3, 15360')
        a('v_add_u32 v8, s25, v2')
        a('s_mul_i32 s25, s3, 5120')
        a('s_add_u32 s29, s25, 81920')
        a('s_mul_i32 s31, s18, %d' % NBSTRIDE)
        a('s_add_u32 s31, s31, s25')
        a('s_add_u32 s31, s31, %d' % (WS_B + 60 * 5120))
        a('s_mul_i32 s30, s19, %d' % RSTRIDE)
        a('s_add_u32 s30, s30, %d' % (60 * 4096))
        a('s_add_u32 s25, s25, 0xf000')
        a('v_add_u32 v15, s25, v2')
        a('s_mul_i32 s25, s18, 160')
        a('v_mul_u32_u24 v12, 0x500, v12')
        a('v_lshrrev_b32 v1, 4, v0')
        a('v_lshl_add_u32 v0, v1, 3, v12')
        a('v_lshl_add_u32 v12, v1, 4, v12')
        a('v_add_u32 v1, 0xf000, v2')
        a('s_cmp_eq_u32 s3, 1')
        a('s_cselect_b32 s28, 2, 0')
        if cfg.prof: a('s_waitcnt vmcnt(27)')
        stamp(a, 1, 0)
        for q in range(3): step(q, True, 27)
        a('L2_loop:')
        step(3, True, 27); step(0, True, 27)
        a('s_cmp_eq_u32 s21, s28')
        a('s_cbranch_scc1 L2_dump')
        a('L2_back:')
        step(1, True, 27); step(2, True, 27)
        a('s_cmp_lg_u32 s21, %d' % cfg.ba)
        a('s_cbranch_scc1 L2_nobar')
        a('s_barrier')
        a('L2_nobar:')
        a('s_sub_u32 s21, s21, 1')
        a('s_cmp_lg_u32 s21, 0')
        a('s_cbranch_scc1 L2_loop')
        a('v_add_u32 v13, 81920, v2')
        for r, q in enumerate((3, 0)):
            a('s_add_u32 m0, s29, %d' % (20480 * r))
            a('s_waitcnt vmcnt(27)')
            for nt in range(5):
                for m in range(4):
                    A = v(accr(m, nt), 4)
                    a('v_mfma_f32_16x16x32_bf16 %s, %s, %s, %s' % (A, Bq(q, nt), Aq(q, m), A))
                    if nt == 4 and m == 0: a('s_add_u32 m0, m0, s27')
                a('buffer_load_dwordx4 %s, s[8:11], s31 offen offset:%d lds' % (v(2 if nt < 4 else 3), (nt & 3) * 1024))
            for j in range(4):
                a('buffer_load_dwordx4 %s, v4, s[8:11], s30 offen' % Aq(q, j))
                a('s_add_u32 s30, s30, s27')
            a('s_add_u32 s31, s31, 20480')
        step(1, False, 27)
        for i in range(5): a('ds_read_b128 %s, v15 offset:%d' % (v(T + 4 * i, 4), i * 1024))
        a('v_sub_f32 v15, 1.0, v14')
        for m in range(4):
            a('s_cmp_eq_u32 s3, %d' % m)
            a('s_cselect_b64 vcc, -1, 0')
            a('v_cndmask_b32 %s, v15, v14, vcc' % v(W + 2 * m))
        a('s_waitcnt lgkmcnt(0)')
        for i in range(10): a('v_pk_mul_f32 %s, %s, v[14:15] op_sel_hi:[1,0]' % (v(T + 2 * i, 2), v(T + 2 * i, 2)))
        a('s_waitcnt vmcnt(18)')
        order = [(m, nt) for m in (1, 2, 3, 0) for nt in range(5)]
        for i, (m, nt) in enumerate(order):
            A = v(accr(m, nt), 4)
            a('v_mfma_f32_16x16x32_bf16 %s, %s, %s, %s' % (A, Bq(2, nt), Aq(2, m), A))
            if i >= 5:
                m2, n2 = order[i - 5]
                a('ds_write_b128 %s, %s offset:%d' % (v(8 + m2), v(accr(m2, n2), 4), n2 * 1024))
        for i in range(10):
            a('v_pk_fma_f32 %s, %s, %s, %s op_sel_hi:[1,0,1]' % (v(T + 2 * i, 2), v(AC + 2 * i, 2), v(W, 2), v(T + 2 * i, 2)))
        a('s_waitcnt vmcnt(9) lgkmcnt(0)')
        a('s_barrier')
        rb = lambda i, r=0: 'ds_read_b128 %s, v13 offset:%d' % (Bt(i), i * 1024 + r * 20480)
        ri = lambda m, nt: 'ds_read_b128 %s, v8 offset:%d' % (v(accr(m, nt), 4), ((m - 1) * 5 + nt) * 1024)
        def fm(m, nt):
            for j in range(2):
                d = v(T + 4 * nt + 2 * j, 2)
                if m: a('v_pk_fma_f32 %s, %s, %s, %s op_sel_hi:[1,0,1]' % (d, v(accr(m, nt) + 2 * j, 2), v(W + 2 * m, 2), d))
                else: a('v_pk_fma_f32 %s, %s, v[14:15], %s op_sel:[0,1,0] op_sel_hi:[1,1,1]' % (d, v(accr(0, nt) + 2 * j, 2), d))
        def mm(j, nt, r=0):
            A = v(accr(0, nt), 4)
            a('v_mfma_f32_16x16x32_bf16 %s, %s, %s, %s' % (A, Bt(5 * j + nt), Aq(0 if r else 3, j), A if j or r else '0'))
        rds = []
        for j in range(4):
            rds += [rb(5 * j + nt) for nt in range(5)]
            if j < 3: rds += [ri(j + 1, nt) for nt in range(5)]
        for x in rds[:15]: a(x)
        rds = rds[15:]
        for k in range(7):
            a('s_waitcnt lgkmcnt(%d)' % min(10, 5 * (6 - k)))
            for nt in range(5):
                if k & 1: fm((k + 1) // 2, nt)
                else: mm(k // 2, nt)
                if rds: a(rds.pop(0))
        a('s_waitcnt vmcnt(0)')
        stamp(a, 2, 0)
        if cfg.prof: a('s_waitcnt lgkmcnt(0)')
        a('s_barrier')
        for i in range(15): a(rb(i, 1))
        for j in range(4):
            a('s_waitcnt lgkmcnt(%d)' % min(10, 5 * (3 - j)))
            for nt in range(5):
                mm(j, nt, 1)
                if j == 0: a(rb(15 + nt, 1))
        for nt in range(5):
            fm(0, nt)
            for j in range(2):
                a('v_cvt_pk_bf16_f32 %s, %s, %s' % (v(O + 2 * nt + j), v(T + 4 * nt + 2 * j), v(T + 4 * nt + 2 * j + 1)))
            if nt == 1: a('buffer_store_dwordx4 %s, v12, s[12:15], s25 offen' % v(O, 4) + stp(cfg.k2st))
            if nt == 3: a('buffer_store_dwordx4 %s, v12, s[12:15], s25 offen offset:64' % v(O + 4, 4) + stp(cfg.k2st))
            if nt == 4: a('buffer_store_dwordx2 %s, v0, s[12:15], s25 offen offset:128' % v(O + 8, 2) + stp(cfg.k2st))
        stamp(a, 1, 3)
        if cfg.prof: a('s_waitcnt vmcnt(0)'); a('v_mbcnt_lo_u32_b32 v0, -1, 0'); a('v_mbcnt_hi_u32_b32 v0, -1, v0')
        stamp_flush(a, 1, 4)
        a('L2_end:')
        a('s_endpgm')
        a('L2_dump:')
        a('s_nop 7')
        for nt in range(5):
            for m in range(4):
                a('ds_write_b128 v1, %s offset:%d' % (v(accr(m, nt), 4), ((m + 1) & 3) * 5120 + nt * 1024))
        for i in range(80): a('v_mov_b32 %s, 0' % v(AC + i))
        a('s_waitcnt lgkmcnt(0)')
        a('s_branch L2_back')
        a('L2_last:')
        return 256, 0
    if cfg.bal == 6:
        T = 124; W = T + 20; O = 24
        Bt = lambda i: v(52 + 4 * i if i < 18 else 16 + 4 * (i - 18), 4)
        srd(a, 12, 6, 2048 * 1280)
        for i in range(40): a('v_mov_b64 %s, 0' % v(AC + 2 * i, 2))
        a('s_mul_i32 s25, s3, 15360')
        a('v_add_u32 v8, s25, v2')
        a('s_mul_i32 s25, s3, 5120')
        a('s_add_u32 s29, s25, 81920')
        a('s_mul_i32 s31, s18, %d' % NBSTRIDE)
        a('s_add_u32 s31, s31, s25')
        a('s_add_u32 s31, s31, %d' % (WS_B + 64 * 5120))
        a('s_mul_i32 s30, s19, %d' % RSTRIDE)
        a('s_add_u32 s30, s30, %d' % (64 * 4096))
        a('s_add_u32 s25, s25, 0xf000')
        a('v_add_u32 v15, s25, v2')
        a('s_mul_i32 s25, s18, 160')
        a('v_mul_u32_u24 v12, 0x500, v12')
        a('v_lshrrev_b32 v1, 4, v0')
        a('v_lshl_add_u32 v0, v1, 3, v12')
        a('v_lshl_add_u32 v12, v1, 4, v12')
        a('v_add_u32 v1, 0xf000, v2')
        a('s_cmp_eq_u32 s3, 1')
        a('s_cselect_b32 s28, 6, 0')
        if cfg.w1p:
            a('s_cbranch_scc0 L2_np'); a('s_setprio 3'); a('L2_np:')
        if cfg.pt & 1: a('buffer_load_dword v13, v12, s[12:15], s25 offen')
        if cfg.pt & 8: a('buffer_load_dword v13, v12, s[12:15], s25 offen offset:96')
        if cfg.prof: a('s_waitcnt vmcnt(9)')
        stamp(a, 1, 0)
        a('L2_loop:')
        for q in (0, 1): step(q, True, 9)
        a('s_cmp_eq_u32 s21, s28')
        a('s_cbranch_scc1 L2_dump')
        a('L2_back:')
        a('s_cmp_lg_u32 s21, %d' % cfg.ba)
        a('s_cbranch_scc1 L2_nobar')
        a('s_waitcnt lgkmcnt(0)')
        a('s_barrier')
        for i in range(5): a('ds_read_b128 %s, v15 offset:%d' % (v(T + 4 * i, 4), i * 1024))
        a('v_sub_f32 v15, 1.0, v14')
        for m in range(4):
            a('s_cmp_eq_u32 s3, %d' % m)
            a('s_cselect_b64 vcc, -1, 0')
            a('v_cndmask_b32 %s, v15, v14, vcc' % v(W + 2 * m))
        a('s_waitcnt lgkmcnt(0)')
        for i in range(10): a('v_pk_mul_f32 %s, %s, v[14:15] op_sel_hi:[1,0]' % (v(T + 2 * i, 2), v(T + 2 * i, 2)))
        a('L2_nobar:')
        a('s_sub_u32 s21, s21, 1')
        a('s_cmp_lg_u32 s21, 0')
        a('s_cbranch_scc1 L2_loop')
        a('s_mov_b32 m0, s29')
        a('v_add_u32 v13, 81920, v2')
        a('s_waitcnt vmcnt(9)')
        for nt in range(5):
            for m in range(4):
                A = v(accr(m, nt), 4)
                a('v_mfma_f32_16x16x32_bf16 %s, %s, %s, %s' % (A, Bq(0, nt), Aq(0, m), A))
                if nt == 4 and m == 0: a('s_add_u32 m0, m0, s27')
            a('buffer_load_dwordx4 %s, s[8:11], s31 offen offset:%d lds' % (v(2 if nt < 4 else 3), (nt & 3) * 1024))
        for j in range(4):
            a('buffer_load_dwordx4 %s, v4, s[8:11], s30 offen' % Aq(0, j))
            if j < 3: a('s_add_u32 s30, s30, s27')
        if not cfg.gw: a('s_waitcnt vmcnt(9)')
        order = [(m, nt) for m in (1, 2, 3, 0) for nt in range(5)]
        for i, (m, nt) in enumerate(order):
            if cfg.gw and nt == 0 and m: a('s_waitcnt vmcnt(%d)' % (12 - m))
            A = v(accr(m, nt), 4)
            a('v_mfma_f32_16x16x32_bf16 %s, %s, %s, %s' % (A, Bq(1, nt), Aq(1, m), A))
            if i >= 5:
                m2, n2 = order[i - 5]
                a('ds_write_b128 %s, %s offset:%d' % (v(8 + m2), v(accr(m2, n2), 4), n2 * 1024))
        for i in range(10):
            a('v_pk_fma_f32 %s, %s, %s, %s op_sel_hi:[1,0,1]' % (v(T + 2 * i, 2), v(AC + 2 * i, 2), v(W, 2), v(T + 2 * i, 2)))
        a('s_waitcnt lgkmcnt(0)' if cfg.tb else 's_waitcnt vmcnt(%d) lgkmcnt(0)' % (4 if cfg.gw else 0))
        stamp(a, 2, 0)
        if cfg.prof: a('s_waitcnt lgkmcnt(0)')
        a('s_barrier')
        rb = lambda i: 'ds_read_b128 %s, v13 offset:%d' % (Bt(i), i * 1024)
        ri = lambda m, nt: 'ds_read_b128 %s, v8 offset:%d' % (v(accr(m, nt), 4), ((m - 1) * 5 + nt) * 1024)
        def fm(m, nt):
            for j in range(2):
                d = v(T + 4 * nt + 2 * j, 2)
                if m: a('v_pk_fma_f32 %s, %s, %s, %s op_sel_hi:[1,0,1]' % (d, v(accr(m, nt) + 2 * j, 2), v(W + 2 * m, 2), d))
                else: a('v_pk_fma_f32 %s, %s, v[14:15], %s op_sel:[0,1,0] op_sel_hi:[1,1,1]' % (d, v(accr(0, nt) + 2 * j, 2), d))
        def mm(j, nt):
            A = v(accr(0, nt), 4)
            a('v_mfma_f32_16x16x32_bf16 %s, %s, %s, %s' % (A, Bt(5 * j + nt), Aq(0, j), A if j else '0'))
        if cfg.tb:
            for m in range(1, 4):
                for nt in range(5): a(ri(m, nt))
            for m in range(1, 4):
                a('s_waitcnt lgkmcnt(%d)' % (15 - 5 * m))
                for nt in range(5): fm(m, nt)
            a('s_waitcnt vmcnt(0)')
            a('s_barrier')
            for i in range(15): a(rb(i))
            for j in range(4):
                a('s_waitcnt lgkmcnt(%d)' % min(10, 5 * (3 - j)))
                for nt in range(5):
                    mm(j, nt)
                    if j == 0: a(rb(15 + nt))
        else:
            rds = []
            for j in range(4):
                rds += [rb(5 * j + nt) for nt in range(5)]
                if j < 3: rds += [ri(j + 1, nt) for nt in range(5)]
            for x in rds[:15]: a(x)
            rds = rds[15:]
            for k in range(7):
                a('s_waitcnt ' + ('vmcnt(%d) ' % (3 - k // 2) if cfg.gw and not k & 1 else '') + 'lgkmcnt(%d)' % min(10, 5 * (6 - k)))
                for nt in range(5):
                    if k & 1: fm((k + 1) // 2, nt)
                    else: mm(k // 2, nt)
                    if rds: a(rds.pop(0))
        for nt in range(5):
            fm(0, nt)
            for j in range(2):
                a('v_cvt_pk_bf16_f32 %s, %s, %s' % (v(O + 2 * nt + j), v(T + 4 * nt + 2 * j), v(T + 4 * nt + 2 * j + 1)))
            if nt == 1: a('buffer_store_dwordx4 %s, v12, s[12:15], s25 offen' % v(O, 4) + stp(cfg.k2st))
            if nt == 3: a('buffer_store_dwordx4 %s, v12, s[12:15], s25 offen offset:64' % v(O + 4, 4) + stp(cfg.k2st))
            if nt == 4: a('buffer_store_dwordx2 %s, v0, s[12:15], s25 offen offset:128' % v(O + 8, 2) + stp(cfg.k2st))
        stamp(a, 1, 3)
        if cfg.prof: a('s_waitcnt vmcnt(0)'); a('v_mbcnt_lo_u32_b32 v0, -1, 0'); a('v_mbcnt_hi_u32_b32 v0, -1, v0')
        stamp_flush(a, 1, 4)
        a('L2_end:')
        a('s_endpgm')
        a('L2_dump:')
        a('s_nop 7')
        tl = [(m, nt) for nt in range(5) for m in range(4)]
        for i in range(22):
            if i < 20:
                m, nt = tl[i]
                a('ds_write_b128 v1, %s offset:%d' % (v(accr(m, nt), 4), ((m + 1) & 3) * 5120 + nt * 1024))
            if i >= 2:
                for j in (0, 2): a('v_mov_b64 %s, 0' % v(accr(*tl[i - 2]) + j, 2))
        a('s_branch L2_back')
        a('L2_last:')
        return AC + 80, 0
    if cfg.bal == 5:
        T = 124; W = T + 20; O = 112
        Bt = lambda i: v(16 + 4 * i if i < 14 else 88 + 4 * (i - 14), 4)
        srd(a, 12, 6, 2048 * 1280)
        for i in range(80): a('v_mov_b32 %s, 0' % v(AC + i))
        a('s_mul_i32 s25, s3, 15360')
        a('v_add_u32 v8, s25, v2')
        a('s_mul_i32 s25, s3, 5120')
        a('s_add_u32 s29, s25, 81920')
        a('s_mul_i32 s31, s18, %d' % NBSTRIDE)
        a('s_add_u32 s31, s31, s25')
        a('s_add_u32 s31, s31, %d' % (WS_B + 64 * 5120))
        a('s_mul_i32 s30, s19, %d' % RSTRIDE)
        a('s_add_u32 s30, s30, %d' % (64 * 4096))
        a('s_add_u32 s25, s25, 0xf000')
        a('v_add_u32 v15, s25, v2')
        a('s_mul_i32 s25, s18, 160')
        a('v_mul_u32_u24 v12, 0x500, v12')
        a('v_lshrrev_b32 v1, 4, v0')
        a('v_lshl_add_u32 v0, v1, 3, v12')
        a('v_lshl_add_u32 v12, v1, 4, v12')
        a('v_add_u32 v1, 0xf000, v2')
        a('s_cmp_eq_u32 s3, 1')
        a('s_cselect_b32 s28, 4, 0')
        if cfg.pt & 1: a('buffer_load_dword v13, v12, s[12:15], s25 offen')
        if cfg.pt & 8: a('buffer_load_dword v13, v12, s[12:15], s25 offen offset:96')
        if cfg.prof: a('s_waitcnt vmcnt(18)')
        stamp(a, 1, 0)
        step(0, True, 18)
        a('L2_loop:')
        for q in (1, 2, 0): step(q, True, 18)
        a('s_cmp_eq_u32 s21, s28')
        a('s_cbranch_scc1 L2_dump')
        a('L2_back:')
        a('s_cmp_lg_u32 s21, %d' % cfg.ba)
        a('s_cbranch_scc1 L2_nobar')
        a('s_barrier')
        a('L2_nobar:')
        a('s_sub_u32 s21, s21, 1')
        a('s_cmp_lg_u32 s21, 0')
        a('s_cbranch_scc1 L2_loop')
        a('s_mov_b32 m0, s29')
        a('v_add_u32 v13, 81920, v2')
        for i in range(5): a('ds_read_b128 %s, v15 offset:%d' % (v(T + 4 * i, 4), i * 1024))
        a('s_waitcnt vmcnt(18)')
        for nt in range(5):
            for m in range(4):
                A = v(accr(m, nt), 4)
                a('v_mfma_f32_16x16x32_bf16 %s, %s, %s, %s' % (A, Bq(1, nt), Aq(1, m), A))
                if nt == 4 and m == 0: a('s_add_u32 m0, m0, s27')
            a('buffer_load_dwordx4 %s, s[8:11], s31 offen offset:%d lds' % (v(2 if nt < 4 else 3), (nt & 3) * 1024))
        for j in range(4):
            a('buffer_load_dwordx4 %s, v4, s[8:11], s30 offen' % Aq(1, j))
            if j < 3: a('s_add_u32 s30, s30, s27')
        a('v_sub_f32 v15, 1.0, v14')
        for m in range(4):
            a('s_cmp_eq_u32 s3, %d' % m)
            a('s_cselect_b64 vcc, -1, 0')
            a('v_cndmask_b32 %s, v15, v14, vcc' % v(W + 2 * m))
        a('s_waitcnt lgkmcnt(0)')
        for i in range(10): a('v_pk_mul_f32 %s, %s, v[14:15] op_sel_hi:[1,0]' % (v(T + 2 * i, 2), v(T + 2 * i, 2)))
        step(2, False, 18)
        a('s_waitcnt vmcnt(9)')
        order = [(m, nt) for m in (1, 2, 3, 0) for nt in range(5)]
        for i, (m, nt) in enumerate(order):
            A = v(accr(m, nt), 4)
            a('v_mfma_f32_16x16x32_bf16 %s, %s, %s, %s' % (A, Bq(0, nt), Aq(0, m), A))
            if i >= 5:
                m2, n2 = order[i - 5]
                a('ds_write_b128 %s, %s offset:%d' % (v(8 + m2), v(accr(m2, n2), 4), n2 * 1024))
        for i in range(10):
            a('v_pk_fma_f32 %s, %s, %s, %s op_sel_hi:[1,0,1]' % (v(T + 2 * i, 2), v(AC + 2 * i, 2), v(W, 2), v(T + 2 * i, 2)))
        a('s_waitcnt vmcnt(0) lgkmcnt(0)')
        stamp(a, 2, 0)
        if cfg.prof: a('s_waitcnt lgkmcnt(0)')
        a('s_barrier')
        rb = lambda i: 'ds_read_b128 %s, v13 offset:%d' % (Bt(i), i * 1024)
        ri = lambda m, nt: 'ds_read_b128 %s, v8 offset:%d' % (v(accr(m, nt), 4), ((m - 1) * 5 + nt) * 1024)
        def fm(m, nt):
            for j in range(2):
                d = v(T + 4 * nt + 2 * j, 2)
                if m: a('v_pk_fma_f32 %s, %s, %s, %s op_sel_hi:[1,0,1]' % (d, v(accr(m, nt) + 2 * j, 2), v(W + 2 * m, 2), d))
                else: a('v_pk_fma_f32 %s, %s, v[14:15], %s op_sel:[0,1,0] op_sel_hi:[1,1,1]' % (d, v(accr(0, nt) + 2 * j, 2), d))
        def mm(j, nt):
            A = v(accr(0, nt), 4)
            a('v_mfma_f32_16x16x32_bf16 %s, %s, %s, %s' % (A, Bt(5 * j + nt), Aq(1, j), A if j else '0'))
        rds = []
        for j in range(4):
            rds += [rb(5 * j + nt) for nt in range(5)]
            if j < 3: rds += [ri(j + 1, nt) for nt in range(5)]
        for x in rds[:15]: a(x)
        rds = rds[15:]
        for k in range(7):
            a('s_waitcnt lgkmcnt(%d)' % min(10, 5 * (6 - k)))
            for nt in range(5):
                if k & 1: fm((k + 1) // 2, nt)
                else: mm(k // 2, nt)
                if rds: a(rds.pop(0))
        for nt in range(5):
            fm(0, nt)
            for j in range(2):
                a('v_cvt_pk_bf16_f32 %s, %s, %s' % (v(O + 2 * nt + j), v(T + 4 * nt + 2 * j), v(T + 4 * nt + 2 * j + 1)))
            if nt == 1: a('buffer_store_dwordx4 %s, v12, s[12:15], s25 offen' % v(O, 4) + stp(cfg.k2st))
            if nt == 3: a('buffer_store_dwordx4 %s, v12, s[12:15], s25 offen offset:64' % v(O + 4, 4) + stp(cfg.k2st))
            if nt == 4: a('buffer_store_dwordx2 %s, v0, s[12:15], s25 offen offset:128' % v(O + 8, 2) + stp(cfg.k2st))
        stamp(a, 1, 3)
        if cfg.prof: a('s_waitcnt vmcnt(0)'); a('v_mbcnt_lo_u32_b32 v0, -1, 0'); a('v_mbcnt_hi_u32_b32 v0, -1, v0')
        stamp_flush(a, 1, 4)
        a('L2_end:')
        a('s_endpgm')
        a('L2_dump:')
        a('s_nop 7')
        for nt in range(5):
            for m in range(4):
                a('ds_write_b128 v1, %s offset:%d' % (v(accr(m, nt), 4), ((m + 1) & 3) * 5120 + nt * 1024))
        for i in range(80): a('v_mov_b32 %s, 0' % v(AC + i))
        a('s_waitcnt lgkmcnt(0)')
        a('s_branch L2_back')
        a('L2_last:')
        return AC + 80, 0
    if cfg.bal == 3:
        T = RING + 36; W = T + 20; O = 24
        Bt = lambda i: v(88 + 4 * i if i < 18 else 16 + 4 * (i - 18), 4)
        srd(a, 12, 6, 2048 * 1280)
        for i in range(80): a('v_mov_b32 %s, 0' % v(AC + i))
        a('s_mul_i32 s25, s3, 15360')
        a('v_add_u32 v8, s25, v2')
        a('s_mul_i32 s25, s3, 5120')
        a('s_add_u32 s29, s25, 81920')
        a('s_mul_i32 s31, s18, %d' % NBSTRIDE)
        a('s_add_u32 s31, s31, s25')
        a('s_add_u32 s31, s31, %d' % (WS_B + 64 * 5120))
        a('s_mul_i32 s30, s19, %d' % RSTRIDE)
        a('s_add_u32 s30, s30, %d' % (64 * 4096))
        a('s_add_u32 s25, s25, 0xf000')
        a('v_add_u32 v15, s25, v2')
        a('s_mul_i32 s25, s18, 160')
        a('v_mul_u32_u24 v12, 0x500, v12')
        a('v_lshrrev_b32 v1, 4, v0')
        a('v_lshl_add_u32 v0, v1, 3, v12')
        a('v_lshl_add_u32 v12, v1, 4, v12')
        a('v_add_u32 v1, 0xf000, v2')
        a('s_cmp_eq_u32 s3, 1')
        a('s_cselect_b32 s28, 3, 0')
        if cfg.pt & 1: a('buffer_load_dword v13, v12, s[12:15], s25 offen')
        if cfg.pt & 8: a('buffer_load_dword v13, v12, s[12:15], s25 offen offset:96')
        if cfg.prof: a('s_waitcnt vmcnt(27)')
        stamp(a, 1, 0)
        a('L2_loop:')
        for q in range(4): step(q, True, 27)
        a('s_cmp_eq_u32 s21, s28')
        a('s_cbranch_scc1 L2_dump')
        a('L2_back:')
        a('s_cmp_lg_u32 s21, %d' % cfg.ba)
        a('s_cbranch_scc1 L2_nobar')
        a('s_barrier')
        a('L2_nobar:')
        a('s_sub_u32 s21, s21, 1')
        a('s_cmp_lg_u32 s21, 0')
        a('s_cbranch_scc1 L2_loop')
        a('s_mov_b32 m0, s29')
        a('v_add_u32 v13, 81920, v2')
        a('s_waitcnt vmcnt(27)')
        for nt in range(5):
            for m in range(4):
                A = v(accr(m, nt), 4)
                a('v_mfma_f32_16x16x32_bf16 %s, %s, %s, %s' % (A, Bq(0, nt), Aq(0, m), A))
                if nt == 4 and m == 0: a('s_add_u32 m0, m0, s27')
            a('buffer_load_dwordx4 %s, s[8:11], s31 offen offset:%d lds' % (v(2 if nt < 4 else 3), (nt & 3) * 1024))
        for j in range(4):
            a('buffer_load_dwordx4 %s, v4, s[8:11], s30 offen' % Aq(0, j))
            if j < 3: a('s_add_u32 s30, s30, s27')
        step(1, False, 27)
        for i in range(5): a('ds_read_b128 %s, v15 offset:%d' % (v(T + 4 * i, 4), i * 1024))
        step(2, False, 18)
        a('v_sub_f32 v15, 1.0, v14')
        for m in range(4):
            a('s_cmp_eq_u32 s3, %d' % m)
            a('s_cselect_b64 vcc, -1, 0')
            a('v_cndmask_b32 %s, v15, v14, vcc' % v(W + 2 * m))
        a('s_waitcnt lgkmcnt(0)')
        for i in range(10): a('v_pk_mul_f32 %s, %s, v[14:15] op_sel_hi:[1,0]' % (v(T + 2 * i, 2), v(T + 2 * i, 2)))
        a('s_waitcnt vmcnt(9)')
        order = [(m, nt) for m in (1, 2, 3, 0) for nt in range(5)]
        for i, (m, nt) in enumerate(order):
            A = v(accr(m, nt), 4)
            a('v_mfma_f32_16x16x32_bf16 %s, %s, %s, %s' % (A, Bq(3, nt), Aq(3, m), A))
            if i >= 5:
                m2, n2 = order[i - 5]
                a('ds_write_b128 %s, %s offset:%d' % (v(8 + m2), v(accr(m2, n2), 4), n2 * 1024))
        for i in range(10):
            a('v_pk_fma_f32 %s, %s, %s, %s op_sel_hi:[1,0,1]' % (v(T + 2 * i, 2), v(AC + 2 * i, 2), v(W, 2), v(T + 2 * i, 2)))
        a('s_waitcnt vmcnt(0) lgkmcnt(0)')
        stamp(a, 2, 0)
        if cfg.prof: a('s_waitcnt lgkmcnt(0)')
        a('s_barrier')
        rb = lambda i: 'ds_read_b128 %s, v13 offset:%d' % (Bt(i), i * 1024)
        ri = lambda m, nt: 'ds_read_b128 %s, v8 offset:%d' % (v(accr(m, nt), 4), ((m - 1) * 5 + nt) * 1024)
        def fm(m, nt):
            for j in range(2):
                d = v(T + 4 * nt + 2 * j, 2)
                if m: a('v_pk_fma_f32 %s, %s, %s, %s op_sel_hi:[1,0,1]' % (d, v(accr(m, nt) + 2 * j, 2), v(W + 2 * m, 2), d))
                else: a('v_pk_fma_f32 %s, %s, v[14:15], %s op_sel:[0,1,0] op_sel_hi:[1,1,1]' % (d, v(accr(0, nt) + 2 * j, 2), d))
        def mm(j, nt):
            A = v(accr(0, nt), 4)
            a('v_mfma_f32_16x16x32_bf16 %s, %s, %s, %s' % (A, Bt(5 * j + nt), Aq(0, j), A if j else '0'))
        rds = []
        for j in range(4):
            rds += [rb(5 * j + nt) for nt in range(5)]
            if j < 3: rds += [ri(j + 1, nt) for nt in range(5)]
        for x in rds[:15]: a(x)
        rds = rds[15:]
        for k in range(7):
            a('s_waitcnt lgkmcnt(%d)' % min(10, 5 * (6 - k)))
            for nt in range(5):
                if k & 1: fm((k + 1) // 2, nt)
                else: mm(k // 2, nt)
                if rds: a(rds.pop(0))
        for nt in range(5):
            fm(0, nt)
            for j in range(2):
                a('v_cvt_pk_bf16_f32 %s, %s, %s' % (v(O + 2 * nt + j), v(T + 4 * nt + 2 * j), v(T + 4 * nt + 2 * j + 1)))
            if nt == 1: a('buffer_store_dwordx4 %s, v12, s[12:15], s25 offen' % v(O, 4) + stp(cfg.k2st))
            if nt == 3: a('buffer_store_dwordx4 %s, v12, s[12:15], s25 offen offset:64' % v(O + 4, 4) + stp(cfg.k2st))
            if nt == 4: a('buffer_store_dwordx2 %s, v0, s[12:15], s25 offen offset:128' % v(O + 8, 2) + stp(cfg.k2st))
        stamp(a, 1, 3)
        if cfg.prof: a('s_waitcnt vmcnt(0)'); a('v_mbcnt_lo_u32_b32 v0, -1, 0'); a('v_mbcnt_hi_u32_b32 v0, -1, v0')
        stamp_flush(a, 1, 4)
        a('L2_end:')
        a('s_endpgm')
        a('L2_dump:')
        a('s_nop 7')
        for nt in range(5):
            for m in range(4):
                a('ds_write_b128 v1, %s offset:%d' % (v(accr(m, nt), 4), ((m + 1) & 3) * 5120 + nt * 1024))
        for i in range(80): a('v_mov_b32 %s, 0' % v(AC + i))
        a('s_waitcnt lgkmcnt(0)')
        a('s_branch L2_back')
        a('L2_last:')
        return AC + 80, 0
    if cfg.bal == 2:
        T = RING + 36
        srd(a, 12, 6, 2048 * 1280)
        for i in range(80): a('v_mov_b32 %s, 0' % v(AC + i))
        a('s_mul_i32 s25, s3, 15360')
        a('v_add_u32 v8, s25, v2')
        a('s_mul_i32 s25, s3, 5120')
        a('s_add_u32 s25, s25, 0xf000')
        a('v_add_u32 v15, s25, v2')
        a('s_mul_i32 s25, s18, 160')
        a('v_mul_u32_u24 v12, 0x500, v12')
        a('v_lshrrev_b32 v1, 4, v0')
        a('v_lshl_add_u32 v0, v1, 3, v12')
        a('v_lshl_add_u32 v12, v1, 4, v12')
        a('v_add_u32 v1, 0xf000, v2')
        a('s_cmp_eq_u32 s3, 1')
        a('s_cselect_b32 s28, 3, 0')
        if cfg.prof: a('s_waitcnt vmcnt(27)')
        stamp(a, 1, 0)
        step(0, True, 27)
        a('L2_loop:')
        step(1, True, 27); step(2, True, 27)
        a('s_cmp_eq_u32 s21, s28')
        a('s_cbranch_scc1 L2_dump')
        a('L2_back:')
        step(3, True, 27); step(0, True, 27)
        a('s_cmp_lg_u32 s21, %d' % cfg.ba)
        a('s_cbranch_scc1 L2_nobar')
        a('s_barrier')
        a('L2_nobar:')
        a('s_sub_u32 s21, s21, 1')
        a('s_cmp_lg_u32 s21, 0')
        a('s_cbranch_scc1 L2_loop')
        step(1, False, 27)
        for i in range(5): a('ds_read_b128 %s, v15 offset:%d' % (v(T + 4 * i, 4), i * 1024))
        step(2, False, 18)
        a('v_sub_f32 v15, 1.0, v14')
        W = T + 20
        for m in range(4):
            a('s_cmp_eq_u32 s3, %d' % m)
            a('s_cselect_b64 vcc, -1, 0')
            a('v_cndmask_b32 %s, v15, v14, vcc' % v(W + 2 * m))
        a('s_waitcnt lgkmcnt(0)')
        for i in range(10): a('v_pk_mul_f32 %s, %s, v[14:15] op_sel_hi:[1,0]' % (v(T + 2 * i, 2), v(T + 2 * i, 2)))
        step(3, False, 9)
        a('s_waitcnt vmcnt(0)')
        order = [(m, nt) for m in (1, 2, 3, 0) for nt in range(5)]
        for i, (m, nt) in enumerate(order):
            A = v(accr(m, nt), 4)
            a('v_mfma_f32_16x16x32_bf16 %s, %s, %s, %s' % (A, Bq(0, nt), Aq(0, m), A))
            if i >= 5:
                m2, n2 = order[i - 5]
                a('ds_write_b128 %s, %s offset:%d' % (v(8 + m2), v(accr(m2, n2), 4), n2 * 1024))
        stamp(a, 2, 0)
        for i in range(10):
            a('v_pk_fma_f32 %s, %s, %s, %s op_sel_hi:[1,0,1]' % (v(T + 2 * i, 2), v(AC + 2 * i, 2), v(W, 2), v(T + 2 * i, 2)))
        a('s_waitcnt lgkmcnt(0)')
        a('s_barrier')
        for nt in range(5):
            for m in range(1, 4):
                a('ds_read_b128 %s, v8 offset:%d' % (v(accr(m, nt), 4), ((m - 1) * 5 + nt) * 1024))
        O = W + 8
        for nt in range(5):
            a('s_waitcnt lgkmcnt(%d)' % (3 * (4 - nt)))
            for m in range(1, 4):
                for j in range(2):
                    d = v(T + 4 * nt + 2 * j, 2)
                    a('v_pk_fma_f32 %s, %s, %s, %s op_sel_hi:[1,0,1]' % (d, v(accr(m, nt) + 2 * j, 2), v(W + 2 * m, 2), d))
            for j in range(2):
                a('v_cvt_pk_bf16_f32 %s, %s, %s' % (v(O + 2 * nt + j), v(T + 4 * nt + 2 * j), v(T + 4 * nt + 2 * j + 1)))
            if nt == 1: a('buffer_store_dwordx4 %s, v12, s[12:15], s25 offen' % v(O, 4) + stp(cfg.k2st))
            if nt == 3: a('buffer_store_dwordx4 %s, v12, s[12:15], s25 offen offset:64' % v(O + 4, 4) + stp(cfg.k2st))
            if nt == 4: a('buffer_store_dwordx2 %s, v0, s[12:15], s25 offen offset:128' % v(O + 8, 2) + stp(cfg.k2st))
        stamp(a, 1, 3)
        if cfg.prof: a('s_waitcnt vmcnt(0)'); a('v_mbcnt_lo_u32_b32 v0, -1, 0'); a('v_mbcnt_hi_u32_b32 v0, -1, v0')
        stamp_flush(a, 1, 4)
        a('L2_end:')
        a('s_endpgm')
        a('L2_dump:')
        a('s_nop 7')
        for nt in range(5):
            for m in range(4):
                a('ds_write_b128 v1, %s offset:%d' % (v(accr(m, nt), 4), ((m + 1) & 3) * 5120 + nt * 1024))
        for i in range(80): a('v_mov_b32 %s, 0' % v(AC + i))
        a('s_waitcnt lgkmcnt(0)')
        a('s_branch L2_back')
        a('L2_last:')
        return AC + 80, 0
    if cfg.bal:
        ag = lambda m, nt: 'a[%d:%d]' % ((m * 5 + nt) * 4, (m * 5 + nt) * 4 + 3)
        srd(a, 12, 6, 2048 * 1280)
        for i in range(80): a('v_mov_b32 %s, 0' % v(AC + i))
        tmp = [None, 8, 15, 1]
        for m in range(1, 4): a('v_add_u32 %s, 0xf000, %s' % (v(tmp[m]), v(8 + m)))
        a('s_waitcnt vmcnt(27)')
        stamp(a, 1, 0)
        for nt in range(5):
            for m in range(4):
                a('v_mfma_f32_16x16x32_bf16 %s, %s, %s, 0' % (ag(m, nt), Bq(0, nt), Aq(0, m)))
            a(ldB(0, nt))
        for m in range(4): a(ldA(0, m))
        for x in adv: a(x)
        for nt in range(5):
            for m in range(1, 4):
                a('ds_write_b128 %s, %s offset:%d' % (v(tmp[m]), ag(m, nt), nt * 1024))
        a('s_mul_i32 s25, s3, 15360')
        a('s_add_u32 s25, s25, 0xf000')
        a('v_add_u32 v13, s25, v2')
        a('L2_loop:')
        for q in (1, 2, 3, 0): step(q, True, 27)
        a('s_sub_u32 s21, s21, 1')
        a('s_cmp_lg_u32 s21, 0')
        a('s_cbranch_scc1 L2_loop')
        a('s_waitcnt lgkmcnt(0)')
        a('s_barrier')
        step(1, False, 27)
        step(2, False, 18)
        for i in range(15): a('ds_read_b128 %s, v13 offset:%d' % (v(P + 4 * i, 4), i * 1024))
        step(3, False, 9)
        a('s_waitcnt lgkmcnt(0)')
        for j in (1, 2):
            for i in range(10): a('v_pk_add_f32 %s, %s, %s' % (v(P + 2 * i, 2), v(P + 2 * i, 2), v(P + 20 * j + 2 * i, 2)))
        for i in range(20): a('v_accvgpr_read_b32 %s, a%d' % (v(P + 20 + i), i))
        for i in range(10): a('v_pk_add_f32 %s, %s, %s' % (v(P + 2 * i, 2), v(P + 2 * i, 2), v(P + 20 + 2 * i, 2)))
        for i in range(10): a('v_pk_mul_f32 %s, %s, v[14:15] op_sel_hi:[1,0]' % (v(P + 2 * i, 2), v(P + 2 * i, 2)))
        step(0, False, 0)
    elif cfg.e2:
        T = 24
        srd(a, 12, 6, 2048 * 1280)
        for i in range(80): a('v_mov_b32 %s, 0' % v(AC + i))
        a('s_mul_i32 s25, s3, 15360')
        a('v_add_u32 v8, s25, v2')
        a('s_cmp_eq_u32 s3, 1')
        a('s_cselect_b32 s28, 5120, 0')
        a('s_cmp_eq_u32 s3, 3')
        a('s_cselect_b32 s29, 0, 5120')
        a('s_add_u32 s29, s29, 5120')
        a('s_mul_i32 s30, s3, 5120')
        a('s_sub_u32 s30, s30, 5120')
        a('s_mul_i32 s25, s18, 160')
        a('v_mul_u32_u24 v12, 0x500, v12')
        a('v_lshrrev_b32 v1, 4, v0')
        a('v_lshl_add_u32 v0, v1, 3, v12')
        a('v_lshl_add_u32 v12, v1, 4, v12')
        if cfg.prof: a('s_waitcnt vmcnt(27)')
        stamp(a, 1, 0)
        a('L2_loop:')
        for q in range(4): step(q, True, 27)
        a('s_sub_u32 s21, s21, 1')
        a('s_cmp_lg_u32 s21, 0')
        a('s_cbranch_scc1 L2_loop')
        a('v_sub_f32 v15, 1.0, v14')
        def last():
            a('s_waitcnt vmcnt(0)')
            order = [(m, nt) for m in (1, 2, 3, 0) for nt in range(5)]
            for i, (m, nt) in enumerate(order):
                A = v(accr(m, nt), 4)
                a('v_mfma_f32_16x16x32_bf16 %s, %s, %s, %s' % (A, Bq(3, nt), Aq(3, m), A))
                if i >= 5:
                    m2, n2 = order[i - 5]
                    a('ds_write_b128 %s, %s offset:%d' % (v(8 + m2), v(accr(m2, n2), 4), n2 * 1024))
        def fin():
            for i in range(10):
                a('v_cvt_pk_bf16_f32 %s, %s, %s' % (v(T + 20 + i), v(T + 2 * i), v(T + 2 * i + 1)))
            a('buffer_store_dwordx4 %s, v12, s[12:15], s25 offen' % v(T + 20, 4) + stp(cfg.k2st))
            a('buffer_store_dwordx4 %s, v12, s[12:15], s25 offen offset:64' % v(T + 24, 4) + stp(cfg.k2st))
            a('buffer_store_dwordx2 %s, v0, s[12:15], s25 offen offset:128' % v(T + 28, 2) + stp(cfg.k2st))
        padd = lambda d, x: [a('v_pk_add_f32 %s, %s, %s' % (v(d + 2 * i, 2), v(d + 2 * i, 2), v(x + 2 * i, 2))) for i in range(10)]
        pm1 = lambda: [a('v_pk_mul_f32 %s, %s, v[14:15] op_sel:[0,1] op_sel_hi:[1,1]' % (v(T + 2 * i, 2), v(T + 2 * i, 2))) for i in range(10)]
        pfg = lambda x: [a('v_pk_fma_f32 %s, %s, v[14:15], %s op_sel_hi:[1,0,1]' % (v(T + 2 * i, 2), v(x + 2 * i, 2), v(T + 2 * i, 2))) for i in range(10)]
        step(0, False, 27)
        step(1, False, 18)
        a('s_cmp_eq_u32 s3, 0')
        a('s_cbranch_scc0 L2_h')
        if cfg.ba == 3: step(2, False, 9)
        a('s_barrier')
        for i in range(15): a('ds_read_b128 %s, v8 offset:%d' % (v(T + 4 * i, 4), i * 1024))
        if cfg.ba == 2: step(2, False, 9)
        a('s_waitcnt lgkmcnt(0)')
        padd(T, T + 20); padd(T, T + 40); pm1()
        last()
        stamp(a, 2, 0)
        a('s_waitcnt lgkmcnt(0)')
        a('s_barrier')
        pfg(AC)
        fin()
        a('s_branch L2_done')
        a('L2_h:')
        step(2, False, 9)
        a('v_add_u32 v4, s28, v8')
        a('v_add_u32 v5, s29, v8')
        a('v_add_u32 v6, s30, v8')
        last()
        stamp(a, 2, 0)
        a('s_waitcnt lgkmcnt(0)')
        a('s_barrier')
        for i in range(10): a('ds_read_b128 %s, %s offset:%d' % (v(T + 4 * i, 4), v(4 + i // 5), (i % 5) * 1024))
        a('s_waitcnt lgkmcnt(0)')
        padd(T, T + 20); padd(T, AC); pm1()
        a('s_barrier')
        for i in range(5): a('ds_read_b128 %s, v6 offset:%d' % (v(T + 40 + 4 * i, 4), i * 1024))
        for i in range(5):
            a('s_waitcnt lgkmcnt(%d)' % (4 - i))
            for j in (2 * i, 2 * i + 1):
                a('v_pk_fma_f32 %s, %s, v[14:15], %s op_sel_hi:[1,0,1]' % (v(T + 2 * j, 2), v(T + 40 + 2 * j, 2), v(T + 2 * j, 2)))
        fin()
        a('L2_done:')
        stamp(a, 1, 3)
        if cfg.prof: a('s_waitcnt vmcnt(0)'); a('v_mbcnt_lo_u32_b32 v0, -1, 0'); a('v_mbcnt_hi_u32_b32 v0, -1, v0')
        stamp_flush(a, 1, 4)
        a('L2_end:')
        a('s_endpgm')
        return AC + 80, 0
    elif D0 == D1:
        srd(a, 12, 6, 2048 * 1280)
        for i in range(80): a('v_mov_b32 %s, 0' % v(AC + i))
        body(D0, '', 20 if 20 % D0 == 0 else 16)
    else:
        a('s_cmp_eq_u32 s3, 0')
        a('s_cbranch_scc0 L2_w')
        fill(Dm, D0)
        for i in range(80): a('v_mov_b32 %s, 0' % v(AC + i))
        body(D0, 'o', 20)
        a('s_branch L2_join')
        a('L2_w:')
        fill(Dm, D1)
        for i in range(80): a('v_mov_b32 %s, 0' % v(AC + i))
        body(D1, 'h', 16)
        a('L2_join:')
        srd(a, 12, 6, 2048 * 1280)
    stamp(a, 2, 0)
    for m in range(1, 4):
        for nt in range(5):
            a('ds_write_b128 %s, %s offset:%d' % (v(8 + m), v(accr(m, nt), 4), nt * 1024))
    a('v_sub_f32 v15, 1.0, v14')
    for m in range(4):
        a('s_cmp_eq_u32 s3, %d' % m)
        a('s_cselect_b64 vcc, -1, 0')
        a('v_cndmask_b32 %s, v15, v14, vcc' % v(16 + 2 * m))
    a('s_mul_i32 s25, s3, 15360')
    a('v_add_u32 v8, s25, v2')
    a('s_mul_i32 s25, s18, 160')
    a('v_mul_u32_u24 v12, 0x500, v12')
    a('v_lshrrev_b32 v13, 4, v0')
    a('v_lshl_add_u32 v9, v13, 3, v12')
    a('v_lshl_add_u32 v12, v13, 4, v12')
    for i in range(10):
        A = AC + 2 * i
        if cfg.bal: a('v_pk_fma_f32 %s, %s, v[16:17], %s op_sel_hi:[1,0,1]' % (v(A, 2), v(A, 2), v(P + 2 * i, 2)))
        else: a('v_pk_mul_f32 %s, %s, v[16:17] op_sel_hi:[1,0]' % (v(A, 2), v(A, 2)))
    a('s_waitcnt lgkmcnt(0)')
    a('s_barrier')
    for m in range(1, 4):
        for nt in range(5):
            a('ds_read_b128 %s, v8 offset:%d' % (v(accr(m, nt), 4), ((m - 1) * 5 + nt) * 1024))
    for m in range(1, 4):
        a('s_waitcnt lgkmcnt(%d)' % (5 * (3 - m)))
        for i in range(10):
            A = AC + 2 * i
            a('v_pk_fma_f32 %s, %s, %s, %s op_sel_hi:[1,0,1]' % (v(A, 2), v(A + 20 * m, 2), v(16 + 2 * m, 2), v(A, 2)))
    for i in range(10):
        a('v_cvt_pk_bf16_f32 %s, %s, %s' % (v(24 + i), v(AC + 2 * i), v(AC + 2 * i + 1)))
    a('buffer_store_dwordx4 v[24:27], v12, s[12:15], s25 offen' + stp(cfg.k2st))
    a('buffer_store_dwordx4 v[28:31], v12, s[12:15], s25 offen offset:64' + stp(cfg.k2st))
    a('buffer_store_dwordx2 v[32:33], v9, s[12:15], s25 offen offset:128' + stp(cfg.k2st))
    if cfg.prof: a('s_waitcnt vmcnt(0)')
    stamp_flush(a, 1, 4)
    a('L2_end:')
    a('s_endpgm')
    return AC + 80, 80 if cfg.bal else 36 * max(0, max(D0, D1) - D)

def desc(name, nv, na=0):
    nv = (nv + 7) // 8 * 8
    return '''.p2align 6
.amdhsa_kernel %s
  .amdhsa_next_free_vgpr %d
  .amdhsa_next_free_sgpr 102
  .amdhsa_accum_offset %d
  .amdhsa_group_segment_fixed_size 0
  .amdhsa_kernarg_size 80
  .amdhsa_user_sgpr_count 2
  .amdhsa_user_sgpr_kernarg_segment_ptr 1
  .amdhsa_system_sgpr_workgroup_id_x 1
.end_amdhsa_kernel
''' % (name, nv + na, nv)

def align8(body):
    import subprocess, re, tempfile, os
    d = tempfile.mkdtemp()
    open(d + '/a.s', 'w').write('.amdgcn_target "amdgcn-amd-amdhsa--gfx950"\n.text\n' + re.sub(r'^\.p2align.*$', '', body, flags=re.M))
    subprocess.check_call(['clang', '-x', 'assembler', '-target', 'amdgcn-amd-amdhsa', '-mcpu=gfx950', '-c', d + '/a.s', '-o', d + '/a.o'])
    dis = subprocess.check_output(['llvm-objdump', '-d', d + '/a.o'], text=True)
    sizes = [4 * len(m.group(1).split()) for m in re.finditer(r'// [0-9A-F]+: ([0-9A-F ]+)', dis)]
    lines = body.split('\n')
    idx = [i for i, l in enumerate(lines) if l.startswith('    ')]
    assert len(idx) == len(sizes), (len(idx), len(sizes))
    size = dict(zip(idx, sizes))
    off = 0; run = []; np_ = nn = 0
    for i, l in enumerate(lines):
        if l.startswith('.p2align'): off = 0; run = []; continue
        if i not in size:
            continue
        if size[i] == 4:
            run.append((i, off)); off += 4
            continue
        if off % 8 and run:
            cand = [j for j, o in run if o % 8 == 0 and lines[j].split()[0].startswith('v_') and not lines[j].split()[0].startswith(('v_readfirstlane', 'v_fmac', 'v_dot2c'))]
            dead = [j for j, o in run if lines[j].split()[0] in ('s_endpgm', 's_branch')]
            k = idx.index(i); n8 = 0
            par = 0
            while k < len(idx) and n8 < 3:
                if size[idx[k]] == 8:
                    if par: break
                    n8 += 1
                else: par ^= 1
                k += 1
            if dead:
                lines[dead[-1]] += '\n    s_nop 0'; off += 4
            elif cand:
                j = cand[-1]; op = lines[j].split()[0]
                lines[j] = lines[j].replace(op, op + '_e64', 1); np_ += 1; off += 4
            elif n8 >= 3:
                j = run[0][0]
                lines[j] = '    s_nop 0\n' + lines[j]; nn += 1; off += 4
        off += 8; run = []
    print('align: promoted', np_, 'nops', nn)
    return '\n'.join(lines)

def main():
    for arg in sys.argv[2:]:
        k, val = arg.split('='); setattr(cfg, k, int(val))
    a = Asm()
    gen_k1(a)
    nv2 = gen_k2(a)
    body = a.finish()
    hdr = '''; gated mix of sliding-window dilated attention and ReLU FFN, two launches.
; launch 1: qkv projection + attention, FFN up projection + relu, weight re-layout + gate
; launch 2: output projections (wo, w2) and gated mix
; @launch kernel=%s grid=(256,1,1) block=(512,1,1) lds=%d
; @launch kernel=%s grid=(256,1,1) block=(256,1,1) lds=%d
.amdgcn_target "amdgcn-amd-amdhsa--gfx950"
.text
''' % (K1, 3 * SLOT, K2, [61440, 122880, 81920, 102400, 122880, 102400, 102400][cfg.bal])
    if cfg.align: body = align8(body)
    out = hdr + body + '.section .rodata,"a"\n' + desc(K1, 256) + desc(K2, *nv2)
    open(sys.argv[1], 'w').write(out)
    print('nops inserted:', a.nops, 'bytes', len(out))

main()
```
